```python
import torch

def _softmax(x, axis=-1):
    return torch.softmax(x, dim=axis)
def _gelu(x):
    return torch.nn.functional.gelu(x, approximate="tanh")
def _silu(x):
    return torch.nn.functional.silu(x)
def _sigmoid(x):
    return torch.sigmoid(x)
def _layernorm(x, axis=-1, eps=1e-5):
    m = x.mean(dim=axis, keepdim=True)
    v = x.var(dim=axis, keepdim=True, unbiased=False)
    return (x - m) / torch.sqrt(v + eps)
def _scatter_add(tgt, idx, src, axis=0):
    return tgt.clone().index_add_(axis, idx, src)
def _segment_sum(src, seg, n):
    out = torch.zeros((n,) + src.shape[1:], dtype=src.dtype)
    return out.index_add_(0, seg, src)
def _pad(x, pw):
    flat = tuple(v for pair in reversed(pw) for v in pair)
    return torch.nn.functional.pad(x, flat)

kernel_name = 'recurrent_scan__mha_block_cached__glu_gated_reglu__prompt'

def setup_inputs():

    _w = (lambda a: (lambda t: t.to(torch.bfloat16) if t.is_floating_point() else t)(torch.as_tensor(a)))
    def _A_setup():
        B, Sq, D = 1, 2048, 512
        H, Sk, Dh = 32, 2048, 128
        return {
            "x": _w((lambda *s: torch.randn(*s, dtype=torch.bfloat16) * 0.05)(B, Sq, D)),
            "k_cache": _w((lambda *s: torch.randn(*s, dtype=torch.bfloat16) * 1.6)(B, H, Sk, Dh)),
            "v_cache": _w((lambda *s: torch.randn(*s, dtype=torch.bfloat16) * 1.6)(B, H, Sk, Dh)),
            "wq": _w((lambda *s: torch.randn(*s, dtype=torch.bfloat16) * 1.6)(D, H * Dh) * (D ** -0.5)),
            "wo": _w((lambda *s: torch.randn(*s, dtype=torch.bfloat16) * 1.6)(H * Dh, D) * ((H * Dh) ** -0.5)),
        }
    _A_in = _A_setup()

    def _B_setup():
        B, S, D, F = 1, 2048, 512, 1792
        return {
            "x": _w((lambda *s: torch.randn(*s, dtype=torch.bfloat16) * 0.05)(B, S, D)),
            "W_gate": _w((lambda *s: torch.randn(*s, dtype=torch.bfloat16) * 0.2)(D, F) * (2.0 / D) ** 0.5),
            "W_up": _w((lambda *s: torch.randn(*s, dtype=torch.bfloat16) * 0.2)(D, F) * (2.0 / D) ** 0.5),
            "W_down": _w((lambda *s: torch.randn(*s, dtype=torch.bfloat16) * 0.2)(F, D) * (1.0 / F) ** 0.5),
        }
    _B_in = _B_setup()

    return {
        "A_x": _A_in["x"],
        "A_k_cache": _A_in["k_cache"],
        "A_v_cache": _A_in["v_cache"],
        "A_wq": _A_in["wq"],
        "A_wo": _A_in["wo"],
        "B_x": _B_in["x"],
        "B_W_gate": _B_in["W_gate"],
        "B_W_up": _B_in["W_up"],
        "B_W_down": _B_in["W_down"],
    }

def reference(A_x, A_k_cache, A_v_cache, A_wq, A_wo, B_x, B_W_gate, B_W_up, B_W_down):
    def _A_ref(x, k_cache, v_cache, wq, wo):
        B, Sq, D = x.shape
        H, Dh = 32, 128
        q = (lambda x, *d: x.permute(*d))((x @ wq).reshape(B, Sq, H, Dh), 0, 2, 1, 3)
        scores = torch.einsum("bhqd,bhkd->bhqk", q, k_cache) * (Dh ** -0.5)
        p = _softmax(scores, axis=-1)
        o = torch.einsum("bhqk,bhkd->bhqd", p, v_cache)
        return (lambda x, *d: x.permute(*d))(o, 0, 2, 1, 3).reshape(B, Sq, H * Dh) @ wo

    def _B_ref(x, W_gate, W_up, W_down):
        gate = torch.einsum("bsd,df->bsf", x, W_gate)
        up = torch.einsum("bsd,df->bsf", x, W_up)
        gate = gate * (lambda x, dt: x.to(dt))(gate > 0, gate.dtype)
        h = gate * up
        return torch.einsum("bsf,fd->bsd", h, W_down)

    x = A_x
    xn = _layernorm(x, axis=-1)
    s = _A_ref(xn, A_k_cache, A_v_cache, A_wq, A_wo)
    g = _silu(_B_ref(xn, B_W_gate, B_W_up, B_W_down))
    return x + s * g
```

```python
import re

class I:
    __slots__ = ("text", "kind", "rd", "wr", "tag", "need", "pin")
    def __init__(self, text, kind, rd=(), wr=(), tag=None, need=None):
        self.text = text; self.kind = kind
        self.rd = set(rd); self.wr = set(wr)
        self.tag = tag
        self.need = need
        self.pin = False
    def clone(self):
        x = I(self.text, self.kind, self.rd, self.wr, self.tag, self.need); x.pin = self.pin
        return x
    def __repr__(self): return f"I({self.text!r},{self.kind})"

def regs(kind, base, n=1):
    return [(kind, base + i) for i in range(n)]

def rn(kind, base, n=1):
    if n == 1: return f"{kind}{base}"
    return f"{kind}[{base}:{base+n-1}]"

def R(x):
    k, b, n = x
    return rn(k, b, n), regs(k, b, n)

def V(b, n=1): return ("v", b, n)
def A(b, n=1): return ("a", b, n)
def S(b, n=1): return ("s", b, n)

def opnd(x):
    if isinstance(x, tuple):
        return R(x)
    return (str(x), [])

def mfma16(D, Aop, Bop, C):
    dn, dr = R(D); an, ar = R(Aop); bn, br = R(Bop)
    if isinstance(C, tuple): cn, cr = R(C)
    else: cn, cr = str(C), []
    x = I(f"v_mfma_f32_16x16x32_bf16 {dn}, {an}, {bn}, {cn}", "mfma", rd=ar + br + cr, wr=dr)
    x.tag = ("C", tuple(cr), tuple(ar + br))
    return x

def valu(op, dst, *srcs, kind="valu", extra="", rd_extra=(), wr_extra=(), dst_is_src=False):
    dn, dr = opnd(dst)
    names = [dn]; rd = []
    for s in srcs:
        sn, sr = opnd(s); names.append(sn); rd += sr
    if dst_is_src: rd += dr
    t = f"{op} " + ", ".join(names) + (" " + extra if extra else "")
    return I(t, kind, rd=list(rd) + list(rd_extra), wr=list(dr) + list(wr_extra))

def trans(op, dst, src): return valu(op, dst, src, kind="trans")

def salu(op, dst, *srcs, extra=""):
    dn, dr = opnd(dst) if isinstance(dst, tuple) else (dst, [("s", dst)] if dst in ("m0", "vcc", "exec", "scc") else [])
    names = [dn]; rd = []
    for s in srcs:
        if isinstance(s, tuple): sn, sr = R(s)
        else: sn, sr = str(s), ([("s", s)] if s in ("m0", "vcc", "exec") else [])
        names.append(sn); rd += sr
    return I(f"{op} " + ", ".join(names) + (" " + extra if extra else ""), "salu", rd=rd, wr=dr)

def raw(text, kind="other", rd=(), wr=()): return I(text, kind, rd, wr)

def ds_read(op, dst, addr, offset=0):
    dn, dr = R(dst); an, ar = R(addr)
    assert 0 <= offset < 65536, offset
    return I(f"{op} {dn}, {an}" + (f" offset:{offset}" if offset else ""), "lds", rd=ar, wr=dr)

def ds_write(op, addr, src, offset=0):
    sn, sr = R(src); an, ar = R(addr)
    assert 0 <= offset < 65536, offset
    return I(f"{op} {an}, {sn}" + (f" offset:{offset}" if offset else ""), "ldsw", rd=ar + sr, wr=[])

def buf_load(dst, voff, srd, soff, offset=0, n=4, tag=None, flags=""):
    dn, dr = R(dst); vn, vr = R(voff); sn, sr = R(srd)
    on, orr = opnd(soff)
    op = {1: "buffer_load_dword", 2: "buffer_load_dwordx2", 4: "buffer_load_dwordx4"}[n]
    assert 0 <= offset < 4096, offset
    return I(f"{op} {dn}, {vn}, {sn}, {on} offen" + (f" offset:{offset}" if offset else "") + (" " + flags if flags else ""),
             "vmem", rd=vr + sr + orr, wr=dr, tag=tag)

def buf_dma(voff, srd, soff, offset=0, tag=None, flags=""):
    vn, vr = R(voff); sn, sr = R(srd); on, orr = opnd(soff)
    assert 0 <= offset < 4096, offset
    return I(f"buffer_load_dwordx4 {vn}, {sn}, {on} offen" + (f" offset:{offset}" if offset else "") + (" " + flags if flags else "") + " lds",
             "dma", rd=vr + sr + orr + [("s", "m0")], wr=[], tag=tag)

def buf_store(src, voff, srd, soff, offset=0, n=4, tag=None, flags=""):
    dn, dr = R(src); vn, vr = R(voff); sn, sr = R(srd); on, orr = opnd(soff)
    op = {1: "buffer_store_dword", 2: "buffer_store_dwordx2", 4: "buffer_store_dwordx4"}[n]
    assert 0 <= offset < 4096, offset
    x = I(f"{op} {dn}, {vn}, {sn}, {on} offen" + (f" offset:{offset}" if offset else "") + (" " + flags if flags else ""),
             "store", rd=dr + vr + sr + orr, wr=[], tag=tag)
    return x

def wait_vm(*tags):
    return I("; wait_vm " + ",".join(map(str, tags)), "waitvm", need=set(tags))

def wait_raw(vm=None, lgkm=None):
    t = "s_waitcnt"
    if vm is not None: t += f" vmcnt({vm})"
    if lgkm is not None: t += f" lgkmcnt({lgkm})"
    x = I(t, "wait"); x.tag = (vm, lgkm)
    return x

def barrier(): return I("s_barrier", "barrier")
def label(n): return I(f"{n}:", "label")
def comment(t): return I(f"; {t}", "comment")
def nop(n): return I(f"s_nop {n}", "nop")

class LoopBegin(I):
    def __init__(self, name): super().__init__(f"{name}:", "loopbegin"); self.tag = name
class LoopEnd(I):
    def __init__(self, name): super().__init__(f"; end loop {name}", "loopend"); self.tag = name

VM_KINDS = ("vmem", "dma", "store")
LG_KINDS = ("lds", "ldsw")

def expand_loops(stream):
    out = []; i = 0; n = len(stream)
    while i < n:
        x = stream[i]
        if x.kind == "loopbegin":
            j = i + 1
            while stream[j].kind != "loopend": j += 1
            for c in range(3):
                for k in range(i, j + 1): out.append((stream[k], k, c))
            i = j + 1
        else:
            out.append((x, i, 0)); i += 1
    return out

def insert_waits(stream, look_age=7, vm_age=100000, verbose=False):
    lin = expand_loops(stream)
    ins = {}
    def add(oi, key, nval):
        d = ins.setdefault(oi, {})
        d[key] = min(d.get(key, 99), nval)
    lgq = []
    vmq = []
    lg_issued = []
    vm_issued = []
    lg_done = 0
    vm_done = 0
    gap = 0
    last_mfma_pos = -1
    lg_cnt_at = []; vm_cnt_at = []
    for pos, (x, oi, c) in enumerate(lin):
        lg_cnt_at.append(len(lg_issued)); vm_cnt_at.append(len(vm_issued))
        touched = x.rd | x.wr
        def place(qname, issued, done, idx_needed, cnt_at, maxn):
            p = pos
            if last_mfma_pos >= 0 and issued[idx_needed][0] < last_mfma_pos and x.kind == "mfma":
                p = last_mfma_pos + 1
                for q in range(p, pos):
                    if lin[q][0].kind in ("loopbegin", "loopend", "label", "barrier", "branch"):
                        p = q + 1
            idx = idx_needed
            la = look_age if qname == 'lg' else vm_age
            while idx + 1 < cnt_at[p] and issued[idx + 1][2] <= gap - la: idx += 1
            nval = cnt_at[p] - 1 - idx
            nval = min(nval, maxn)
            add(lin[p][1], qname, nval)
            return cnt_at[p] - nval
        if x.kind == "wait":
            vm, lg = x.tag if x.tag else (None, None)
            if vm is not None: vm_done = max(vm_done, len(vm_issued) - vm)
            if lg is not None: lg_done = max(lg_done, len(lg_issued) - lg)
        if x.kind == "waitvm":
            need = -1
            for k in range(len(vm_issued) - 1, vm_done - 1, -1):
                if vm_issued[k][3] in x.need: need = k; break
            if need >= 0:
                nval = min(len(vm_issued) - 1 - need, 63)
                add(oi, "vm", nval); vm_done = max(vm_done, len(vm_issued) - nval)
        if touched:
            need = -1
            for k in range(len(lg_issued) - 1, lg_done - 1, -1):
                if lg_issued[k][1] & touched: need = k; break
            if need >= 0: lg_done = max(lg_done, place("lg", lg_issued, lg_done, need, lg_cnt_at, 15))
            need = -1
            for k in range(len(vm_issued) - 1, vm_done - 1, -1):
                if vm_issued[k][1] & touched: need = k; break
            if need >= 0: vm_done = max(vm_done, place("vm", vm_issued, vm_done, need, vm_cnt_at, 63))
        if x.kind in LG_KINDS: lg_issued.append((pos, set(x.wr), gap, None))
        if x.kind in VM_KINDS: vm_issued.append((pos, set(x.wr), gap, x.tag))
        if x.kind == "smem":
            pass
        if x.kind == "mfma": last_mfma_pos = pos; gap += 1
    out = []
    for oi, x in enumerate(stream):
        if oi in ins:
            d = ins[oi]
            out.append(wait_raw(d.get("vm"), d.get("lg")))
        if x.kind == "waitvm": continue
        out.append(x)
    return out

def check_hazards(stream, name=""):
    lin = [x for x, _, _ in expand_loops(stream) if x.kind not in ("comment", "label", "loopbegin", "loopend")]
    probs = []
    def states(x):
        if x.kind == "nop": return int(x.text.split()[1]) + 1
        return 1
    n = len(lin)
    for i, x in enumerate(lin):
        dist = 0
        for j in range(i + 1, min(n, i + 24)):
            y = lin[j]
            def bad(msg, need):
                if dist < need: probs.append(f"{name}: {msg} need {need} have {dist}: [{x.text}] -> [{y.text}]")
            isvalu = lambda z: z.kind in ("valu", "trans")
            if isvalu(x) and y.kind == "mfma" and (x.wr & y.rd): bad("valu->mfma", 2)
            if x.kind == "mfma":
                cr = set(x.tag[1]);
                if x.wr & (y.rd | y.wr):
                    if y.kind == "mfma":
                        ycr = set(y.tag[1]); yab = set(y.tag[2])
                        if x.wr & yab: bad("mfmaD->mfmaAB", 8)
                        elif x.wr & ycr:
                            if x.wr != ycr: bad("mfmaD->mfmaC partial", 6)
                        elif x.wr & y.wr: bad("mfmaD->mfmaD waw", 6)
                    else: bad("mfmaD->other", 8)
                if isvalu(y) and (cr & y.wr): bad("mfmaC war", 3)
            if x.kind == "trans" and y.kind == "valu" and (x.wr & y.rd): bad("trans->valu", 1)
            if x.kind == "trans" and y.kind in ("lds", "ldsw", "store", "vmem", "mfma") and (x.wr & y.rd): bad("trans->nonvalu", 2)
            if x.kind == "salu" and ("s", "m0") in x.wr and y.kind == "dma": bad("m0->dma", 1)
            if isvalu(x) and y.text.startswith("v_permlane") and (x.wr & (y.rd | y.wr)): bad("valu->permlane", 2)
            if isvalu(x) and (y.text.startswith("v_readfirstlane") or y.text.startswith("v_readlane")) and (x.wr & y.rd): bad("valu->readlane", 1)
            if isvalu(x) and any(r[0] == "s" for r in x.wr):
                sw = {r for r in x.wr if r[0] == "s"}
                if y.kind in ("vmem", "dma", "store") and (sw & y.rd): bad("valu sgpr->vmem", 5)
                if isvalu(y) and (sw & y.rd): bad("valu sgpr->valu", 2)
            if x.kind == "store" and "x4" in x.text and isvalu(y):
                data = set(regs(*_first_operand(x.text)))
                if data & y.wr: bad("store data war", 2)
            if isvalu(x) and "dpp" in y.text and (x.wr & y.rd): bad("valu->dpp", 2)
            dist += states(y)
            if dist > 20: break
    return probs

def _first_operand(text):
    m = re.match(r"\S+\s+([va])\[(\d+):(\d+)\]", text)
    if m: return (m.group(1), int(m.group(2)), int(m.group(3)) - int(m.group(2)) + 1)
    m = re.match(r"\S+\s+([va])(\d+)", text)
    return (m.group(1), int(m.group(2)), 1)

def render(stream):
    out = []
    for x in stream:
        if x.kind in ("label", "loopbegin"): out.append(x.text)
        else: out.append("    " + x.text)
    return "\n".join(out) + "\n"
```

```python
from ir import *
XN_OFF = 0
O_OFF = 2 << 20
H_OFF = 18 << 20
DBG_OFF = 32 << 20

def srd(base_s, ptr_s, nbytes, add=0):
    out = []
    if add:
        out.append(salu("s_add_u32", S(base_s), S(ptr_s), add & 0xffffffff))
        out.append(salu("s_addc_u32", S(base_s + 1), S(ptr_s + 1), 0))
    else:
        out.append(salu("s_mov_b32", S(base_s), S(ptr_s)))
        out.append(salu("s_mov_b32", S(base_s + 1), S(ptr_s + 1)))
    out.append(salu("s_mov_b32", S(base_s + 2), nbytes))
    out.append(salu("s_mov_b32", S(base_s + 3), "0x00020000"))
    return out

def sload(dst, off, n=2):
    op = {2: "s_load_dwordx2", 4: "s_load_dwordx4"}[n]
    return I(f"{op} s[{dst}:{dst+n-1}], s[0:1], {off}", "smem", rd=regs("s", 0, 2), wr=regs("s", dst, n))

def gen_k0(name):
    s = []
    e = s.append
    e(salu("s_cmp_ge_u32", S(2), 256)); s[-1].wr = set(); s[-1].text = "s_cmp_ge_u32 s2, 256"
    e(raw(f"s_cbranch_scc1 {name}_end", "branch"))
    e(sload(4, 0)); e(sload(6, 88))
    e(raw("s_waitcnt lgkmcnt(0)", "wait")); s[-1].tag = (None, 0)
    s += srd(8, 4, 2097152)
    s += srd(12, 6, 2097152, add=XN_OFF)
    e(valu("v_and_b32", V(1), 63, V(0)))
    e(valu("v_lshrrev_b32", V(2), 6, V(0)))
    e(salu("s_lshl_b32", S(3), S(2), 1))
    e(valu("v_add_u32", V(2), S(3), V(2)))
    e(valu("v_and_b32", V(3), 3, V(1)))
    e(valu("v_lshl_add_u32", V(3), V(2), 2, V(3)))
    e(valu("v_lshrrev_b32", V(4), 2, V(1)))
    e(valu("v_and_b32", V(5), 3, V(4)))
    e(valu("v_lshrrev_b32", V(6), 2, V(4)))
    e(valu("v_lshlrev_b32", V(7), 10, V(3)))
    e(valu("v_lshl_add_u32", V(7), V(6), 6, V(7)))
    e(valu("v_lshl_add_u32", V(7), V(5), 3, V(7)))
    for i in range(4):
        for rd in range(2):
            e(buf_load(V(16 + 4*i + 2*rd, 2), V(7), S(8, 4), 0, offset=i*256 + rd*32, n=2))
    e(valu("v_lshrrev_b32", V(8), 4, V(3)))
    e(valu("v_lshl_add_u32", V(8), V(8), 4, V(6)))
    e(valu("v_lshlrev_b32", V(8), 10, V(8)))
    e(valu("v_and_b32", V(9), 15, V(3)))
    e(valu("v_lshl_add_u32", V(9), V(5), 4, V(9)))
    e(valu("v_lshl_add_u32", V(8), V(9), 4, V(8)))
    for p in range(16):
        e(valu("v_lshlrev_b32", V(32 + 2*p), 16, V(16 + p)))
        e(valu("v_and_b32", V(33 + 2*p), "0xffff0000", V(16 + p)))
    e(valu("v_add_f32", V(10), V(32), V(33)))
    e(valu("v_add_f32", V(11), V(34), V(35)))
    for k in range(4, 32, 2):
        e(valu("v_add_f32", V(10), V(10), V(32 + k)))
        e(valu("v_add_f32", V(11), V(11), V(33 + k)))
    e(valu("v_add_f32", V(10), V(10), V(11)))
    def reduce16(r, t):
        out = []
        out.append(nop(1))
        out.append(valu("v_add_f32_dpp", V(r), V(r), V(r), extra="row_ror:4 row_mask:0xf bank_mask:0xf"))
        out.append(nop(1))
        out.append(valu("v_add_f32_dpp", V(r), V(r), V(r), extra="row_ror:8 row_mask:0xf bank_mask:0xf"))
        out.append(valu("v_mov_b32", V(t), V(r)))
        out.append(nop(1))
        out.append(valu("v_permlane16_swap_b32", V(t), V(r), dst_is_src=True, wr_extra=regs("v", r)))
        out.append(nop(1))
        out.append(valu("v_add_f32", V(r), V(r), V(t)))
        out.append(valu("v_mov_b32", V(t), V(r)))
        out.append(nop(1))
        out.append(valu("v_permlane32_swap_b32", V(t), V(r), dst_is_src=True, wr_extra=regs("v", r)))
        out.append(nop(1))
        out.append(valu("v_add_f32", V(r), V(r), V(t)))
        return out
    s += reduce16(10, 11)
    e(valu("v_mul_f32", V(10), "0x3b000000", V(10)))
    e(valu("v_sub_f32", V(12), V(32), V(10)))
    e(valu("v_sub_f32", V(13), V(33), V(10)))
    e(valu("v_mul_f32", V(14), V(12), V(12)))
    e(valu("v_mul_f32", V(15), V(13), V(13)))
    for k in range(2, 32, 2):
        e(valu("v_sub_f32", V(12), V(32 + k), V(10)))
        e(valu("v_sub_f32", V(13), V(33 + k), V(10)))
        e(valu("v_fmac_f32", V(14), V(12), V(12), dst_is_src=True))
        e(valu("v_fmac_f32", V(15), V(13), V(13), dst_is_src=True))
    e(valu("v_add_f32", V(14), V(14), V(15)))
    s += reduce16(14, 11)
    e(valu("v_mul_f32", V(14), "0x3b000000", V(14)))
    def rbf(dst, src):
        return [valu("v_cvt_pk_bf16_f32", V(dst), V(src), V(src)), valu("v_lshlrev_b32", V(dst), 16, V(dst))]
    s += rbf(10, 10)
    s += rbf(14, 14)
    e(valu("v_add_f32", V(14), "0x3727c5ac", V(14)))
    s += rbf(14, 14)
    e(trans("v_sqrt_f32", V(14), V(14)))
    e(nop(0))
    s += rbf(14, 14)
    e(trans("v_rcp_f32", V(15), V(14)))
    e(nop(0))
    e(valu("v_fma_f32", V(13), "-" + "v14", V(15), 2.0, rd_extra=regs("v", 14)))
    e(valu("v_mul_f32", V(15), V(15), V(13)))
    for k in range(32):
        e(valu("v_sub_f32", V(32 + k), V(32 + k), V(10)))
    for p in range(16):
        e(valu("v_cvt_pk_bf16_f32", V(16 + p), V(32 + 2*p), V(33 + 2*p)))
    for p in range(16):
        e(valu("v_lshlrev_b32", V(32 + 2*p), 16, V(16 + p)))
        e(valu("v_and_b32", V(33 + 2*p), "0xffff0000", V(16 + p)))
    for k in range(32):
        e(valu("v_mul_f32", V(32 + k), V(32 + k), V(15)))
    for p in range(16):
        e(valu("v_cvt_pk_bf16_f32", V(16 + p), V(32 + 2*p), V(33 + 2*p)))
    e(salu("s_mov_b32", S(16), 4096)); e(salu("s_mov_b32", S(17), 8192)); e(salu("s_mov_b32", S(18), 12288))
    e(buf_store(V(16, 4), V(8), S(12, 4), 0))
    e(buf_store(V(20, 4), V(8), S(12, 4), S(16)))
    e(buf_store(V(24, 4), V(8), S(12, 4), S(17)))
    e(buf_store(V(28, 4), V(8), S(12, 4), S(18)))
    e(label(f"{name}_end"))
    e(raw("s_endpgm", "end"))
    s = insert_waits(s)
    pr = check_hazards(s, name)
    for p in pr: print("HAZARD", p)
    return s, dict(vgpr=64, sgpr=24, accum=64)
```

```python
from ir import *
from k0 import srd, sload, XN_OFF, O_OFF, H_OFF, DBG_OFF

KR, VR, XR = 0, 65536, 131072
LDS_BYTES = 163840
ADDRK, ADDRV, VOFFK, VOFFV, ADDRW, VOFFW, VOFFB = 2, 6, 14, 18, 20, 24, 26
SREG, PREG, NEGM, TMP = 32, 64, 96, 112
ACC = 128
LREG, ONES = 128, 160
def QF(qb, ds): return V(ACC + 16*(2*ds + 1) + 4*qb, 4)
def ACCR(db, qb): return V(ACC + 16*db + 4*qb, 4)
def OACC(db, qb): return A(16*db + 4*qb, 4)
def KF(f): return A(192 + 4*f, 4)
def VF(f): return A(224 + 4*f, 4)
def AF(t, db): return A(192 + 32*(t & 1) + 4*db, 4)
def BF(t, qb): return A(128 + 16*(t & 3) + 4*qb, 4)
def SR(kb, qb, r=None): return V(SREG + 16*kb + 4*qb, 4) if r is None else V(SREG + 16*kb + 4*qb + r)
def PR(buf, qb, i=None): return V(PREG + 16*buf + 4*qb, 4) if i is None else V(PREG + 16*buf + 4*qb + i)
S_WAVE, S_HEAD, S_QB = 3, 4, 5
SRD_K, SRD_V, SRD_W, SRD_XN, SRD_O, SRD_H = 8, 12, 16, 20, 24, 28
S_SOFFK, S_SOFFV, S_W4K, S_W2K, S_C4K, S_C8K, S_C12K, S_LOOP, S_SOFFW = 32, 33, 34, 35, 36, 37, 38, 40, 41
S_T = 44
DOFF = 40.0
QSCALE = 1.4426950408889634 / (128 ** 0.5)

def f2h(x):
    import struct
    return "0x%08x" % struct.unpack("<I", struct.pack("<f", x))[0]

def slotW(t):
    if t < 4: return XR + 8192*t
    if t < 12: return VR + 8192*(t - 4)
    return 32768 + 8192*(t - 12)

def sub(x, off, n=1):
    k, b, _ = x
    return (k, b + off, n)

def setup(name, dbg=None):
    s = []; e = s.append
    e(raw("s_cmp_ge_u32 s2, 256", "salu", rd=regs("s", 2)))
    e(raw(f"s_cbranch_scc1 {name}_end", "branch"))
    e(sload(44, 8, 4))
    e(sload(48, 24, 2))
    e(sload(50, 48, 4))
    s.pop()
    e(sload(52, 48, 4))
    e(sload(56, 88, 2))
    e(valu("v_and_b32", V(1), 63, V(0)))
    e(valu("v_lshrrev_b32", V(30), 6, V(0)))
    e(salu("s_and_b32", S(S_HEAD), S(2), 31))
    e(valu("v_readfirstlane_b32", S(S_WAVE), V(30)))
    e(salu("s_lshr_b32", S(S_QB), S(2), 5))
    e(raw("s_waitcnt lgkmcnt(0)", "wait")); s[-1].tag = (None, 0)
    e(salu("s_lshl_b32", S(58), S(S_HEAD), 19))
    for srdb, p in ((SRD_K, 44), (SRD_V, 46)):
        e(salu("s_add_u32", S(srdb), S(p), S(58)))
        e(salu("s_addc_u32", S(srdb + 1), S(p + 1), 0))
        e(salu("s_mov_b32", S(srdb + 2), 524288))
        e(salu("s_mov_b32", S(srdb + 3), "0x00020000"))
    e(salu("s_lshl_b32", S(58), S(S_HEAD), 8))
    e(salu("s_add_u32", S(SRD_W), S(48), S(58)))
    e(salu("s_addc_u32", S(SRD_W + 1), S(49), 0))
    e(salu("s_sub_u32", S(SRD_W + 2), 4194304, S(58)))
    e(salu("s_mov_b32", S(SRD_W + 3), "0x00020000"))
    e(salu("s_lshl_b32", S(59), S(S_QB), 4))
    e(salu("s_lshl_b32", S(60), S(S_WAVE), 2))
    e(salu("s_add_u32", S(59), S(59), S(60)))
    e(salu("s_lshl_b32", S(58), S(59), 14))
    e(salu("s_add_u32", S(58), S(58), XN_OFF))
    e(salu("s_add_u32", S(SRD_XN), S(56), S(58)))
    e(salu("s_addc_u32", S(SRD_XN + 1), S(57), 0))
    e(salu("s_mov_b32", S(SRD_XN + 2), 65536))
    e(salu("s_mov_b32", S(SRD_XN + 3), "0x00020000"))
    e(salu("s_lshl_b32", S(58), S(59), 7))
    e(salu("s_lshl_b32", S(60), S(S_HEAD), 2))
    e(salu("s_add_u32", S(58), S(58), S(60)))
    e(salu("s_lshl_b32", S(58), S(58), 10))
    e(salu("s_add_u32", S(58), S(58), O_OFF))
    e(salu("s_add_u32", S(SRD_O), S(56), S(58)))
    e(salu("s_addc_u32", S(SRD_O + 1), S(57), 0))
    e(salu("s_mov_b32", S(SRD_O + 2), 3*131072 + 4096))
    e(salu("s_mov_b32", S(SRD_O + 3), "0x00020000"))
    e(salu("s_mul_i32", S(58), S(59), 56))
    e(salu("s_lshl_b32", S(60), S(S_HEAD), 1))
    e(salu("s_add_u32", S(58), S(58), S(60)))
    e(salu("s_lshl_b32", S(58), S(58), 10))
    e(salu("s_add_u32", S(58), S(58), H_OFF))
    e(salu("s_add_u32", S(SRD_H), S(56), S(58)))
    e(salu("s_addc_u32", S(SRD_H + 1), S(57), 0))
    e(salu("s_mov_b32", S(SRD_H + 2), 3*57344 + 2048))
    e(salu("s_mov_b32", S(SRD_H + 3), "0x00020000"))
    e(salu("s_lshl_b32", S(S_W4K), S(S_WAVE), 12))
    e(salu("s_lshl_b32", S(S_W2K), S(S_WAVE), 11))
    e(salu("s_mov_b32", S(S_C4K), 4096)); e(salu("s_mov_b32", S(S_C8K), 8192)); e(salu("s_mov_b32", S(S_C12K), 12288))
    G, N, RR, C, T1, T2 = 112, 113, 114, 115, 116, 117
    e(valu("v_lshrrev_b32", V(G), 4, V(1)))
    e(valu("v_and_b32", V(N), 15, V(1)))
    e(valu("v_bfe_u32", V(RR), V(1), 2, 2))
    e(valu("v_and_b32", V(C), 3, V(1)))
    for ds in range(4):
        e(valu("v_add_u32", V(T1), 4*ds, V(G)))
        e(valu("v_xor_b32", V(T1), V(T1), V(N)))
        e(valu("v_lshlrev_b32", V(T1), 4, V(T1)))
        e(valu("v_lshl_add_u32", V(ADDRK + ds), V(N), 8, V(T1)))
    ROW8, ROWB = 118, 119
    e(valu("v_and_b32", V(ROW8), 1, V(G)))
    e(valu("v_lshl_add_u32", V(ROW8), V(ROW8), 2, V(RR)))
    e(valu("v_lshl_add_u32", V(ROWB), V(G), 2, V(RR)))
    e(valu("v_lshlrev_b32", V(T2), 8, V(ROWB)))
    e(valu("v_lshl_add_u32", V(T2), V(C), 3, V(T2)))
    e(valu("v_add_u32", V(T2), VR, V(T2)))
    for db in range(8):
        e(valu("v_xor_b32", V(T1), db, V(ROW8)))
        e(valu("v_lshl_add_u32", V(ADDRV + db), V(T1), 5, V(T2)))
    for i in range(4):
        e(valu("v_add_u32", V(T1), 4*i, V(G)))
        e(valu("v_xor_b32", V(T1), V(T1), V(N)))
        e(valu("v_lshlrev_b32", V(T1), 4, V(T1)))
        e(valu("v_lshl_add_u32", V(VOFFK + i), V(G), 8, V(T1)))
    for i in range(2):
        e(valu("v_add_u32", V(T1), 4*i, V(G)))
        e(valu("v_lshlrev_b32", V(T1), 1, V(T1)))
        e(valu("v_xor_b32", V(T1), V(T1), V(N)))
        e(valu("v_lshlrev_b32", V(T1), 4, V(T1)))
        e(valu("v_lshl_add_u32", V(VOFFV + i), V(G), 8, V(T1)))
    e(valu("v_lshlrev_b32", V(T2), 8, V(ROWB)))
    e(valu("v_and_b32", V(T1), 1, V(C)))
    e(valu("v_lshl_add_u32", V(T2), V(T1), 4, V(T2)))
    e(valu("v_add_u32", V(T2), XR, V(T2)))
    CH = 120
    e(valu("v_lshrrev_b32", V(CH), 1, V(C)))
    for ds in range(4):
        e(valu("v_add_u32", V(T1), 2*ds, V(CH)))
        e(valu("v_xor_b32", V(T1), V(T1), V(ROW8)))
        e(valu("v_lshl_add_u32", V(ADDRW + ds), V(T1), 5, V(T2)))
    for i in range(2):
        e(valu("v_add_u32", V(T1), 4*i, V(G)))
        e(valu("v_lshlrev_b32", V(T2), 13, V(T1)))
        e(valu("v_lshlrev_b32", V(T1), 1, V(T1)))
        e(valu("v_xor_b32", V(T1), V(T1), V(N)))
        e(valu("v_lshl_add_u32", V(VOFFW + i), V(T1), 4, V(T2)))
        if i: e(valu("v_subrev_u32", V(VOFFW + i), 1024, V(VOFFW + i)))
    e(valu("v_lshlrev_b32", V(VOFFB), 4, V(1)))
    for qb in range(1, 4):
        e(valu("v_add_u32", V(VOFFB + qb), qb*16384, V(VOFFB)))
    e(salu("s_lshl_b32", S(S_SOFFW), S(S_WAVE), 16))
    e(salu("s_mov_b32", S(S_SOFFK), S(S_W4K)))
    e(salu("s_mov_b32", S(S_SOFFV), S(S_W4K)))
    return s

def dmaK(slot):
    out = [salu("s_add_u32", "m0", S(S_W4K), KR + slot*16384)]
    d = [buf_dma(V(VOFFK + i), S(SRD_K, 4), S(S_SOFFK), offset=i*1024, tag=("K", slot)) for i in range(4)]
    adv = salu("s_add_u32", S(S_SOFFK), S(S_SOFFK), 16384)
    return out, d, adv
def dmaV(slot):
    out = [salu("s_add_u32", "m0", S(S_W4K), VR + slot*16384)]
    d = [buf_dma(V(VOFFV + (i & 1)), S(SRD_V, 4), S(S_SOFFV), offset=i*1024, tag=("V", slot)) for i in range(4)]
    adv = salu("s_add_u32", S(S_SOFFV), S(S_SOFFV), 16384)
    return out, d, adv
def dmaW(t):
    out = [salu("s_add_u32", "m0", S(S_W2K), slotW(t))]
    d = [buf_dma(V(VOFFW + i), S(SRD_W, 4), S(S_SOFFW), offset=i*1024, tag=("W", t)) for i in range(2)]
    return out, d
def flat_dma(parts):
    o = []
    pre, d = parts[0], parts[1]
    o += pre; o.append(nop(0)); o += d
    if len(parts) > 2: o.append(parts[2])
    return o
def loadB(t):
    so = {0: 0, 1: S(S_C4K), 2: S(S_C8K), 3: S(S_C12K)}[t >> 2]
    return [buf_load(BF(t, qb), V(VOFFB + qb), S(SRD_XN, 4), so, offset=(t & 3)*1024, tag=("B", t)) for qb in range(4)]

def readA_q(t, db, rd):
    ds, u = db >> 1, db & 1
    base = XR if t < 4 else (VR if t < 12 else 0)
    return ds_read("ds_read_b64_tr_b16", sub(AF(t, db), 2*rd, 2), V(ADDRW + ds), offset=slotW(t) - base + rd*4096 + 8*u)
def readA_e(t, db, rd):
    mat, b = db >> 2, db & 3
    base = XR if t < 4 else (VR if t < 12 else 0)
    return ds_read("ds_read_b64_tr_b16", sub(AF(t, db), 2*rd, 2), V(ADDRW + b), offset=slotW(t) - base + mat*4096 + rd*2048)

def gemm_phase(kind, extra_fill=None):
    s = []; e = s.append
    rdA = readA_q if kind == "A" else readA_e
    wstep = 262144 if kind == "A" else 32*3584
    e(wait_vm(("W", 0), ("W", 1))); e(barrier())
    for db in range(8):
        for rd in range(2): e(rdA(0, db, rd))
    bar_before = {1: range(2, 5), 4: range(5, 9), 8: range(9, 13), 12: range(13, 16)}
    for t in range(16):
        if t in bar_before:
            e(wait_vm(*[("W", k) for k in bar_before[t]])); e(barrier())
        fill = {g: [] for g in range(32)}
        post_bar = []
        if kind == "A":
            if t == 8: post_bar = [dmaV(0), dmaV(1)]
            if t == 12: post_bar = [dmaV(2)]
        gi = 0
        for pre, d, adv in post_bar:
            fill[gi].insert(0, pre[0])
            for k, x in enumerate(d): fill[gi + 2 + 2*k].append(x)
            fill[gi + 9].insert(0, adv)
            gi += 10
        if t + 1 in (4, 12):
            for i in range(4): e(valu("v_subrev_u32", V(ADDRW + i), 65536, V(ADDRW + i)))
        if t + 1 < 16:
            for db in range(8):
                fill[4*db + 1].append(rdA(t + 1, db, 0)); fill[4*db + 3].append(rdA(t + 1, db, 1))
        if t >= 1 and t + 3 < 16:
            for qb, x in enumerate(loadB(t + 3)): fill[20 + 2*qb].append(x)
        wl = WPLAN.get(t, [])
        gi = 22 if post_bar else 0
        gi = 0 if not post_bar else 24
        for k in wl:
            fill[gi].insert(0, salu("s_add_u32", S(S_SOFFW), S(S_SOFFW), wstep))
            pre, d = dmaW(k)
            fill[gi + 1].insert(0, pre[0])
            fill[gi + 2].append(d[0]); fill[gi + 4].append(d[1])
            gi += 6 if gi + 6 + 4 < 32 else 0
        if extra_fill:
            for g, x in extra_fill(t): fill[g].append(x)
        for db in range(8):
            for qb in range(4):
                g = 4*db + qb
                e(mfma16(ACCR(db, qb), AF(t, db), BF(t, qb), 0 if t == 0 else ACCR(db, qb)))
                f = fill[g]
                f = [x for x in f if x.kind == "salu"] + [x for x in f if x.kind in ("lds", "dma", "vmem")] + [x for x in f if x.kind not in ("salu", "lds", "dma", "vmem")]
                s += f
    return s

W_UPFRONT = [0, 1, 2, 3, 4]
WPLAN = {0: [5, 6], 1: [7, 8], 2: [9, 10], 3: [11], 4: [12], 5: [13], 6: [14], 7: [15]}

def gemm_pre_A():
    s = []
    wstep = 262144
    first = True
    def w(t):
        nonlocal first
        o = []
        if not first: o.append(salu("s_add_u32", S(S_SOFFW), S(S_SOFFW), wstep))
        first = False
        o += flat_dma(dmaW(t)); return o
    s += w(0); s += w(1); s += loadB(0); s += loadB(1)
    s += w(2); s += w(3); s += w(4); s += loadB(2); s += loadB(3)
    s += flat_dma(dmaK(0)); s += flat_dma(dmaK(1))
    return s

def window(j, T, first=False, last_qk=True, do_pv=True, do_kread=True, dma=None, bar=False, exp_tail=True, extra=None):
    s = []; e = s.append
    par = j & 1
    NG = 68
    fill = {g: [] for g in range(NG)}
    pb_cur = par
    pb_nxt = par ^ 1
    def ex(kb, idx):
        qb, r = idx >> 2, idx & 3
        return trans("v_exp_f32", SR(kb, qb, r), SR(kb, qb, r))
    def cv(kb, pair, pb):
        qb, h = pair >> 1, pair & 1
        return valu("v_cvt_pk_bf16_f32", PR(pb, qb, 2*kb + h), SR(kb, qb, 2*h), SR(kb, qb, 2*h + 1))
    if exp_tail:
        for i in range(7): fill[2*i].append(ex(1, 9 + i))
        for pair, g in ((4, 1), (5, 5), (6, 9), (7, 13)): fill[g].append(cv(1, pair, pb_cur))
    if last_qk:
        for i in range(16): fill[18 + 2*i].append(ex(0, i))
        for i in range(9): fill[50 + 2*i].append(ex(1, i))
        for pair in range(8): fill[18 + 4*pair + 3].append(cv(0, pair, pb_nxt))
        for pair in range(4): fill[50 + 4*pair + 3].append(cv(1, pair, pb_nxt))
    if do_pv:
        voff = ((j >> 1) & 3)*16384 + (j & 1)*8192
        for db in range(8):
            for rd in range(2):
                fill[4*db + 1 + 2*rd].insert(0, ds_read("ds_read_b64_tr_b16", sub(VF(db), 2*rd, 2), V(ADDRV + db), offset=voff + rd*4096))
    if do_kread:
        b = j + 2
        koff = ((b >> 1) & 3)*16384 + (b & 1)*8192
        for f in range(8):
            kb, ds = f >> 2, f & 3
            fill[33 + 4*f].insert(0, ds_read("ds_read_b128", KF(f), V(ADDRK + ds), offset=koff + kb*4096))
    if dma:
        for g, x in dma:
            if x.kind == "salu": fill[g].insert(0, x)
            else: fill[g].insert(0, x)
    if extra:
        for g, x in extra: fill[g].append(x)
    mf = []
    for kb in range(2):
        for ds in range(4):
            for qb in range(4):
                mf.append(mfma16(SR(kb, qb), KF(4*kb + ds), QF(qb, ds), V(NEGM + 4*qb, 4) if ds == 0 else SR(kb, qb)) if last_qk else None)
    for db in range(8):
        for qb in range(4):
            mf.append(mfma16(OACC(db, qb), VF(db), PR(pb_cur, qb), OACC(db, qb)) if do_pv else None)
        if db & 1:
            qb = db >> 1
            mf.append(mfma16(V(LREG + 4*qb, 4), V(ONES, 4), PR(pb_cur, qb), V(LREG + 4*qb, 4)) if do_pv else None)
    assert len(mf) == NG
    for g in range(NG):
        if g == 32 and bar:
            e(wait_vm(("K", (T + 1) & 3), ("V", (T + 1) & 3))); e(barrier())
        if mf[g] is not None: e(mf[g])
        else: e(nop(0))
        if j == -1 and g == 16: e(nop(3))
        f = fill[g]
        f = [x for x in f if x.kind == "salu"] + [x for x in f if x.kind in ("lds", "dma", "vmem")] + [x for x in f if x.kind not in ("salu", "lds", "dma", "vmem")]
        s += f
    return s

def tile_dma(T, doK=True, doV=True):
    w0, w1 = [], []
    if doK:
        pre, d, adv = dmaK(T & 3)
        w0.append((34, pre[0]))
        for k, x in enumerate(d): w0.append((35 + 8*k + (0 if k else 0), x))
        w0.append((66, adv))
    if doV:
        pre, d, adv = dmaV((T + 3) & 3)
        w1.append((34, pre[0]))
        for k, x in enumerate(d): w1.append((35 + 8*k, x))
        w1.append((66, adv))
    return w0, w1

def first_max():
    s = []; e = s.append
    e(wait_vm(("K", 0), ("K", 1))); e(barrier())
    for f in range(8):
        kb, ds = f >> 2, f & 3
        e(ds_read("ds_read_b128", KF(f), V(ADDRK + ds), offset=kb*4096))
    for kb in range(2):
        for ds in range(4):
            for qb in range(4):
                e(mfma16(SR(kb, qb), KF(4*kb + ds), QF(qb, ds), 0 if ds == 0 else SR(kb, qb)))
    e(nop(7))
    M = TMP
    for qb in range(4):
        e(valu("v_max3_f32", V(M + qb), SR(0, qb, 0), SR(0, qb, 1), SR(0, qb, 2)))
        e(valu("v_max3_f32", V(M + qb), V(M + qb), SR(0, qb, 3), SR(1, qb, 0)))
        e(valu("v_max3_f32", V(M + qb), V(M + qb), SR(1, qb, 1), SR(1, qb, 2)))
        e(valu("v_max_f32", V(M + qb), V(M + qb), SR(1, qb, 3)))
    for swp in ("v_permlane16_swap_b32", "v_permlane32_swap_b32"):
        for qb in range(4): e(valu("v_mov_b32", V(M + 4 + qb), V(M + qb)))
        e(nop(1))
        for qb in range(4): e(valu(swp, V(M + 4 + qb), V(M + qb), dst_is_src=True, wr_extra=regs("v", M + qb)))
        e(nop(1))
        for qb in range(4): e(valu("v_max_f32", V(M + qb), V(M + qb), V(M + 4 + qb)))
    for qb in range(4):
        e(valu("v_sub_f32", V(M + qb), f2h(-DOFF), V(M + qb)))
    for qb in range(4):
        for r in range(4): e(valu("v_mov_b32", V(NEGM + 4*qb + r), V(M + qb)))
    return s

def qconvert():
    s = []; e = s.append
    e(salu("s_mov_b32", S(S_T), f2h(QSCALE)))
    e(nop(7))
    for ds in range(4):
        for qb in range(4):
            a0, a1 = ACCR(2*ds, qb), ACCR(2*ds + 1, qb)
            for r in range(4):
                e(valu("v_mul_f32", sub(a0, r), S(S_T), sub(a0, r)))
                e(valu("v_mul_f32", sub(a1, r), S(S_T), sub(a1, r)))
            e(valu("v_cvt_pk_bf16_f32", sub(a1, 3), sub(a1, 2), sub(a1, 3)))
            e(valu("v_cvt_pk_bf16_f32", sub(a1, 2), sub(a1, 0), sub(a1, 1)))
            e(valu("v_cvt_pk_bf16_f32", sub(a1, 1), sub(a0, 2), sub(a0, 3)))
            e(valu("v_cvt_pk_bf16_f32", sub(a1, 0), sub(a0, 0), sub(a0, 1)))
    return s

def o_epilogue():
    s = []; e = s.append
    e(nop(7))
    RI = TMP
    for qb in range(4):
        e(trans("v_rcp_f32", V(RI + qb), V(LREG + 4*qb)))
    e(nop(0))
    for qb in range(4):
        e(valu("v_fma_f32", V(RI + 4 + qb), f"-v{LREG + 4*qb}", V(RI + qb), 2.0, rd_extra=regs("v", LREG + 4*qb)))
    for qb in range(4):
        e(valu("v_mul_f32", V(RI + qb), V(RI + qb), V(RI + 4 + qb)))
    for qb in range(4): e(salu("s_mov_b32", S(S_T + qb), qb*131072))
    e(valu("v_lshlrev_b32", V(TMP + 8), 4, V(1)))
    k = 0
    for qb in range(4):
        for dp in range(4):
            t = SREG + 8*(k % 4) if True else 0
            pk = PREG + 4*(k % 8)
            for u in range(2):
                for r in range(4):
                    e(valu("v_accvgpr_read_b32", V(t + 4*u + r), sub(OACC(2*dp + u, qb), r)))
            for i in range(8): e(valu("v_mul_f32", V(t + i), V(t + i), V(RI + qb)))
            for i in range(4): e(valu("v_cvt_pk_bf16_f32", V(pk + i), V(t + 2*i), V(t + 2*i + 1)))
            e(buf_store(V(pk, 4), V(TMP + 8), S(SRD_O, 4), S(S_T + qb), offset=dp*1024, tag="O"))
            k += 1
    return s

def setup_E():
    s = []; e = s.append
    e(raw(f"s_cmp_ge_u32 s{S_WAVE}, 2", "salu", rd=regs("s", S_WAVE)))
    e(salu("s_cselect_b32", S(58), S(54), S(52)))
    e(salu("s_cselect_b32", S(59), S(55), S(53)))
    e(salu("s_lshl_b32", S(60), S(S_HEAD), 7))
    e(salu("s_add_u32", S(SRD_W), S(58), S(60)))
    e(salu("s_addc_u32", S(SRD_W + 1), S(59), 0))
    e(salu("s_sub_u32", S(SRD_W + 2), 512*3584, S(60)))
    e(salu("s_mov_b32", S(SRD_W + 3), "0x00020000"))
    e(salu("s_and_b32", S(60), S(S_WAVE), 1))
    e(salu("s_mul_i32", S(S_SOFFW), S(60), 16*3584))
    G, N, RR, C, T1, T2, X = 112, 113, 114, 115, 116, 117, 118
    e(valu("v_lshrrev_b32", V(G), 4, V(1)))
    e(valu("v_bfe_u32", V(RR), V(1), 2, 2))
    e(valu("v_and_b32", V(C), 3, V(1)))
    e(valu("v_lshl_add_u32", V(T2), V(G), 2, V(RR)))
    e(valu("v_lshlrev_b32", V(T2), 7, V(T2)))
    e(valu("v_lshl_add_u32", V(T2), V(C), 3, V(T2)))
    e(valu("v_add_u32", V(T2), XR, V(T2)))
    e(valu("v_and_b32", V(X), 1, V(G)))
    e(valu("v_lshlrev_b32", V(X), 1, V(X)))
    e(valu("v_lshrrev_b32", V(T1), 1, V(RR)))
    e(valu("v_add_u32", V(X), V(X), V(T1)))
    for b in range(4):
        e(valu("v_xor_b32", V(T1), b, V(X)))
        e(valu("v_lshl_add_u32", V(ADDRW + b), V(T1), 5, V(T2)))
    e(valu("v_lshrrev_b32", V(T1), 3, V(1)))
    e(salu("s_mov_b32", S(60), 3584))
    e(valu("v_mul_lo_u32", V(T2), V(T1), S(60)))
    e(valu("v_lshlrev_b32", V(X), 1, V(G)))
    e(valu("v_and_b32", V(T1), 7, V(1)))
    e(valu("v_xor_b32", V(T1), V(T1), V(X)))
    e(valu("v_lshl_add_u32", V(VOFFW), V(T1), 4, V(T2)))
    e(valu("v_add_u32", V(VOFFW + 1), 8*3584 - 1024, V(VOFFW)))
    return s

def gemm_pre_E():
    s = []
    wstep = 32*3584
    first = True
    def w(t):
        nonlocal first
        o = []
        if not first: o.append(salu("s_add_u32", S(S_SOFFW), S(S_SOFFW), wstep))
        first = False
        o += flat_dma(dmaW(t)); return o
    s += w(0); s += w(1); s += loadB(0); s += loadB(1)
    s += w(2); s += w(3); s += w(4); s += loadB(2); s += loadB(3)
    return s

def h_epilogue():
    s = []; e = s.append
    e(nop(7))
    for qb in range(4): e(salu("s_mov_b32", S(S_T + qb), qb*57344))
    e(valu("v_lshlrev_b32", V(TMP + 8), 4, V(1)))
    k = 0
    for qb in range(4):
        for tp in range(2):
            pk = PREG + 4*(k % 8)
            for u in range(2):
                b = 2*tp + u
                for r in range(4):
                    gr, up = sub(ACCR(b, qb), r), sub(ACCR(4 + b, qb), r)
                    e(valu("v_max_f32", gr, 0, gr))
                    e(valu("v_mul_f32", gr, gr, up))
            for u in range(2):
                b = 2*tp + u
                for hh in range(2):
                    e(valu("v_cvt_pk_bf16_f32", V(pk + 2*u + hh), sub(ACCR(b, qb), 2*hh), sub(ACCR(b, qb), 2*hh + 1)))
            e(buf_store(V(pk, 4), V(TMP + 8), S(SRD_H, 4), S(S_T + qb), offset=tp*1024, tag="H"))
            k += 1
    return s

def gen_k1(name, stop=None):
    s = setup(name)
    e = s.append
    s += gemm_pre_A()
    zl = [valu("v_accvgpr_write_b32", A(i), 0) for i in range(128)]
    def xf(t):
        out = []
        for k in range(8):
            idx = 8*t + k
            out.append((4*k + 2, zl[idx]))
        return out
    s += gemm_phase("A", extra_fill=xf)
    e(barrier())
    s += flat_dma(dmaK(2)); s += flat_dma(dmaK(3))
    s += qconvert()
    for i in range(16): e(valu("v_mov_b32", V(LREG + i), 0))
    for i in range(4): e(valu("v_mov_b32", V(ONES + i), "0x3f803f80"))
    if stop == "Q":
        s += dump_regs([QF(qb, ds) for qb in range(4) for ds in range(4)], name)
        return finish(s, name)
    s += first_max()
    s += window(-1, 0, last_qk=True, do_pv=False, do_kread=True, exp_tail=False)
    e(salu("s_mov_b32", S(S_LOOP), 0))
    e(LoopBegin(f"{name}_loop"))
    for T in range(4):
        d0, d1 = tile_dma(T)
        s += window(2*T, T, dma=d0, bar=True)
        s += window(2*T + 1, T, dma=d1)
    e(salu("s_add_u32", S(S_LOOP), S(S_LOOP), 1))
    e(raw(f"s_cmp_lt_u32 s{S_LOOP}, 7", "salu", rd=regs("s", S_LOOP)))
    e(raw(f"s_cbranch_scc1 {name}_loop", "branch"))
    e(LoopEnd(f"{name}_loop"))
    for T in range(28, 32):
        d0, d1 = tile_dma(T, doK=False, doV=(T + 3 <= 31))
        j = 2*T
        s += window(j, T, dma=d0, bar=(T < 31), do_kread=(j + 2 <= 63))
        j = 2*T + 1
        s += window(j, T, dma=d1, last_qk=(j + 1 <= 63), do_kread=(j + 2 <= 63))
    s += o_epilogue()
    e(raw(f"s_cmp_ge_u32 s{S_HEAD}, 28", "salu", rd=regs("s", S_HEAD)))
    e(raw(f"s_cbranch_scc1 {name}_end", "branch"))
    e(barrier())
    s += setup_E()
    s += gemm_pre_E()
    s += gemm_phase("E")
    s += h_epilogue()
    return finish(s, name)

def dump_regs(rl, name):
    s = []; e = s.append
    e(salu("s_lshl_b32", S(58), S(2), 2)); e(salu("s_add_u32", S(58), S(58), S(S_WAVE)))
    e(salu("s_mul_i32", S(58), S(58), len(rl)*1024))
    e(salu("s_add_u32", S(58), S(58), DBG_OFF))
    e(salu("s_add_u32", S(60), S(56), S(58))); e(salu("s_addc_u32", S(61), S(57), 0))
    e(salu("s_mov_b32", S(62), len(rl)*1024)); e(salu("s_mov_b32", S(63), "0x00020000"))
    e(valu("v_lshlrev_b32", V(31), 4, V(1)))
    for i, r in enumerate(rl):
        e(salu("s_mov_b32", S(59), i*1024))
        if r[0] == "a":
            for k in range(4): e(valu("v_accvgpr_read_b32", V(TMP + k), sub(r, k)))
            r = V(TMP, 4)
        e(buf_store(r, V(31), S(60, 4), S(59)))
        e(nop(1))
    return s

def finish(s, name):
    s.append(label(f"{name}_end"))
    s.append(raw("s_endpgm", "end"))
    s = insert_waits(s)
    pr = check_hazards(s, name)
    for p in pr[:40]: print("HAZARD", p)
    if pr: print("total hazards", len(pr))
    return s, dict(vgpr=512, sgpr=96, accum=256)
```

```python
from ir import *
from k0 import srd, sload, XN_OFF, O_OFF, H_OFF, DBG_OFF
from k1 import sub, f2h

NSLOT = 8
NT_O, NT_H = 32, 14
ADDRA, VOFFW, VOFFB = 2, 6, 10
ACCS, ACCF = 128, 192
def ACC(part, nb, qb): return V((ACCS if part == 0 else ACCF) + 16*nb + 4*qb, 4)
def AF(t, nb): return A(16*(t & 1) + 4*nb, 4)
def BF(t, qb): return A(128 + 16*(t % NSLOT) + 4*qb, 4)
SRD_A0, SRD_A1, SRD_W0, SRD_W1, SRD_X, SRD_OUT = 8, 12, 16, 20, 24, 28
S_WAVE, S_RB, S_CB, S_LDSW = 3, 4, 5, 32
S_SA, S_SW = 33, 34
S_QO = 36

def gen_k2(name):
    s = []; e = s.append
    e(raw("s_cmp_ge_u32 s2, 256", "salu", rd=regs("s", 2)))
    e(raw(f"s_cbranch_scc1 {name}_end", "branch"))
    e(sload(44, 0, 2))
    e(sload(46, 32, 2))
    e(sload(48, 64, 4))
    e(sload(52, 88, 2))
    e(valu("v_and_b32", V(1), 63, V(0)))
    e(valu("v_lshrrev_b32", V(30), 6, V(0)))
    e(salu("s_and_b32", S(58), S(2), 7))
    e(valu("v_readfirstlane_b32", S(S_WAVE), V(30)))
    e(salu("s_lshr_b32", S(59), S(2), 3))
    e(salu("s_lshr_b32", S(60), S(59), 3))
    e(salu("s_lshl_b32", S(58), S(58), 2))
    e(salu("s_add_u32", S(S_RB), S(58), S(60)))
    e(salu("s_and_b32", S(S_CB), S(59), 7))
    e(raw("s_waitcnt lgkmcnt(0)", "wait")); s[-1].tag = (None, 0)
    e(salu("s_lshl_b32", S(58), S(S_RB), 9))
    e(salu("s_lshl_b32", S(59), S(S_WAVE), 5))
    e(salu("s_add_u32", S(58), S(58), S(59)))
    e(salu("s_lshl_b32", S(58), S(58), 10))
    e(salu("s_add_u32", S(58), S(58), O_OFF))
    e(salu("s_add_u32", S(SRD_A0), S(52), S(58))); e(salu("s_addc_u32", S(SRD_A0 + 1), S(53), 0))
    e(salu("s_mov_b32", S(SRD_A0 + 2), 3*131072 + 32*1024)); e(salu("s_mov_b32", S(SRD_A0 + 3), "0x00020000"))
    e(salu("s_mul_i32", S(58), S(S_RB), 224))
    e(salu("s_mul_i32", S(59), S(S_WAVE), 14))
    e(salu("s_add_u32", S(58), S(58), S(59)))
    e(salu("s_lshl_b32", S(58), S(58), 10))
    e(salu("s_add_u32", S(58), S(58), H_OFF))
    e(salu("s_add_u32", S(SRD_A1), S(52), S(58))); e(salu("s_addc_u32", S(SRD_A1 + 1), S(53), 0))
    e(salu("s_mov_b32", S(SRD_A1 + 2), 3*57344 + 14*1024)); e(salu("s_mov_b32", S(SRD_A1 + 3), "0x00020000"))
    e(salu("s_lshl_b32", S(58), S(S_WAVE), 20))
    e(salu("s_lshl_b32", S(59), S(S_CB), 7))
    e(salu("s_add_u32", S(58), S(58), S(59)))
    e(salu("s_add_u32", S(SRD_W0), S(46), S(58))); e(salu("s_addc_u32", S(SRD_W0 + 1), S(47), 0))
    e(salu("s_sub_u32", S(SRD_W0 + 2), 4096*1024, S(58))); e(salu("s_mov_b32", S(SRD_W0 + 3), "0x00020000"))
    e(salu("s_mul_i32", S(58), S(S_WAVE), 448*1024))
    e(salu("s_add_u32", S(58), S(58), S(59)))
    e(salu("s_add_u32", S(SRD_W1), S(48), S(58))); e(salu("s_addc_u32", S(SRD_W1 + 1), S(49), 0))
    e(salu("s_sub_u32", S(SRD_W1 + 2), 1792*1024, S(58))); e(salu("s_mov_b32", S(SRD_W1 + 3), "0x00020000"))
    s += srd(SRD_X, 44, 2097152)
    s += srd(SRD_OUT, 50, 2097152)
    e(salu("s_lshl_b32", S(S_LDSW), S(S_WAVE), 15))
    for qb in range(4):
        e(salu("s_mov_b32", S(S_QO + qb), qb*131072)); e(salu("s_mov_b32", S(S_QO + 4 + qb), qb*57344))
    G, RR, C, T1, T2, X = 20, 21, 22, 23, 24, 25
    e(valu("v_lshrrev_b32", V(G), 4, V(1)))
    e(valu("v_bfe_u32", V(RR), V(1), 2, 2))
    e(valu("v_and_b32", V(C), 3, V(1)))
    e(valu("v_lshl_add_u32", V(T2), V(G), 2, V(RR)))
    e(valu("v_lshlrev_b32", V(T2), 7, V(T2)))
    e(valu("v_lshl_add_u32", V(T2), V(C), 3, V(T2)))
    e(valu("v_add_u32", V(T2), S(S_LDSW), V(T2)))
    e(valu("v_and_b32", V(X), 1, V(G)))
    e(valu("v_lshlrev_b32", V(X), 1, V(X)))
    e(valu("v_lshrrev_b32", V(T1), 1, V(RR)))
    e(valu("v_add_u32", V(X), V(X), V(T1)))
    for b in range(4):
        e(valu("v_xor_b32", V(T1), b, V(X)))
        e(valu("v_lshl_add_u32", V(ADDRA + b), V(T1), 5, V(T2)))
    e(valu("v_lshrrev_b32", V(T1), 3, V(1)))
    e(valu("v_lshlrev_b32", V(T2), 10, V(T1)))
    e(valu("v_lshlrev_b32", V(X), 1, V(G)))
    e(valu("v_and_b32", V(T1), 7, V(1)))
    e(valu("v_xor_b32", V(T1), V(T1), V(X)))
    e(valu("v_lshl_add_u32", V(VOFFW), V(T1), 4, V(T2)))
    for i in range(1, 4): e(valu("v_add_u32", V(VOFFW + i), i*7168, V(VOFFW)))
    e(valu("v_lshlrev_b32", V(VOFFB), 4, V(1)))
    NT = NT_O + NT_H
    VB = 12
    for qb in range(4):
        e(valu("v_add_u32", V(VB + qb), qb*131072, V(VOFFB)))
        e(valu("v_add_u32", V(VB + 4 + qb), qb*57344, V(VOFFB)))
    e(salu("s_mov_b32", S(S_SA), 0)); e(salu("s_mov_b32", S(S_SW), 0))
    def loads(t):
        part = 0 if t < NT_O else 1
        tl = t if part == 0 else t - NT_O
        pre = []
        if tl == 0 and part == 1:
            pre += [salu("s_mov_b32", S(S_SA), 0), salu("s_mov_b32", S(S_SW), 0)]
        pre.append(salu("s_add_u32", "m0", S(S_LDSW), (t % NSLOT)*4096))
        vm = []
        for i in range(4):
            vm.append(buf_dma(V(VOFFW + i), S(SRD_W0 if part == 0 else SRD_W1, 4), S(S_SW), offset=i*1024, tag=("W", t)))
        for qb in range(4):
            vm.append(buf_load(BF(t, qb), V(VB + 4*part + qb), S(SRD_A0 if part == 0 else SRD_A1, 4), S(S_SA), tag=("B", t)))
        post = [salu("s_add_u32", S(S_SW), S(S_SW), 32768), salu("s_add_u32", S(S_SA), S(S_SA), 1024)]
        return pre, vm, post
    def rdA(t, nb, rd):
        return ds_read("ds_read_b64_tr_b16", sub(AF(t, nb), 2*rd, 2), V(ADDRA + nb), offset=(t % NSLOT)*4096 + rd*2048)
    D = NSLOT - 1
    for t in range(D):
        pre, vm, post = loads(t)
        s += pre; e(nop(0)); s += vm; s += post
    e(wait_vm(("W", 0)))
    for nb in range(4):
        for rd in range(2): e(rdA(0, nb, rd))
    for t in range(NT):
        part = 0 if t < NT_O else 1
        tl = t if part == 0 else t - NT_O
        fill = {g: [] for g in range(16)}
        if t + 1 < NT:
            fill[0].append(wait_vm(("W", t + 1)))
            for nb in range(4):
                fill[1 + 4*nb - (0 if nb == 0 else 0)].append(rdA(t + 1, nb, 0)); fill[3 + 4*nb].append(rdA(t + 1, nb, 1))
        if t + D < NT:
            pre, vm, post = loads(t + D)
            for x in pre: fill[0].append(x)
            for k, x in enumerate(vm): fill[2 + 2*(k % 7) + (0 if k < 7 else 0)].append(x) if k < 7 else fill[15].append(x)
            fill[15] += post
        for nb in range(4):
            for qb in range(4):
                g = 4*nb + qb
                e(mfma16(ACC(part, nb, qb), AF(t, nb), BF(t, qb), 0 if tl == 0 else ACC(part, nb, qb)))
                f = fill[g]
                f = [x for x in f if x.kind in ("waitvm",)] + [x for x in f if x.kind == "salu" and x not in (fill[15][-2:] if g == 15 else [])] + \
                    [x for x in f if x.kind in ("lds", "dma", "vmem")] + [x for x in f if x.kind == "salu" and x in (fill[15][-2:] if g == 15 else [])]
                s += f
    e(nop(7))
    e(barrier())
    e(valu("v_lshlrev_b32", V(20), 4, V(1)))
    e(valu("v_add_u32", V(21), S(S_LDSW), V(20)))
    for i in range(32):
        e(ds_write("ds_write_b128", V(21), V(128 + 4*i, 4), offset=i*1024))
    e(wait_raw(lgkm=0)); e(barrier())
    e(salu("s_lshl_b32", S(58), S(S_WAVE), 10))
    e(valu("v_add_u32", V(21), S(58), V(20)))
    e(valu("v_add_u32", V(22), 65536, V(21)))
    for part in range(2):
        for nb in range(4):
            for src in range(4):
                off = (src & 1)*32768 + (part*16 + nb*4)*1024
                e(ds_read("ds_read_b128", V(32 + ((part*4 + nb)*4 + src)*4, 4), V(21 if src < 2 else 22), offset=off))
    e(valu("v_and_b32", V(23), 15, V(1)))
    e(salu("s_lshl_b32", S(58), S(S_RB), 6)); e(salu("s_lshl_b32", S(59), S(S_WAVE), 4)); e(salu("s_add_u32", S(58), S(58), S(59)))
    e(valu("v_add_u32", V(23), S(58), V(23)))
    e(valu("v_lshlrev_b32", V(23), 10, V(23)))
    e(valu("v_lshrrev_b32", V(24), 4, V(1)))
    e(valu("v_lshl_add_u32", V(23), V(24), 3, V(23)))
    e(salu("s_lshl_b32", S(59), S(S_CB), 7))
    e(valu("v_add_u32", V(23), S(59), V(23)))
    XR_ = 160
    for nb in range(4):
        e(buf_load(V(XR_ + 2*nb, 2), V(23), S(SRD_X, 4), 0, offset=nb*32, n=2))
    for part in range(2):
        for nb in range(4):
            b = 32 + (part*4 + nb)*16
            for r in range(4):
                e(valu("v_add_f32", V(b + r), V(b + r), V(b + 4 + r)))
                e(valu("v_add_f32", V(b + 8 + r), V(b + 8 + r), V(b + 12 + r)))
            for r in range(4):
                e(valu("v_add_f32", V(b + r), V(b + r), V(b + 8 + r)))
    T = 168
    for nb in range(4):
        sb, fb = 32 + nb*16, 96 + nb*16
        e(valu("v_cvt_pk_bf16_f32", V(T), V(sb), V(sb + 1))); e(valu("v_cvt_pk_bf16_f32", V(T + 1), V(sb + 2), V(sb + 3)))
        e(valu("v_cvt_pk_bf16_f32", V(T + 2), V(fb), V(fb + 1))); e(valu("v_cvt_pk_bf16_f32", V(T + 3), V(fb + 2), V(fb + 3)))
        for h in range(2):
            e(valu("v_lshlrev_b32", V(sb + 2*h), 16, V(T + h))); e(valu("v_and_b32", V(sb + 2*h + 1), "0xffff0000", V(T + h)))
            e(valu("v_lshlrev_b32", V(fb + 2*h), 16, V(T + 2 + h))); e(valu("v_and_b32", V(fb + 2*h + 1), "0xffff0000", V(T + 2 + h)))
        for r in range(4): e(valu("v_mul_f32", V(T + 4 + r), f2h(-1.4426950408889634), V(fb + r)))
        for r in range(4): e(trans("v_exp_f32", V(T + 4 + r), V(T + 4 + r)))
        e(nop(0))
        for r in range(4): e(valu("v_add_f32", V(T + 4 + r), 1.0, V(T + 4 + r)))
        for r in range(4): e(trans("v_rcp_f32", V(T + 4 + r), V(T + 4 + r)))
        e(nop(0))
        for r in range(4): e(valu("v_mul_f32", V(fb + r), V(fb + r), V(T + 4 + r)))
        e(valu("v_cvt_pk_bf16_f32", V(T + 2), V(fb), V(fb + 1))); e(valu("v_cvt_pk_bf16_f32", V(T + 3), V(fb + 2), V(fb + 3)))
        for h in range(2):
            e(valu("v_lshlrev_b32", V(fb + 2*h), 16, V(T + 2 + h))); e(valu("v_and_b32", V(fb + 2*h + 1), "0xffff0000", V(T + 2 + h)))
        for r in range(4): e(valu("v_mul_f32", V(sb + r), V(sb + r), V(fb + r)))
        e(valu("v_cvt_pk_bf16_f32", V(T), V(sb), V(sb + 1))); e(valu("v_cvt_pk_bf16_f32", V(T + 1), V(sb + 2), V(sb + 3)))
        for h in range(2):
            e(valu("v_lshlrev_b32", V(sb + 2*h), 16, V(T + h))); e(valu("v_and_b32", V(sb + 2*h + 1), "0xffff0000", V(T + h)))
            e(valu("v_lshlrev_b32", V(fb + 2*h), 16, V(XR_ + 2*nb + h))); e(valu("v_and_b32", V(fb + 2*h + 1), "0xffff0000", V(XR_ + 2*nb + h)))
        for r in range(4): e(valu("v_add_f32", V(sb + r), V(sb + r), V(fb + r)))
        e(valu("v_cvt_pk_bf16_f32", V(T + 8 + 2*nb), V(sb), V(sb + 1))); e(valu("v_cvt_pk_bf16_f32", V(T + 9 + 2*nb), V(sb + 2), V(sb + 3)))
        e(buf_store(V(T + 8 + 2*nb, 2), V(23), S(SRD_OUT, 4), 0, offset=nb*32, n=2))
    e(label(f"{name}_end"))
    e(raw("s_endpgm", "end"))
    s = insert_waits(s)
    pr = check_hazards(s, name)
    for p in pr[:40]: print("HAZARD", p)
    return s, dict(vgpr=512, sgpr=96, accum=256)
```

```python
import sys
from ir import render
import k0, k1, k2

NAME = "recurrent_scan__mha_block_cached__glu_gated_reglu__prompt"
HDR = open("cdna_kernels/" + NAME + ".s.ref").read().split("\n")

def build(stop=None, kernels=("k0", "k1", "k2")):
    head = [l for l in HDR if l.startswith(";") and "@launch" not in l and "Override launch" not in l and "grid=ceil" not in l]
    launches = {"k0": "; @launch kernel=ln_kernel grid=(256,1,1) block=(128,1,1) lds=0",
                "k1": f"; @launch kernel=attn_kernel grid=(256,1,1) block=(256,1,1) lds={k1.LDS_BYTES}",
                "k2": "; @launch kernel=final_kernel grid=(256,1,1) block=(256,1,1) lds=131072"}
    out = head + [launches[k] for k in kernels]
    out.append('.amdgcn_target "amdgcn-amd-amdhsa--gfx950"')
    out.append(".text")
    descs = []
    for k, nm, fn in (("k0", "ln_kernel", lambda n: k0.gen_k0(n)), ("k1", "attn_kernel", lambda n: k1.gen_k1(n, stop=stop)), ("k2", "final_kernel", lambda n: k2.gen_k2(n))):
        if k not in kernels: continue
        st, res = fn(nm)
        out.append(f".globl {nm}\n.p2align 8\n.type {nm},@function\n{nm}:")
        out.append(render(st))
        descs.append(f""".amdhsa_kernel {nm}
  .amdhsa_next_free_vgpr {res['vgpr']}
  .amdhsa_next_free_sgpr {res['sgpr']}
  .amdhsa_accum_offset {res['accum']}
  .amdhsa_group_segment_fixed_size 0
  .amdhsa_kernarg_size 96
  .amdhsa_user_sgpr_count 2
  .amdhsa_user_sgpr_kernarg_segment_ptr 1
  .amdhsa_system_sgpr_workgroup_id_x 1
.end_amdhsa_kernel""")
    out.append('.section .rodata,"a"')
    for d in descs:
        out.append(".p2align 6"); out.append(d)
    return "\n".join(out) + "\n"

if __name__ == "__main__":
    import argparse
    ap = argparse.ArgumentParser()
    ap.add_argument("-o", default="full.s")
    ap.add_argument("--stop", default=None)
    ap.add_argument("--kernels", default="k0,k1,k2")
    a = ap.parse_args()
    t = build(stop=a.stop, kernels=a.kernels.split(","))
    open(a.o, "w").write(t)
    print("wrote", a.o, len(t), "bytes")
```

```python
from ir import *
from k0 import srd, sload, XN_OFF, O_OFF, H_OFF, DBG_OFF

KR, VR, XR = 0, 65536, 131072
LDS_BYTES = 163840
ADDRK, ADDRV, VOFFK, VOFFV, ADDRW, VOFFW, VOFFB = 2, 6, 14, 18, 20, 24, 26
SREG, PREG, NEGM, TMP = 32, 64, 96, 112
VLANE16 = 30
PFD = 124
ACC = 128
LREG, ONES = 128, 160
def QF(qb, ds): return V(ACC + 16*(2*ds + 1) + 4*qb, 4)
def ACCR(db, qb): return V(ACC + 16*db + 4*qb, 4)
def OACC(db, qb): return A(16*db + 4*qb, 4)
def KF(f): return A(192 + 4*f, 4)
def VF(f): return A(224 + 4*f, 4)
def AF(t, db): return A(192 + 32*(t & 1) + 4*db, 4)
def BF(t, qb): return A(128 + 16*(t & 3) + 4*qb, 4)
def SR(kb, qb, r=None): return V(SREG + 16*kb + 4*qb, 4) if r is None else V(SREG + 16*kb + 4*qb + r)
def PR(buf, qb, i=None): return V(PREG + 16*buf + 4*qb, 4) if i is None else V(PREG + 16*buf + 4*qb + i)
S_WAVE, S_HEAD, S_QB = 3, 4, 5
SRD_K, SRD_V, SRD_W, SRD_XN, SRD_O, SRD_H = 8, 12, 16, 20, 24, 28
S_SOFFK, S_SOFFV, S_W4K, S_W2K, S_PHI, S_SOFFB, S_LOOP, S_SOFFW, S_TMPW = 32, 33, 34, 35, 36, 37, 40, 41, 43
S_T = 44
P_KV, P_WQ, P_WO, P_WG, P_WD, P_WS = 44, 48, 50, 52, 56, 58
T0_, T1_, T2_, T3_ = 60, 61, 62, 63
DOFF = 40.0
QSCALE = 1.4426950408889634 / (128 ** 0.5)
STAMPS = False
ROT = True
PREFETCH = True
SC1 = False
def sc(): return 'sc1' if SC1 else ''

def f2h(x):
    import struct
    return "0x%08x" % struct.unpack("<I", struct.pack("<f", x))[0]

def slotW(t):
    if t < 4: return XR + 8192*t
    if t < 12: return VR + 8192*(t - 4)
    return 32768 + 8192*(t - 12)

def sub(x, off, n=1):
    k, b, _ = x
    return (k, b + off, n)

class Fill:
    def __init__(self, n): self.g = [dict(S=[], M=[], V=[]) for _ in range(n)]
    def add(self, g, x):
        xs = x if isinstance(x, list) else [x]
        k = xs[0].kind
        c = "S" if k in ("salu", "waitvm", "wait") else ("M" if k in ("lds", "dma", "vmem", "store", "ldsw") else "V")
        self.g[g][c] += xs
    def emit(self, g): return self.g[g]["S"] + self.g[g]["M"] + self.g[g]["V"]

STEPSTAMP = None
def sstamp(kind, t):
    if STEPSTAMP != kind: return []
    return [raw("s_memtime s[96:97]", "smem"), raw("s_waitcnt lgkmcnt(0)", "other"), raw(f"s_mov_b32 s{64+t}, s96", "salu")]
def stamp(i):
    if not STAMPS or STEPSTAMP: return []
    return [raw("s_memtime s[96:97]", "smem"), raw("s_memrealtime s[98:99]", "smem"), raw("s_waitcnt lgkmcnt(0)", "other"),
            raw(f"s_mov_b32 s{64+i}, s96", "salu"), raw(f"s_mov_b32 s{80+i}, s98", "salu")]
def stamp_dump(n):
    if not STAMPS: return []
    s = []; e = s.append
    e(salu("s_lshl_b32", S(T0_), S(2), 2)); e(salu("s_add_u32", S(T0_), S(T0_), S(S_WAVE)))
    e(salu("s_lshl_b32", S(T0_), S(T0_), 7))
    e(salu("s_add_u32", S(T0_), S(T0_), DBG_OFF))
    e(salu("s_add_u32", S(8), S(P_WS), S(T0_))); e(salu("s_addc_u32", S(9), S(P_WS + 1), 0))
    e(salu("s_mov_b32", S(10), 128)); e(salu("s_mov_b32", S(11), "0x00020000"))
    e(valu("v_mov_b32", V(31), 0))
    for i in range(n):
        e(valu("v_mov_b32", V(30), S(64 + i))); e(buf_store(V(30), V(31), S(8, 4), 0, offset=4*i, n=1)); e(nop(1))
        e(valu("v_mov_b32", V(30), S(80 + i))); e(buf_store(V(30), V(31), S(8, 4), 0, offset=64 + 4*i, n=1)); e(nop(1))
    return s

def mksrd(base, ptr, off_s, size):
    o = []
    if off_s is None:
        o += [salu("s_mov_b32", S(base), S(ptr)), salu("s_mov_b32", S(base + 1), S(ptr + 1))]
    else:
        o += [salu("s_add_u32", S(base), S(ptr), S(off_s)), salu("s_addc_u32", S(base + 1), S(ptr + 1), 0)]
    o += [salu("s_mov_b32", S(base + 2), size), salu("s_mov_b32", S(base + 3), "0x00020000")]
    return o

G_, N_, RR_, C_, U1, U2, ROW8, ROWB, CH = 112, 113, 114, 115, 116, 117, 118, 119, 120

def setup1(name):
    s = []; e = s.append
    e(raw("s_cmp_ge_u32 s2, 256", "salu", rd=regs("s", 2)))
    e(raw(f"s_cbranch_scc1 {name}_end", "branch"))
    e(sload(P_WQ, 24, 4))
    e(sload(P_WS, 88, 2))
    e(sload(P_KV, 8, 4))
    e(sload(P_WG, 48, 4))
    e(sload(P_WD, 64, 2))
    e(valu("v_and_b32", V(1), 63, V(0)))
    e(valu("v_lshrrev_b32", V(30), 6, V(0)))
    e(salu("s_and_b32", S(S_HEAD), S(2), 31))
    e(valu("v_readfirstlane_b32", S(S_WAVE), V(30)))
    e(salu("s_lshr_b32", S(S_QB), S(2), 5))
    e(valu("v_lshrrev_b32", V(G_), 4, V(1)))
    e(valu("v_and_b32", V(N_), 15, V(1)))
    for i in range(2):
        e(valu("v_add_u32", V(U1), 4*i, V(G_)))
        e(valu("v_lshlrev_b32", V(U2), 13, V(U1)))
        e(valu("v_lshlrev_b32", V(U1), 1, V(U1)))
        e(valu("v_xor_b32", V(U1), V(U1), V(N_)))
        e(valu("v_lshl_add_u32", V(VOFFW + i), V(U1), 4, V(U2)))
        if i: e(valu("v_subrev_u32", V(VOFFW + i), 1024, V(VOFFW + i)))
    e(valu("v_lshlrev_b32", V(VLANE16), 4, V(1)))
    e(valu("v_mov_b32", V(VOFFB), V(VLANE16)))
    for qb in range(1, 4):
        e(valu("v_add_u32", V(VOFFB + qb), qb*16384, V(VLANE16)))
    e(salu("s_lshr_b32", S(T0_), S(S_HEAD), 3))
    e(salu("s_lshl_b32", S(T0_), S(T0_), 2))
    e(salu("s_lshl_b32", S(T1_), S(S_QB), 1))
    e(salu("s_add_u32", S(S_PHI), S(T0_), S(T1_)))
    e(salu("s_and_b32", S(S_PHI), S(S_PHI), 15 if ROT else 0))
    e(salu("s_lshl_b32", S(S_W4K), S(S_WAVE), 12))
    e(salu("s_lshl_b32", S(S_W2K), S(S_WAVE), 11))
    e(salu("s_lshl_b32", S(S_SOFFB), S(S_PHI), 10))
    e(salu("s_lshl_b32", S(S_SOFFW), S(S_PHI), 18))
    e(salu("s_lshl_b32", S(T0_), S(S_WAVE), 16))
    e(salu("s_add_u32", S(S_SOFFW), S(S_SOFFW), S(T0_)))
    e(salu("s_lshl_b32", S(T3_), S(S_QB), 4))
    e(salu("s_lshl_b32", S(T2_), S(S_WAVE), 2))
    e(salu("s_add_u32", S(T3_), S(T3_), S(T2_)))
    e(raw("s_waitcnt lgkmcnt(0)", "wait")); s[-1].tag = (None, 0)
    e(salu("s_lshl_b32", S(T0_), S(S_HEAD), 8))
    e(salu("s_sub_u32", S(T1_), 4194304, S(T0_)))
    s += mksrd(SRD_W, P_WQ, T0_, S(T1_))
    e(salu("s_lshl_b32", S(T0_), S(T3_), 14))
    e(salu("s_add_u32", S(T0_), S(T0_), XN_OFF)) if XN_OFF else None
    s += mksrd(SRD_XN, P_WS, T0_, 65536)
    e(salu("s_lshl_b32", S(T0_), S(S_HEAD), 19))
    s += mksrd(SRD_K, P_KV, T0_, 524288)
    s += mksrd(SRD_V, P_KV + 2, T0_, 524288)
    return s

def setup2():
    s = []; e = s.append
    e(salu("s_lshl_b32", S(T3_), S(S_QB), 4))
    e(salu("s_lshl_b32", S(T2_), S(S_WAVE), 2))
    e(salu("s_add_u32", S(T3_), S(T3_), S(T2_)))
    e(salu("s_lshl_b32", S(T0_), S(T3_), 7))
    e(salu("s_lshl_b32", S(T1_), S(S_HEAD), 2))
    e(salu("s_add_u32", S(T0_), S(T0_), S(T1_)))
    e(salu("s_lshl_b32", S(T0_), S(T0_), 10))
    e(salu("s_add_u32", S(T0_), S(T0_), O_OFF))
    s += mksrd(SRD_O, P_WS, T0_, 3*131072 + 4096)
    e(salu("s_mul_i32", S(T0_), S(T3_), 56))
    e(salu("s_lshl_b32", S(T1_), S(S_HEAD), 1))
    e(salu("s_add_u32", S(T0_), S(T0_), S(T1_)))
    e(salu("s_lshl_b32", S(T0_), S(T0_), 10))
    e(salu("s_add_u32", S(T0_), S(T0_), H_OFF))
    s += mksrd(SRD_H, P_WS, T0_, 3*57344 + 2048)
    e(valu("v_bfe_u32", V(RR_), V(1), 2, 2))
    e(valu("v_and_b32", V(C_), 3, V(1)))
    e(valu("v_and_b32", V(ROW8), 1, V(G_)))
    e(valu("v_lshl_add_u32", V(ROW8), V(ROW8), 2, V(RR_)))
    e(valu("v_lshl_add_u32", V(ROWB), V(G_), 2, V(RR_)))
    e(valu("v_lshlrev_b32", V(U2), 8, V(ROWB)))
    e(valu("v_and_b32", V(U1), 1, V(C_)))
    e(valu("v_lshl_add_u32", V(U2), V(U1), 4, V(U2)))
    e(valu("v_add_u32", V(U2), XR, V(U2)))
    e(valu("v_lshrrev_b32", V(CH), 1, V(C_)))
    for ds in range(4):
        e(valu("v_add_u32", V(U1), 2*ds, V(CH)))
        e(valu("v_xor_b32", V(U1), V(U1), V(ROW8)))
        e(valu("v_lshl_add_u32", V(ADDRW + ds), V(U1), 5, V(U2)))
    for ds in range(4):
        e(valu("v_add_u32", V(U1), 4*ds, V(G_)))
        e(valu("v_xor_b32", V(U1), V(U1), V(N_)))
        e(valu("v_lshlrev_b32", V(U1), 4, V(U1)))
        e(valu("v_lshl_add_u32", V(ADDRK + ds), V(N_), 8, V(U1)))
    e(valu("v_lshlrev_b32", V(U2), 8, V(ROWB)))
    e(valu("v_lshl_add_u32", V(U2), V(C_), 3, V(U2)))
    e(valu("v_add_u32", V(U2), VR, V(U2)))
    for db in range(8):
        e(valu("v_xor_b32", V(U1), db, V(ROW8)))
        e(valu("v_lshl_add_u32", V(ADDRV + db), V(U1), 5, V(U2)))
    for i in range(2):
        e(valu("v_add_u32", V(U1), 4*i, V(G_)))
        e(valu("v_lshlrev_b32", V(U1), 1, V(U1)))
        e(valu("v_xor_b32", V(U1), V(U1), V(N_)))
        e(valu("v_lshlrev_b32", V(U1), 4, V(U1)))
        e(valu("v_lshl_add_u32", V(VOFFV + i), V(G_), 8, V(U1)))
    return s

def setupK():
    s = []; e = s.append
    for i in range(4):
        e(valu("v_add_u32", V(U1), 4*i, V(G_)))
        e(valu("v_xor_b32", V(U1), V(U1), V(N_)))
        e(valu("v_lshlrev_b32", V(U1), 4, V(U1)))
        e(valu("v_lshl_add_u32", V(VOFFK + i), V(G_), 8, V(U1)))
    e(salu("s_mov_b32", S(S_SOFFK), S(S_W4K)))
    e(salu("s_mov_b32", S(S_SOFFV), S(S_W4K)))
    return s

def dmaK(slot):
    pre = salu("s_add_u32", "m0", S(S_W4K), KR + slot*16384)
    d = [buf_dma(V(VOFFK + i), S(SRD_K, 4), S(S_SOFFK), offset=i*1024, tag=("K", slot)) for i in range(4)]
    adv = salu("s_add_u32", S(S_SOFFK), S(S_SOFFK), 16384)
    return pre, d, adv
def dmaV(slot):
    pre = salu("s_add_u32", "m0", S(S_W4K), VR + slot*16384)
    d = [buf_dma(V(VOFFV + (i & 1)), S(SRD_V, 4), S(S_SOFFV), offset=i*1024, tag=("V", slot)) for i in range(4)]
    adv = salu("s_add_u32", S(S_SOFFV), S(S_SOFFV), 16384)
    return pre, d, adv
def dmaW(t):
    pre = salu("s_add_u32", "m0", S(S_W2K), slotW(t))
    d = [buf_dma(V(VOFFW + i), S(SRD_W, 4), S(S_SOFFW), offset=i*1024, tag=("W", t)) for i in range(2)]
    return pre, d
def loadB(t):
    return [buf_load(BF(t, qb), V(VOFFB + qb), S(SRD_XN, 4), S(S_SOFFB), tag=("B", t), flags=sc()) for qb in range(4)]
def advB():
    return [salu("s_add_u32", S(S_SOFFB), S(S_SOFFB), 1024), salu("s_and_b32", S(S_SOFFB), S(S_SOFFB), 16383)]
def advW(kind):
    if kind == "A":
        return [salu("s_add_u32", S(S_SOFFW), S(S_SOFFW), 262144), salu("s_and_b32", S(S_SOFFW), S(S_SOFFW), 16*262144 - 1)]
    ws = 32*3584
    return [salu("s_add_u32", S(S_SOFFW), S(S_SOFFW), ws), salu("s_sub_u32", S(S_TMPW), S(S_SOFFW), 16*ws),
            raw(f"s_cmp_ge_u32 s{S_SOFFW}, {16*ws}", "salu", rd=regs("s", S_SOFFW)), salu("s_cselect_b32", S(S_SOFFW), S(S_TMPW), S(S_SOFFW))]
def flatW(t, kind):
    pre, d = dmaW(t); return [pre, nop(0)] + d + advW(kind)
def flatB(t): return loadB(t) + advB()
def flatKV(p):
    pre, d, adv = p; return [pre, nop(0)] + d + [adv]

def readA_q(t, db, rd):
    ds, u = db >> 1, db & 1
    base = XR if t < 4 else (VR if t < 12 else 0)
    return ds_read("ds_read_b64_tr_b16", sub(AF(t, db), 2*rd, 2), V(ADDRW + ds), offset=slotW(t) - base + rd*4096 + 8*u)
def readA_e(t, db, rd):
    mat, b = db >> 2, db & 3
    base = XR if t < 4 else (VR if t < 12 else 0)
    return ds_read("ds_read_b64_tr_b16", sub(AF(t, db), 2*rd, 2), V(ADDRW + b), offset=slotW(t) - base + mat*4096 + rd*2048)

def gemm_phase(kind, wplan, bars, extra_fill=None, post_bar=None, first_bar=True):
    s = []; e = s.append
    rdA = readA_q if kind == "A" else readA_e
    e(wait_vm(("W", 0), ("W", 1)))
    e(barrier())
    for db in range(8):
        for rd in range(2): e(rdA(0, db, rd))
    for t in range(16):
        s += sstamp(kind, t)
        if t in bars:
            e(wait_vm(*[("W", k) for k in bars[t]])); e(barrier())
        F = Fill(32)
        gi = 0
        for p in (post_bar or {}).get(t, []):
            pre, d, adv = p
            F.add(gi, pre)
            for k, x in enumerate(d): F.add(gi + 2 + 2*k, x)
            F.add(gi + 9, adv)
            gi += 10
        if t + 1 in (4, 12):
            for i in range(4): e(valu("v_subrev_u32", V(ADDRW + i), 65536, V(ADDRW + i)))
        if t + 1 < 16:
            for db in range(8):
                F.add(4*db + 1, rdA(t + 1, db, 0)); F.add(4*db + 3, rdA(t + 1, db, 1))
        if t >= 1 and t + 3 < 16:
            for qb, x in enumerate(loadB(t + 3)): F.add(22 + 2*qb, x)
            F.add(29, advB())
        for k in wplan.get(t, []):
            pre, d = dmaW(k)
            F.add(gi, pre); F.add(gi + 2, d[0]); F.add(gi + 4, d[1]); F.add(gi + 5, advW(kind))
            gi += 6
        assert gi <= 22
        if extra_fill:
            for g, x in extra_fill(t): F.add(g, x)
        for db in range(8):
            for qb in range(4):
                g = 4*db + qb
                e(mfma16(ACCR(db, qb), AF(t, db), BF(t, qb), 0 if t == 0 else ACCR(db, qb)))
                s += F.emit(g)
    return s

def window(j, T, last_qk=True, do_pv=True, do_kread=True, dma=None, bar=False, exp_tail=True, extra=None):
    s = []; e = s.append
    par = j & 1
    NG = 68
    F = Fill(NG)
    pb_cur = par; pb_nxt = par ^ 1
    def ex(kb, idx):
        qb, r = idx >> 2, idx & 3
        return trans("v_exp_f32", SR(kb, qb, r), SR(kb, qb, r))
    def cv(kb, pair, pb):
        qb, h = pair >> 1, pair & 1
        return valu("v_cvt_pk_bf16_f32", PR(pb, qb, 2*kb + h), SR(kb, qb, 2*h), SR(kb, qb, 2*h + 1))
    if do_pv:
        voff = ((j >> 1) & 3)*16384 + (j & 1)*8192
        for db in range(8):
            for rd in range(2):
                F.add(4*db + 1 + 2*rd, ds_read("ds_read_b64_tr_b16", sub(VF(db), 2*rd, 2), V(ADDRV + db), offset=voff + rd*4096))
    if do_kread:
        b = j + 2
        koff = ((b >> 1) & 3)*16384 + (b & 1)*8192
        for f in range(8):
            kb, ds = f >> 2, f & 3
            F.add(33 + 4*f, ds_read("ds_read_b128", KF(f), V(ADDRK + ds), offset=koff + kb*4096))
    if exp_tail:
        for i in range(7): F.add(2*i, ex(1, 9 + i))
        for pair, g in ((4, 1), (5, 5), (6, 9), (7, 13)): F.add(g, cv(1, pair, pb_cur))
    if last_qk:
        for i in range(16): F.add(18 + 2*i, ex(0, i))
        for i in range(9): F.add(50 + 2*i, ex(1, i))
        for pair in range(8): F.add(18 + 4*pair + 3, cv(0, pair, pb_nxt))
        for pair in range(4): F.add(50 + 4*pair + 3, cv(1, pair, pb_nxt))
    for g, x in (dma or []): F.add(g, x)
    for g, x in (extra or []): F.add(g, x)
    mf = []
    for kb in range(2):
        for ds in range(4):
            for qb in range(4):
                mf.append(mfma16(SR(kb, qb), KF(4*kb + ds), QF(qb, ds), V(NEGM + 4*qb, 4) if ds == 0 else SR(kb, qb)) if last_qk else None)
    for db in range(8):
        for qb in range(4):
            mf.append(mfma16(OACC(db, qb), VF(db), PR(pb_cur, qb), OACC(db, qb)) if do_pv else None)
        if db & 1:
            qb = db >> 1
            mf.append(mfma16(V(LREG + 4*qb, 4), V(ONES, 4), PR(pb_cur, qb), V(LREG + 4*qb, 4)) if do_pv else None)
    assert len(mf) == NG
    for g in range(NG):
        if g == 32 and bar:
            e(wait_vm(("K", (T + 1) & 3), ("V", (T + 1) & 3))); e(barrier())
        if mf[g] is not None: e(mf[g])
        else: e(nop(0))
        if j == -1 and g == 16: e(nop(3))
        s += F.emit(g)
    return s

def tile_dma(T, doK=True, doV=True):
    w0, w1 = [], []
    if doK:
        pre, d, adv = dmaK(T & 3)
        w0.append((34, pre))
        for k, x in enumerate(d): w0.append((35 + 8*k, x))
        w0.append((66, adv))
    if doV:
        pre, d, adv = dmaV((T + 3) & 3)
        w1.append((34, pre))
        for k, x in enumerate(d): w1.append((35 + 8*k, x))
        w1.append((66, adv))
    return w0, w1

def first_max():
    s = []; e = s.append
    e(wait_vm(("K", 0), ("K", 1))); e(barrier())
    for f in range(8):
        kb, ds = f >> 2, f & 3
        e(ds_read("ds_read_b128", KF(f), V(ADDRK + ds), offset=kb*4096))
    for kb in range(2):
        for ds in range(4):
            for qb in range(4):
                e(mfma16(SR(kb, qb), KF(4*kb + ds), QF(qb, ds), 0 if ds == 0 else SR(kb, qb)))
    e(nop(7))
    M = TMP
    for qb in range(4):
        e(valu("v_max3_f32", V(M + qb), SR(0, qb, 0), SR(0, qb, 1), SR(0, qb, 2)))
        e(valu("v_max3_f32", V(M + qb), V(M + qb), SR(0, qb, 3), SR(1, qb, 0)))
        e(valu("v_max3_f32", V(M + qb), V(M + qb), SR(1, qb, 1), SR(1, qb, 2)))
        e(valu("v_max_f32", V(M + qb), V(M + qb), SR(1, qb, 3)))
    for swp in ("v_permlane16_swap_b32", "v_permlane32_swap_b32"):
        for qb in range(4): e(valu("v_mov_b32", V(M + 4 + qb), V(M + qb)))
        e(nop(1))
        for qb in range(4): e(valu(swp, V(M + 4 + qb), V(M + qb), dst_is_src=True, wr_extra=regs("v", M + qb)))
        e(nop(1))
        for qb in range(4): e(valu("v_max_f32", V(M + qb), V(M + qb), V(M + 4 + qb)))
    for qb in range(4):
        e(valu("v_sub_f32", V(M + qb), f2h(-DOFF), V(M + qb)))
    for qb in range(4):
        for r in range(4): e(valu("v_mov_b32", V(NEGM + 4*qb + r), V(M + qb)))
    return s

def qconvert():
    s = []; e = s.append
    e(salu("s_mov_b32", S(S_T), f2h(QSCALE)))
    e(nop(7))
    for ds in range(4):
        for qb in range(4):
            a0, a1 = ACCR(2*ds, qb), ACCR(2*ds + 1, qb)
            for r in range(4):
                e(valu("v_mul_f32", sub(a0, r), S(S_T), sub(a0, r)))
                e(valu("v_mul_f32", sub(a1, r), S(S_T), sub(a1, r)))
            e(valu("v_cvt_pk_bf16_f32", sub(a1, 3), sub(a1, 2), sub(a1, 3)))
            e(valu("v_cvt_pk_bf16_f32", sub(a1, 2), sub(a1, 0), sub(a1, 1)))
            e(valu("v_cvt_pk_bf16_f32", sub(a1, 1), sub(a0, 2), sub(a0, 3)))
            e(valu("v_cvt_pk_bf16_f32", sub(a1, 0), sub(a0, 0), sub(a0, 1)))
    return s

RI = TMP
def o_rinv():
    s = []; e = s.append
    e(nop(7))
    for qb in range(4): e(trans("v_rcp_f32", V(RI + qb), V(LREG + 4*qb)))
    e(nop(0))
    for qb in range(4): e(valu("v_fma_f32", V(RI + 4 + qb), f"-v{LREG + 4*qb}", V(RI + qb), 2.0, rd_extra=regs("v", LREG + 4*qb)))
    for qb in range(4): e(valu("v_mul_f32", V(RI + qb), V(RI + qb), V(RI + 4 + qb)))
    for qb in range(4): e(salu("s_mov_b32", S(S_T + qb), qb*131072))
    return s
def o_unit(k):
    qb, dp = k >> 2, k & 3
    t = SREG + 8*(k % 4); pk = PREG + 4*(k % 8)
    o = []
    for u in range(2):
        for r in range(4): o.append(valu("v_accvgpr_read_b32", V(t + 4*u + r), sub(OACC(2*dp + u, qb), r)))
    for i in range(8): o.append(valu("v_mul_f32", V(t + i), V(t + i), V(RI + qb)))
    for i in range(4): o.append(valu("v_cvt_pk_bf16_f32", V(pk + i), V(t + 2*i), V(t + 2*i + 1)))
    o.append(buf_store(V(pk, 4), V(VLANE16), S(SRD_O, 4), S(S_T + qb), offset=dp*1024, tag="O", flags=sc()))
    return o

def setup_E():
    s = []; e = s.append
    e(raw(f"s_cmp_ge_u32 s{S_WAVE}, 2", "salu", rd=regs("s", S_WAVE)))
    e(salu("s_cselect_b32", S(T0_), S(P_WG + 2), S(P_WG)))
    e(salu("s_cselect_b32", S(T1_), S(P_WG + 3), S(P_WG + 1)))
    e(salu("s_lshl_b32", S(T2_), S(S_HEAD), 7))
    e(salu("s_add_u32", S(SRD_W), S(T0_), S(T2_)))
    e(salu("s_addc_u32", S(SRD_W + 1), S(T1_), 0))
    e(salu("s_sub_u32", S(SRD_W + 2), 512*3584, S(T2_)))
    e(salu("s_mov_b32", S(SRD_W + 3), "0x00020000"))
    e(salu("s_and_b32", S(T2_), S(S_WAVE), 1))
    e(salu("s_mul_i32", S(S_SOFFW), S(T2_), 16*3584))
    e(salu("s_mul_i32", S(T2_), S(S_PHI), 32*3584))
    e(salu("s_add_u32", S(S_SOFFW), S(S_SOFFW), S(T2_)))
    e(salu("s_lshl_b32", S(S_SOFFB), S(S_PHI), 10))
    X = ROW8
    e(valu("v_lshlrev_b32", V(U2), 7, V(ROWB)))
    e(valu("v_lshl_add_u32", V(U2), V(C_), 3, V(U2)))
    e(valu("v_add_u32", V(U2), XR, V(U2)))
    e(valu("v_and_b32", V(CH), 1, V(G_)))
    e(valu("v_lshlrev_b32", V(CH), 1, V(CH)))
    e(valu("v_lshrrev_b32", V(U1), 1, V(RR_)))
    e(valu("v_add_u32", V(CH), V(CH), V(U1)))
    for b in range(4):
        e(valu("v_xor_b32", V(U1), b, V(CH)))
        e(valu("v_lshl_add_u32", V(ADDRW + b), V(U1), 5, V(U2)))
    e(valu("v_lshrrev_b32", V(U1), 3, V(1)))
    e(salu("s_mov_b32", S(T2_), 3584))
    e(valu("v_mul_lo_u32", V(U2), V(U1), S(T2_)))
    e(valu("v_lshlrev_b32", V(CH), 1, V(G_)))
    e(valu("v_and_b32", V(U1), 7, V(1)))
    e(valu("v_xor_b32", V(U1), V(U1), V(CH)))
    e(valu("v_lshl_add_u32", V(VOFFW), V(U1), 4, V(U2)))
    e(valu("v_add_u32", V(VOFFW + 1), 8*3584 - 1024, V(VOFFW)))
    return s

def mall_prefetch():
    out = []
    pre = [salu("s_lshl_b32", S(S_T), S(2), 2), salu("s_add_u32", S(S_T), S(S_T), S(S_WAVE)), salu("s_lshl_b32", S(S_T), S(S_T), 7)]
    out.append(pre)
    out.append([valu("v_lshlrev_b32", V(PFD + 3), 17, V(1))])
    for i, (p, size) in enumerate(((P_WO, 4096*1024), (P_WD, 1792*1024), (P_WG, 512*3584), (P_WG + 2, 512*3584))):
        out.append([salu("s_mov_b32", S(60), S(p)), salu("s_mov_b32", S(61), S(p + 1)), salu("s_mov_b32", S(62), size), salu("s_mov_b32", S(63), "0x00020000")])
        out.append([buf_load(V(PFD + (i % 3)), V(PFD + 3), S(60, 4), S(S_T), n=1, tag="PF")])
    return out

def h_epilogue():
    s = []; e = s.append
    e(nop(7))
    for qb in range(4): e(salu("s_mov_b32", S(S_T + qb), qb*57344))
    k = 0
    for qb in range(4):
        for tp in range(2):
            pk = PREG + 4*(k % 8)
            for u in range(2):
                b = 2*tp + u
                for r in range(4):
                    gr, up = sub(ACCR(b, qb), r), sub(ACCR(4 + b, qb), r)
                    e(valu("v_max_f32", gr, 0, gr))
                    e(valu("v_mul_f32", gr, gr, up))
            for u in range(2):
                b = 2*tp + u
                for hh in range(2):
                    e(valu("v_cvt_pk_bf16_f32", V(pk + 2*u + hh), sub(ACCR(b, qb), 2*hh), sub(ACCR(b, qb), 2*hh + 1)))
            e(buf_store(V(pk, 4), V(VLANE16), S(SRD_H, 4), S(S_T + qb), offset=tp*1024, tag="H", flags=sc()))
            k += 1
    return s

def tail_windows():
    s = []
    for T in range(28, 32):
        d0, d1 = tile_dma(T, doK=False, doV=(T + 3 <= 31))
        x0, x1 = [], []
        if T == 28 and PREFETCH:
            pf = mall_prefetch()
            x0.append((34, pf[0])); x0.append((35, pf[1]))
            gi = 38
            for k in range(4):
                x0.append((gi, pf[2 + 2*k])); x0.append((gi + 5, pf[3 + 2*k])); gi += 8 if k < 3 else 0
        if T == 29:
            gi = 34
            for k in range(2):
                pre, d = dmaW(k); x0.append((gi, pre)); x0.append((gi + 1, d[0])); x0.append((gi + 9, d[1])); x0.append((gi + 10, advW("E"))); gi += 16
            gi = 34
            for k in range(2, 4):
                pre, d = dmaW(k); x1.append((gi, pre)); x1.append((gi + 1, d[0])); x1.append((gi + 9, d[1])); x1.append((gi + 10, advW("E"))); gi += 16
        if T == 30:
            for k in range(2):
                for qb, x in enumerate(loadB(k)): x0.append((35 + 16*k + 4*qb if 35 + 16*k + 4*qb < 67 else 67, x))
                x0.append((50 if k == 0 else 66, advB()))
            for k in range(2, 4):
                kk = k - 2
                for qb, x in enumerate(loadB(k)): x1.append((35 + 16*kk + 4*qb, x))
                x1.append((50 if kk == 0 else 66, advB()))
        j = 2*T
        s += window(j, T, dma=d0, bar=(T < 31), do_kread=(j + 2 <= 63), extra=x0)
        j = 2*T + 1
        s += window(j, T, dma=d1, last_qk=(j + 1 <= 63), do_kread=(j + 2 <= 63), extra=x1)
    return s

def gen_k1(name, stop=None):
    s = stamp(0) + ([raw('s_memtime s[96:97]', 'smem'), raw('s_waitcnt lgkmcnt(0)', 'other'), raw('s_mov_b32 s80, s96', 'salu')] if STEPSTAMP else []) + setup1(name)
    e = s.append
    s += flatW(0, "A"); s += flatW(1, "A"); s += flatB(0); s += flatB(1)
    s += flatW(2, "A"); s += flatW(3, "A"); s += flatW(4, "A"); s += flatB(2); s += flatB(3)
    s += setupK()
    s += flatKV(dmaK(0)); s += flatKV(dmaK(1))
    s += setup2()
    zl = [valu("v_accvgpr_write_b32", A(i), 0) for i in range(128)]
    def xf(t): return [(4*k + 2 if k < 5 else 4*k, zl[8*t + k]) for k in range(8)]
    s += stamp(1)
    wplanA = {0: [5, 6], 1: [7, 8], 2: [9, 10], 3: [11, 12], 4: [13], 5: [14], 6: [15]}
    barsA = {1: range(2, 5), 4: range(5, 9), 8: range(9, 13), 12: range(13, 16)}
    s += gemm_phase("A", wplanA, barsA, extra_fill=xf, post_bar={8: [dmaV(0), dmaV(1)], 12: [dmaV(2)]})
    s += stamp(2)
    e(barrier())
    s += flatKV(dmaK(2)); s += flatKV(dmaK(3))
    s += setup_E()
    s += qconvert()
    for i in range(16): e(valu("v_mov_b32", V(LREG + i), 0))
    for i in range(4): e(valu("v_mov_b32", V(ONES + i), "0x3f803f80"))
    s += first_max()
    s += window(-1, 0, last_qk=True, do_pv=False, do_kread=True, exp_tail=False)
    s += stamp(3)
    e(salu("s_mov_b32", S(S_LOOP), 0))
    e(LoopBegin(f"{name}_loop"))
    for T in range(4):
        d0, d1 = tile_dma(T)
        s += window(2*T, T, dma=d0, bar=True)
        s += window(2*T + 1, T, dma=d1)
    e(salu("s_add_u32", S(S_LOOP), S(S_LOOP), 1))
    e(raw(f"s_cmp_lt_u32 s{S_LOOP}, 7", "salu", rd=regs("s", S_LOOP)))
    e(raw(f"s_cbranch_scc1 {name}_loop", "branch"))
    e(LoopEnd(f"{name}_loop"))
    s += stamp(4)
    s += tail_windows()
    s += stamp(5)
    s += o_rinv()
    e(raw(f"s_cmp_ge_u32 s{S_HEAD}, 28", "salu", rd=regs("s", S_HEAD)))
    e(raw(f"s_cbranch_scc1 {name}_noE", "branch"))
    e(barrier())
    for k in range(4, 16): s += flatW(k, "E")
    s += stamp(6)
    def of(t):
        u = o_unit(t)
        pos = [2, 2, 4, 4, 6, 6, 8, 8, 10, 10, 12, 12, 14, 14, 16, 16, 18, 18, 20, 20, 30]
        return list(zip(pos, u))
    s += gemm_phase("E", {}, {1: range(2, 5), 4: range(5, 9), 8: range(9, 13), 12: range(13, 16)}, extra_fill=of)
    s += stamp(7)
    s += h_epilogue()
    e(raw(f"s_branch {name}_fin", "branch"))
    e(label(f"{name}_noE"))
    for k in range(16): s += o_unit(k)
    e(label(f"{name}_fin"))
    s += stamp(8)
    if STAMPS: e(raw("s_waitcnt vmcnt(0)", "other"))
    s += stamp(9)
    s += stamp_dump(16 if STEPSTAMP else 10)
    return finish(s, name)

def finish(s, name):
    s = [x for x in s if x is not None]
    s.append(label(f"{name}_end"))
    s.append(raw("s_endpgm", "end"))
    s = insert_waits(s)
    pr = check_hazards(s, name)
    for p in pr[:40]: print("HAZARD", p)
    if pr: print("total hazards", len(pr))
    return s, dict(vgpr=512, sgpr=102, accum=256)
```

```python
from ir import *
from k0 import srd, sload, XN_OFF, O_OFF, H_OFF, DBG_OFF
from k1 import sub, f2h

DELTA = 1
NSLOT = 8
NT_O, NT_H = 32, 14
ADDRA, VOFFW, VOFFB = 2, 6, 10
ACCS, ACCF = 128, 192
def ACC(part, nb, qb): return V((ACCS if part == 0 else ACCF) + 16*nb + 4*qb, 4)
def AF(t, nb): return A(16*(t & 1) + 4*nb, 4)
def BF(t, qb): return A(128 + 16*(t % NSLOT) + 4*qb, 4)
SRD_A0, SRD_A1, SRD_W0, SRD_W1, SRD_X, SRD_OUT = 8, 12, 16, 20, 24, 28
S_WAVE, S_RB, S_CB, S_LDSW = 3, 4, 5, 32
S_SA, S_SW = 33, 34
S_QO = 36

def gen_k2(name):
    s = []; e = s.append
    e(raw("s_cmp_ge_u32 s2, 256", "salu", rd=regs("s", 2)))
    e(raw(f"s_cbranch_scc1 {name}_end", "branch"))
    e(sload(44, 0, 2))
    e(sload(46, 32, 2))
    e(sload(48, 64, 4))
    e(sload(52, 88, 2))
    e(valu("v_and_b32", V(1), 63, V(0)))
    e(valu("v_lshrrev_b32", V(30), 6, V(0)))
    e(salu("s_and_b32", S(58), S(2), 7))
    e(valu("v_readfirstlane_b32", S(S_WAVE), V(30)))
    e(salu("s_lshr_b32", S(59), S(2), 3))
    e(salu("s_lshr_b32", S(60), S(59), 3))
    e(salu("s_lshl_b32", S(58), S(58), 2))
    e(salu("s_add_u32", S(S_RB), S(58), S(60)))
    e(salu("s_and_b32", S(S_CB), S(59), 7))
    e(raw("s_waitcnt lgkmcnt(0)", "wait")); s[-1].tag = (None, 0)
    e(salu("s_lshl_b32", S(58), S(S_RB), 9))
    e(salu("s_lshl_b32", S(59), S(S_WAVE), 5))
    e(salu("s_add_u32", S(58), S(58), S(59)))
    e(salu("s_lshl_b32", S(58), S(58), 10))
    e(salu("s_add_u32", S(58), S(58), O_OFF))
    e(salu("s_add_u32", S(SRD_A0), S(52), S(58))); e(salu("s_addc_u32", S(SRD_A0 + 1), S(53), 0))
    e(salu("s_mov_b32", S(SRD_A0 + 2), 3*131072 + 32*1024)); e(salu("s_mov_b32", S(SRD_A0 + 3), "0x00020000"))
    e(salu("s_mul_i32", S(58), S(S_RB), 224))
    e(salu("s_mul_i32", S(59), S(S_WAVE), 14))
    e(salu("s_add_u32", S(58), S(58), S(59)))
    e(salu("s_lshl_b32", S(58), S(58), 10))
    e(salu("s_add_u32", S(58), S(58), H_OFF))
    e(salu("s_add_u32", S(SRD_A1), S(52), S(58))); e(salu("s_addc_u32", S(SRD_A1 + 1), S(53), 0))
    e(salu("s_mov_b32", S(SRD_A1 + 2), 3*57344 + 14*1024)); e(salu("s_mov_b32", S(SRD_A1 + 3), "0x00020000"))
    e(salu("s_lshl_b32", S(58), S(S_WAVE), 20))
    e(salu("s_lshl_b32", S(59), S(S_CB), 7))
    e(salu("s_add_u32", S(58), S(58), S(59)))
    e(salu("s_add_u32", S(SRD_W0), S(46), S(58))); e(salu("s_addc_u32", S(SRD_W0 + 1), S(47), 0))
    e(salu("s_sub_u32", S(SRD_W0 + 2), 4096*1024, S(58))); e(salu("s_mov_b32", S(SRD_W0 + 3), "0x00020000"))
    e(salu("s_mul_i32", S(58), S(S_WAVE), 448*1024))
    e(salu("s_add_u32", S(58), S(58), S(59)))
    e(salu("s_add_u32", S(SRD_W1), S(48), S(58))); e(salu("s_addc_u32", S(SRD_W1 + 1), S(49), 0))
    e(salu("s_sub_u32", S(SRD_W1 + 2), 1792*1024, S(58))); e(salu("s_mov_b32", S(SRD_W1 + 3), "0x00020000"))
    s += srd(SRD_X, 44, 2097152)
    s += srd(SRD_OUT, 50, 2097152)
    e(salu("s_lshl_b32", S(S_LDSW), S(S_WAVE), 15))
    for qb in range(4):
        e(salu("s_mov_b32", S(S_QO + qb), qb*131072)); e(salu("s_mov_b32", S(S_QO + 4 + qb), qb*57344))
    G, RR, C, T1, T2, X = 20, 21, 22, 23, 24, 25
    e(valu("v_lshrrev_b32", V(G), 4, V(1)))
    e(valu("v_bfe_u32", V(RR), V(1), 2, 2))
    e(valu("v_and_b32", V(C), 3, V(1)))
    e(valu("v_lshl_add_u32", V(T2), V(G), 2, V(RR)))
    e(valu("v_lshlrev_b32", V(T2), 7, V(T2)))
    e(valu("v_lshl_add_u32", V(T2), V(C), 3, V(T2)))
    e(valu("v_add_u32", V(T2), S(S_LDSW), V(T2)))
    e(valu("v_and_b32", V(X), 1, V(G)))
    e(valu("v_lshlrev_b32", V(X), 1, V(X)))
    e(valu("v_lshrrev_b32", V(T1), 1, V(RR)))
    e(valu("v_add_u32", V(X), V(X), V(T1)))
    for b in range(4):
        e(valu("v_xor_b32", V(T1), b, V(X)))
        e(valu("v_lshl_add_u32", V(ADDRA + b), V(T1), 5, V(T2)))
    e(valu("v_lshrrev_b32", V(T1), 3, V(1)))
    e(valu("v_lshlrev_b32", V(T2), 10, V(T1)))
    e(valu("v_lshlrev_b32", V(X), 1, V(G)))
    e(valu("v_and_b32", V(T1), 7, V(1)))
    e(valu("v_xor_b32", V(T1), V(T1), V(X)))
    e(valu("v_lshl_add_u32", V(VOFFW), V(T1), 4, V(T2)))
    for i in range(1, 4): e(valu("v_add_u32", V(VOFFW + i), i*7168, V(VOFFW)))
    e(valu("v_lshlrev_b32", V(VOFFB), 4, V(1)))
    NT = NT_O + NT_H
    VB = 12
    for qb in range(4):
        e(valu("v_add_u32", V(VB + qb), qb*131072, V(VOFFB)))
        e(valu("v_add_u32", V(VB + 4 + qb), qb*57344, V(VOFFB)))
    e(salu("s_lshr_b32", S(58), S(2), 6))
    e(salu("s_lshl_b32", S(58), S(58), 1))
    e(salu("s_add_u32", S(58), S(58), S(S_CB)))
    e(salu("s_and_b32", S(58), S(58), 7))
    e(salu("s_mul_i32", S(58), S(58), DELTA))
    e(salu("s_lshl_b32", S(S_SA), S(58), 10))
    e(salu("s_lshl_b32", S(S_SW), S(S_SA), 5))
    e(salu("s_sub_u32", S(59), S(58), 14))
    e(raw("s_cmp_ge_u32 s58, 14", "salu", rd=regs("s", 58)))
    e(salu("s_cselect_b32", S(58), S(59), S(58)))
    e(salu("s_lshl_b32", S(35), S(58), 10))
    def loads(t):
        part = 0 if t < NT_O else 1
        tl = t if part == 0 else t - NT_O
        pre = []
        if tl == 0 and part == 1:
            pre += [salu("s_mov_b32", S(S_SA), S(35)), salu("s_lshl_b32", S(S_SW), S(35), 5)]
        pre.append(salu("s_add_u32", "m0", S(S_LDSW), (t % NSLOT)*4096))
        vm = []
        for i in range(4):
            vm.append(buf_dma(V(VOFFW + i), S(SRD_W0 if part == 0 else SRD_W1, 4), S(S_SW), offset=i*1024, tag=("W", t)))
        for qb in range(4):
            vm.append(buf_load(BF(t, qb), V(VB + 4*part + qb), S(SRD_A0 if part == 0 else SRD_A1, 4), S(S_SA), tag=("B", t)))
        if part == 0:
            post = [salu("s_add_u32", S(S_SA), S(S_SA), 1024), salu("s_and_b32", S(S_SA), S(S_SA), 32767), salu("s_lshl_b32", S(S_SW), S(S_SA), 5)]
        else:
            post = [salu("s_add_u32", S(S_SA), S(S_SA), 1024), raw(f"s_cmp_eq_u32 s{S_SA}, {14*1024}", "salu", rd=regs("s", S_SA)),
                    salu("s_cselect_b32", S(S_SA), 0, S(S_SA)), salu("s_lshl_b32", S(S_SW), S(S_SA), 5)]
        return pre, vm, post
    def rdA(t, nb, rd):
        return ds_read("ds_read_b64_tr_b16", sub(AF(t, nb), 2*rd, 2), V(ADDRA + nb), offset=(t % NSLOT)*4096 + rd*2048)
    D = NSLOT - 1
    for t in range(D):
        pre, vm, post = loads(t)
        s += pre; e(nop(0)); s += vm; s += post
    e(wait_vm(("W", 0)))
    for nb in range(4):
        for rd in range(2): e(rdA(0, nb, rd))
    for t in range(NT):
        part = 0 if t < NT_O else 1
        tl = t if part == 0 else t - NT_O
        fill = {g: [] for g in range(16)}
        postl = []
        if t + 1 < NT:
            fill[0].append(wait_vm(("W", t + 1)))
            for nb in range(4):
                fill[1 + 4*nb - (0 if nb == 0 else 0)].append(rdA(t + 1, nb, 0)); fill[3 + 4*nb].append(rdA(t + 1, nb, 1))
        if t + D < NT:
            pre, vm, post = loads(t + D)
            for x in pre: fill[0].append(x)
            for k, x in enumerate(vm): fill[2 + 2*(k % 7) + (0 if k < 7 else 0)].append(x) if k < 7 else fill[15].append(x)
            postl = post
        for nb in range(4):
            for qb in range(4):
                g = 4*nb + qb
                e(mfma16(ACC(part, nb, qb), AF(t, nb), BF(t, qb), 0 if tl == 0 else ACC(part, nb, qb)))
                f = fill[g]
                f = [x for x in f if x.kind in ("waitvm",)] + [x for x in f if x.kind == "salu"] + [x for x in f if x.kind in ("lds", "dma", "vmem")]
                s += f
                if g == 15: s += postl
    e(nop(7))
    e(barrier())
    e(valu("v_lshlrev_b32", V(20), 4, V(1)))
    e(valu("v_add_u32", V(21), S(S_LDSW), V(20)))
    for i in range(32):
        e(ds_write("ds_write_b128", V(21), V(128 + 4*i, 4), offset=i*1024))
    e(wait_raw(lgkm=0)); e(barrier())
    e(salu("s_lshl_b32", S(58), S(S_WAVE), 10))
    e(valu("v_add_u32", V(21), S(58), V(20)))
    e(valu("v_add_u32", V(22), 65536, V(21)))
    for part in range(2):
        for nb in range(4):
            for src in range(4):
                off = (src & 1)*32768 + (part*16 + nb*4)*1024
                e(ds_read("ds_read_b128", V(32 + ((part*4 + nb)*4 + src)*4, 4), V(21 if src < 2 else 22), offset=off))
    e(valu("v_and_b32", V(23), 15, V(1)))
    e(salu("s_lshl_b32", S(58), S(S_RB), 6)); e(salu("s_lshl_b32", S(59), S(S_WAVE), 4)); e(salu("s_add_u32", S(58), S(58), S(59)))
    e(valu("v_add_u32", V(23), S(58), V(23)))
    e(valu("v_lshlrev_b32", V(23), 10, V(23)))
    e(valu("v_lshrrev_b32", V(24), 4, V(1)))
    e(valu("v_lshl_add_u32", V(23), V(24), 3, V(23)))
    e(salu("s_lshl_b32", S(59), S(S_CB), 7))
    e(valu("v_add_u32", V(23), S(59), V(23)))
    XR_ = 160
    for nb in range(4):
        e(buf_load(V(XR_ + 2*nb, 2), V(23), S(SRD_X, 4), 0, offset=nb*32, n=2))
    for part in range(2):
        for nb in range(4):
            b = 32 + (part*4 + nb)*16
            for r in range(4):
                e(valu("v_add_f32", V(b + r), V(b + r), V(b + 4 + r)))
                e(valu("v_add_f32", V(b + 8 + r), V(b + 8 + r), V(b + 12 + r)))
            for r in range(4):
                e(valu("v_add_f32", V(b + r), V(b + r), V(b + 8 + r)))
    T = 168
    for nb in range(4):
        sb, fb = 32 + nb*16, 96 + nb*16
        e(valu("v_cvt_pk_bf16_f32", V(T), V(sb), V(sb + 1))); e(valu("v_cvt_pk_bf16_f32", V(T + 1), V(sb + 2), V(sb + 3)))
        e(valu("v_cvt_pk_bf16_f32", V(T + 2), V(fb), V(fb + 1))); e(valu("v_cvt_pk_bf16_f32", V(T + 3), V(fb + 2), V(fb + 3)))
        for h in range(2):
            e(valu("v_lshlrev_b32", V(sb + 2*h), 16, V(T + h))); e(valu("v_and_b32", V(sb + 2*h + 1), "0xffff0000", V(T + h)))
            e(valu("v_lshlrev_b32", V(fb + 2*h), 16, V(T + 2 + h))); e(valu("v_and_b32", V(fb + 2*h + 1), "0xffff0000", V(T + 2 + h)))
        for r in range(4): e(valu("v_mul_f32", V(T + 4 + r), f2h(-1.4426950408889634), V(fb + r)))
        for r in range(4): e(trans("v_exp_f32", V(T + 4 + r), V(T + 4 + r)))
        e(nop(0))
        for r in range(4): e(valu("v_add_f32", V(T + 4 + r), 1.0, V(T + 4 + r)))
        for r in range(4): e(trans("v_rcp_f32", V(T + 4 + r), V(T + 4 + r)))
        e(nop(0))
        for r in range(4): e(valu("v_mul_f32", V(fb + r), V(fb + r), V(T + 4 + r)))
        e(valu("v_cvt_pk_bf16_f32", V(T + 2), V(fb), V(fb + 1))); e(valu("v_cvt_pk_bf16_f32", V(T + 3), V(fb + 2), V(fb + 3)))
        for h in range(2):
            e(valu("v_lshlrev_b32", V(fb + 2*h), 16, V(T + 2 + h))); e(valu("v_and_b32", V(fb + 2*h + 1), "0xffff0000", V(T + 2 + h)))
        for r in range(4): e(valu("v_mul_f32", V(sb + r), V(sb + r), V(fb + r)))
        e(valu("v_cvt_pk_bf16_f32", V(T), V(sb), V(sb + 1))); e(valu("v_cvt_pk_bf16_f32", V(T + 1), V(sb + 2), V(sb + 3)))
        for h in range(2):
            e(valu("v_lshlrev_b32", V(sb + 2*h), 16, V(T + h))); e(valu("v_and_b32", V(sb + 2*h + 1), "0xffff0000", V(T + h)))
            e(valu("v_lshlrev_b32", V(fb + 2*h), 16, V(XR_ + 2*nb + h))); e(valu("v_and_b32", V(fb + 2*h + 1), "0xffff0000", V(XR_ + 2*nb + h)))
        for r in range(4): e(valu("v_add_f32", V(sb + r), V(sb + r), V(fb + r)))
        e(valu("v_cvt_pk_bf16_f32", V(T + 8 + 2*nb), V(sb), V(sb + 1))); e(valu("v_cvt_pk_bf16_f32", V(T + 9 + 2*nb), V(sb + 2), V(sb + 3)))
        e(buf_store(V(T + 8 + 2*nb, 2), V(23), S(SRD_OUT, 4), 0, offset=nb*32, n=2))
    e(label(f"{name}_end"))
    e(raw("s_endpgm", "end"))
    s = insert_waits(s)
    pr = check_hazards(s, name)
    for p in pr[:40]: print("HAZARD", p)
    return s, dict(vgpr=512, sgpr=96, accum=256)
```

```python
from ir import *
from k0 import sload, XN_OFF, O_OFF, H_OFF, DBG_OFF
import k1
from k1 import *

SYNC_OFF = 30 << 20
S_EPOCH = 6
S_GRP = 5
SRD_SY = 76
SPIN_MAX = 400000
TOUCH = True
NT_O, NT_H, NSLOT = 32, 14, 8

def poll_barrier(name, idx):
    s = []; e = s.append
    L = f"{name}_gb{idx}"
    e(barrier())
    e(raw(f"s_cmp_lg_u32 s{S_WAVE}, 0", "salu", rd=regs("s", S_WAVE)))
    e(raw(f"s_cbranch_scc1 {L}_skip", "branch"))
    e(salu("s_lshl_b32", S(T0_), S(S_QB), 7))
    e(salu("s_add_u32", S(T0_), S(T0_), 4096*(1 + idx)))
    e(salu("s_lshl_b32", S(T1_), S(S_HEAD), 2))
    e(salu("s_add_u32", S(T1_), S(T1_), S(T0_)))
    e(valu("v_mov_b32", V(TMP + 10), S(S_EPOCH)))
    e(valu("v_mov_b32", V(TMP + 11), 0))
    e(raw("s_mov_b64 exec, 1", "salu"))
    e(buf_store(V(TMP + 10), V(TMP + 11), S(SRD_SY, 4), S(T1_), n=1, flags="sc1"))
    e(raw("s_mov_b32 exec_lo, -1", "salu")); e(raw("s_mov_b32 exec_hi, 0", "salu"))
    e(valu("v_lshlrev_b32", V(TMP + 11), 2, V(1)))
    e(salu("s_mov_b32", S(T2_), SPIN_MAX))
    e(label(f"{L}_poll"))
    e(raw(f"buffer_load_dword v{TMP+12}, v{TMP+11}, s[{SRD_SY}:{SRD_SY+3}], s{T0_} offen sc1", "other"))
    e(raw("s_waitcnt vmcnt(0)", "other"))
    e(raw(f"v_cmp_ne_u32 vcc, s{S_EPOCH}, v{TMP+12}", "other"))
    e(raw("s_nop 4", "other"))
    e(raw(f"s_cbranch_vccz {L}_done", "branch"))
    e(raw(f"s_sub_u32 s{T2_}, s{T2_}, 1", "other"))
    e(raw(f"s_cbranch_scc1 {L}_done", "branch"))
    e(raw("s_sleep 1", "other"))
    e(raw(f"s_branch {L}_poll", "branch"))
    e(label(f"{L}_done"))
    if idx == 0:
        e(raw(f"s_cmp_lg_u32 s{S_HEAD}, 0", "salu", rd=regs("s", S_HEAD)))
        e(raw(f"s_cbranch_scc1 {L}_noep", "branch"))
        e(raw("s_mov_b64 exec, 1", "salu"))
        e(salu("s_lshl_b32", S(T0_), S(S_QB), 7))
        e(raw(f"v_mov_b32 v{TMP+11}, 0", "other"))
        e(raw(f"buffer_store_dword v{TMP+10}, v{TMP+11}, s[{SRD_SY}:{SRD_SY+3}], s{T0_} offen sc1", "other"))
        e(label(f"{L}_noep"))
    e(raw("s_mov_b64 exec, -1", "salu"))
    e(label(f"{L}_skip"))
    e(barrier())
    return s

LX = 32
def ln_loads():
    s = []; e = s.append
    e(valu("v_and_b32", V(60), 7, V(1)))
    e(valu("v_bfe_u32", V(61), V(1), 3, 2))
    e(valu("v_lshrrev_b32", V(62), 5, V(1)))
    e(salu("s_lshl_b32", S(S_T), S(S_QB), 8)); e(salu("s_lshl_b32", S(S_T + 1), S(S_HEAD), 3)); e(salu("s_add_u32", S(S_T), S(S_T), S(S_T + 1)))
    e(salu("s_lshl_b32", S(S_T), S(S_T), 10)); e(salu("s_lshl_b32", S(S_T + 1), S(S_WAVE), 8)); e(salu("s_add_u32", S(S_T), S(S_T), S(S_T + 1)))
    e(valu("v_lshlrev_b32", V(63), 10, V(60)))
    e(valu("v_lshl_add_u32", V(63), V(62), 7, V(63)))
    e(valu("v_lshl_add_u32", V(63), V(61), 3, V(63)))
    for i in range(2):
        for rd in range(2):
            e(buf_load(V(LX + 4*i + 2*rd, 2), V(63), S(60, 4), S(S_T), offset=i*64 + rd*32, n=2))
    return s

def ln_compute():
    s = []; e = s.append
    X = 40
    for p in range(8):
        e(valu("v_lshlrev_b32", V(X + 2*p), 16, V(LX + p)))
        e(valu("v_and_b32", V(X + 2*p + 1), "0xffff0000", V(LX + p)))
    def red(r, t, slot):
        o = []
        o.append(nop(1))
        o.append(valu("v_add_f32_dpp", V(r), V(r), V(r), extra="row_ror:8 row_mask:0xf bank_mask:0xf"))
        for swp in ("v_permlane16_swap_b32", "v_permlane32_swap_b32"):
            o.append(valu("v_mov_b32", V(t), V(r))); o.append(nop(1))
            o.append(valu(swp, V(t), V(r), dst_is_src=True, wr_extra=regs("v", r))); o.append(nop(1))
            o.append(valu("v_add_f32", V(r), V(r), V(t)))
        o.append(ds_write("ds_write_b32", V(58), V(r), offset=slot*128))
        o.append(wait_raw(lgkm=0)); o.append(barrier())
        for w in range(4): o.append(ds_read("ds_read_b32", V(t + w), V(59), offset=slot*128 + w*32))
        o.append(valu("v_add_f32", V(t), V(t), V(t + 1)))
        o.append(valu("v_add_f32", V(t + 2), V(t + 2), V(t + 3)))
        o.append(valu("v_add_f32", V(r), V(t), V(t + 2)))
        return o
    e(valu("v_lshlrev_b32", V(59), 2, V(60)))
    e(salu("s_lshl_b32", S(S_T + 1), S(S_WAVE), 5))
    e(valu("v_add_u32", V(58), S(S_T + 1), V(59)))
    e(valu("v_add_f32", V(56), V(X), V(X + 1)))
    e(valu("v_add_f32", V(57), V(X + 2), V(X + 3)))
    for k in range(4, 16, 2):
        e(valu("v_add_f32", V(56), V(56), V(X + k))); e(valu("v_add_f32", V(57), V(57), V(X + k + 1)))
    e(valu("v_add_f32", V(56), V(56), V(57)))
    s += red(56, 64, 0)
    e(valu("v_mul_f32", V(56), "0x3b000000", V(56)))
    e(valu("v_sub_f32", V(68), V(X), V(56))); e(valu("v_sub_f32", V(69), V(X + 1), V(56)))
    e(valu("v_mul_f32", V(70), V(68), V(68))); e(valu("v_mul_f32", V(71), V(69), V(69)))
    for k in range(2, 16, 2):
        e(valu("v_sub_f32", V(68), V(X + k), V(56))); e(valu("v_sub_f32", V(69), V(X + k + 1), V(56)))
        e(valu("v_fmac_f32", V(70), V(68), V(68), dst_is_src=True)); e(valu("v_fmac_f32", V(71), V(69), V(69), dst_is_src=True))
    e(valu("v_add_f32", V(70), V(70), V(71)))
    s += red(70, 64, 1)
    e(valu("v_mul_f32", V(70), "0x3b000000", V(70)))
    def rbf(dst, src): return [valu("v_cvt_pk_bf16_f32", V(dst), V(src), V(src)), valu("v_lshlrev_b32", V(dst), 16, V(dst))]
    s += rbf(56, 56); s += rbf(70, 70)
    e(valu("v_add_f32", V(70), "0x3727c5ac", V(70)))
    s += rbf(70, 70)
    e(trans("v_sqrt_f32", V(70), V(70))); e(nop(0))
    s += rbf(70, 70)
    e(trans("v_rcp_f32", V(71), V(70))); e(nop(0))
    e(valu("v_fma_f32", V(69), "-v70", V(71), 2.0, rd_extra=regs("v", 70)))
    e(valu("v_mul_f32", V(71), V(71), V(69)))
    for k in range(16): e(valu("v_sub_f32", V(X + k), V(X + k), V(56)))
    for p in range(8): e(valu("v_cvt_pk_bf16_f32", V(LX + p), V(X + 2*p), V(X + 2*p + 1)))
    for p in range(8):
        e(valu("v_lshlrev_b32", V(X + 2*p), 16, V(LX + p))); e(valu("v_and_b32", V(X + 2*p + 1), "0xffff0000", V(LX + p)))
    for k in range(16): e(valu("v_mul_f32", V(X + k), V(X + k), V(71)))
    for p in range(8): e(valu("v_cvt_pk_bf16_f32", V(LX + p), V(X + 2*p), V(X + 2*p + 1)))
    e(salu("s_lshl_b32", S(S_T), S(S_QB), 4)); e(salu("s_lshr_b32", S(S_T + 1), S(S_HEAD), 1)); e(salu("s_add_u32", S(S_T), S(S_T), S(S_T + 1)))
    e(salu("s_lshl_b32", S(S_T), S(S_T), 14))
    e(salu("s_lshl_b32", S(S_T + 1), S(S_WAVE), 12)); e(salu("s_add_u32", S(S_T), S(S_T), S(S_T + 1)))
    e(salu("s_and_b32", S(S_T + 1), S(S_HEAD), 1)); e(salu("s_lshl_b32", S(S_T + 1), S(S_T + 1), 7)); e(salu("s_add_u32", S(S_T), S(S_T), S(S_T + 1)))
    if XN_OFF: e(salu("s_add_u32", S(S_T), S(S_T), XN_OFF))
    e(valu("v_lshlrev_b32", V(63), 4, V(60)))
    e(valu("v_lshl_add_u32", V(63), V(61), 8, V(63)))
    e(valu("v_lshl_add_u32", V(63), V(62), 11, V(63)))
    s += mksrd(60, P_WS, None, 32 << 20)
    for i in range(2):
        e(buf_store(V(LX + 4*i, 4), V(63), S(60, 4), S(S_T), offset=i*1024, tag="XN", flags="sc1"))
    return s

def touches():
    s = []; e = s.append
    if not TOUCH: return s
    e(valu("v_bfe_u32", V(U1), V(1), 3, 2))
    e(valu("v_lshlrev_b32", V(U1), 18, V(U1)))
    e(valu("v_bfe_u32", V(U2), V(1), 1, 2))
    e(valu("v_lshl_add_u32", V(U1), V(U2), 13, V(U1)))
    e(valu("v_and_b32", V(U2), 1, V(1)))
    e(valu("v_lshl_add_u32", V(U1), V(U2), 7, V(U1)))
    e(salu("s_lshl_b32", S(S_T), S(S_WAVE), 20))
    e(salu("s_lshl_b32", S(S_T + 1), S(S_QB), 15))
    e(salu("s_add_u32", S(S_T), S(S_T), S(S_T + 1)))
    e(buf_load(V(PFD), V(U1), S(SRD_W, 4), S(S_T), n=1, tag="PF"))
    e(valu("v_lshlrev_b32", V(U2), 7, V(1)))
    e(salu("s_lshl_b32", S(S_T), S(S_QB), 13))
    e(raw(f"s_cmp_eq_u32 s{S_WAVE}, 2", "salu", rd=regs("s", S_WAVE)))
    for i in range(3): e(salu("s_cselect_b32", S(60 + i), S(SRD_K + i), S(SRD_V + i)))
    e(salu("s_mov_b32", S(63), "0x00020000"))
    e(raw(f"s_cmp_ge_u32 s{S_WAVE}, 2", "salu", rd=regs("s", S_WAVE)))
    e(salu("s_cselect_b32", S(62), S(62), 0))
    e(buf_load(V(PFD + 1), V(U2), S(60, 4), S(S_T), n=1, tag="PF"))
    return s

def final_phase(name):
    s = []; e = s.append
    ADDRA, VOFW, VOFB, VB = 2, 6, 10, 12
    ACCS, ACCF = 128, 192
    def ACC(part, nb, qb): return V((ACCS if part == 0 else ACCF) + 16*nb + 4*qb, 4)
    def AF(t, nb): return A(16*(t & 1) + 4*nb, 4)
    def BF(t, qb): return A(128 + 16*(t % NSLOT) + 4*qb, 4)
    SRD_A0, SRD_A1, SRD_W0, SRD_W1, SRD_X, SRD_OUT = 8, 12, 16, 20, 24, 28
    S_RB, S_CB, S_LDSW, S_SA, S_SW = 32, 33, 34, 35, 36
    pre = []; e = pre.append
    e(sload(44, 0, 2)); e(sload(46, 72, 2))
    e(salu("s_and_b32", S(T0_), S(S_HEAD), 7)); e(salu("s_lshr_b32", S(T1_), S(S_HEAD), 3))
    e(salu("s_lshr_b32", S(T2_), S(T0_), 1)); e(salu("s_lshl_b32", S(S_RB), S(S_QB), 2)); e(salu("s_add_u32", S(S_RB), S(S_RB), S(T2_)))
    e(salu("s_and_b32", S(T0_), S(T0_), 1)); e(salu("s_lshl_b32", S(T0_), S(T0_), 2)); e(salu("s_add_u32", S(S_CB), S(T0_), S(T1_)))
    e(salu("s_lshl_b32", S(T0_), S(S_RB), 9)); e(salu("s_lshl_b32", S(T1_), S(S_WAVE), 5)); e(salu("s_add_u32", S(T0_), S(T0_), S(T1_)))
    e(salu("s_lshl_b32", S(T0_), S(T0_), 10)); e(salu("s_add_u32", S(T0_), S(T0_), O_OFF))
    pre += mksrd(SRD_A0, P_WS, T0_, 3*131072 + 32*1024)
    e(salu("s_mul_i32", S(T0_), S(S_RB), 224)); e(salu("s_mul_i32", S(T1_), S(S_WAVE), 14)); e(salu("s_add_u32", S(T0_), S(T0_), S(T1_)))
    e(salu("s_lshl_b32", S(T0_), S(T0_), 10)); e(salu("s_add_u32", S(T0_), S(T0_), H_OFF))
    pre += mksrd(SRD_A1, P_WS, T0_, 3*57344 + 14*1024)
    e(salu("s_lshl_b32", S(T0_), S(S_WAVE), 20)); e(salu("s_lshl_b32", S(T1_), S(S_CB), 7)); e(salu("s_add_u32", S(T0_), S(T0_), S(T1_)))
    e(salu("s_sub_u32", S(T2_), 4096*1024, S(T0_)))
    pre += mksrd(SRD_W0, P_WO, T0_, S(T2_))
    e(salu("s_mul_i32", S(T0_), S(S_WAVE), 448*1024)); e(salu("s_add_u32", S(T0_), S(T0_), S(T1_)))
    e(salu("s_sub_u32", S(T2_), 1792*1024, S(T0_)))
    pre += mksrd(SRD_W1, P_WD, T0_, S(T2_))
    e(salu("s_lshl_b32", S(S_LDSW), S(S_WAVE), 15))
    G, RR, C, T1, T2, X = 20, 21, 22, 23, 24, 25
    e(valu("v_lshrrev_b32", V(G), 4, V(1))); e(valu("v_bfe_u32", V(RR), V(1), 2, 2)); e(valu("v_and_b32", V(C), 3, V(1)))
    e(valu("v_lshl_add_u32", V(T2), V(G), 2, V(RR))); e(valu("v_lshlrev_b32", V(T2), 7, V(T2)))
    e(valu("v_lshl_add_u32", V(T2), V(C), 3, V(T2))); e(valu("v_add_u32", V(T2), S(S_LDSW), V(T2)))
    e(valu("v_and_b32", V(X), 1, V(G))); e(valu("v_lshlrev_b32", V(X), 1, V(X))); e(valu("v_lshrrev_b32", V(T1), 1, V(RR))); e(valu("v_add_u32", V(X), V(X), V(T1)))
    for b in range(4):
        e(valu("v_xor_b32", V(T1), b, V(X))); e(valu("v_lshl_add_u32", V(ADDRA + b), V(T1), 5, V(T2)))
    e(valu("v_lshrrev_b32", V(T1), 3, V(1))); e(valu("v_lshlrev_b32", V(T2), 10, V(T1)))
    e(valu("v_lshlrev_b32", V(X), 1, V(G))); e(valu("v_and_b32", V(T1), 7, V(1))); e(valu("v_xor_b32", V(T1), V(T1), V(X)))
    e(valu("v_lshl_add_u32", V(VOFW), V(T1), 4, V(T2)))
    for i in range(1, 4): e(valu("v_add_u32", V(VOFW + i), i*7168, V(VOFW)))
    e(valu("v_lshlrev_b32", V(VOFB), 4, V(1)))
    for qb in range(4):
        e(valu("v_add_u32", V(VB + qb), qb*131072, V(VOFB))); e(valu("v_add_u32", V(VB + 4 + qb), qb*57344, V(VOFB)))
    e(salu("s_mov_b32", S(S_SA), 0)); e(salu("s_mov_b32", S(S_SW), 0))
    e(raw("s_waitcnt lgkmcnt(0)", "wait")); pre[-1].tag = (None, 0)
    pre += mksrd(SRD_X, 44, None, 2097152); pre += mksrd(SRD_OUT, 46, None, 2097152)
    NT = NT_O + NT_H
    D = NSLOT - 1
    def ldW(t):
        part = 0 if t < NT_O else 1
        o = []
        if t == NT_O: o.append(salu("s_mov_b32", S(S_SW), 0))
        o.append(salu("s_add_u32", "m0", S(S_LDSW), (t % NSLOT)*4096))
        d = [buf_dma(V(VOFW + i), S(SRD_W0 if part == 0 else SRD_W1, 4), S(S_SW), offset=i*1024, tag=("FW", t)) for i in range(4)]
        return o, d, [salu("s_add_u32", S(S_SW), S(S_SW), 32768)]
    def ldB(t):
        part = 0 if t < NT_O else 1
        o = []
        if t == NT_O: o.append(salu("s_mov_b32", S(S_SA), 0))
        d = [buf_load(BF(t, qb), V(VB + 4*part + qb), S(SRD_A0 if part == 0 else SRD_A1, 4), S(S_SA), tag=("FB", t), flags="sc1") for qb in range(4)]
        return o, d, [salu("s_add_u32", S(S_SA), S(S_SA), 1024)]
    def rdA(t, nb, rd):
        return ds_read("ds_read_b64_tr_b16", sub(AF(t, nb), 2*rd, 2), V(ADDRA + nb), offset=(t % NSLOT)*4096 + rd*2048)
    for t in range(D):
        o, d, p = ldW(t); pre += o; pre.append(nop(0)); pre += d; pre += p
    e = s.append
    for t in range(D):
        o, d, p = ldB(t); s += o; s += d; s += p
    for nb in range(4):
        for rd in range(2):
            if nb == 0 and rd == 0: e(wait_vm(("FW", 0)))
            e(rdA(0, nb, rd))
    for t in range(NT):
        part = 0 if t < NT_O else 1
        tl = t if part == 0 else t - NT_O
        F = Fill(16)
        post = []
        if t + 1 < NT:
            F.add(0, wait_vm(("FW", t + 1)))
            for nb in range(4):
                F.add(1 + 4*nb, rdA(t + 1, nb, 0)); F.add(3 + 4*nb, rdA(t + 1, nb, 1))
        if t + D < NT:
            o, d, p = ldW(t + D)
            F.add(0, o)
            for k, x in enumerate(d): F.add(2 + 2*k, x)
            F.add(9, p)
            o, d, p = ldB(t + D)
            if o: F.add(9, o)
            for k, x in enumerate(d): F.add(10 + 2*k if k < 3 else 15, x)
            post = p
        for nb in range(4):
            for qb in range(4):
                g = 4*nb + qb
                e(mfma16(ACC(part, nb, qb), AF(t, nb), BF(t, qb), 0 if tl == 0 else ACC(part, nb, qb)))
                s += F.emit(g)
        s += post
    e(nop(7)); e(barrier())
    e(valu("v_lshlrev_b32", V(20), 4, V(1)))
    e(valu("v_add_u32", V(21), S(S_LDSW), V(20)))
    for i in range(32): e(ds_write("ds_write_b128", V(21), V(128 + 4*i, 4), offset=i*1024))
    e(valu("v_and_b32", V(23), 15, V(1)))
    e(salu("s_lshl_b32", S(T0_), S(S_RB), 6)); e(salu("s_lshl_b32", S(T1_), S(S_WAVE), 4)); e(salu("s_add_u32", S(T0_), S(T0_), S(T1_)))
    e(valu("v_add_u32", V(23), S(T0_), V(23))); e(valu("v_lshlrev_b32", V(23), 10, V(23)))
    e(valu("v_lshrrev_b32", V(24), 4, V(1))); e(valu("v_lshl_add_u32", V(23), V(24), 3, V(23)))
    e(salu("s_lshl_b32", S(T1_), S(S_CB), 7)); e(valu("v_add_u32", V(23), S(T1_), V(23)))
    XR_ = 160
    for nb in range(4): e(buf_load(V(XR_ + 2*nb, 2), V(23), S(SRD_X, 4), 0, offset=nb*32, n=2))
    e(wait_raw(lgkm=0)); e(barrier())
    e(salu("s_lshl_b32", S(T0_), S(S_WAVE), 10))
    e(valu("v_add_u32", V(21), S(T0_), V(20))); e(valu("v_add_u32", V(22), 65536, V(21)))
    for part in range(2):
        for nb in range(4):
            for src in range(4):
                off = (src & 1)*32768 + (part*16 + nb*4)*1024
                e(ds_read("ds_read_b128", V(32 + ((part*4 + nb)*4 + src)*4, 4), V(21 if src < 2 else 22), offset=off))
    for part in range(2):
        for nb in range(4):
            b = 32 + (part*4 + nb)*16
            for r in range(4):
                e(valu("v_add_f32", V(b + r), V(b + r), V(b + 4 + r))); e(valu("v_add_f32", V(b + 8 + r), V(b + 8 + r), V(b + 12 + r)))
            for r in range(4): e(valu("v_add_f32", V(b + r), V(b + r), V(b + 8 + r)))
    T = 168
    for nb in range(4):
        sb, fb = 32 + nb*16, 96 + nb*16
        e(valu("v_cvt_pk_bf16_f32", V(T), V(sb), V(sb + 1))); e(valu("v_cvt_pk_bf16_f32", V(T + 1), V(sb + 2), V(sb + 3)))
        e(valu("v_cvt_pk_bf16_f32", V(T + 2), V(fb), V(fb + 1))); e(valu("v_cvt_pk_bf16_f32", V(T + 3), V(fb + 2), V(fb + 3)))
        for h in range(2):
            e(valu("v_lshlrev_b32", V(sb + 2*h), 16, V(T + h))); e(valu("v_and_b32", V(sb + 2*h + 1), "0xffff0000", V(T + h)))
            e(valu("v_lshlrev_b32", V(fb + 2*h), 16, V(T + 2 + h))); e(valu("v_and_b32", V(fb + 2*h + 1), "0xffff0000", V(T + 2 + h)))
        for r in range(4): e(valu("v_mul_f32", V(T + 4 + r), f2h(-1.4426950408889634), V(fb + r)))
        for r in range(4): e(trans("v_exp_f32", V(T + 4 + r), V(T + 4 + r)))
        e(nop(0))
        for r in range(4): e(valu("v_add_f32", V(T + 4 + r), 1.0, V(T + 4 + r)))
        for r in range(4): e(trans("v_rcp_f32", V(T + 4 + r), V(T + 4 + r)))
        e(nop(0))
        for r in range(4): e(valu("v_mul_f32", V(fb + r), V(fb + r), V(T + 4 + r)))
        e(valu("v_cvt_pk_bf16_f32", V(T + 2), V(fb), V(fb + 1))); e(valu("v_cvt_pk_bf16_f32", V(T + 3), V(fb + 2), V(fb + 3)))
        for h in range(2):
            e(valu("v_lshlrev_b32", V(fb + 2*h), 16, V(T + 2 + h))); e(valu("v_and_b32", V(fb + 2*h + 1), "0xffff0000", V(T + 2 + h)))
        for r in range(4): e(valu("v_mul_f32", V(sb + r), V(sb + r), V(fb + r)))
        e(valu("v_cvt_pk_bf16_f32", V(T), V(sb), V(sb + 1))); e(valu("v_cvt_pk_bf16_f32", V(T + 1), V(sb + 2), V(sb + 3)))
        for h in range(2):
            e(valu("v_lshlrev_b32", V(sb + 2*h), 16, V(T + h))); e(valu("v_and_b32", V(sb + 2*h + 1), "0xffff0000", V(T + h)))
            e(valu("v_lshlrev_b32", V(fb + 2*h), 16, V(XR_ + 2*nb + h))); e(valu("v_and_b32", V(fb + 2*h + 1), "0xffff0000", V(XR_ + 2*nb + h)))
        for r in range(4): e(valu("v_add_f32", V(sb + r), V(sb + r), V(fb + r)))
        e(valu("v_cvt_pk_bf16_f32", V(T + 8 + 2*nb), V(sb), V(sb + 1))); e(valu("v_cvt_pk_bf16_f32", V(T + 9 + 2*nb), V(sb + 2), V(sb + 3)))
        e(buf_store(V(T + 8 + 2*nb, 2), V(23), S(SRD_OUT, 4), 0, offset=nb*32, n=2))
    return pre, s

def gen_mega(name):
    k1.SC1 = True
    s = stamp(0); e = s.append
    e(raw("s_cmp_ge_u32 s2, 256", "salu", rd=regs("s", 2)))
    e(raw(f"s_cbranch_scc1 {name}_end", "branch"))
    e(sload(60, 0, 2))
    st = setup1_mega()
    s += st
    s += epoch_fix()
    s += ln_compute()
    s += flatW(0, "A"); s += flatW(1, "A")
    s += touches()
    s += flatW(2, "A"); s += flatW(3, "A"); s += flatW(4, "A")
    s += setupK()
    s += setup2()
    e(wait_vm("XN"))
    s += stamp(1)
    s += poll_barrier(name, 0)
    s += stamp(2)
    s += flatB(0); s += flatB(1); s += flatB(2); s += flatB(3)
    zl = [valu("v_accvgpr_write_b32", A(i), 0) for i in range(128)]
    def xf(t): return [(4*k + 2 if k < 5 else 4*k, zl[8*t + k]) for k in range(8)]
    wplanA = {0: [5, 6], 1: [7, 8], 2: [9, 10], 3: [11, 12], 4: [13], 5: [14], 6: [15]}
    barsA = {1: range(2, 5), 4: range(5, 9), 8: range(9, 13), 12: range(13, 16)}
    s += gemm_phase("A", wplanA, barsA, extra_fill=xf, post_bar={4: [dmaK(0)], 5: [dmaK(1)], 8: [dmaV(0), dmaV(1)], 12: [dmaV(2)]})
    s += stamp(3)
    e(barrier())
    s += flatKV(dmaK(2)); s += flatKV(dmaK(3))
    s += setup_E()
    s += qconvert()
    for i in range(16): e(valu("v_mov_b32", V(LREG + i), 0))
    for i in range(4): e(valu("v_mov_b32", V(ONES + i), "0x3f803f80"))
    s += first_max()
    s += window(-1, 0, last_qk=True, do_pv=False, do_kread=True, exp_tail=False)
    s += stamp(4)
    e(salu("s_mov_b32", S(S_LOOP), 0))
    e(LoopBegin(f"{name}_loop"))
    for T in range(4):
        d0, d1 = tile_dma(T)
        s += window(2*T, T, dma=d0, bar=True)
        s += window(2*T + 1, T, dma=d1)
    e(salu("s_add_u32", S(S_LOOP), S(S_LOOP), 1))
    e(raw(f"s_cmp_lt_u32 s{S_LOOP}, 7", "salu", rd=regs("s", S_LOOP)))
    e(raw(f"s_cbranch_scc1 {name}_loop", "branch"))
    e(LoopEnd(f"{name}_loop"))
    s += tail_windows()
    s += stamp(5)
    s += o_rinv()
    e(raw(f"s_cmp_ge_u32 s{S_HEAD}, 28", "salu", rd=regs("s", S_HEAD)))
    e(raw(f"s_cbranch_scc1 {name}_noE", "branch"))
    e(barrier())
    for k in range(4, 16): s += flatW(k, "E")
    def of(t):
        u = o_unit(t)
        pos = [2, 2, 4, 4, 6, 6, 8, 8, 10, 10, 12, 12, 14, 14, 16, 16, 18, 18, 20, 20, 30]
        return list(zip(pos, u))
    s += gemm_phase("E", {}, {1: range(2, 5), 4: range(5, 9), 8: range(9, 13), 12: range(13, 16)}, extra_fill=of)
    s += stamp(6)
    s += h_epilogue()
    e(raw(f"s_branch {name}_fin", "branch"))
    e(label(f"{name}_noE"))
    for k in range(16): s += o_unit(k)
    s += stamp(6)
    e(label(f"{name}_fin"))
    pre, fin = final_phase(name)
    e(barrier())
    s += pre[:]
    e(wait_vm("O", "H"))
    s += stamp(7)
    s += poll_barrier(name, 1)
    s += stamp(8)
    s += fin
    if STAMPS: e(raw("s_waitcnt vmcnt(0)", "other"))
    s += stamp(9)
    s += stamp_dump(10)
    return finish(s, name)

def setup1_mega():
    s = []; e = s.append
    e(sload(P_WS, 88, 2))
    e(sload(P_WQ, 24, 4)); e(sload(SRD_K, 8, 2)); e(sload(SRD_V, 16, 2)); e(sload(P_WG, 48, 4)); e(sload(P_WD, 64, 2))
    e(valu("v_and_b32", V(1), 63, V(0)))
    e(valu("v_lshrrev_b32", V(30), 6, V(0)))
    e(salu("s_and_b32", S(S_HEAD), S(2), 31))
    e(valu("v_readfirstlane_b32", S(S_WAVE), V(30)))
    e(salu("s_lshr_b32", S(S_QB), S(2), 5))
    e(salu("s_mov_b32", S(62), 2097152)); e(salu("s_mov_b32", S(63), "0x00020000"))
    e(raw("s_waitcnt lgkmcnt(0)", "wait")); s[-1].tag = (None, 0)
    s += ln_loads()
    e(salu("s_add_u32", S(SRD_SY), S(P_WS), SYNC_OFF)); e(salu("s_addc_u32", S(SRD_SY + 1), S(P_WS + 1), 0))
    e(salu("s_mov_b32", S(SRD_SY + 2), 16384)); e(salu("s_mov_b32", S(SRD_SY + 3), "0x00020000"))
    e(salu("s_lshl_b32", S(S_T + 2), S(S_QB), 7))
    e(valu("v_mov_b32", V(TMP + 11), 0))
    e(buf_load(V(TMP + 12), V(TMP + 11), S(SRD_SY, 4), S(S_T + 2), n=1, flags="sc1"))
    e(valu("v_lshrrev_b32", V(G_), 4, V(1)))
    e(valu("v_and_b32", V(N_), 15, V(1)))
    for i in range(2):
        e(valu("v_add_u32", V(U1), 4*i, V(G_)))
        e(valu("v_lshlrev_b32", V(U2), 13, V(U1)))
        e(valu("v_lshlrev_b32", V(U1), 1, V(U1)))
        e(valu("v_xor_b32", V(U1), V(U1), V(N_)))
        e(valu("v_lshl_add_u32", V(VOFFW + i), V(U1), 4, V(U2)))
        if i: e(valu("v_subrev_u32", V(VOFFW + i), 1024, V(VOFFW + i)))
    e(valu("v_lshlrev_b32", V(VLANE16), 4, V(1)))
    e(valu("v_mov_b32", V(VOFFB), V(VLANE16)))
    for qb in range(1, 4): e(valu("v_add_u32", V(VOFFB + qb), qb*16384, V(VLANE16)))
    e(salu("s_mov_b32", S(S_PHI), 0))
    e(salu("s_lshl_b32", S(S_W4K), S(S_WAVE), 12))
    e(salu("s_lshl_b32", S(S_W2K), S(S_WAVE), 11))
    e(salu("s_mov_b32", S(S_SOFFB), 0))
    e(salu("s_lshl_b32", S(S_SOFFW), S(S_WAVE), 16))
    e(salu("s_lshl_b32", S(S_T), S(S_HEAD), 8))
    e(salu("s_sub_u32", S(S_T + 1), 4194304, S(S_T)))
    s += mksrd(SRD_W, P_WQ, S_T, S(S_T + 1))
    e(salu("s_lshl_b32", S(S_T), S(S_QB), 4)); e(salu("s_lshl_b32", S(S_T + 1), S(S_WAVE), 2)); e(salu("s_add_u32", S(S_T), S(S_T), S(S_T + 1)))
    e(salu("s_lshl_b32", S(S_T), S(S_T), 14))
    if XN_OFF: e(salu("s_add_u32", S(S_T), S(S_T), XN_OFF))
    s += mksrd(SRD_XN, P_WS, S_T, 65536)
    e(salu("s_lshl_b32", S(S_T), S(S_HEAD), 19))
    for b in (SRD_K, SRD_V):
        e(salu("s_add_u32", S(b), S(b), S(S_T))); e(salu("s_addc_u32", S(b + 1), S(b + 1), 0))
        e(salu("s_mov_b32", S(b + 2), 524288)); e(salu("s_mov_b32", S(b + 3), "0x00020000"))
    return s

def epoch_fix():
    return [valu("v_readfirstlane_b32", S(S_EPOCH), V(TMP + 12)), nop(3), salu("s_add_u32", S(S_EPOCH), S(S_EPOCH), 1)]
```

```python
import sys
from ir import render
import k0, k1, k2, mega

NAME = "recurrent_scan__mha_block_cached__glu_gated_reglu__prompt"
HDR = open("cdna_kernels/" + NAME + ".s.ref").read().split("\n")

def build(stop=None, kernels=("k0", "k1", "k2")):
    head = [l for l in HDR if l.startswith(";") and "@launch" not in l and "Override launch" not in l and "grid=ceil" not in l]
    launches = {"k0": "; @launch kernel=ln_kernel grid=(256,1,1) block=(128,1,1) lds=0",
                "k1": f"; @launch kernel=attn_kernel grid=(256,1,1) block=(256,1,1) lds={k1.LDS_BYTES}",
                "k2": "; @launch kernel=final_kernel grid=(256,1,1) block=(256,1,1) lds=131072",
                "mega": f"; @launch kernel=mega_kernel grid=(256,1,1) block=(256,1,1) lds={k1.LDS_BYTES}"}
    out = head + [launches[k] for k in kernels]
    out.append('.amdgcn_target "amdgcn-amd-amdhsa--gfx950"')
    out.append(".text")
    descs = []
    for k, nm, fn in (("k0", "ln_kernel", lambda n: k0.gen_k0(n)), ("k1", "attn_kernel", lambda n: k1.gen_k1(n, stop=stop)), ("k2", "final_kernel", lambda n: k2.gen_k2(n)), ("mega", "mega_kernel", lambda n: mega.gen_mega(n))):
        if k not in kernels: continue
        st, res = fn(nm)
        out.append(f".globl {nm}\n.p2align 8\n.type {nm},@function\n{nm}:")
        out.append(render(st))
        descs.append(f""".amdhsa_kernel {nm}
  .amdhsa_next_free_vgpr {res['vgpr']}
  .amdhsa_next_free_sgpr {res['sgpr']}
  .amdhsa_accum_offset {res['accum']}
  .amdhsa_group_segment_fixed_size 0
  .amdhsa_kernarg_size 96
  .amdhsa_user_sgpr_count 2
  .amdhsa_user_sgpr_kernarg_segment_ptr 1
  .amdhsa_system_sgpr_workgroup_id_x 1
.end_amdhsa_kernel""")
    out.append('.section .rodata,"a"')
    for d in descs:
        out.append(".p2align 6"); out.append(d)
    return "\n".join(out) + "\n"

if __name__ == "__main__":
    import argparse
    ap = argparse.ArgumentParser()
    ap.add_argument("-o", default="full.s")
    ap.add_argument("--stop", default=None)
    ap.add_argument("--kernels", default="k0,k1,k2")
    ap.add_argument("--stamps", action="store_true")
    ap.add_argument("--delta", type=int, default=1)
    ap.add_argument("--stepstamp", default=None)
    ap.add_argument("--norot", action="store_true")
    a = ap.parse_args()
    k1.STAMPS = a.stamps; k2.STAMPS = a.stamps
    k2.DELTA = a.delta
    k1.STEPSTAMP = a.stepstamp
    if a.stepstamp: k1.STAMPS = True
    k1.ROT = not a.norot
    t = build(stop=a.stop, kernels=a.kernels.split(","))
    open(a.o, "w").write(t)
    print("wrote", a.o, len(t), "bytes")
```

```python
from ir import *
from k0 import srd, sload, XN_OFF, O_OFF, H_OFF, DBG_OFF

KR, VR, XR = 0, 65536, 131072
LDS_BYTES = 163840
ADDRK, ADDRV, VOFFK, VOFFV, ADDRW, VOFFW, VOFFB = 2, 6, 14, 18, 20, 24, 26
SREG, PREG, NEGM, TMP = 32, 64, 96, 112
VLANE16 = 30
PFD = 124
ACC = 128
LREG, ONES = 128, 160
def QF(qb, ds): return V(ACC + 16*(2*ds + 1) + 4*qb, 4)
def ACCR(db, qb): return V(ACC + 16*db + 4*qb, 4)
def OACC(db, qb): return A(16*db + 4*qb, 4)
def KF(f): return A(192 + 4*f, 4)
def VF(f): return A(224 + 4*f, 4)
def AF(t, db): return A(192 + 32*(t & 1) + 4*db, 4)
BRING_E = False
def BF(t, qb):
    if BRING_E:
        k = t % 6
        if k < 4: return A(128 + 16*k + 4*qb, 4)
        return V((96 if k == 4 else 2) + 4*qb, 4)
    return A(128 + 16*(t & 3) + 4*qb, 4)
def SR(kb, qb, r=None): return V(SREG + 16*kb + 4*qb, 4) if r is None else V(SREG + 16*kb + 4*qb + r)
def PR(buf, qb, i=None): return V(PREG + 16*buf + 4*qb, 4) if i is None else V(PREG + 16*buf + 4*qb + i)
S_WAVE, S_HEAD, S_QB = 3, 4, 5
SRD_K, SRD_V, SRD_W, SRD_XN, SRD_O, SRD_H = 8, 12, 16, 20, 24, 28
S_SOFFK, S_SOFFV, S_W4K, S_W2K, S_PHI, S_SOFFB, S_LOOP, S_SOFFW, S_TMPW = 32, 33, 34, 35, 36, 37, 40, 41, 43
S_T = 44
P_KV, P_WQ, P_WO, P_WG, P_WD, P_WS = 44, 48, 50, 52, 56, 58
T0_, T1_, T2_, T3_ = 60, 61, 62, 63
DOFF = 40.0
QSCALE = 1.4426950408889634 / (128 ** 0.5)
STAMPS = False
ROT = True
PREFETCH = True
SC1 = False
def sc(): return 'sc1' if SC1 else ''

def f2h(x):
    import struct
    return "0x%08x" % struct.unpack("<I", struct.pack("<f", x))[0]

def slotW(t):
    if t < 4: return XR + 8192*t
    if t < 12: return VR + 8192*(t - 4)
    return 32768 + 8192*(t - 12)

def sub(x, off, n=1):
    k, b, _ = x
    return (k, b + off, n)

class Fill:
    def __init__(self, n): self.g = [dict(S=[], M=[], V=[]) for _ in range(n)]
    def add(self, g, x):
        xs = x if isinstance(x, list) else [x]
        k = xs[0].kind
        c = "S" if k in ("salu", "waitvm", "wait") else ("M" if k in ("lds", "dma", "vmem", "store", "ldsw") else "V")
        self.g[g][c] += xs
    def emit(self, g): return self.g[g]["S"] + self.g[g]["M"] + self.g[g]["V"]

STEPSTAMP = None
def sstamp(kind, t):
    if STEPSTAMP != kind: return []
    return [raw("s_memtime s[96:97]", "smem"), raw("s_waitcnt lgkmcnt(0)", "other"), raw(f"s_mov_b32 s{64+t}, s96", "salu")]
_cs = [0]
def cstamp(mode):
    if STEPSTAMP != mode: return []
    i = _cs[0]; _cs[0] += 1
    assert i < 11
    return [raw("s_memtime s[96:97]", "smem"), raw("s_waitcnt lgkmcnt(0)", "other"), raw(f"s_mov_b32 s{64+i}, s96", "salu")]
def stamp(i):
    if not STAMPS or STEPSTAMP: return []
    return [raw("s_memtime s[96:97]", "smem"), raw("s_memrealtime s[98:99]", "smem"), raw("s_waitcnt lgkmcnt(0)", "other"),
            raw(f"s_mov_b32 s{64+i}, s96", "salu"), raw(f"s_mov_b32 s{80+i}, s98", "salu")]
def stamp_dump(n):
    if not STAMPS: return []
    s = []; e = s.append
    e(salu("s_lshl_b32", S(T0_), S(2), 2)); e(salu("s_add_u32", S(T0_), S(T0_), S(S_WAVE)))
    e(salu("s_lshl_b32", S(T0_), S(T0_), 7))
    e(salu("s_add_u32", S(T0_), S(T0_), DBG_OFF))
    e(salu("s_add_u32", S(8), S(P_WS), S(T0_))); e(salu("s_addc_u32", S(9), S(P_WS + 1), 0))
    e(salu("s_mov_b32", S(10), 128)); e(salu("s_mov_b32", S(11), "0x00020000"))
    e(valu("v_mov_b32", V(31), 0))
    for i in range(n):
        e(valu("v_mov_b32", V(30), S(64 + i))); e(buf_store(V(30), V(31), S(8, 4), 0, offset=4*i, n=1)); e(nop(1))
        e(valu("v_mov_b32", V(30), S(80 + i))); e(buf_store(V(30), V(31), S(8, 4), 0, offset=64 + 4*i, n=1)); e(nop(1))
    return s

def mksrd(base, ptr, off_s, size):
    o = []
    if off_s is None:
        o += [salu("s_mov_b32", S(base), S(ptr)), salu("s_mov_b32", S(base + 1), S(ptr + 1))]
    else:
        o += [salu("s_add_u32", S(base), S(ptr), S(off_s)), salu("s_addc_u32", S(base + 1), S(ptr + 1), 0)]
    o += [salu("s_mov_b32", S(base + 2), size), salu("s_mov_b32", S(base + 3), "0x00020000")]
    return o

G_, N_, RR_, C_, U1, U2, ROW8, ROWB, CH = 112, 113, 114, 115, 116, 117, 118, 119, 120

def setup1(name):
    s = []; e = s.append
    e(raw("s_cmp_ge_u32 s2, 256", "salu", rd=regs("s", 2)))
    e(raw(f"s_cbranch_scc1 {name}_end", "branch"))
    e(sload(P_WQ, 24, 4))
    e(sload(P_WS, 88, 2))
    e(sload(P_KV, 8, 4))
    e(sload(P_WG, 48, 4))
    e(sload(P_WD, 64, 2))
    e(valu("v_and_b32", V(1), 63, V(0)))
    e(valu("v_lshrrev_b32", V(30), 6, V(0)))
    e(salu("s_and_b32", S(S_HEAD), S(2), 31))
    e(valu("v_readfirstlane_b32", S(S_WAVE), V(30)))
    e(salu("s_lshr_b32", S(S_QB), S(2), 5))
    e(valu("v_lshrrev_b32", V(G_), 4, V(1)))
    e(valu("v_and_b32", V(N_), 15, V(1)))
    for i in range(2):
        e(valu("v_add_u32", V(U1), 4*i, V(G_)))
        e(valu("v_lshlrev_b32", V(U2), 13, V(U1)))
        e(valu("v_lshlrev_b32", V(U1), 1, V(U1)))
        e(valu("v_xor_b32", V(U1), V(U1), V(N_)))
        e(valu("v_lshl_add_u32", V(VOFFW + i), V(U1), 4, V(U2)))
        if i: e(valu("v_subrev_u32", V(VOFFW + i), 1024, V(VOFFW + i)))
    e(valu("v_lshlrev_b32", V(VLANE16), 4, V(1)))
    e(valu("v_mov_b32", V(VOFFB), V(VLANE16)))
    for qb in range(1, 4):
        e(valu("v_add_u32", V(VOFFB + qb), qb*16384, V(VLANE16)))
    e(salu("s_lshr_b32", S(T0_), S(S_HEAD), 3))
    e(salu("s_lshl_b32", S(T0_), S(T0_), 2))
    e(salu("s_lshl_b32", S(T1_), S(S_QB), 1))
    e(salu("s_add_u32", S(S_PHI), S(T0_), S(T1_)))
    e(salu("s_and_b32", S(S_PHI), S(S_PHI), 15 if ROT else 0))
    e(salu("s_lshl_b32", S(S_W4K), S(S_WAVE), 12))
    e(salu("s_lshl_b32", S(S_W2K), S(S_WAVE), 11))
    e(salu("s_lshl_b32", S(S_SOFFB), S(S_PHI), 10))
    e(salu("s_lshl_b32", S(S_SOFFW), S(S_PHI), 18))
    e(salu("s_lshl_b32", S(T0_), S(S_WAVE), 16))
    e(salu("s_add_u32", S(S_SOFFW), S(S_SOFFW), S(T0_)))
    e(salu("s_lshl_b32", S(T3_), S(S_QB), 4))
    e(salu("s_lshl_b32", S(T2_), S(S_WAVE), 2))
    e(salu("s_add_u32", S(T3_), S(T3_), S(T2_)))
    e(raw("s_waitcnt lgkmcnt(0)", "wait")); s[-1].tag = (None, 0)
    e(salu("s_lshl_b32", S(T0_), S(S_HEAD), 8))
    e(salu("s_sub_u32", S(T1_), 4194304, S(T0_)))
    s += mksrd(SRD_W, P_WQ, T0_, S(T1_))
    e(salu("s_lshl_b32", S(T0_), S(T3_), 14))
    e(salu("s_add_u32", S(T0_), S(T0_), XN_OFF)) if XN_OFF else None
    s += mksrd(SRD_XN, P_WS, T0_, 65536)
    e(salu("s_lshl_b32", S(T0_), S(S_HEAD), 19))
    s += mksrd(SRD_K, P_KV, T0_, 524288)
    s += mksrd(SRD_V, P_KV + 2, T0_, 524288)
    return s

def setup2():
    s = []; e = s.append
    e(salu("s_lshl_b32", S(T3_), S(S_QB), 4))
    e(salu("s_lshl_b32", S(T2_), S(S_WAVE), 2))
    e(salu("s_add_u32", S(T3_), S(T3_), S(T2_)))
    e(salu("s_lshl_b32", S(T0_), S(T3_), 7))
    e(salu("s_lshl_b32", S(T1_), S(S_HEAD), 2))
    e(salu("s_add_u32", S(T0_), S(T0_), S(T1_)))
    e(salu("s_lshl_b32", S(T0_), S(T0_), 10))
    e(salu("s_add_u32", S(T0_), S(T0_), O_OFF))
    s += mksrd(SRD_O, P_WS, T0_, 3*131072 + 4096)
    e(salu("s_mul_i32", S(T0_), S(T3_), 56))
    e(salu("s_lshl_b32", S(T1_), S(S_HEAD), 1))
    e(salu("s_add_u32", S(T0_), S(T0_), S(T1_)))
    e(salu("s_lshl_b32", S(T0_), S(T0_), 10))
    e(salu("s_add_u32", S(T0_), S(T0_), H_OFF))
    s += mksrd(SRD_H, P_WS, T0_, 3*57344 + 2048)
    e(valu("v_bfe_u32", V(RR_), V(1), 2, 2))
    e(valu("v_and_b32", V(C_), 3, V(1)))
    e(valu("v_and_b32", V(ROW8), 1, V(G_)))
    e(valu("v_lshl_add_u32", V(ROW8), V(ROW8), 2, V(RR_)))
    e(valu("v_lshl_add_u32", V(ROWB), V(G_), 2, V(RR_)))
    e(valu("v_lshlrev_b32", V(U2), 8, V(ROWB)))
    e(valu("v_and_b32", V(U1), 1, V(C_)))
    e(valu("v_lshl_add_u32", V(U2), V(U1), 4, V(U2)))
    e(valu("v_add_u32", V(U2), XR, V(U2)))
    e(valu("v_lshrrev_b32", V(CH), 1, V(C_)))
    for ds in range(4):
        e(valu("v_add_u32", V(U1), 2*ds, V(CH)))
        e(valu("v_xor_b32", V(U1), V(U1), V(ROW8)))
        e(valu("v_lshl_add_u32", V(ADDRW + ds), V(U1), 5, V(U2)))
    for ds in range(4):
        e(valu("v_add_u32", V(U1), 4*ds, V(G_)))
        e(valu("v_xor_b32", V(U1), V(U1), V(N_)))
        e(valu("v_lshlrev_b32", V(U1), 4, V(U1)))
        e(valu("v_lshl_add_u32", V(ADDRK + ds), V(N_), 8, V(U1)))
    e(valu("v_lshlrev_b32", V(U2), 8, V(ROWB)))
    e(valu("v_lshl_add_u32", V(U2), V(C_), 3, V(U2)))
    e(valu("v_add_u32", V(U2), VR, V(U2)))
    for db in range(8):
        e(valu("v_xor_b32", V(U1), db, V(ROW8)))
        e(valu("v_lshl_add_u32", V(ADDRV + db), V(U1), 5, V(U2)))
    for i in range(2):
        e(valu("v_add_u32", V(U1), 4*i, V(G_)))
        e(valu("v_lshlrev_b32", V(U1), 1, V(U1)))
        e(valu("v_xor_b32", V(U1), V(U1), V(N_)))
        e(valu("v_lshlrev_b32", V(U1), 4, V(U1)))
        e(valu("v_lshl_add_u32", V(VOFFV + i), V(G_), 8, V(U1)))
    return s

def setupK():
    s = []; e = s.append
    for i in range(4):
        e(valu("v_add_u32", V(U1), 4*i, V(G_)))
        e(valu("v_xor_b32", V(U1), V(U1), V(N_)))
        e(valu("v_lshlrev_b32", V(U1), 4, V(U1)))
        e(valu("v_lshl_add_u32", V(VOFFK + i), V(G_), 8, V(U1)))
    e(salu("s_mov_b32", S(S_SOFFK), S(S_W4K)))
    e(salu("s_mov_b32", S(S_SOFFV), S(S_W4K)))
    return s

def dmaK(slot):
    pre = salu("s_add_u32", "m0", S(S_W4K), KR + slot*16384)
    d = [buf_dma(V(VOFFK + i), S(SRD_K, 4), S(S_SOFFK), offset=i*1024, tag=("K", slot)) for i in range(4)]
    adv = salu("s_add_u32", S(S_SOFFK), S(S_SOFFK), 16384)
    return pre, d, adv
def dmaV(slot):
    pre = salu("s_add_u32", "m0", S(S_W4K), VR + slot*16384)
    d = [buf_dma(V(VOFFV + (i & 1)), S(SRD_V, 4), S(S_SOFFV), offset=i*1024, tag=("V", slot)) for i in range(4)]
    adv = salu("s_add_u32", S(S_SOFFV), S(S_SOFFV), 16384)
    return pre, d, adv
def dmaW(t):
    pre = salu("s_add_u32", "m0", S(S_W2K), slotW(t))
    d = [buf_dma(V(VOFFW + i), S(SRD_W, 4), S(S_SOFFW), offset=i*1024, tag=("W", t)) for i in range(2)]
    return pre, d
def loadB(t):
    return [buf_load(BF(t, qb), V(VOFFB + qb), S(SRD_XN, 4), S(S_SOFFB), tag=("B", t), flags=sc()) for qb in range(4)]
def advB():
    return [salu("s_add_u32", S(S_SOFFB), S(S_SOFFB), 1024), salu("s_and_b32", S(S_SOFFB), S(S_SOFFB), 16383)]
def advW(kind):
    if kind == "A":
        return [salu("s_add_u32", S(S_SOFFW), S(S_SOFFW), 262144), salu("s_and_b32", S(S_SOFFW), S(S_SOFFW), 16*262144 - 1)]
    ws = 32*3584
    return [salu("s_add_u32", S(S_SOFFW), S(S_SOFFW), ws), salu("s_sub_u32", S(S_TMPW), S(S_SOFFW), 16*ws),
            raw(f"s_cmp_ge_u32 s{S_SOFFW}, {16*ws}", "salu", rd=regs("s", S_SOFFW)), salu("s_cselect_b32", S(S_SOFFW), S(S_TMPW), S(S_SOFFW))]
def flatW(t, kind):
    pre, d = dmaW(t); return [pre, nop(0)] + d + advW(kind)
def flatB(t): return loadB(t) + advB()
def flatKV(p):
    pre, d, adv = p; return [pre, nop(0)] + d + [adv]

def readA_q(t, db, rd):
    ds, u = db >> 1, db & 1
    base = XR if t < 4 else (VR if t < 12 else 0)
    return ds_read("ds_read_b64_tr_b16", sub(AF(t, db), 2*rd, 2), V(ADDRW + ds), offset=slotW(t) - base + rd*4096 + 8*u)
def readA_e(t, db, rd):
    mat, b = db >> 2, db & 3
    base = XR if t < 4 else (VR if t < 12 else 0)
    return ds_read("ds_read_b64_tr_b16", sub(AF(t, db), 2*rd, 2), V(ADDRW + b), offset=slotW(t) - base + mat*4096 + rd*2048)

def gemm_phase(kind, wplan, bars, extra_fill=None, post_bar=None, first_bar=True):
    s = []; e = s.append
    rdA = readA_q if kind == "A" else readA_e
    e(wait_vm(("W", 0), ("W", 1)))
    e(barrier())
    for db in range(8):
        for rd in range(2): e(rdA(0, db, rd))
    for t in range(16):
        s += sstamp(kind, t)
        if t in bars:
            e(wait_vm(*[("W", k) for k in bars[t]])); e(barrier())
        F = Fill(32)
        gi = 0
        for p in (post_bar or {}).get(t, []):
            pre, d, adv = p
            F.add(gi, pre)
            for k, x in enumerate(d): F.add(gi + 2 + 2*k, x)
            F.add(gi + 9, adv)
            gi += 10
        if t + 1 in (4, 12):
            for i in range(4): e(valu("v_subrev_u32", V(ADDRW + i), 65536, V(ADDRW + i)))
        if t + 1 < 16:
            for db in range(8):
                F.add(4*db + 1, rdA(t + 1, db, 0)); F.add(4*db + 3, rdA(t + 1, db, 1))
        la = 5 if BRING_E else 3
        if t >= 1 and t + la < 16:
            for qb, x in enumerate(loadB(t + la)): F.add(22 + 2*qb, x)
            F.add(29, advB())
        for k in wplan.get(t, []):
            pre, d = dmaW(k)
            F.add(gi, pre); F.add(gi + 2, d[0]); F.add(gi + 4, d[1]); F.add(gi + 5, advW(kind))
            gi += 6
        assert gi <= 22
        if extra_fill:
            for g, x in extra_fill(t): F.add(g, x)
        for db in range(8):
            for qb in range(4):
                g = 4*db + qb
                e(mfma16(ACCR(db, qb), AF(t, db), BF(t, qb), 0 if t == 0 else ACCR(db, qb)))
                s += F.emit(g)
    return s

def window(j, T, last_qk=True, do_pv=True, do_kread=True, dma=None, bar=False, exp_tail=True, extra=None, mid=None):
    s = []; e = s.append
    par = j & 1
    NG = 68
    F = Fill(NG)
    pb_cur = par; pb_nxt = par ^ 1
    def ex(kb, idx):
        qb, r = idx >> 2, idx & 3
        return trans("v_exp_f32", SR(kb, qb, r), SR(kb, qb, r))
    def cv(kb, pair, pb):
        qb, h = pair >> 1, pair & 1
        return valu("v_cvt_pk_bf16_f32", PR(pb, qb, 2*kb + h), SR(kb, qb, 2*h), SR(kb, qb, 2*h + 1))
    if do_pv:
        voff = ((j >> 1) & 3)*16384 + (j & 1)*8192
        for db in range(8):
            for rd in range(2):
                F.add(4*db + 1 + 2*rd, ds_read("ds_read_b64_tr_b16", sub(VF(db), 2*rd, 2), V(ADDRV + db), offset=voff + rd*4096))
    if do_kread:
        b = j + 2
        koff = ((b >> 1) & 3)*16384 + (b & 1)*8192
        for f in range(8):
            kb, ds = f >> 2, f & 3
            F.add(33 + 4*f, ds_read("ds_read_b128", KF(f), V(ADDRK + ds), offset=koff + kb*4096))
    if exp_tail:
        for i in range(7): F.add(2*i, ex(1, 9 + i))
        for pair, g in ((4, 1), (5, 5), (6, 9), (7, 13)): F.add(g, cv(1, pair, pb_cur))
    if last_qk:
        for i in range(16): F.add(18 + 2*i, ex(0, i))
        for i in range(9): F.add(50 + 2*i, ex(1, i))
        for pair in range(8): F.add(18 + 4*pair + 3, cv(0, pair, pb_nxt))
        for pair in range(4): F.add(50 + 4*pair + 3, cv(1, pair, pb_nxt))
    for g, x in (dma or []): F.add(g, x)
    for g, x in (extra or []): F.add(g, x)
    mf = []
    for kb in range(2):
        for ds in range(4):
            for qb in range(4):
                mf.append(mfma16(SR(kb, qb), KF(4*kb + ds), QF(qb, ds), V(NEGM + 4*qb, 4) if ds == 0 else SR(kb, qb)) if last_qk else None)
    for db in range(8):
        for qb in range(4):
            mf.append(mfma16(OACC(db, qb), VF(db), PR(pb_cur, qb), OACC(db, qb)) if do_pv else None)
        if db & 1:
            qb = db >> 1
            mf.append(mfma16(V(LREG + 4*qb, 4), V(ONES, 4), PR(pb_cur, qb), V(LREG + 4*qb, 4)) if do_pv else None)
    assert len(mf) == NG
    for g in range(NG):
        if g == 32 and mid: s += mid
        if g == 32 and bar:
            e(wait_vm(("K", (T + 1) & 3), ("V", (T + 1) & 3))); e(barrier())
        if mf[g] is not None: e(mf[g])
        else: e(nop(0))
        if j == -1 and g == 16: e(nop(3))
        s += F.emit(g)
    return s

def tile_dma(T, doK=True, doV=True):
    w0, w1 = [], []
    if doK:
        pre, d, adv = dmaK(T & 3)
        w0.append((34, pre))
        for k, x in enumerate(d): w0.append((35 + 8*k, x))
        w0.append((66, adv))
    if doV:
        pre, d, adv = dmaV((T + 3) & 3)
        w1.append((34, pre))
        for k, x in enumerate(d): w1.append((35 + 8*k, x))
        w1.append((66, adv))
    return w0, w1

def first_max():
    s = []; e = s.append
    e(wait_vm(("K", 0), ("K", 1))); e(barrier())
    for f in range(8):
        kb, ds = f >> 2, f & 3
        e(ds_read("ds_read_b128", KF(f), V(ADDRK + ds), offset=kb*4096))
    for kb in range(2):
        for ds in range(4):
            for qb in range(4):
                e(mfma16(SR(kb, qb), KF(4*kb + ds), QF(qb, ds), 0 if ds == 0 else SR(kb, qb)))
    e(nop(7))
    M = TMP
    for qb in range(4):
        e(valu("v_max3_f32", V(M + qb), SR(0, qb, 0), SR(0, qb, 1), SR(0, qb, 2)))
        e(valu("v_max3_f32", V(M + qb), V(M + qb), SR(0, qb, 3), SR(1, qb, 0)))
        e(valu("v_max3_f32", V(M + qb), V(M + qb), SR(1, qb, 1), SR(1, qb, 2)))
        e(valu("v_max_f32", V(M + qb), V(M + qb), SR(1, qb, 3)))
    for swp in ("v_permlane16_swap_b32", "v_permlane32_swap_b32"):
        for qb in range(4): e(valu("v_mov_b32", V(M + 4 + qb), V(M + qb)))
        e(nop(1))
        for qb in range(4): e(valu(swp, V(M + 4 + qb), V(M + qb), dst_is_src=True, wr_extra=regs("v", M + qb)))
        e(nop(1))
        for qb in range(4): e(valu("v_max_f32", V(M + qb), V(M + qb), V(M + 4 + qb)))
    for qb in range(4):
        e(valu("v_sub_f32", V(M + qb), f2h(-DOFF), V(M + qb)))
    for qb in range(4):
        for r in range(4): e(valu("v_mov_b32", V(NEGM + 4*qb + r), V(M + qb)))
    return s

def qconvert():
    s = []; e = s.append
    e(salu("s_mov_b32", S(S_T), f2h(QSCALE)))
    e(nop(7))
    for ds in range(4):
        for qb in range(4):
            a0, a1 = ACCR(2*ds, qb), ACCR(2*ds + 1, qb)
            for r in range(4):
                e(valu("v_mul_f32", sub(a0, r), S(S_T), sub(a0, r)))
                e(valu("v_mul_f32", sub(a1, r), S(S_T), sub(a1, r)))
            e(valu("v_cvt_pk_bf16_f32", sub(a1, 3), sub(a1, 2), sub(a1, 3)))
            e(valu("v_cvt_pk_bf16_f32", sub(a1, 2), sub(a1, 0), sub(a1, 1)))
            e(valu("v_cvt_pk_bf16_f32", sub(a1, 1), sub(a0, 2), sub(a0, 3)))
            e(valu("v_cvt_pk_bf16_f32", sub(a1, 0), sub(a0, 0), sub(a0, 1)))
    return s

RI = TMP
def o_rinv():
    s = []; e = s.append
    e(nop(7))
    for qb in range(4): e(trans("v_rcp_f32", V(RI + qb), V(LREG + 4*qb)))
    e(nop(0))
    for qb in range(4): e(valu("v_fma_f32", V(RI + 4 + qb), f"-v{LREG + 4*qb}", V(RI + qb), 2.0, rd_extra=regs("v", LREG + 4*qb)))
    for qb in range(4): e(valu("v_mul_f32", V(RI + qb), V(RI + qb), V(RI + 4 + qb)))
    for qb in range(4): e(salu("s_mov_b32", S(S_T + qb), qb*131072))
    return s
def o_unit(k):
    qb, dp = k >> 2, k & 3
    t = SREG + 8*(k % 4); pk = PREG + 4*(k % 8)
    o = []
    for u in range(2):
        for r in range(4): o.append(valu("v_accvgpr_read_b32", V(t + 4*u + r), sub(OACC(2*dp + u, qb), r)))
    for i in range(8): o.append(valu("v_mul_f32", V(t + i), V(t + i), V(RI + qb)))
    for i in range(4): o.append(valu("v_cvt_pk_bf16_f32", V(pk + i), V(t + 2*i), V(t + 2*i + 1)))
    o.append(buf_store(V(pk, 4), V(VLANE16), S(SRD_O, 4), S(S_T + qb), offset=dp*1024, tag="O", flags=sc()))
    return o

def setup_E():
    s = []; e = s.append
    e(raw(f"s_cmp_ge_u32 s{S_WAVE}, 2", "salu", rd=regs("s", S_WAVE)))
    e(salu("s_cselect_b32", S(T0_), S(P_WG + 2), S(P_WG)))
    e(salu("s_cselect_b32", S(T1_), S(P_WG + 3), S(P_WG + 1)))
    e(salu("s_lshl_b32", S(T2_), S(S_HEAD), 7))
    e(salu("s_add_u32", S(SRD_W), S(T0_), S(T2_)))
    e(salu("s_addc_u32", S(SRD_W + 1), S(T1_), 0))
    e(salu("s_sub_u32", S(SRD_W + 2), 512*3584, S(T2_)))
    e(salu("s_mov_b32", S(SRD_W + 3), "0x00020000"))
    e(salu("s_and_b32", S(T2_), S(S_WAVE), 1))
    e(salu("s_mul_i32", S(S_SOFFW), S(T2_), 16*3584))
    e(salu("s_mul_i32", S(T2_), S(S_PHI), 32*3584))
    e(salu("s_add_u32", S(S_SOFFW), S(S_SOFFW), S(T2_)))
    e(salu("s_lshl_b32", S(S_SOFFB), S(S_PHI), 10))
    X = ROW8
    e(valu("v_lshlrev_b32", V(U2), 7, V(ROWB)))
    e(valu("v_lshl_add_u32", V(U2), V(C_), 3, V(U2)))
    e(valu("v_add_u32", V(U2), XR, V(U2)))
    e(valu("v_and_b32", V(CH), 1, V(G_)))
    e(valu("v_lshlrev_b32", V(CH), 1, V(CH)))
    e(valu("v_lshrrev_b32", V(U1), 1, V(RR_)))
    e(valu("v_add_u32", V(CH), V(CH), V(U1)))
    for b in range(4):
        e(valu("v_xor_b32", V(U1), b, V(CH)))
        e(valu("v_lshl_add_u32", V(ADDRW + b), V(U1), 5, V(U2)))
    e(valu("v_lshrrev_b32", V(U1), 3, V(1)))
    e(salu("s_mov_b32", S(T2_), 3584))
    e(valu("v_mul_lo_u32", V(U2), V(U1), S(T2_)))
    e(valu("v_lshlrev_b32", V(CH), 1, V(G_)))
    e(valu("v_and_b32", V(U1), 7, V(1)))
    e(valu("v_xor_b32", V(U1), V(U1), V(CH)))
    e(valu("v_lshl_add_u32", V(VOFFW), V(U1), 4, V(U2)))
    e(valu("v_add_u32", V(VOFFW + 1), 8*3584 - 1024, V(VOFFW)))
    return s

def mall_prefetch():
    out = []
    pre = [salu("s_lshl_b32", S(S_T), S(2), 2), salu("s_add_u32", S(S_T), S(S_T), S(S_WAVE)), salu("s_lshl_b32", S(S_T), S(S_T), 7)]
    out.append(pre)
    out.append([valu("v_lshlrev_b32", V(PFD + 3), 17, V(1))])
    for i, (p, size) in enumerate(((P_WO, 4096*1024), (P_WD, 1792*1024), (P_WG, 512*3584), (P_WG + 2, 512*3584))):
        out.append([salu("s_mov_b32", S(60), S(p)), salu("s_mov_b32", S(61), S(p + 1)), salu("s_mov_b32", S(62), size), salu("s_mov_b32", S(63), "0x00020000")])
        out.append([buf_load(V(PFD + (i % 3)), V(PFD + 3), S(60, 4), S(S_T), n=1, tag="PF")])
    return out

def h_epilogue():
    s = []; e = s.append
    e(nop(7))
    for qb in range(4): e(salu("s_mov_b32", S(S_T + qb), qb*57344))
    k = 0
    for qb in range(4):
        for tp in range(2):
            pk = PREG + 4*(k % 8)
            for u in range(2):
                b = 2*tp + u
                for r in range(4):
                    gr, up = sub(ACCR(b, qb), r), sub(ACCR(4 + b, qb), r)
                    e(valu("v_max_f32", gr, 0, gr))
                    e(valu("v_mul_f32", gr, gr, up))
            for u in range(2):
                b = 2*tp + u
                for hh in range(2):
                    e(valu("v_cvt_pk_bf16_f32", V(pk + 2*u + hh), sub(ACCR(b, qb), 2*hh), sub(ACCR(b, qb), 2*hh + 1)))
            e(buf_store(V(pk, 4), V(VLANE16), S(SRD_H, 4), S(S_T + qb), offset=tp*1024, tag="H", flags=sc()))
            k += 1
    return s

def tail_windows():
    s = []
    for T in range(28, 32):
        d0, d1 = tile_dma(T, doK=False, doV=(T + 3 <= 31))
        x0, x1 = [], []
        if T == 28 and PREFETCH and not SC1:
            pf = mall_prefetch()
            x0.append((34, pf[0])); x0.append((35, pf[1]))
            gi = 38
            for k in range(4):
                x0.append((gi, pf[2 + 2*k])); x0.append((gi + 5, pf[3 + 2*k])); gi += 8 if k < 3 else 0
        if T == 29:
            gi = 34
            for k in range(2):
                pre, d = dmaW(k); x0.append((gi, pre)); x0.append((gi + 1, d[0])); x0.append((gi + 9, d[1])); x0.append((gi + 10, advW("E"))); gi += 16
            gi = 34
            for k in range(2, 4):
                pre, d = dmaW(k); x1.append((gi, pre)); x1.append((gi + 1, d[0])); x1.append((gi + 9, d[1])); x1.append((gi + 10, advW("E"))); gi += 16
        if T == 30:
            for k in range(2):
                for qb, x in enumerate(loadB(k)): x0.append((35 + 16*k + 4*qb if 35 + 16*k + 4*qb < 67 else 67, x))
                x0.append((50 if k == 0 else 66, advB()))
            for k in range(2, 4):
                kk = k - 2
                for qb, x in enumerate(loadB(k)): x1.append((35 + 16*kk + 4*qb, x))
                x1.append((50 if kk == 0 else 66, advB()))
        j = 2*T
        s += window(j, T, dma=d0, bar=(T < 31), do_kread=(j + 2 <= 63), extra=x0)
        j = 2*T + 1
        s += window(j, T, dma=d1, last_qk=(j + 1 <= 63), do_kread=(j + 2 <= 63), extra=x1)
    return s

def gen_k1(name, stop=None):
    s = stamp(0) + ([raw('s_memtime s[96:97]', 'smem'), raw('s_waitcnt lgkmcnt(0)', 'other'), raw('s_mov_b32 s80, s96', 'salu')] if STEPSTAMP else []) + setup1(name)
    e = s.append
    s += flatW(0, "A"); s += flatW(1, "A"); s += flatB(0); s += flatB(1)
    s += flatW(2, "A"); s += flatW(3, "A"); s += flatW(4, "A"); s += flatB(2); s += flatB(3)
    s += setupK()
    s += flatKV(dmaK(0)); s += flatKV(dmaK(1))
    s += setup2()
    zl = [valu("v_accvgpr_write_b32", A(i), 0) for i in range(128)]
    def xf(t): return [(4*k + 2 if k < 5 else 4*k, zl[8*t + k]) for k in range(8)]
    s += stamp(1)
    wplanA = {0: [5, 6], 1: [7, 8], 2: [9, 10], 3: [11, 12], 4: [13], 5: [14], 6: [15]}
    barsA = {1: range(2, 5), 4: range(5, 9), 8: range(9, 13), 12: range(13, 16)}
    s += gemm_phase("A", wplanA, barsA, extra_fill=xf, post_bar={8: [dmaV(0), dmaV(1)], 12: [dmaV(2)]})
    s += stamp(2)
    e(barrier())
    s += flatKV(dmaK(2)); s += flatKV(dmaK(3))
    s += setup_E()
    s += qconvert()
    for i in range(16): e(valu("v_mov_b32", V(LREG + i), 0))
    for i in range(4): e(valu("v_mov_b32", V(ONES + i), "0x3f803f80"))
    s += first_max()
    s += window(-1, 0, last_qk=True, do_pv=False, do_kread=True, exp_tail=False)
    s += stamp(3)
    e(salu("s_mov_b32", S(S_LOOP), 0))
    e(LoopBegin(f"{name}_loop"))
    for T in range(4):
        d0, d1 = tile_dma(T)
        s += window(2*T, T, dma=d0, bar=True)
        s += window(2*T + 1, T, dma=d1)
    e(salu("s_add_u32", S(S_LOOP), S(S_LOOP), 1))
    e(raw(f"s_cmp_lt_u32 s{S_LOOP}, 7", "salu", rd=regs("s", S_LOOP)))
    e(raw(f"s_cbranch_scc1 {name}_loop", "branch"))
    e(LoopEnd(f"{name}_loop"))
    s += stamp(4)
    s += tail_windows()
    s += stamp(5)
    s += o_rinv()
    e(raw(f"s_cmp_ge_u32 s{S_HEAD}, 28", "salu", rd=regs("s", S_HEAD)))
    e(raw(f"s_cbranch_scc1 {name}_noE", "branch"))
    e(barrier())
    for k in range(4, 16): s += flatW(k, "E")
    s += stamp(6)
    def of(t):
        u = o_unit(t)
        pos = [2, 2, 4, 4, 6, 6, 8, 8, 10, 10, 12, 12, 14, 14, 16, 16, 18, 18, 20, 20, 30]
        return list(zip(pos, u))
    s += gemm_phase("E", {}, {1: range(2, 5), 4: range(5, 9), 8: range(9, 13), 12: range(13, 16)}, extra_fill=of)
    s += stamp(7)
    s += h_epilogue()
    e(raw(f"s_branch {name}_fin", "branch"))
    e(label(f"{name}_noE"))
    for k in range(16): s += o_unit(k)
    e(label(f"{name}_fin"))
    s += stamp(8)
    if STAMPS: e(raw("s_waitcnt vmcnt(0)", "other"))
    s += stamp(9)
    s += stamp_dump(16 if STEPSTAMP else 10)
    return finish(s, name)

def finish(s, name):
    s = [x for x in s if x is not None]
    s.append(label(f"{name}_end"))
    s.append(raw("s_endpgm", "end"))
    s = insert_waits(s)
    pr = check_hazards(s, name)
    for p in pr[:40]: print("HAZARD", p)
    if pr: print("total hazards", len(pr))
    return s, dict(vgpr=512, sgpr=102, accum=256)
```

```python
from ir import *
from k0 import sload, XN_OFF, O_OFF, H_OFF, DBG_OFF
import k1
from k1 import *

SYNC_OFF = 30 << 20
S_EPOCH = 6
S_GRP = 5
SRD_SY = 92
SPIN_MAX = 400000
TOUCH = True
NT_O, NT_H, NSLOT = 32, 14, 8

def poll_barrier(name, idx):
    s = []; e = s.append
    L = f"{name}_gb{idx}"
    e(barrier())
    e(raw(f"s_cmp_lg_u32 s{S_WAVE}, 0", "salu", rd=regs("s", S_WAVE)))
    e(raw(f"s_cbranch_scc1 {L}_skip", "branch"))
    e(salu("s_lshl_b32", S(T0_), S(S_QB), 7))
    e(salu("s_add_u32", S(T0_), S(T0_), 4096*(1 + idx)))
    e(salu("s_lshl_b32", S(T1_), S(S_HEAD), 2))
    e(salu("s_add_u32", S(T1_), S(T1_), S(T0_)))
    e(valu("v_mov_b32", V(TMP + 10), S(S_EPOCH)))
    e(valu("v_mov_b32", V(TMP + 11), 0))
    e(raw("s_mov_b64 exec, 1", "salu"))
    e(buf_store(V(TMP + 10), V(TMP + 11), S(SRD_SY, 4), S(T1_), n=1, flags="sc1"))
    e(raw("s_mov_b32 exec_lo, -1", "salu")); e(raw("s_mov_b32 exec_hi, 0", "salu"))
    e(valu("v_lshlrev_b32", V(TMP + 11), 2, V(1)))
    e(salu("s_mov_b32", S(T2_), SPIN_MAX))
    e(label(f"{L}_poll"))
    e(raw(f"buffer_load_dword v{TMP+12}, v{TMP+11}, s[{SRD_SY}:{SRD_SY+3}], s{T0_} offen sc1", "other"))
    e(raw("s_waitcnt vmcnt(0)", "other"))
    e(raw(f"v_cmp_ne_u32 vcc, s{S_EPOCH}, v{TMP+12}", "other"))
    e(raw("s_nop 4", "other"))
    e(raw(f"s_cbranch_vccz {L}_done", "branch"))
    e(raw(f"s_sub_u32 s{T2_}, s{T2_}, 1", "other"))
    e(raw(f"s_cbranch_scc1 {L}_done", "branch"))
    e(raw("s_sleep 1", "other"))
    e(raw(f"s_branch {L}_poll", "branch"))
    e(label(f"{L}_done"))
    if idx == 0:
        e(raw(f"s_cmp_lg_u32 s{S_HEAD}, 0", "salu", rd=regs("s", S_HEAD)))
        e(raw(f"s_cbranch_scc1 {L}_noep", "branch"))
        e(raw("s_mov_b64 exec, 1", "salu"))
        e(salu("s_lshl_b32", S(T0_), S(S_QB), 7))
        e(raw(f"v_mov_b32 v{TMP+11}, 0", "other"))
        e(raw(f"buffer_store_dword v{TMP+10}, v{TMP+11}, s[{SRD_SY}:{SRD_SY+3}], s{T0_} offen sc1", "other"))
        e(label(f"{L}_noep"))
    e(raw("s_mov_b64 exec, -1", "salu"))
    e(label(f"{L}_skip"))
    e(barrier())
    return s

LX = 32
def ln_loads():
    s = []; e = s.append
    e(valu("v_and_b32", V(60), 7, V(1)))
    e(valu("v_bfe_u32", V(61), V(1), 3, 2))
    e(valu("v_lshrrev_b32", V(62), 5, V(1)))
    e(salu("s_lshl_b32", S(S_T), S(S_QB), 8)); e(salu("s_lshl_b32", S(S_T + 1), S(S_HEAD), 3)); e(salu("s_add_u32", S(S_T), S(S_T), S(S_T + 1)))
    e(salu("s_lshl_b32", S(S_T), S(S_T), 10)); e(salu("s_lshl_b32", S(S_T + 1), S(S_WAVE), 8)); e(salu("s_add_u32", S(S_T), S(S_T), S(S_T + 1)))
    e(valu("v_lshlrev_b32", V(63), 10, V(60)))
    e(valu("v_lshl_add_u32", V(63), V(62), 7, V(63)))
    e(valu("v_lshl_add_u32", V(63), V(61), 3, V(63)))
    for i in range(2):
        for rd in range(2):
            e(buf_load(V(LX + 4*i + 2*rd, 2), V(63), S(60, 4), S(S_T), offset=i*64 + rd*32, n=2))
    return s

def ln_compute():
    s = []; e = s.append
    X = 40
    for p in range(8):
        e(valu("v_lshlrev_b32", V(X + 2*p), 16, V(LX + p)))
        e(valu("v_and_b32", V(X + 2*p + 1), "0xffff0000", V(LX + p)))
    def red(r, t, slot):
        o = []
        o.append(nop(1))
        o.append(valu("v_add_f32_dpp", V(r), V(r), V(r), extra="row_ror:8 row_mask:0xf bank_mask:0xf"))
        for swp in ("v_permlane16_swap_b32", "v_permlane32_swap_b32"):
            o.append(valu("v_mov_b32", V(t), V(r))); o.append(nop(1))
            o.append(valu(swp, V(t), V(r), dst_is_src=True, wr_extra=regs("v", r))); o.append(nop(1))
            o.append(valu("v_add_f32", V(r), V(r), V(t)))
        o.append(ds_write("ds_write_b32", V(58), V(r), offset=slot*128))
        o.append(wait_raw(lgkm=0)); o.append(barrier())
        for w in range(4): o.append(ds_read("ds_read_b32", V(t + w), V(59), offset=slot*128 + w*32))
        o.append(valu("v_add_f32", V(t), V(t), V(t + 1)))
        o.append(valu("v_add_f32", V(t + 2), V(t + 2), V(t + 3)))
        o.append(valu("v_add_f32", V(r), V(t), V(t + 2)))
        return o
    e(valu("v_lshlrev_b32", V(59), 2, V(60)))
    e(salu("s_lshl_b32", S(S_T + 1), S(S_WAVE), 5))
    e(valu("v_add_u32", V(58), S(S_T + 1), V(59)))
    e(valu("v_add_f32", V(56), V(X), V(X + 1)))
    e(valu("v_add_f32", V(57), V(X + 2), V(X + 3)))
    for k in range(4, 16, 2):
        e(valu("v_add_f32", V(56), V(56), V(X + k))); e(valu("v_add_f32", V(57), V(57), V(X + k + 1)))
    e(valu("v_add_f32", V(56), V(56), V(57)))
    s += red(56, 64, 0)
    e(valu("v_mul_f32", V(56), "0x3b000000", V(56)))
    e(valu("v_sub_f32", V(68), V(X), V(56))); e(valu("v_sub_f32", V(69), V(X + 1), V(56)))
    e(valu("v_mul_f32", V(70), V(68), V(68))); e(valu("v_mul_f32", V(71), V(69), V(69)))
    for k in range(2, 16, 2):
        e(valu("v_sub_f32", V(68), V(X + k), V(56))); e(valu("v_sub_f32", V(69), V(X + k + 1), V(56)))
        e(valu("v_fmac_f32", V(70), V(68), V(68), dst_is_src=True)); e(valu("v_fmac_f32", V(71), V(69), V(69), dst_is_src=True))
    e(valu("v_add_f32", V(70), V(70), V(71)))
    s += red(70, 64, 1)
    e(valu("v_mul_f32", V(70), "0x3b000000", V(70)))
    def rbf(dst, src): return [valu("v_cvt_pk_bf16_f32", V(dst), V(src), V(src)), valu("v_lshlrev_b32", V(dst), 16, V(dst))]
    s += rbf(56, 56); s += rbf(70, 70)
    e(valu("v_add_f32", V(70), "0x3727c5ac", V(70)))
    s += rbf(70, 70)
    e(trans("v_sqrt_f32", V(70), V(70))); e(nop(0))
    s += rbf(70, 70)
    e(trans("v_rcp_f32", V(71), V(70))); e(nop(0))
    e(valu("v_fma_f32", V(69), "-v70", V(71), 2.0, rd_extra=regs("v", 70)))
    e(valu("v_mul_f32", V(71), V(71), V(69)))
    for k in range(16): e(valu("v_sub_f32", V(X + k), V(X + k), V(56)))
    for p in range(8): e(valu("v_cvt_pk_bf16_f32", V(LX + p), V(X + 2*p), V(X + 2*p + 1)))
    for p in range(8):
        e(valu("v_lshlrev_b32", V(X + 2*p), 16, V(LX + p))); e(valu("v_and_b32", V(X + 2*p + 1), "0xffff0000", V(LX + p)))
    for k in range(16): e(valu("v_mul_f32", V(X + k), V(X + k), V(71)))
    for p in range(8): e(valu("v_cvt_pk_bf16_f32", V(LX + p), V(X + 2*p), V(X + 2*p + 1)))
    e(salu("s_lshl_b32", S(S_T), S(S_QB), 4)); e(salu("s_lshr_b32", S(S_T + 1), S(S_HEAD), 1)); e(salu("s_add_u32", S(S_T), S(S_T), S(S_T + 1)))
    e(salu("s_lshl_b32", S(S_T), S(S_T), 14))
    e(salu("s_lshl_b32", S(S_T + 1), S(S_WAVE), 12)); e(salu("s_add_u32", S(S_T), S(S_T), S(S_T + 1)))
    e(salu("s_and_b32", S(S_T + 1), S(S_HEAD), 1)); e(salu("s_lshl_b32", S(S_T + 1), S(S_T + 1), 7)); e(salu("s_add_u32", S(S_T), S(S_T), S(S_T + 1)))
    if XN_OFF: e(salu("s_add_u32", S(S_T), S(S_T), XN_OFF))
    e(valu("v_lshlrev_b32", V(63), 4, V(60)))
    e(valu("v_lshl_add_u32", V(63), V(61), 8, V(63)))
    e(valu("v_lshl_add_u32", V(63), V(62), 11, V(63)))
    s += mksrd(60, P_WS, None, 32 << 20)
    for i in range(2):
        e(buf_store(V(LX + 4*i, 4), V(63), S(60, 4), S(S_T), offset=i*1024, tag="XN", flags="sc1"))
    return s

def touches():
    s = []; e = s.append
    if not TOUCH: return s
    e(valu("v_lshrrev_b32", V(U1), 3, V(1)))
    e(valu("v_lshlrev_b32", V(U1), 18, V(U1)))
    e(valu("v_bfe_u32", V(U2), V(1), 1, 2))
    e(valu("v_lshl_add_u32", V(U1), V(U2), 13, V(U1)))
    e(valu("v_and_b32", V(U2), 1, V(1)))
    e(valu("v_lshl_add_u32", V(U1), V(U2), 7, V(U1)))
    e(salu("s_lshl_b32", S(S_T + 1), S(S_QB), 15))
    e(raw(f"s_cmp_eq_u32 s{S_WAVE}, 2", "salu", rd=regs("s", S_WAVE)))
    e(salu("s_cselect_b32", S(S_T), 8*262144, 0))
    e(salu("s_add_u32", S(S_T), S(S_T), S(S_T + 1)))
    for i in range(4): e(salu("s_mov_b32", S(60 + i), S(SRD_W + i)))
    e(salu("s_mov_b32", S(63), "0x00020000"))
    e(salu("s_sub_u32", S(S_T + 2), S(S_WAVE), 1))
    e(raw(f"s_cmp_lt_u32 s{S_T+2}, 2", "salu", rd=regs("s", S_T + 2)))
    e(salu("s_cselect_b32", S(62), S(62), 0))
    e(buf_load(V(PFD), V(U1), S(60, 4), S(S_T), n=1, tag="PF"))
    e(valu("v_and_b32", V(U2), 31, V(1)))
    e(valu("v_lshlrev_b32", V(U2), 7, V(U2)))
    e(salu("s_lshl_b32", S(S_T), S(S_QB), 12))
    for srdb in (SRD_K, SRD_V):
        for i in range(3): e(salu("s_mov_b32", S(60 + i), S(srdb + i)))
        e(raw(f"s_cmp_eq_u32 s{S_WAVE}, 3", "salu", rd=regs("s", S_WAVE)))
        e(salu("s_cselect_b32", S(62), S(62), 0))
        e(buf_load(V(PFD + 1 + (srdb == SRD_V)), V(U2), S(60, 4), S(S_T), n=1, tag="PF"))
    return s


FB_THRESH = 4096.0
FORCE_FB = False
def fb_check(name):
    s = []; e = s.append
    e(nop(7))
    e(salu("s_mov_b32", S(S_T), f2h(-1.0 if FORCE_FB else FB_THRESH)))
    e(salu("s_mov_b64", S(S_T + 2, 2), 0))
    for qb in range(4):
        e(raw(f"v_cmp_nle_f32 vcc, v{LREG + 4*qb}, s{S_T}", "valu", rd=regs("v", LREG + 4*qb) + regs("s", S_T), wr=[("s", "vcc")]))
        s[-1].text = f"v_cmp_nle_f32_e64 vcc, v{LREG + 4*qb}, s{S_T}"
        e(nop(4))
        e(raw(f"s_or_b64 s[{S_T+2}:{S_T+3}], s[{S_T+2}:{S_T+3}], vcc", "salu"))
    e(raw(f"s_or_b32 s{S_T+2}, s{S_T+2}, s{S_T+3}", "salu"))
    e(raw(f"s_cmp_lg_u32 s{S_T+2}, 0", "salu"))
    e(salu("s_cselect_b32", S(S_T + 2), 1, 0))
    e(valu("v_mov_b32", V(TMP + 8), S(S_T + 2)))
    e(salu("s_lshl_b32", S(S_T + 3), S(S_WAVE), 2))
    e(valu("v_mov_b32", V(TMP + 9), S(S_T + 3)))
    e(barrier())
    e(ds_write("ds_write_b32", V(TMP + 9), V(TMP + 8), offset=0))
    e(wait_raw(lgkm=0)); e(barrier())
    e(valu("v_mov_b32", V(TMP + 9), 0))
    e(ds_read("ds_read_b128", V(TMP + 4, 4), V(TMP + 9), offset=0))
    e(valu("v_or_b32", V(TMP + 4), V(TMP + 4), V(TMP + 5)))
    e(valu("v_or_b32", V(TMP + 6), V(TMP + 6), V(TMP + 7)))
    e(valu("v_or_b32", V(TMP + 4), V(TMP + 4), V(TMP + 6)))
    e(nop(0))
    e(valu("v_readfirstlane_b32", S(S_T + 2), V(TMP + 4)))
    e(nop(3))
    e(raw(f"s_cmp_lg_u32 s{S_T+2}, 0", "salu"))
    e(raw(f"s_cbranch_scc1 {name}_fb", "branch"))
    e(label(f"{name}_fbret"))
    return s

def fallback(name):
    s = []; e = s.append
    M, MN, AL = TMP, TMP + 4, TMP + 8
    e(label(f"{name}_fb"))
    e(wait_raw(vm=0, lgkm=0)); e(barrier())
    for i in range(128): e(valu("v_accvgpr_write_b32", A(i), 0))
    for i in range(16): e(valu("v_mov_b32", V(LREG + i), 0))
    for qb in range(4): e(valu("v_mov_b32", V(M + qb), "0xff800000"))
    e(salu("s_mov_b32", S(S_SOFFK), S(S_W4K))); e(salu("s_mov_b32", S(S_SOFFV), S(S_W4K)))
    e(salu("s_mov_b32", S(S_LOOP), 0))
    e(label(f"{name}_fbloop"))
    s += flatKV(dmaK(0)); s += flatKV(dmaV(0))
    e(wait_raw(vm=0)); e(barrier())
    for half in range(2):
        for f in range(8):
            kb, ds = f >> 2, f & 3
            e(ds_read("ds_read_b128", KF(f), V(ADDRK + ds), offset=half*8192 + kb*4096))
        for db in range(8):
            for rd in range(2):
                e(ds_read("ds_read_b64_tr_b16", sub(VF(db), 2*rd, 2), V(ADDRV + db), offset=half*8192 + rd*4096))
        e(wait_raw(lgkm=0))
        for kb in range(2):
            for ds in range(4):
                for qb in range(4):
                    e(mfma16(SR(kb, qb), KF(4*kb + ds), QF(qb, ds), 0 if ds == 0 else SR(kb, qb)))
        e(nop(7))
        for qb in range(4):
            e(valu("v_max3_f32", V(MN + qb), SR(0, qb, 0), SR(0, qb, 1), SR(0, qb, 2)))
            e(valu("v_max3_f32", V(MN + qb), V(MN + qb), SR(0, qb, 3), SR(1, qb, 0)))
            e(valu("v_max3_f32", V(MN + qb), V(MN + qb), SR(1, qb, 1), SR(1, qb, 2)))
            e(valu("v_max3_f32", V(MN + qb), V(MN + qb), SR(1, qb, 3), V(M + qb)))
        for swp in ("v_permlane16_swap_b32", "v_permlane32_swap_b32"):
            for qb in range(4): e(valu("v_mov_b32", V(AL + qb), V(MN + qb)))
            e(nop(1))
            for qb in range(4): e(valu(swp, V(AL + qb), V(MN + qb), dst_is_src=True, wr_extra=regs("v", MN + qb)))
            e(nop(1))
            for qb in range(4): e(valu("v_max_f32", V(MN + qb), V(MN + qb), V(AL + qb)))
        for qb in range(4): e(valu("v_sub_f32", V(AL + qb), V(M + qb), V(MN + qb)))
        for qb in range(4): e(trans("v_exp_f32", V(AL + qb), V(AL + qb)))
        for qb in range(4): e(valu("v_mov_b32", V(M + qb), V(MN + qb)))
        for kb in range(2):
            for qb in range(4):
                for r in range(4): e(valu("v_sub_f32", SR(kb, qb, r), SR(kb, qb, r), V(M + qb)))
        for kb in range(2):
            for qb in range(4):
                for r in range(4): e(trans("v_exp_f32", SR(kb, qb, r), SR(kb, qb, r)))
        e(nop(0))
        for kb in range(2):
            for qb in range(4):
                for h in range(2): e(valu("v_cvt_pk_bf16_f32", PR(0, qb, 2*kb + h), SR(kb, qb, 2*h), SR(kb, qb, 2*h + 1)))
        for db in range(8):
            for qb in range(4):
                for r in range(4): e(valu("v_accvgpr_read_b32", V(SREG + 4*qb + r), sub(OACC(db, qb), r)))
            for qb in range(4):
                for r in range(4): e(valu("v_mul_f32", V(SREG + 4*qb + r), V(SREG + 4*qb + r), V(AL + qb)))
            for qb in range(4):
                for r in range(4): e(valu("v_accvgpr_write_b32", sub(OACC(db, qb), r), V(SREG + 4*qb + r)))
        for qb in range(4):
            for r in range(4): e(valu("v_mul_f32", V(LREG + 4*qb + r), V(LREG + 4*qb + r), V(AL + qb)))
        e(nop(1))
        for db in range(8):
            for qb in range(4): e(mfma16(OACC(db, qb), VF(db), PR(0, qb), OACC(db, qb)))
        for qb in range(4): e(mfma16(V(LREG + 4*qb, 4), V(ONES, 4), PR(0, qb), V(LREG + 4*qb, 4)))
        e(nop(7))
    e(barrier())
    e(raw(f"s_add_u32 s{S_LOOP}, s{S_LOOP}, 1", "salu")); e(raw(f"s_cmp_lt_u32 s{S_LOOP}, 32", "salu"))
    e(raw(f"s_cbranch_scc1 {name}_fbloop", "branch"))
    e(raw(f"s_branch {name}_fbret", "branch"))
    s = insert_waits(s)
    for p in check_hazards(s, name + "_fb")[:20]: print("HAZARD", p)
    return s

def final_phase(name):
    s = []; e = s.append
    ADDRA, VOFW, VOFB, VB = 2, 6, 10, 12
    ACCS, ACCF = 128, 192
    def ACC(part, nb, qb): return V((ACCS if part == 0 else ACCF) + 16*nb + 4*qb, 4)
    def AF(t, nb): return A(16*(t & 1) + 4*nb, 4)
    def BF(t, qb): return A(128 + 16*(t % NSLOT) + 4*qb, 4)
    SRD_A0, SRD_A1, SRD_W0, SRD_W1, SRD_X, SRD_OUT = 8, 12, 16, 20, 24, 28
    S_RB, S_CB, S_LDSW, S_SA, S_SW = 32, 33, 34, 35, 36
    pre = []; e = pre.append
    e(sload(44, 0, 2)); e(sload(46, 72, 2))
    e(salu("s_and_b32", S(T0_), S(S_HEAD), 7)); e(salu("s_lshr_b32", S(T1_), S(S_HEAD), 3))
    e(salu("s_lshr_b32", S(T2_), S(T0_), 1)); e(salu("s_lshl_b32", S(S_RB), S(S_QB), 2)); e(salu("s_add_u32", S(S_RB), S(S_RB), S(T2_)))
    e(salu("s_and_b32", S(T0_), S(T0_), 1)); e(salu("s_lshl_b32", S(T0_), S(T0_), 2)); e(salu("s_add_u32", S(S_CB), S(T0_), S(T1_)))
    e(salu("s_lshl_b32", S(T0_), S(S_RB), 9)); e(salu("s_lshl_b32", S(T1_), S(S_WAVE), 5)); e(salu("s_add_u32", S(T0_), S(T0_), S(T1_)))
    e(salu("s_lshl_b32", S(T0_), S(T0_), 10)); e(salu("s_add_u32", S(T0_), S(T0_), O_OFF))
    pre += mksrd(SRD_A0, P_WS, T0_, 3*131072 + 32*1024)
    e(salu("s_mul_i32", S(T0_), S(S_RB), 224)); e(salu("s_mul_i32", S(T1_), S(S_WAVE), 14)); e(salu("s_add_u32", S(T0_), S(T0_), S(T1_)))
    e(salu("s_lshl_b32", S(T0_), S(T0_), 10)); e(salu("s_add_u32", S(T0_), S(T0_), H_OFF))
    pre += mksrd(SRD_A1, P_WS, T0_, 3*57344 + 14*1024)
    e(salu("s_lshl_b32", S(T0_), S(S_WAVE), 20)); e(salu("s_lshl_b32", S(T1_), S(S_CB), 7)); e(salu("s_add_u32", S(T0_), S(T0_), S(T1_)))
    e(salu("s_sub_u32", S(T2_), 4096*1024, S(T0_)))
    pre += mksrd(SRD_W0, P_WO, T0_, S(T2_))
    e(salu("s_mul_i32", S(T0_), S(S_WAVE), 448*1024)); e(salu("s_add_u32", S(T0_), S(T0_), S(T1_)))
    e(salu("s_sub_u32", S(T2_), 1792*1024, S(T0_)))
    pre += mksrd(SRD_W1, P_WD, T0_, S(T2_))
    e(salu("s_lshl_b32", S(S_LDSW), S(S_WAVE), 15))
    G, RR, C, T1, T2, X = 20, 21, 22, 23, 24, 25
    e(valu("v_lshrrev_b32", V(G), 4, V(1))); e(valu("v_bfe_u32", V(RR), V(1), 2, 2)); e(valu("v_and_b32", V(C), 3, V(1)))
    e(valu("v_lshl_add_u32", V(T2), V(G), 2, V(RR))); e(valu("v_lshlrev_b32", V(T2), 7, V(T2)))
    e(valu("v_lshl_add_u32", V(T2), V(C), 3, V(T2))); e(valu("v_add_u32", V(T2), S(S_LDSW), V(T2)))
    e(valu("v_and_b32", V(X), 1, V(G))); e(valu("v_lshlrev_b32", V(X), 1, V(X))); e(valu("v_lshrrev_b32", V(T1), 1, V(RR))); e(valu("v_add_u32", V(X), V(X), V(T1)))
    for b in range(4):
        e(valu("v_xor_b32", V(T1), b, V(X))); e(valu("v_lshl_add_u32", V(ADDRA + b), V(T1), 5, V(T2)))
    e(valu("v_lshrrev_b32", V(T1), 3, V(1))); e(valu("v_lshlrev_b32", V(T2), 10, V(T1)))
    e(valu("v_lshlrev_b32", V(X), 1, V(G))); e(valu("v_and_b32", V(T1), 7, V(1))); e(valu("v_xor_b32", V(T1), V(T1), V(X)))
    e(valu("v_lshl_add_u32", V(VOFW), V(T1), 4, V(T2)))
    for i in range(1, 4): e(valu("v_add_u32", V(VOFW + i), i*7168, V(VOFW)))
    e(valu("v_lshlrev_b32", V(VOFB), 4, V(1)))
    for qb in range(4):
        e(valu("v_add_u32", V(VB + qb), qb*131072, V(VOFB))); e(valu("v_add_u32", V(VB + 4 + qb), qb*57344, V(VOFB)))
    e(salu("s_mov_b32", S(S_SA), 0)); e(salu("s_mov_b32", S(S_SW), 0))
    e(raw("s_waitcnt lgkmcnt(0)", "wait")); pre[-1].tag = (None, 0)
    pre += mksrd(SRD_X, 44, None, 2097152); pre += mksrd(SRD_OUT, 46, None, 2097152)
    NT = NT_O + NT_H
    D = NSLOT - 1
    def ldW(t):
        part = 0 if t < NT_O else 1
        o = []
        if t == NT_O: o.append(salu("s_mov_b32", S(S_SW), 0))
        o.append(salu("s_add_u32", "m0", S(S_LDSW), (t % NSLOT)*4096))
        d = [buf_dma(V(VOFW + i), S(SRD_W0 if part == 0 else SRD_W1, 4), S(S_SW), offset=i*1024, tag=("FW", t)) for i in range(4)]
        return o, d, [salu("s_add_u32", S(S_SW), S(S_SW), 32768)]
    def ldB(t):
        part = 0 if t < NT_O else 1
        o = []
        if t == NT_O: o.append(salu("s_mov_b32", S(S_SA), 0))
        d = [buf_load(BF(t, qb), V(VB + 4*part + qb), S(SRD_A0 if part == 0 else SRD_A1, 4), S(S_SA), tag=("FB", t), flags="sc1") for qb in range(4)]
        return o, d, [salu("s_add_u32", S(S_SA), S(S_SA), 1024)]
    def rdA(t, nb, rd):
        return ds_read("ds_read_b64_tr_b16", sub(AF(t, nb), 2*rd, 2), V(ADDRA + nb), offset=(t % NSLOT)*4096 + rd*2048)
    for t in range(D):
        o, d, p = ldW(t); pre += o; pre.append(nop(0)); pre += d; pre += p
    e = s.append
    for t in range(D):
        o, d, p = ldB(t); s += o; s += d; s += p
    for nb in range(4):
        for rd in range(2):
            if nb == 0 and rd == 0: e(wait_vm(("FW", 0)))
            e(rdA(0, nb, rd))
    for t in range(NT):
        part = 0 if t < NT_O else 1
        tl = t if part == 0 else t - NT_O
        F = Fill(16)
        post = []
        if t + 1 < NT:
            F.add(0, wait_vm(("FW", t + 1)))
            for nb in range(4):
                F.add(1 + 4*nb, rdA(t + 1, nb, 0)); F.add(3 + 4*nb, rdA(t + 1, nb, 1))
        if t + D < NT:
            o, d, p = ldW(t + D)
            F.add(0, o)
            for k, x in enumerate(d): F.add(2 + 2*k, x)
            F.add(9, p)
            o, d, p = ldB(t + D)
            if o: F.add(9, o)
            for k, x in enumerate(d): F.add(10 + 2*k if k < 3 else 15, x)
            post = p
        for nb in range(4):
            for qb in range(4):
                g = 4*nb + qb
                e(mfma16(ACC(part, nb, qb), AF(t, nb), BF(t, qb), 0 if tl == 0 else ACC(part, nb, qb)))
                s += F.emit(g)
        s += post
    e(nop(7)); e(barrier())
    e(valu("v_lshlrev_b32", V(20), 4, V(1)))
    e(valu("v_add_u32", V(21), S(S_LDSW), V(20)))
    for i in range(32): e(ds_write("ds_write_b128", V(21), V(128 + 4*i, 4), offset=i*1024))
    e(valu("v_and_b32", V(23), 15, V(1)))
    e(salu("s_lshl_b32", S(T0_), S(S_RB), 6)); e(salu("s_lshl_b32", S(T1_), S(S_WAVE), 4)); e(salu("s_add_u32", S(T0_), S(T0_), S(T1_)))
    e(valu("v_add_u32", V(23), S(T0_), V(23))); e(valu("v_lshlrev_b32", V(23), 10, V(23)))
    e(valu("v_lshrrev_b32", V(24), 4, V(1))); e(valu("v_lshl_add_u32", V(23), V(24), 3, V(23)))
    e(salu("s_lshl_b32", S(T1_), S(S_CB), 7)); e(valu("v_add_u32", V(23), S(T1_), V(23)))
    XR_ = 160
    for nb in range(4): e(buf_load(V(XR_ + 2*nb, 2), V(23), S(SRD_X, 4), 0, offset=nb*32, n=2))
    e(wait_raw(lgkm=0)); e(barrier())
    e(salu("s_lshl_b32", S(T0_), S(S_WAVE), 10))
    e(valu("v_add_u32", V(21), S(T0_), V(20))); e(valu("v_add_u32", V(22), 65536, V(21)))
    for part in range(2):
        for nb in range(4):
            for src in range(4):
                off = (src & 1)*32768 + (part*16 + nb*4)*1024
                e(ds_read("ds_read_b128", V(32 + ((part*4 + nb)*4 + src)*4, 4), V(21 if src < 2 else 22), offset=off))
    for part in range(2):
        for nb in range(4):
            b = 32 + (part*4 + nb)*16
            for r in range(4):
                e(valu("v_add_f32", V(b + r), V(b + r), V(b + 4 + r))); e(valu("v_add_f32", V(b + 8 + r), V(b + 8 + r), V(b + 12 + r)))
            for r in range(4): e(valu("v_add_f32", V(b + r), V(b + r), V(b + 8 + r)))
    T = 168
    for nb in range(4):
        sb, fb = 32 + nb*16, 96 + nb*16
        e(valu("v_cvt_pk_bf16_f32", V(T), V(sb), V(sb + 1))); e(valu("v_cvt_pk_bf16_f32", V(T + 1), V(sb + 2), V(sb + 3)))
        e(valu("v_cvt_pk_bf16_f32", V(T + 2), V(fb), V(fb + 1))); e(valu("v_cvt_pk_bf16_f32", V(T + 3), V(fb + 2), V(fb + 3)))
        for h in range(2):
            e(valu("v_lshlrev_b32", V(sb + 2*h), 16, V(T + h))); e(valu("v_and_b32", V(sb + 2*h + 1), "0xffff0000", V(T + h)))
            e(valu("v_lshlrev_b32", V(fb + 2*h), 16, V(T + 2 + h))); e(valu("v_and_b32", V(fb + 2*h + 1), "0xffff0000", V(T + 2 + h)))
        for r in range(4): e(valu("v_mul_f32", V(T + 4 + r), f2h(-1.4426950408889634), V(fb + r)))
        for r in range(4): e(trans("v_exp_f32", V(T + 4 + r), V(T + 4 + r)))
        e(nop(0))
        for r in range(4): e(valu("v_add_f32", V(T + 4 + r), 1.0, V(T + 4 + r)))
        for r in range(4): e(trans("v_rcp_f32", V(T + 4 + r), V(T + 4 + r)))
        e(nop(0))
        for r in range(4): e(valu("v_mul_f32", V(fb + r), V(fb + r), V(T + 4 + r)))
        e(valu("v_cvt_pk_bf16_f32", V(T + 2), V(fb), V(fb + 1))); e(valu("v_cvt_pk_bf16_f32", V(T + 3), V(fb + 2), V(fb + 3)))
        for h in range(2):
            e(valu("v_lshlrev_b32", V(fb + 2*h), 16, V(T + 2 + h))); e(valu("v_and_b32", V(fb + 2*h + 1), "0xffff0000", V(T + 2 + h)))
        for r in range(4): e(valu("v_mul_f32", V(sb + r), V(sb + r), V(fb + r)))
        e(valu("v_cvt_pk_bf16_f32", V(T), V(sb), V(sb + 1))); e(valu("v_cvt_pk_bf16_f32", V(T + 1), V(sb + 2), V(sb + 3)))
        for h in range(2):
            e(valu("v_lshlrev_b32", V(sb + 2*h), 16, V(T + h))); e(valu("v_and_b32", V(sb + 2*h + 1), "0xffff0000", V(T + h)))
            e(valu("v_lshlrev_b32", V(fb + 2*h), 16, V(XR_ + 2*nb + h))); e(valu("v_and_b32", V(fb + 2*h + 1), "0xffff0000", V(XR_ + 2*nb + h)))
        for r in range(4): e(valu("v_add_f32", V(sb + r), V(sb + r), V(fb + r)))
        e(valu("v_cvt_pk_bf16_f32", V(T + 8 + 2*nb), V(sb), V(sb + 1))); e(valu("v_cvt_pk_bf16_f32", V(T + 9 + 2*nb), V(sb + 2), V(sb + 3)))
        e(buf_store(V(T + 8 + 2*nb, 2), V(23), S(SRD_OUT, 4), 0, offset=nb*32, n=2))
    return pre, s

def gen_mega(name):
    k1.SC1 = True
    s = stamp(0); e = s.append
    if k1.STEPSTAMP: s += [raw('s_memtime s[96:97]', 'smem'), raw('s_waitcnt lgkmcnt(0)', 'other'), raw('s_mov_b32 s80, s96', 'salu')]
    e(raw("s_cmp_ge_u32 s2, 256", "salu", rd=regs("s", 2)))
    e(raw(f"s_cbranch_scc1 {name}_end", "branch"))
    e(sload(60, 0, 2))
    st = setup1_mega()
    s += st
    s += cstamp('S')
    s += epoch_fix()
    s += cstamp('S')
    s += ln_compute()
    s += cstamp('S')
    s += touches()
    s += setupK()
    s += setup2()
    s += cstamp('S')
    e(wait_vm("XN"))
    s += cstamp('S')
    s += stamp(1)
    s += poll_barrier(name, 0)
    s += cstamp('S')
    s += stamp(2)
    s += flatW(0, "A"); s += flatW(1, "A"); s += flatB(0); s += flatB(1)
    s += flatW(2, "A"); s += flatW(3, "A"); s += flatW(4, "A"); s += flatB(2); s += flatB(3)
    zl = [valu("v_accvgpr_write_b32", A(i), 0) for i in range(128)]
    def xf(t): return [(4*k + 2 if k < 5 else 4*k, zl[8*t + k]) for k in range(8)]
    wplanA = {0: [5, 6], 1: [7, 8], 2: [9, 10], 3: [11, 12], 4: [13], 5: [14], 6: [15]}
    barsA = {1: range(2, 5), 4: range(5, 9), 8: range(9, 13), 12: range(13, 16)}
    s += gemm_phase("A", wplanA, barsA, extra_fill=xf, post_bar={4: [dmaK(0)], 5: [dmaK(1)], 8: [dmaV(0), dmaV(1)], 12: [dmaV(2)]})
    s += stamp(3)
    s += cstamp('S')
    e(barrier())
    s += flatKV(dmaK(2)); s += flatKV(dmaK(3))
    s += setup_E()
    s += qconvert()
    for i in range(16): e(valu("v_mov_b32", V(LREG + i), 0))
    for i in range(4): e(valu("v_mov_b32", V(ONES + i), "0x3f803f80"))
    s += first_max()
    s += window(-1, 0, last_qk=True, do_pv=False, do_kread=True, exp_tail=False)
    s += stamp(4)
    e(salu("s_mov_b32", S(S_LOOP), 0))
    e(salu("s_lshl_b32", S(7), S(2), 2)); e(salu("s_add_u32", S(7), S(7), S(S_WAVE))); e(salu("s_lshl_b32", S(7), S(7), 12))
    e(valu("v_and_b32", V(PFD + 3), 31, V(1))); e(valu("v_lshlrev_b32", V(PFD + 3), 7, V(PFD + 3)))
    s += [salu("s_mov_b32", S(60), S(P_WO)), salu("s_mov_b32", S(61), S(P_WO + 1)), salu("s_mov_b32", S(62), 4096*1024), salu("s_mov_b32", S(63), "0x00020000")]
    def pf_next():
        b = []
        for it, p in ((0, P_WD), (1, P_WG), (2, P_WG + 2)):
            b.append([raw(f"s_cmp_eq_u32 s{S_LOOP}, {it}", "salu", rd=regs("s", S_LOOP)), salu("s_cselect_b32", S(60), S(p), S(60)), salu("s_cselect_b32", S(61), S(p + 1), S(61))])
        b.append([raw(f"s_cmp_lt_u32 s{S_LOOP}, 3", "salu", rd=regs("s", S_LOOP)), salu("s_cselect_b32", S(62), 1792*1024, 0)])
        return b
    e(LoopBegin(f"{name}_loop"))
    for T in range(4):
        d0, d1 = tile_dma(T)
        x0, x1 = [], []
        if T == 0 and k1.PREFETCH:
            x1.append((39, buf_load(V(PFD), V(PFD + 3), S(60, 4), S(7), n=1, tag="PF")))
        if T == 1 and k1.PREFETCH:
            for k, b in enumerate(pf_next()): x1.append((13 + 2*k + 2, b))
        s += window(2*T, T, dma=d0, bar=True, extra=x0)
        s += window(2*T + 1, T, dma=d1, extra=x1)
    e(salu("s_add_u32", S(S_LOOP), S(S_LOOP), 1))
    e(raw(f"s_cmp_lt_u32 s{S_LOOP}, 7", "salu", rd=regs("s", S_LOOP)))
    e(raw(f"s_cbranch_scc1 {name}_loop", "branch"))
    e(LoopEnd(f"{name}_loop"))
    s += tail_windows()
    s += stamp(5)
    s += fb_check(name)
    s += o_rinv()
    e(raw(f"s_cmp_ge_u32 s{S_HEAD}, 28", "salu", rd=regs("s", S_HEAD)))
    e(raw(f"s_cbranch_scc1 {name}_noE", "branch"))
    k1.BRING_E = True
    s += flatB(4); s += flatB(5)
    for k in range(4, 16): s += flatW(k, "E")
    def of(t):
        u = o_unit(t)
        pos = [2, 2, 4, 4, 6, 6, 8, 8, 10, 10, 12, 12, 14, 14, 16, 16, 18, 18, 20, 20, 30]
        return list(zip(pos, u))
    s += gemm_phase("E", {}, {1: range(2, 5), 4: range(5, 9), 8: range(9, 13), 12: range(13, 16)}, extra_fill=of)
    k1.BRING_E = False
    s += stamp(6)
    s += h_epilogue()
    e(raw(f"s_branch {name}_fin", "branch"))
    e(label(f"{name}_noE"))
    for k in range(16): s += o_unit(k)
    s += stamp(6)
    e(label(f"{name}_fin"))
    pre, fin = final_phase(name)
    e(barrier())
    s += pre[:]
    e(wait_vm("O", "H"))
    s += stamp(7)
    s += poll_barrier(name, 1)
    s += stamp(8)
    s += fin
    if STAMPS: e(raw("s_waitcnt vmcnt(0)", "other"))
    s += stamp(9)
    s += stamp_dump(16 if k1.STEPSTAMP else 10)
    main, res = finish(s, name)
    return main + fallback(name), res

def setup1_mega():
    s = []; e = s.append
    e(sload(P_WS, 88, 2))
    e(sload(P_WQ, 24, 4)); e(sload(SRD_K, 8, 2)); e(sload(SRD_V, 16, 2)); e(sload(P_WG, 48, 4)); e(sload(P_WD, 64, 2))
    e(valu("v_and_b32", V(1), 63, V(0)))
    e(valu("v_lshrrev_b32", V(30), 6, V(0)))
    e(salu("s_and_b32", S(S_HEAD), S(2), 31))
    e(valu("v_readfirstlane_b32", S(S_WAVE), V(30)))
    e(salu("s_lshr_b32", S(S_QB), S(2), 5))
    e(salu("s_mov_b32", S(62), 2097152)); e(salu("s_mov_b32", S(63), "0x00020000"))
    e(raw("s_waitcnt lgkmcnt(0)", "wait")); s[-1].tag = (None, 0)
    s += ln_loads()
    e(salu("s_add_u32", S(SRD_SY), S(P_WS), SYNC_OFF)); e(salu("s_addc_u32", S(SRD_SY + 1), S(P_WS + 1), 0))
    e(salu("s_mov_b32", S(SRD_SY + 2), 16384)); e(salu("s_mov_b32", S(SRD_SY + 3), "0x00020000"))
    e(salu("s_lshl_b32", S(S_T + 2), S(S_QB), 7))
    e(valu("v_mov_b32", V(TMP + 11), 0))
    e(buf_load(V(TMP + 12), V(TMP + 11), S(SRD_SY, 4), S(S_T + 2), n=1, flags="sc1"))
    e(valu("v_lshrrev_b32", V(G_), 4, V(1)))
    e(valu("v_and_b32", V(N_), 15, V(1)))
    for i in range(2):
        e(valu("v_add_u32", V(U1), 4*i, V(G_)))
        e(valu("v_lshlrev_b32", V(U2), 13, V(U1)))
        e(valu("v_lshlrev_b32", V(U1), 1, V(U1)))
        e(valu("v_xor_b32", V(U1), V(U1), V(N_)))
        e(valu("v_lshl_add_u32", V(VOFFW + i), V(U1), 4, V(U2)))
        if i: e(valu("v_subrev_u32", V(VOFFW + i), 1024, V(VOFFW + i)))
    e(valu("v_lshlrev_b32", V(VLANE16), 4, V(1)))
    e(valu("v_mov_b32", V(VOFFB), V(VLANE16)))
    for qb in range(1, 4): e(valu("v_add_u32", V(VOFFB + qb), qb*16384, V(VLANE16)))
    e(salu("s_mov_b32", S(S_PHI), 0))
    e(salu("s_lshl_b32", S(S_W4K), S(S_WAVE), 12))
    e(salu("s_lshl_b32", S(S_W2K), S(S_WAVE), 11))
    e(salu("s_mov_b32", S(S_SOFFB), 0))
    e(salu("s_lshl_b32", S(S_SOFFW), S(S_WAVE), 16))
    e(salu("s_lshl_b32", S(S_T), S(S_HEAD), 8))
    e(salu("s_sub_u32", S(S_T + 1), 4194304, S(S_T)))
    s += mksrd(SRD_W, P_WQ, S_T, S(S_T + 1))
    e(salu("s_lshl_b32", S(S_T), S(S_QB), 4)); e(salu("s_lshl_b32", S(S_T + 1), S(S_WAVE), 2)); e(salu("s_add_u32", S(S_T), S(S_T), S(S_T + 1)))
    e(salu("s_lshl_b32", S(S_T), S(S_T), 14))
    if XN_OFF: e(salu("s_add_u32", S(S_T), S(S_T), XN_OFF))
    s += mksrd(SRD_XN, P_WS, S_T, 65536)
    e(salu("s_lshl_b32", S(S_T), S(S_HEAD), 19))
    for b in (SRD_K, SRD_V):
        e(salu("s_add_u32", S(b), S(b), S(S_T))); e(salu("s_addc_u32", S(b + 1), S(b + 1), 0))
        e(salu("s_mov_b32", S(b + 2), 524288)); e(salu("s_mov_b32", S(b + 3), "0x00020000"))
    return s

def epoch_fix():
    return [valu("v_readfirstlane_b32", S(S_EPOCH), V(TMP + 12)), nop(3), salu("s_add_u32", S(S_EPOCH), S(S_EPOCH), 1)]
```

```python
import sys
from ir import render
import k0, k1, k2, mega

NAME = "recurrent_scan__mha_block_cached__glu_gated_reglu__prompt"
HDR = open("cdna_kernels/" + NAME + ".s.ref").read().split("\n")

def build(stop=None, kernels=("k0", "k1", "k2")):
    head = [l for l in HDR if l.startswith(";") and "@launch" not in l and "Override launch" not in l and "grid=ceil" not in l]
    launches = {"k0": "; @launch kernel=ln_kernel grid=(256,1,1) block=(128,1,1) lds=0",
                "k1": f"; @launch kernel=attn_kernel grid=(256,1,1) block=(256,1,1) lds={k1.LDS_BYTES}",
                "k2": "; @launch kernel=final_kernel grid=(256,1,1) block=(256,1,1) lds=131072",
                "mega": f"; @launch kernel=mega_kernel grid=(256,1,1) block=(256,1,1) lds={k1.LDS_BYTES}",
                "single": f"; @launch grid=(256,1,1) block=(256,1,1) lds={k1.LDS_BYTES}"}
    out = head + [launches[k] for k in kernels]
    out.append('.amdgcn_target "amdgcn-amd-amdhsa--gfx950"')
    out.append(".text")
    descs = []
    for k, nm, fn in (("k0", "ln_kernel", lambda n: k0.gen_k0(n)), ("k1", "attn_kernel", lambda n: k1.gen_k1(n, stop=stop)), ("k2", "final_kernel", lambda n: k2.gen_k2(n)), ("mega", "mega_kernel", lambda n: mega.gen_mega(n)), ("single", NAME + "_kernel", lambda n: mega.gen_mega("mk"))):
        if k not in kernels: continue
        st, res = fn(nm)
        if k == "single":
            pass
        out.append(f".globl {nm}\n.p2align 8\n.type {nm},@function\n{nm}:")
        out.append(render(st))
        descs.append(f""".amdhsa_kernel {nm}
  .amdhsa_next_free_vgpr {res['vgpr']}
  .amdhsa_next_free_sgpr {res['sgpr']}
  .amdhsa_accum_offset {res['accum']}
  .amdhsa_group_segment_fixed_size 0
  .amdhsa_kernarg_size 96
  .amdhsa_user_sgpr_count 2
  .amdhsa_user_sgpr_kernarg_segment_ptr 1
  .amdhsa_system_sgpr_workgroup_id_x 1
.end_amdhsa_kernel""")
    out.append('.section .rodata,"a"')
    for d in descs:
        out.append(".p2align 6"); out.append(d)
    return "\n".join(out) + "\n"

if __name__ == "__main__":
    import argparse
    ap = argparse.ArgumentParser()
    ap.add_argument("-o", default="full.s")
    ap.add_argument("--stop", default=None)
    ap.add_argument("--kernels", default="k0,k1,k2")
    ap.add_argument("--stamps", action="store_true")
    ap.add_argument("--delta", type=int, default=1)
    ap.add_argument("--stepstamp", default=None)
    ap.add_argument("--norot", action="store_true")
    ap.add_argument("--forcefb", action="store_true")
    a = ap.parse_args()
    k1.STAMPS = a.stamps; k2.STAMPS = a.stamps
    k2.DELTA = a.delta
    k1.STEPSTAMP = a.stepstamp
    if a.stepstamp: k1.STAMPS = True
    k1.ROT = not a.norot
    mega.FORCE_FB = a.forcefb
    t = build(stop=a.stop, kernels=a.kernels.split(","))
    open(a.o, "w").write(t)
    print("wrote", a.o, len(t), "bytes")
```

```python
from ir import *
from k0 import sload, XN_OFF, O_OFF, H_OFF, DBG_OFF
import k1
from k1 import *

SYNC_OFF = 30 << 20
S_EPOCH = 6
S_GRP = 5
SRD_SY = 92
SPIN_MAX = 400000
TOUCH = True
NT_O, NT_H, NSLOT = 32, 14, 8
FIN = dict(sc1=True, noB=False, noW=False, map=0, rot=0)

def poll_barrier(name, idx):
    s = []; e = s.append
    L = f"{name}_gb{idx}"
    e(barrier())
    e(raw(f"s_cmp_lg_u32 s{S_WAVE}, 0", "salu", rd=regs("s", S_WAVE)))
    e(raw(f"s_cbranch_scc1 {L}_skip", "branch"))
    e(salu("s_lshl_b32", S(T0_), S(S_QB), 7))
    e(salu("s_add_u32", S(T0_), S(T0_), 4096*(1 + idx)))
    e(salu("s_lshl_b32", S(T1_), S(S_HEAD), 2))
    e(salu("s_add_u32", S(T1_), S(T1_), S(T0_)))
    e(valu("v_mov_b32", V(TMP + 10), S(S_EPOCH)))
    e(valu("v_mov_b32", V(TMP + 11), 0))
    e(raw("s_mov_b64 exec, 1", "salu"))
    e(buf_store(V(TMP + 10), V(TMP + 11), S(SRD_SY, 4), S(T1_), n=1, flags="sc1"))
    e(raw("s_mov_b32 exec_lo, -1", "salu")); e(raw("s_mov_b32 exec_hi, 0", "salu"))
    e(valu("v_lshlrev_b32", V(TMP + 11), 2, V(1)))
    e(salu("s_mov_b32", S(T2_), SPIN_MAX))
    e(label(f"{L}_poll"))
    e(raw(f"buffer_load_dword v{TMP+12}, v{TMP+11}, s[{SRD_SY}:{SRD_SY+3}], s{T0_} offen sc1", "other"))
    e(raw("s_waitcnt vmcnt(0)", "other"))
    e(raw(f"v_cmp_ne_u32 vcc, s{S_EPOCH}, v{TMP+12}", "other"))
    e(raw("s_nop 4", "other"))
    e(raw(f"s_cbranch_vccz {L}_done", "branch"))
    e(raw(f"s_sub_u32 s{T2_}, s{T2_}, 1", "other"))
    e(raw(f"s_cbranch_scc1 {L}_done", "branch"))
    e(raw("s_sleep 1", "other"))
    e(raw(f"s_branch {L}_poll", "branch"))
    e(label(f"{L}_done"))
    if idx == 0:
        e(raw(f"s_cmp_lg_u32 s{S_HEAD}, 0", "salu", rd=regs("s", S_HEAD)))
        e(raw(f"s_cbranch_scc1 {L}_noep", "branch"))
        e(raw("s_mov_b64 exec, 1", "salu"))
        e(salu("s_lshl_b32", S(T0_), S(S_QB), 7))
        e(raw(f"v_mov_b32 v{TMP+11}, 0", "other"))
        e(raw(f"buffer_store_dword v{TMP+10}, v{TMP+11}, s[{SRD_SY}:{SRD_SY+3}], s{T0_} offen sc1", "other"))
        e(label(f"{L}_noep"))
    e(raw("s_mov_b64 exec, -1", "salu"))
    e(label(f"{L}_skip"))
    e(barrier())
    return s

LX = 32
def ln_loads():
    s = []; e = s.append
    e(valu("v_and_b32", V(60), 7, V(1)))
    e(valu("v_bfe_u32", V(61), V(1), 3, 2))
    e(valu("v_lshrrev_b32", V(62), 5, V(1)))
    e(salu("s_lshl_b32", S(S_T), S(S_QB), 8)); e(salu("s_lshl_b32", S(S_T + 1), S(S_HEAD), 3)); e(salu("s_add_u32", S(S_T), S(S_T), S(S_T + 1)))
    e(salu("s_lshl_b32", S(S_T), S(S_T), 10)); e(salu("s_lshl_b32", S(S_T + 1), S(S_WAVE), 8)); e(salu("s_add_u32", S(S_T), S(S_T), S(S_T + 1)))
    e(valu("v_lshlrev_b32", V(63), 10, V(60)))
    e(valu("v_lshl_add_u32", V(63), V(62), 7, V(63)))
    e(valu("v_lshl_add_u32", V(63), V(61), 3, V(63)))
    for i in range(2):
        for rd in range(2):
            e(buf_load(V(LX + 4*i + 2*rd, 2), V(63), S(60, 4), S(S_T), offset=i*64 + rd*32, n=2))
    return s

def ln_compute():
    s = []; e = s.append
    X = 40
    for p in range(8):
        e(valu("v_lshlrev_b32", V(X + 2*p), 16, V(LX + p)))
        e(valu("v_and_b32", V(X + 2*p + 1), "0xffff0000", V(LX + p)))
    def red(r, t, slot):
        o = []
        o.append(nop(1))
        o.append(valu("v_add_f32_dpp", V(r), V(r), V(r), extra="row_ror:8 row_mask:0xf bank_mask:0xf"))
        for swp in ("v_permlane16_swap_b32", "v_permlane32_swap_b32"):
            o.append(valu("v_mov_b32", V(t), V(r))); o.append(nop(1))
            o.append(valu(swp, V(t), V(r), dst_is_src=True, wr_extra=regs("v", r))); o.append(nop(1))
            o.append(valu("v_add_f32", V(r), V(r), V(t)))
        o.append(ds_write("ds_write_b32", V(58), V(r), offset=slot*128))
        o.append(wait_raw(lgkm=0)); o.append(barrier())
        for w in range(4): o.append(ds_read("ds_read_b32", V(t + w), V(59), offset=slot*128 + w*32))
        o.append(valu("v_add_f32", V(t), V(t), V(t + 1)))
        o.append(valu("v_add_f32", V(t + 2), V(t + 2), V(t + 3)))
        o.append(valu("v_add_f32", V(r), V(t), V(t + 2)))
        return o
    e(valu("v_lshlrev_b32", V(59), 2, V(60)))
    e(salu("s_lshl_b32", S(S_T + 1), S(S_WAVE), 5))
    e(valu("v_add_u32", V(58), S(S_T + 1), V(59)))
    e(valu("v_add_f32", V(56), V(X), V(X + 1)))
    e(valu("v_add_f32", V(57), V(X + 2), V(X + 3)))
    for k in range(4, 16, 2):
        e(valu("v_add_f32", V(56), V(56), V(X + k))); e(valu("v_add_f32", V(57), V(57), V(X + k + 1)))
    e(valu("v_add_f32", V(56), V(56), V(57)))
    s += red(56, 64, 0)
    e(valu("v_mul_f32", V(56), "0x3b000000", V(56)))
    e(valu("v_sub_f32", V(68), V(X), V(56))); e(valu("v_sub_f32", V(69), V(X + 1), V(56)))
    e(valu("v_mul_f32", V(70), V(68), V(68))); e(valu("v_mul_f32", V(71), V(69), V(69)))
    for k in range(2, 16, 2):
        e(valu("v_sub_f32", V(68), V(X + k), V(56))); e(valu("v_sub_f32", V(69), V(X + k + 1), V(56)))
        e(valu("v_fmac_f32", V(70), V(68), V(68), dst_is_src=True)); e(valu("v_fmac_f32", V(71), V(69), V(69), dst_is_src=True))
    e(valu("v_add_f32", V(70), V(70), V(71)))
    s += red(70, 64, 1)
    e(valu("v_mul_f32", V(70), "0x3b000000", V(70)))
    def rbf(dst, src): return [valu("v_cvt_pk_bf16_f32", V(dst), V(src), V(src)), valu("v_lshlrev_b32", V(dst), 16, V(dst))]
    s += rbf(56, 56); s += rbf(70, 70)
    e(valu("v_add_f32", V(70), "0x3727c5ac", V(70)))
    s += rbf(70, 70)
    e(trans("v_sqrt_f32", V(70), V(70))); e(nop(0))
    s += rbf(70, 70)
    e(trans("v_rcp_f32", V(71), V(70))); e(nop(0))
    e(valu("v_fma_f32", V(69), "-v70", V(71), 2.0, rd_extra=regs("v", 70)))
    e(valu("v_mul_f32", V(71), V(71), V(69)))
    for k in range(16): e(valu("v_sub_f32", V(X + k), V(X + k), V(56)))
    for p in range(8): e(valu("v_cvt_pk_bf16_f32", V(LX + p), V(X + 2*p), V(X + 2*p + 1)))
    for p in range(8):
        e(valu("v_lshlrev_b32", V(X + 2*p), 16, V(LX + p))); e(valu("v_and_b32", V(X + 2*p + 1), "0xffff0000", V(LX + p)))
    for k in range(16): e(valu("v_mul_f32", V(X + k), V(X + k), V(71)))
    for p in range(8): e(valu("v_cvt_pk_bf16_f32", V(LX + p), V(X + 2*p), V(X + 2*p + 1)))
    e(salu("s_lshl_b32", S(S_T), S(S_QB), 4)); e(salu("s_lshr_b32", S(S_T + 1), S(S_HEAD), 1)); e(salu("s_add_u32", S(S_T), S(S_T), S(S_T + 1)))
    e(salu("s_lshl_b32", S(S_T), S(S_T), 14))
    e(salu("s_lshl_b32", S(S_T + 1), S(S_WAVE), 12)); e(salu("s_add_u32", S(S_T), S(S_T), S(S_T + 1)))
    e(salu("s_and_b32", S(S_T + 1), S(S_HEAD), 1)); e(salu("s_lshl_b32", S(S_T + 1), S(S_T + 1), 7)); e(salu("s_add_u32", S(S_T), S(S_T), S(S_T + 1)))
    if XN_OFF: e(salu("s_add_u32", S(S_T), S(S_T), XN_OFF))
    e(valu("v_lshlrev_b32", V(63), 4, V(60)))
    e(valu("v_lshl_add_u32", V(63), V(61), 8, V(63)))
    e(valu("v_lshl_add_u32", V(63), V(62), 11, V(63)))
    s += mksrd(60, P_WS, None, 32 << 20)
    for i in range(2):
        e(buf_store(V(LX + 4*i, 4), V(63), S(60, 4), S(S_T), offset=i*1024, tag="XN", flags="sc1"))
    return s

CODEPF = True
SRD_C = 100 - 12
SRD_C = 72
def code_srd(name):
    return [raw("s_getpc_b64 s[100:101]", "salu", wr=regs("s", 100, 2))]
def code_touch(name, dest, srd=60):
    s = []; e = s.append
    e(salu("s_mov_b32", S(srd), S(100))); e(salu("s_mov_b32", S(srd + 1), S(101)))
    e(raw(f"s_mov_b32 s{srd+2}, {name}_codeend-{name}_pc", "salu", wr=regs("s", srd + 2))); e(salu("s_mov_b32", S(srd + 3), "0x00020000"))
    e(salu("s_lshr_b32", S(S_T + 2), S(2), 3)); e(salu("s_and_b32", S(S_T + 2), S(S_T + 2), 15)); e(salu("s_lshl_b32", S(S_T + 2), S(S_T + 2), 12))
    e(valu("v_lshlrev_b32", V(U1), 6, V(1)))
    e(buf_load(V(dest), V(U1), S(srd, 4), S(S_T + 2), n=1, tag="PF"))
    return s

def touches():
    s = []; e = s.append
    if not TOUCH: return s
    e(valu("v_lshrrev_b32", V(U1), 3, V(1)))
    e(valu("v_lshlrev_b32", V(U1), 18, V(U1)))
    e(valu("v_bfe_u32", V(U2), V(1), 1, 2))
    e(valu("v_lshl_add_u32", V(U1), V(U2), 13, V(U1)))
    e(valu("v_and_b32", V(U2), 1, V(1)))
    e(valu("v_lshl_add_u32", V(U1), V(U2), 7, V(U1)))
    e(salu("s_lshl_b32", S(S_T + 1), S(S_QB), 15))
    e(raw(f"s_cmp_eq_u32 s{S_WAVE}, 2", "salu", rd=regs("s", S_WAVE)))
    e(salu("s_cselect_b32", S(S_T), 8*262144, 0))
    e(salu("s_add_u32", S(S_T), S(S_T), S(S_T + 1)))
    for i in range(4): e(salu("s_mov_b32", S(60 + i), S(SRD_W + i)))
    e(salu("s_mov_b32", S(63), "0x00020000"))
    e(salu("s_sub_u32", S(S_T + 2), S(S_WAVE), 1))
    e(raw(f"s_cmp_lt_u32 s{S_T+2}, 2", "salu", rd=regs("s", S_T + 2)))
    e(salu("s_cselect_b32", S(62), S(62), 0))
    e(buf_load(V(PFD), V(U1), S(60, 4), S(S_T), n=1, tag="PF"))
    e(valu("v_and_b32", V(U2), 31, V(1)))
    e(valu("v_lshlrev_b32", V(U2), 7, V(U2)))
    e(salu("s_lshl_b32", S(S_T), S(S_QB), 12))
    for srdb in (SRD_K, SRD_V):
        for i in range(3): e(salu("s_mov_b32", S(60 + i), S(srdb + i)))
        e(raw(f"s_cmp_eq_u32 s{S_WAVE}, 3", "salu", rd=regs("s", S_WAVE)))
        e(salu("s_cselect_b32", S(62), S(62), 0))
        e(buf_load(V(PFD + 1 + (srdb == SRD_V)), V(U2), S(60, 4), S(S_T), n=1, tag="PF"))
    return s


FB_THRESH = 4096.0
FB_LDS = 0
FORCE_FB = False
def fb_check(name):
    s = []; e = s.append
    e(nop(7))
    e(salu("s_mov_b32", S(S_T), f2h(-1.0 if FORCE_FB else FB_THRESH)))
    e(salu("s_mov_b64", S(S_T + 2, 2), 0))
    for qb in range(4):
        e(raw(f"v_cmp_nle_f32 vcc, v{LREG + 4*qb}, s{S_T}", "valu", rd=regs("v", LREG + 4*qb) + regs("s", S_T), wr=[("s", "vcc")]))
        s[-1].text = f"v_cmp_nle_f32_e64 vcc, v{LREG + 4*qb}, s{S_T}"
        e(nop(4))
        e(raw(f"s_or_b64 s[{S_T+2}:{S_T+3}], s[{S_T+2}:{S_T+3}], vcc", "salu"))
    e(raw(f"s_or_b32 s{S_T+2}, s{S_T+2}, s{S_T+3}", "salu"))
    e(raw(f"s_cmp_lg_u32 s{S_T+2}, 0", "salu"))
    e(salu("s_cselect_b32", S(S_T + 2), 1, 0))
    e(valu("v_mov_b32", V(TMP + 8), S(S_T + 2)))
    e(salu("s_lshl_b32", S(S_T + 3), S(S_WAVE), 2))
    if FB_LDS: e(salu("s_add_u32", S(S_T + 3), S(S_T + 3), FB_LDS))
    e(valu("v_mov_b32", V(TMP + 9), S(S_T + 3)))
    e(barrier())
    e(ds_write("ds_write_b32", V(TMP + 9), V(TMP + 8), offset=0))
    e(wait_raw(lgkm=0)); e(barrier())
    e(valu("v_mov_b32", V(TMP + 9), FB_LDS))
    e(ds_read("ds_read_b128", V(TMP + 4, 4), V(TMP + 9), offset=0))
    e(valu("v_or_b32", V(TMP + 4), V(TMP + 4), V(TMP + 5)))
    e(valu("v_or_b32", V(TMP + 6), V(TMP + 6), V(TMP + 7)))
    e(valu("v_or_b32", V(TMP + 4), V(TMP + 4), V(TMP + 6)))
    e(nop(0))
    e(valu("v_readfirstlane_b32", S(S_T + 2), V(TMP + 4)))
    e(nop(3))
    e(raw(f"s_cmp_lg_u32 s{S_T+2}, 0", "salu"))
    e(raw(f"s_cbranch_scc1 {name}_fb", "branch"))
    e(label(f"{name}_fbret"))
    return s

def fallback(name):
    s = []; e = s.append
    M, MN, AL = TMP, TMP + 4, TMP + 8
    e(label(f"{name}_fb"))
    e(wait_raw(vm=0, lgkm=0)); e(barrier())
    for i in range(128): e(valu("v_accvgpr_write_b32", A(i), 0))
    for i in range(16): e(valu("v_mov_b32", V(LREG + i), 0))
    for qb in range(4): e(valu("v_mov_b32", V(M + qb), "0xff800000"))
    e(salu("s_mov_b32", S(S_SOFFK), S(S_W4K))); e(salu("s_mov_b32", S(S_SOFFV), S(S_W4K)))
    e(salu("s_mov_b32", S(S_LOOP), 0))
    e(label(f"{name}_fbloop"))
    s += flatKV(dmaK(0)); s += flatKV(dmaV(0))
    e(wait_raw(vm=0)); e(barrier())
    for half in range(2):
        for f in range(8):
            kb, ds = f >> 2, f & 3
            e(ds_read("ds_read_b128", KF(f), V(ADDRK + ds), offset=half*8192 + kb*4096))
        for db in range(8):
            for rd in range(2):
                e(ds_read("ds_read_b64_tr_b16", sub(VF(db), 2*rd, 2), V(ADDRV + db), offset=half*8192 + rd*4096))
        e(wait_raw(lgkm=0))
        for kb in range(2):
            for ds in range(4):
                for qb in range(4):
                    e(mfma16(SR(kb, qb), KF(4*kb + ds), QF(qb, ds), 0 if ds == 0 else SR(kb, qb)))
        e(nop(7))
        for qb in range(4):
            e(valu("v_max3_f32", V(MN + qb), SR(0, qb, 0), SR(0, qb, 1), SR(0, qb, 2)))
            e(valu("v_max3_f32", V(MN + qb), V(MN + qb), SR(0, qb, 3), SR(1, qb, 0)))
            e(valu("v_max3_f32", V(MN + qb), V(MN + qb), SR(1, qb, 1), SR(1, qb, 2)))
            e(valu("v_max3_f32", V(MN + qb), V(MN + qb), SR(1, qb, 3), V(M + qb)))
        for swp in ("v_permlane16_swap_b32", "v_permlane32_swap_b32"):
            for qb in range(4): e(valu("v_mov_b32", V(AL + qb), V(MN + qb)))
            e(nop(1))
            for qb in range(4): e(valu(swp, V(AL + qb), V(MN + qb), dst_is_src=True, wr_extra=regs("v", MN + qb)))
            e(nop(1))
            for qb in range(4): e(valu("v_max_f32", V(MN + qb), V(MN + qb), V(AL + qb)))
        for qb in range(4): e(valu("v_sub_f32", V(AL + qb), V(M + qb), V(MN + qb)))
        for qb in range(4): e(trans("v_exp_f32", V(AL + qb), V(AL + qb)))
        for qb in range(4): e(valu("v_mov_b32", V(M + qb), V(MN + qb)))
        for kb in range(2):
            for qb in range(4):
                for r in range(4): e(valu("v_sub_f32", SR(kb, qb, r), SR(kb, qb, r), V(M + qb)))
        for kb in range(2):
            for qb in range(4):
                for r in range(4): e(trans("v_exp_f32", SR(kb, qb, r), SR(kb, qb, r)))
        e(nop(0))
        for kb in range(2):
            for qb in range(4):
                for h in range(2): e(valu("v_cvt_pk_bf16_f32", PR(0, qb, 2*kb + h), SR(kb, qb, 2*h), SR(kb, qb, 2*h + 1)))
        for db in range(8):
            for qb in range(4):
                for r in range(4): e(valu("v_accvgpr_read_b32", V(SREG + 4*qb + r), sub(OACC(db, qb), r)))
            for qb in range(4):
                for r in range(4): e(valu("v_mul_f32", V(SREG + 4*qb + r), V(SREG + 4*qb + r), V(AL + qb)))
            for qb in range(4):
                for r in range(4): e(valu("v_accvgpr_write_b32", sub(OACC(db, qb), r), V(SREG + 4*qb + r)))
        for qb in range(4):
            for r in range(4): e(valu("v_mul_f32", V(LREG + 4*qb + r), V(LREG + 4*qb + r), V(AL + qb)))
        e(nop(1))
        for db in range(8):
            for qb in range(4): e(mfma16(OACC(db, qb), VF(db), PR(0, qb), OACC(db, qb)))
        for qb in range(4): e(mfma16(V(LREG + 4*qb, 4), V(ONES, 4), PR(0, qb), V(LREG + 4*qb, 4)))
        e(nop(7))
    e(barrier())
    e(raw(f"s_add_u32 s{S_LOOP}, s{S_LOOP}, 1", "salu")); e(raw(f"s_cmp_lt_u32 s{S_LOOP}, 32", "salu"))
    e(raw(f"s_cbranch_scc1 {name}_fbloop", "branch"))
    e(raw(f"s_branch {name}_fbret", "branch"))
    s = insert_waits(s)
    for p in check_hazards(s, name + "_fb")[:20]: print("HAZARD", p)
    return s

def final_phase(name):
    s = []; e = s.append
    ADDRA, VOFW, VOFB, VB = 2, 6, 10, 12
    ACCS, ACCF = 128, 192
    def ACC(part, nb, qb): return V((ACCS if part == 0 else ACCF) + 16*nb + 4*qb, 4)
    def AF(t, nb): return A(16*(t & 1) + 4*nb, 4)
    def BF(t, qb): return A(128 + 16*(t % NSLOT) + 4*qb, 4)
    SRD_A0, SRD_A1, SRD_W0, SRD_W1, SRD_X, SRD_OUT = 8, 12, 16, 20, 24, 28
    S_RB, S_CB, S_LDSW, S_SA, S_SW = 32, 33, 34, 35, 36
    pre = []; e = pre.append
    e(sload(44, 0, 2)); e(sload(46, 72, 2))
    if FIN["map"] == 0:
        e(salu("s_and_b32", S(T0_), S(S_HEAD), 7)); e(salu("s_lshr_b32", S(T1_), S(S_HEAD), 3))
        e(salu("s_lshr_b32", S(T2_), S(T0_), 1)); e(salu("s_lshl_b32", S(S_RB), S(S_QB), 2)); e(salu("s_add_u32", S(S_RB), S(S_RB), S(T2_)))
        e(salu("s_and_b32", S(T0_), S(T0_), 1)); e(salu("s_lshl_b32", S(T0_), S(T0_), 2)); e(salu("s_add_u32", S(S_CB), S(T0_), S(T1_)))
    elif FIN["map"] == 1:
        e(salu("s_lshr_b32", S(T2_), S(S_HEAD), 3)); e(salu("s_lshl_b32", S(S_RB), S(S_QB), 2)); e(salu("s_add_u32", S(S_RB), S(S_RB), S(T2_)))
        e(salu("s_and_b32", S(S_CB), S(S_HEAD), 7))
    elif FIN["map"] == 2:
        e(salu("s_and_b32", S(T0_), S(S_HEAD), 7)); e(salu("s_lshr_b32", S(T1_), S(S_HEAD), 3))
        e(salu("s_and_b32", S(T2_), S(T0_), 3)); e(salu("s_lshl_b32", S(S_RB), S(S_QB), 2)); e(salu("s_add_u32", S(S_RB), S(S_RB), S(T2_)))
        e(salu("s_lshr_b32", S(T0_), S(T0_), 2)); e(salu("s_lshl_b32", S(T0_), S(T0_), 2)); e(salu("s_add_u32", S(S_CB), S(T0_), S(T1_)))
    e(salu("s_lshl_b32", S(T0_), S(S_RB), 9)); e(salu("s_lshl_b32", S(T1_), S(S_WAVE), 5)); e(salu("s_add_u32", S(T0_), S(T0_), S(T1_)))
    e(salu("s_lshl_b32", S(T0_), S(T0_), 10)); e(salu("s_add_u32", S(T0_), S(T0_), O_OFF))
    pre += mksrd(SRD_A0, P_WS, T0_, 3*131072 + 32*1024)
    e(salu("s_mul_i32", S(T0_), S(S_RB), 224)); e(salu("s_mul_i32", S(T1_), S(S_WAVE), 14)); e(salu("s_add_u32", S(T0_), S(T0_), S(T1_)))
    e(salu("s_lshl_b32", S(T0_), S(T0_), 10)); e(salu("s_add_u32", S(T0_), S(T0_), H_OFF))
    pre += mksrd(SRD_A1, P_WS, T0_, 3*57344 + 14*1024)
    e(salu("s_lshl_b32", S(T0_), S(S_WAVE), 20)); e(salu("s_lshl_b32", S(T1_), S(S_CB), 7)); e(salu("s_add_u32", S(T0_), S(T0_), S(T1_)))
    e(salu("s_sub_u32", S(T2_), 4096*1024, S(T0_)))
    pre += mksrd(SRD_W0, P_WO, T0_, S(T2_))
    e(salu("s_mul_i32", S(T0_), S(S_WAVE), 448*1024)); e(salu("s_add_u32", S(T0_), S(T0_), S(T1_)))
    e(salu("s_sub_u32", S(T2_), 1792*1024, S(T0_)))
    pre += mksrd(SRD_W1, P_WD, T0_, S(T2_))
    e(salu("s_lshl_b32", S(S_LDSW), S(S_WAVE), 15))
    G, RR, C, T1, T2, X = 20, 21, 22, 23, 24, 25
    e(valu("v_lshrrev_b32", V(G), 4, V(1))); e(valu("v_bfe_u32", V(RR), V(1), 2, 2)); e(valu("v_and_b32", V(C), 3, V(1)))
    e(valu("v_lshl_add_u32", V(T2), V(G), 2, V(RR))); e(valu("v_lshlrev_b32", V(T2), 7, V(T2)))
    e(valu("v_lshl_add_u32", V(T2), V(C), 3, V(T2))); e(valu("v_add_u32", V(T2), S(S_LDSW), V(T2)))
    e(valu("v_and_b32", V(X), 1, V(G))); e(valu("v_lshlrev_b32", V(X), 1, V(X))); e(valu("v_lshrrev_b32", V(T1), 1, V(RR))); e(valu("v_add_u32", V(X), V(X), V(T1)))
    for b in range(4):
        e(valu("v_xor_b32", V(T1), b, V(X))); e(valu("v_lshl_add_u32", V(ADDRA + b), V(T1), 5, V(T2)))
    e(valu("v_lshrrev_b32", V(T1), 3, V(1))); e(valu("v_lshlrev_b32", V(T2), 10, V(T1)))
    e(valu("v_lshlrev_b32", V(X), 1, V(G))); e(valu("v_and_b32", V(T1), 7, V(1))); e(valu("v_xor_b32", V(T1), V(T1), V(X)))
    e(valu("v_lshl_add_u32", V(VOFW), V(T1), 4, V(T2)))
    for i in range(1, 4): e(valu("v_add_u32", V(VOFW + i), i*7168, V(VOFW)))
    e(valu("v_lshlrev_b32", V(VOFB), 4, V(1)))
    for qb in range(4):
        e(valu("v_add_u32", V(VB + qb), qb*131072, V(VOFB))); e(valu("v_add_u32", V(VB + 4 + qb), qb*57344, V(VOFB)))
    e(salu("s_mov_b32", S(S_SA), 0)); e(salu("s_mov_b32", S(S_SW), 0))
    e(raw("s_waitcnt lgkmcnt(0)", "wait")); pre[-1].tag = (None, 0)
    pre += mksrd(SRD_X, 44, None, 2097152); pre += mksrd(SRD_OUT, 46, None, 2097152)
    NT = NT_O + NT_H
    D = NSLOT - 1
    def ldW(t):
        part = 0 if t < NT_O else 1
        o = []
        if t == NT_O: o.append(salu("s_mov_b32", S(S_SW), 0))
        o.append(salu("s_add_u32", "m0", S(S_LDSW), (t % NSLOT)*4096))
        d = [buf_dma(V(VOFW + i), S(SRD_W0 if part == 0 else SRD_W1, 4), S(S_SW), offset=i*1024, tag=("FW", t)) for i in range(4)]
        if FIN["noW"]: d = d[:1]
        return o, d, [salu("s_add_u32", S(S_SW), S(S_SW), 32768)]
    def ldB(t):
        part = 0 if t < NT_O else 1
        o = []
        if t == NT_O: o.append(salu("s_mov_b32", S(S_SA), 0))
        d = [buf_load(BF(t, qb), V(VB + 4*part + qb), S(SRD_A0 if part == 0 else SRD_A1, 4), S(S_SA), tag=("FB", t), flags="sc1" if FIN["sc1"] else "") for qb in range(4)]
        if FIN["noB"]: d = d[:1]
        return o, d, [salu("s_add_u32", S(S_SA), S(S_SA), 1024)]
    def rdA(t, nb, rd):
        return ds_read("ds_read_b64_tr_b16", sub(AF(t, nb), 2*rd, 2), V(ADDRA + nb), offset=(t % NSLOT)*4096 + rd*2048)
    for t in range(D):
        o, d, p = ldW(t); pre += o; pre.append(nop(0)); pre += d; pre += p
    e = s.append
    for t in range(D):
        o, d, p = ldB(t); s += o; s += d; s += p
    for nb in range(4):
        for rd in range(2):
            if nb == 0 and rd == 0: e(wait_vm(("FW", 0)))
            e(rdA(0, nb, rd))
    for t in range(NT):
        part = 0 if t < NT_O else 1
        tl = t if part == 0 else t - NT_O
        F = Fill(16)
        post = []
        if t + 1 < NT:
            F.add(0, wait_vm(("FW", t + 1)))
            for nb in range(4):
                F.add(1 + 4*nb, rdA(t + 1, nb, 0)); F.add(3 + 4*nb, rdA(t + 1, nb, 1))
        if t + D < NT:
            o, d, p = ldW(t + D)
            F.add(0, o)
            for k, x in enumerate(d): F.add(2 + 2*k, x)
            F.add(9, p)
            o, d, p = ldB(t + D)
            if o: F.add(9, o)
            for k, x in enumerate(d): F.add(10 + 2*k if k < 3 else 15, x)
            post = p
        for nb in range(4):
            for qb in range(4):
                g = 4*nb + qb
                e(mfma16(ACC(part, nb, qb), AF(t, nb), BF(t, qb), 0 if tl == 0 else ACC(part, nb, qb)))
                s += F.emit(g)
        s += post
    s += cstamp('M')
    e(nop(7)); e(barrier())
    e(valu("v_lshlrev_b32", V(20), 4, V(1)))
    e(valu("v_add_u32", V(21), S(S_LDSW), V(20)))
    for i in range(32): e(ds_write("ds_write_b128", V(21), V(128 + 4*i, 4), offset=i*1024))
    e(valu("v_and_b32", V(23), 15, V(1)))
    e(salu("s_lshl_b32", S(T0_), S(S_RB), 6)); e(salu("s_lshl_b32", S(T1_), S(S_WAVE), 4)); e(salu("s_add_u32", S(T0_), S(T0_), S(T1_)))
    e(valu("v_add_u32", V(23), S(T0_), V(23))); e(valu("v_lshlrev_b32", V(23), 10, V(23)))
    e(valu("v_lshrrev_b32", V(24), 4, V(1))); e(valu("v_lshl_add_u32", V(23), V(24), 3, V(23)))
    e(salu("s_lshl_b32", S(T1_), S(S_CB), 7)); e(valu("v_add_u32", V(23), S(T1_), V(23)))
    XR_ = 160
    for nb in range(4): e(buf_load(V(XR_ + 2*nb, 2), V(23), S(SRD_X, 4), 0, offset=nb*32, n=2))
    e(wait_raw(lgkm=0)); e(barrier())
    e(salu("s_lshl_b32", S(T0_), S(S_WAVE), 10))
    e(valu("v_add_u32", V(21), S(T0_), V(20))); e(valu("v_add_u32", V(22), 65536, V(21)))
    for part in range(2):
        for nb in range(4):
            for src in range(4):
                off = (src & 1)*32768 + (part*16 + nb*4)*1024
                e(ds_read("ds_read_b128", V(32 + ((part*4 + nb)*4 + src)*4, 4), V(21 if src < 2 else 22), offset=off))
    for part in range(2):
        for nb in range(4):
            b = 32 + (part*4 + nb)*16
            for r in range(4):
                e(valu("v_add_f32", V(b + r), V(b + r), V(b + 4 + r))); e(valu("v_add_f32", V(b + 8 + r), V(b + 8 + r), V(b + 12 + r)))
            for r in range(4): e(valu("v_add_f32", V(b + r), V(b + r), V(b + 8 + r)))
    T = 168
    for nb in range(4):
        sb, fb = 32 + nb*16, 96 + nb*16
        e(valu("v_cvt_pk_bf16_f32", V(T), V(sb), V(sb + 1))); e(valu("v_cvt_pk_bf16_f32", V(T + 1), V(sb + 2), V(sb + 3)))
        e(valu("v_cvt_pk_bf16_f32", V(T + 2), V(fb), V(fb + 1))); e(valu("v_cvt_pk_bf16_f32", V(T + 3), V(fb + 2), V(fb + 3)))
        for h in range(2):
            e(valu("v_lshlrev_b32", V(sb + 2*h), 16, V(T + h))); e(valu("v_and_b32", V(sb + 2*h + 1), "0xffff0000", V(T + h)))
            e(valu("v_lshlrev_b32", V(fb + 2*h), 16, V(T + 2 + h))); e(valu("v_and_b32", V(fb + 2*h + 1), "0xffff0000", V(T + 2 + h)))
        for r in range(4): e(valu("v_mul_f32", V(T + 4 + r), f2h(-1.4426950408889634), V(fb + r)))
        for r in range(4): e(trans("v_exp_f32", V(T + 4 + r), V(T + 4 + r)))
        e(nop(0))
        for r in range(4): e(valu("v_add_f32", V(T + 4 + r), 1.0, V(T + 4 + r)))
        for r in range(4): e(trans("v_rcp_f32", V(T + 4 + r), V(T + 4 + r)))
        e(nop(0))
        for r in range(4): e(valu("v_mul_f32", V(fb + r), V(fb + r), V(T + 4 + r)))
        e(valu("v_cvt_pk_bf16_f32", V(T + 2), V(fb), V(fb + 1))); e(valu("v_cvt_pk_bf16_f32", V(T + 3), V(fb + 2), V(fb + 3)))
        for h in range(2):
            e(valu("v_lshlrev_b32", V(fb + 2*h), 16, V(T + 2 + h))); e(valu("v_and_b32", V(fb + 2*h + 1), "0xffff0000", V(T + 2 + h)))
        for r in range(4): e(valu("v_mul_f32", V(sb + r), V(sb + r), V(fb + r)))
        e(valu("v_cvt_pk_bf16_f32", V(T), V(sb), V(sb + 1))); e(valu("v_cvt_pk_bf16_f32", V(T + 1), V(sb + 2), V(sb + 3)))
        for h in range(2):
            e(valu("v_lshlrev_b32", V(sb + 2*h), 16, V(T + h))); e(valu("v_and_b32", V(sb + 2*h + 1), "0xffff0000", V(T + h)))
            e(valu("v_lshlrev_b32", V(fb + 2*h), 16, V(XR_ + 2*nb + h))); e(valu("v_and_b32", V(fb + 2*h + 1), "0xffff0000", V(XR_ + 2*nb + h)))
        for r in range(4): e(valu("v_add_f32", V(sb + r), V(sb + r), V(fb + r)))
        e(valu("v_cvt_pk_bf16_f32", V(T + 8 + 2*nb), V(sb), V(sb + 1))); e(valu("v_cvt_pk_bf16_f32", V(T + 9 + 2*nb), V(sb + 2), V(sb + 3)))
        e(buf_store(V(T + 8 + 2*nb, 2), V(23), S(SRD_OUT, 4), 0, offset=nb*32, n=2))
    return pre, s

def gen_mega(name):
    k1.SC1 = True
    s = stamp(0); e = s.append
    if k1.STEPSTAMP: s += [raw('s_memtime s[96:97]', 'smem'), raw('s_waitcnt lgkmcnt(0)', 'other'), raw('s_mov_b32 s80, s96', 'salu')]
    e(raw("s_cmp_ge_u32 s2, 256", "salu", rd=regs("s", 2)))
    e(raw(f"s_cbranch_scc1 {name}_end", "branch"))
    e(sload(60, 0, 2))
    if CODEPF:
        e(raw("s_getpc_b64 s[100:101]", "salu", wr=regs("s", 100, 2))); e(label(f"{name}_pc"))
    st = setup1_mega()
    s += st
    s += cstamp('S')
    s += epoch_fix()
    s += cstamp('S')
    s += ln_compute()
    s += cstamp('S')
    s += touches()
    if CODEPF: s += code_touch(name, PFD + 3)
    s += setupK()
    s += setup2()
    s += cstamp('S')
    e(wait_vm("XN"))
    s += cstamp('S')
    s += stamp(1)
    s += poll_barrier(name, 0)
    s += cstamp('S')
    s += stamp(2)
    s += flatW(0, "A"); s += flatW(1, "A"); s += flatB(0); s += flatB(1)
    s += flatW(2, "A"); s += flatW(3, "A"); s += flatW(4, "A"); s += flatB(2); s += flatB(3)
    zl = [valu("v_accvgpr_write_b32", A(i), 0) for i in range(128)]
    def xf(t): return [(4*k + 2 if k < 5 else 4*k, zl[8*t + k]) for k in range(8)]
    wplanA = {0: [5, 6], 1: [7, 8], 2: [9, 10], 3: [11, 12], 4: [13], 5: [14], 6: [15]}
    barsA = {1: range(2, 5), 4: range(5, 9), 8: range(9, 13), 12: range(13, 16)}
    s += gemm_phase("A", wplanA, barsA, extra_fill=xf, post_bar={4: [dmaK(0)], 5: [dmaK(1)], 8: [dmaV(0), dmaV(1)], 12: [dmaV(2)]})
    s += stamp(3)
    s += cstamp('S')
    e(barrier())
    s += flatKV(dmaK(2)); s += flatKV(dmaK(3))
    s += setup_E()
    s += qconvert()
    for i in range(16): e(valu("v_mov_b32", V(LREG + i), 0))
    for i in range(4): e(valu("v_mov_b32", V(ONES + i), "0x3f803f80"))
    s += first_max()
    s += window(-1, 0, last_qk=True, do_pv=False, do_kread=True, exp_tail=False)
    s += stamp(4)
    s += cstamp('M')
    e(salu("s_mov_b32", S(S_LOOP), 0))
    e(salu("s_lshl_b32", S(7), S(2), 2)); e(salu("s_add_u32", S(7), S(7), S(S_WAVE))); e(salu("s_lshl_b32", S(7), S(7), 12))
    e(valu("v_and_b32", V(PFD + 3), 31, V(1))); e(valu("v_lshlrev_b32", V(PFD + 3), 7, V(PFD + 3)))
    s += [salu("s_mov_b32", S(60), S(P_WO)), salu("s_mov_b32", S(61), S(P_WO + 1)), salu("s_mov_b32", S(62), 4096*1024), salu("s_mov_b32", S(63), "0x00020000")]
    if CODEPF:
        s += [salu("s_mov_b32", S(76), S(100)), salu("s_mov_b32", S(77), S(101)), raw(f"s_mov_b32 s78, {name}_codeend-{name}_pc", "salu", wr=regs("s", 78)), salu("s_mov_b32", S(79), "0x00020000")]
        e(salu("s_lshr_b32", S(90), S(2), 3)); e(salu("s_and_b32", S(90), S(90), 15)); e(salu("s_lshl_b32", S(90), S(90), 12))
        e(valu("v_lshlrev_b32", V(PFD + 2), 6, V(1)))
    def pf_next():
        b = []
        for it, p in ((0, P_WD), (1, P_WG), (2, P_WG + 2)):
            b.append([raw(f"s_cmp_eq_u32 s{S_LOOP}, {it}", "salu", rd=regs("s", S_LOOP)), salu("s_cselect_b32", S(60), S(p), S(60)), salu("s_cselect_b32", S(61), S(p + 1), S(61))])
        b.append([raw(f"s_cmp_lt_u32 s{S_LOOP}, 3", "salu", rd=regs("s", S_LOOP)), salu("s_cselect_b32", S(62), 1792*1024, 0)])
        return b
    e(LoopBegin(f"{name}_loop"))
    for T in range(4):
        d0, d1 = tile_dma(T)
        x0, x1 = [], []
        if T == 0 and k1.PREFETCH:
            x1.append((39, buf_load(V(PFD), V(PFD + 3), S(60, 4), S(7), n=1, tag="PF")))
        if T == 2 and CODEPF:
            x1.append((39, buf_load(V(PFD + 1), V(PFD + 2), S(76, 4), S(90), n=1, tag="PF")))
        if T == 1 and k1.PREFETCH:
            for k, b in enumerate(pf_next()): x1.append((13 + 2*k + 2, b))
        s += window(2*T, T, dma=d0, bar=True, extra=x0)
        s += window(2*T + 1, T, dma=d1, extra=x1)
    e(salu("s_add_u32", S(S_LOOP), S(S_LOOP), 1))
    e(raw(f"s_cmp_lt_u32 s{S_LOOP}, 7", "salu", rd=regs("s", S_LOOP)))
    e(raw(f"s_cbranch_scc1 {name}_loop", "branch"))
    e(LoopEnd(f"{name}_loop"))
    s += cstamp('M')
    s += tail_windows()
    s += cstamp('M')
    s += stamp(5)
    s += fb_check(name)
    s += cstamp('M')
    s += o_rinv()
    e(raw(f"s_cmp_ge_u32 s{S_HEAD}, 28", "salu", rd=regs("s", S_HEAD)))
    e(raw(f"s_cbranch_scc1 {name}_noE", "branch"))
    k1.BRING_E = True
    s += flatB(4); s += flatB(5)
    for k in range(4, 16): s += flatW(k, "E")
    s += cstamp('M')
    def of(t):
        u = o_unit(t)
        pos = [2, 2, 4, 4, 6, 6, 8, 8, 10, 10, 12, 12, 14, 14, 16, 16, 18, 18, 20, 20, 30]
        return list(zip(pos, u))
    s += gemm_phase("E", {}, {1: range(2, 5), 4: range(5, 9), 8: range(9, 13), 12: range(13, 16)}, extra_fill=of)
    k1.BRING_E = False
    s += stamp(6)
    s += cstamp('M')
    s += h_epilogue()
    s += cstamp('M')
    e(raw(f"s_branch {name}_fin", "branch"))
    e(label(f"{name}_noE"))
    for k in range(16): s += o_unit(k)
    s += stamp(6)
    e(label(f"{name}_fin"))
    pre, fin = final_phase(name)
    e(barrier())
    s += pre[:]
    e(wait_vm("O", "H"))
    s += stamp(7)
    s += cstamp('M')
    s += poll_barrier(name, 1)
    s += stamp(8)
    s += cstamp('M')
    s += fin
    s += cstamp('M')
    if k1.STAMPS: e(raw("s_waitcnt vmcnt(0)", "other"))
    s += stamp(9)
    s += stamp_dump(16 if k1.STEPSTAMP else 10)
    main, res = finish(s, name)
    return main + [label(f"{name}_codeend")] + fallback(name), res

def setup1_mega():
    s = []; e = s.append
    e(sload(P_WS, 88, 2))
    e(sload(P_WQ, 24, 4)); e(sload(SRD_K, 8, 2)); e(sload(SRD_V, 16, 2)); e(sload(P_WG, 48, 4)); e(sload(P_WD, 64, 2))
    e(valu("v_and_b32", V(1), 63, V(0)))
    e(valu("v_lshrrev_b32", V(30), 6, V(0)))
    e(salu("s_and_b32", S(S_HEAD), S(2), 31))
    e(valu("v_readfirstlane_b32", S(S_WAVE), V(30)))
    e(salu("s_lshr_b32", S(S_QB), S(2), 5))
    e(salu("s_mov_b32", S(62), 2097152)); e(salu("s_mov_b32", S(63), "0x00020000"))
    e(raw("s_waitcnt lgkmcnt(0)", "wait")); s[-1].tag = (None, 0)
    s += ln_loads()
    e(salu("s_add_u32", S(SRD_SY), S(P_WS), SYNC_OFF)); e(salu("s_addc_u32", S(SRD_SY + 1), S(P_WS + 1), 0))
    e(salu("s_mov_b32", S(SRD_SY + 2), 16384)); e(salu("s_mov_b32", S(SRD_SY + 3), "0x00020000"))
    e(salu("s_lshl_b32", S(S_T + 2), S(S_QB), 7))
    e(valu("v_mov_b32", V(TMP + 11), 0))
    e(buf_load(V(TMP + 12), V(TMP + 11), S(SRD_SY, 4), S(S_T + 2), n=1, flags="sc1"))
    e(valu("v_lshrrev_b32", V(G_), 4, V(1)))
    e(valu("v_and_b32", V(N_), 15, V(1)))
    for i in range(2):
        e(valu("v_add_u32", V(U1), 4*i, V(G_)))
        e(valu("v_lshlrev_b32", V(U2), 13, V(U1)))
        e(valu("v_lshlrev_b32", V(U1), 1, V(U1)))
        e(valu("v_xor_b32", V(U1), V(U1), V(N_)))
        e(valu("v_lshl_add_u32", V(VOFFW + i), V(U1), 4, V(U2)))
        if i: e(valu("v_subrev_u32", V(VOFFW + i), 1024, V(VOFFW + i)))
    e(valu("v_lshlrev_b32", V(VLANE16), 4, V(1)))
    e(valu("v_mov_b32", V(VOFFB), V(VLANE16)))
    for qb in range(1, 4): e(valu("v_add_u32", V(VOFFB + qb), qb*16384, V(VLANE16)))
    e(salu("s_mov_b32", S(S_PHI), 0))
    e(salu("s_lshl_b32", S(S_W4K), S(S_WAVE), 12))
    e(salu("s_lshl_b32", S(S_W2K), S(S_WAVE), 11))
    e(salu("s_mov_b32", S(S_SOFFB), 0))
    e(salu("s_lshl_b32", S(S_SOFFW), S(S_WAVE), 16))
    e(salu("s_lshl_b32", S(S_T), S(S_HEAD), 8))
    e(salu("s_sub_u32", S(S_T + 1), 4194304, S(S_T)))
    s += mksrd(SRD_W, P_WQ, S_T, S(S_T + 1))
    e(salu("s_lshl_b32", S(S_T), S(S_QB), 4)); e(salu("s_lshl_b32", S(S_T + 1), S(S_WAVE), 2)); e(salu("s_add_u32", S(S_T), S(S_T), S(S_T + 1)))
    e(salu("s_lshl_b32", S(S_T), S(S_T), 14))
    if XN_OFF: e(salu("s_add_u32", S(S_T), S(S_T), XN_OFF))
    s += mksrd(SRD_XN, P_WS, S_T, 65536)
    e(salu("s_lshl_b32", S(S_T), S(S_HEAD), 19))
    for b in (SRD_K, SRD_V):
        e(salu("s_add_u32", S(b), S(b), S(S_T))); e(salu("s_addc_u32", S(b + 1), S(b + 1), 0))
        e(salu("s_mov_b32", S(b + 2), 524288)); e(salu("s_mov_b32", S(b + 3), "0x00020000"))
    return s

def epoch_fix():
    return [valu("v_readfirstlane_b32", S(S_EPOCH), V(TMP + 12)), nop(3), salu("s_add_u32", S(S_EPOCH), S(S_EPOCH), 1)]
```

```python
from ir import *
from k0 import sload, XN_OFF, O_OFF, H_OFF, DBG_OFF
import k1
from k1 import *
import mega
from mega import SYNC_OFF, S_EPOCH, SRD_SY, SPIN_MAX, ln_loads, ln_compute, code_touch, poll_barrier, fallback
def epoch_fix():
    return [valu("v_readfirstlane_b32", S(S_EPOCH), V(TMP + 9)), nop(3), salu("s_add_u32", S(S_EPOCH), S(S_EPOCH), 1)]

CODEPF = True
OBURST = True
WTOUCH = 3
WPRE = 1
CONV2 = 1
OUTFLAGS = ''
FD = 3
ADDRE, VOFFE = 96, 100
SRD_E = 24
S_SOFFE = 38
RING0 = 32768
def ringslot(t): return RING0 + 16384*(t % 8)
def rbase(t): return RING0 if (t % 8) < 4 else RING0 + 65536
def ACCQ(db, qb): return V(128 + 16*db + 4*qb, 4)
def ACCE(db, qb): return A(16*db + 4*qb, 4)
def AFB(db): return A(192 + 4*db, 4)
WSTEP_E = 32*3584

def flag_addr_setup(idx, vaddr, vval):
    s = []; e = s.append
    e(salu("s_lshl_b32", S(S_T), S(S_QB), 7)); e(salu("s_add_u32", S(S_T), S(S_T), 4096*(1 + idx)))
    e(salu("s_lshl_b32", S(S_T + 1), S(S_HEAD), 2)); e(salu("s_add_u32", S(S_T), S(S_T), S(S_T + 1)))
    e(valu("v_mov_b32", V(vaddr), S(S_T)))
    e(valu("v_lshlrev_b32", V(vval), 20, V(1)))
    e(valu("v_add_u32", V(vaddr), V(vaddr), V(vval)))
    e(valu("v_mov_b32", V(vval), S(S_EPOCH)))
    return s

def setup_mega2():
    s = []; e = s.append
    e(sload(P_WS, 88, 2))
    e(sload(P_WQ, 24, 4)); e(sload(SRD_K, 8, 2)); e(sload(SRD_V, 16, 2)); e(sload(P_WG, 48, 4)); e(sload(P_WD, 64, 2))
    e(valu("v_and_b32", V(1), 63, V(0)))
    e(valu("v_lshrrev_b32", V(30), 6, V(0)))
    e(salu("s_and_b32", S(S_HEAD), S(2), 31))
    e(valu("v_readfirstlane_b32", S(S_WAVE), V(30)))
    e(salu("s_lshr_b32", S(S_QB), S(2), 5))
    e(salu("s_mov_b32", S(62), 2097152)); e(salu("s_mov_b32", S(63), "0x00020000"))
    e(raw("s_waitcnt lgkmcnt(0)", "wait")); s[-1].tag = (None, 0)
    s += ln_loads()
    e(salu("s_add_u32", S(SRD_SY), S(P_WS), SYNC_OFF)); e(salu("s_addc_u32", S(SRD_SY + 1), S(P_WS + 1), 0))
    e(salu("s_mov_b32", S(SRD_SY + 2), 16384)); e(salu("s_mov_b32", S(SRD_SY + 3), "0x00020000"))
    e(salu("s_lshl_b32", S(S_T + 2), S(S_QB), 7))
    e(valu("v_mov_b32", V(TMP + 11), 0))
    e(buf_load(V(TMP + 9), V(TMP + 11), S(SRD_SY, 4), S(S_T + 2), n=1, flags="sc1"))
    e(valu("v_lshrrev_b32", V(G_), 4, V(1)))
    e(valu("v_and_b32", V(N_), 15, V(1)))
    for i in range(2):
        e(valu("v_add_u32", V(U1), 4*i, V(G_)))
        e(valu("v_lshlrev_b32", V(U2), 13, V(U1)))
        e(valu("v_lshlrev_b32", V(U1), 1, V(U1)))
        e(valu("v_xor_b32", V(U1), V(U1), V(N_)))
        e(valu("v_lshl_add_u32", V(VOFFW + i), V(U1), 4, V(U2)))
        if i: e(valu("v_subrev_u32", V(VOFFW + i), 1024, V(VOFFW + i)))
    e(valu("v_lshlrev_b32", V(VLANE16), 4, V(1)))
    e(valu("v_mov_b32", V(VOFFB), V(VLANE16)))
    for qb in range(1, 4): e(valu("v_add_u32", V(VOFFB + qb), qb*16384, V(VLANE16)))
    e(salu("s_lshl_b32", S(S_W4K), S(S_WAVE), 12))
    e(salu("s_lshl_b32", S(S_W2K), S(S_WAVE), 11))
    e(salu("s_mov_b32", S(S_SOFFB), 0))
    e(salu("s_lshl_b32", S(S_SOFFW), S(S_WAVE), 16))
    e(salu("s_lshl_b32", S(S_T), S(S_HEAD), 8))
    e(salu("s_sub_u32", S(S_T + 1), 4194304, S(S_T)))
    s += mksrd(SRD_W, P_WQ, S_T, S(S_T + 1))
    e(salu("s_lshl_b32", S(S_T), S(S_QB), 4)); e(salu("s_lshl_b32", S(S_T + 1), S(S_WAVE), 2)); e(salu("s_add_u32", S(S_T), S(S_T), S(S_T + 1)))
    e(salu("s_lshl_b32", S(S_T), S(S_T), 14))
    if XN_OFF: e(salu("s_add_u32", S(S_T), S(S_T), XN_OFF))
    s += mksrd(SRD_XN, P_WS, S_T, 65536)
    e(salu("s_lshl_b32", S(S_T), S(S_HEAD), 19))
    for b in (SRD_K, SRD_V):
        e(salu("s_add_u32", S(b), S(b), S(S_T))); e(salu("s_addc_u32", S(b + 1), S(b + 1), 0))
        e(salu("s_mov_b32", S(b + 2), 524288)); e(salu("s_mov_b32", S(b + 3), "0x00020000"))
    e(raw(f"s_cmp_ge_u32 s{S_WAVE}, 2", "salu", rd=regs("s", S_WAVE)))
    e(salu("s_cselect_b32", S(S_T), S(P_WG + 2), S(P_WG)))
    e(salu("s_cselect_b32", S(S_T + 1), S(P_WG + 3), S(P_WG + 1)))
    e(salu("s_lshl_b32", S(S_T + 2), S(S_HEAD), 7))
    e(salu("s_add_u32", S(SRD_E), S(S_T), S(S_T + 2)))
    e(salu("s_addc_u32", S(SRD_E + 1), S(S_T + 1), 0))
    e(salu("s_sub_u32", S(SRD_E + 2), 512*3584, S(S_T + 2)))
    e(raw(f"s_cmp_lt_u32 s{S_HEAD}, 28", "salu", rd=regs("s", S_HEAD)))
    e(salu("s_cselect_b32", S(SRD_E + 2), S(SRD_E + 2), 0))
    e(salu("s_mov_b32", S(SRD_E + 3), "0x00020000"))
    e(salu("s_and_b32", S(S_T), S(S_WAVE), 1))
    e(salu("s_mul_i32", S(S_SOFFE), S(S_T), 16*3584))
    return s

def setup_addr2():
    s = []; e = s.append
    e(valu("v_bfe_u32", V(RR_), V(1), 2, 2))
    e(valu("v_and_b32", V(C_), 3, V(1)))
    e(valu("v_and_b32", V(ROW8), 1, V(G_)))
    e(valu("v_lshl_add_u32", V(ROW8), V(ROW8), 2, V(RR_)))
    e(valu("v_lshl_add_u32", V(ROWB), V(G_), 2, V(RR_)))
    e(valu("v_lshrrev_b32", V(U1), 3, V(1)))
    e(salu("s_mov_b32", S(S_T + 2), 3584))
    e(valu("v_mul_lo_u32", V(U2), V(U1), S(S_T + 2)))
    e(valu("v_lshlrev_b32", V(CH), 1, V(G_)))
    e(valu("v_and_b32", V(U1), 7, V(1)))
    e(valu("v_xor_b32", V(U1), V(U1), V(CH)))
    e(valu("v_lshl_add_u32", V(VOFFE), V(U1), 4, V(U2)))
    e(valu("v_add_u32", V(VOFFE + 1), 8*3584 - 1024, V(VOFFE)))
    return s

def setup_addr3():
    s = []; e = s.append
    e(valu("v_lshlrev_b32", V(U2), 8, V(ROWB)))
    e(valu("v_and_b32", V(U1), 1, V(C_)))
    e(valu("v_lshl_add_u32", V(U2), V(U1), 4, V(U2)))
    e(valu("v_add_u32", V(U2), RING0, V(U2)))
    e(valu("v_lshrrev_b32", V(CH), 1, V(C_)))
    for ds in range(4):
        e(valu("v_add_u32", V(U1), 2*ds, V(CH)))
        e(valu("v_xor_b32", V(U1), V(U1), V(ROW8)))
        e(valu("v_lshl_add_u32", V(ADDRW + ds), V(U1), 5, V(U2)))
    e(valu("v_lshlrev_b32", V(U2), 7, V(ROWB)))
    e(valu("v_lshl_add_u32", V(U2), V(C_), 3, V(U2)))
    e(valu("v_add_u32", V(U2), RING0 + 8192, V(U2)))
    e(valu("v_and_b32", V(CH), 1, V(G_)))
    e(valu("v_lshlrev_b32", V(CH), 1, V(CH)))
    e(valu("v_lshrrev_b32", V(U1), 1, V(RR_)))
    e(valu("v_add_u32", V(CH), V(CH), V(U1)))
    for b in range(4):
        e(valu("v_xor_b32", V(U1), b, V(CH)))
        e(valu("v_lshl_add_u32", V(ADDRE + b), V(U1), 5, V(U2)))
    for ds in range(4):
        e(valu("v_add_u32", V(U1), 4*ds, V(G_)))
        e(valu("v_xor_b32", V(U1), V(U1), V(N_)))
        e(valu("v_lshlrev_b32", V(U1), 4, V(U1)))
        e(valu("v_lshl_add_u32", V(ADDRK + ds), V(N_), 8, V(U1)))
    e(valu("v_lshlrev_b32", V(U2), 8, V(ROWB)))
    e(valu("v_lshl_add_u32", V(U2), V(C_), 3, V(U2)))
    e(valu("v_add_u32", V(U2), VR, V(U2)))
    for db in range(8):
        e(valu("v_xor_b32", V(U1), db, V(ROW8)))
        e(valu("v_lshl_add_u32", V(ADDRV + db), V(U1), 5, V(U2)))
    for i in range(2):
        e(valu("v_add_u32", V(U1), 4*i, V(G_)))
        e(valu("v_lshlrev_b32", V(U1), 1, V(U1)))
        e(valu("v_xor_b32", V(U1), V(U1), V(N_)))
        e(valu("v_lshlrev_b32", V(U1), 4, V(U1)))
        e(valu("v_lshl_add_u32", V(VOFFV + i), V(G_), 8, V(U1)))
    e(salu("s_lshl_b32", S(T3_), S(S_QB), 4)); e(salu("s_lshl_b32", S(T2_), S(S_WAVE), 2)); e(salu("s_add_u32", S(T3_), S(T3_), S(T2_)))
    e(salu("s_mul_i32", S(T0_), S(T3_), 56))
    e(salu("s_lshl_b32", S(T1_), S(S_HEAD), 1))
    e(salu("s_add_u32", S(T0_), S(T0_), S(T1_)))
    e(salu("s_lshl_b32", S(T0_), S(T0_), 10))
    e(salu("s_add_u32", S(T0_), S(T0_), H_OFF))
    s += mksrd(SRD_H, P_WS, T0_, 3*57344 + 2048)
    e(raw(f"s_cmp_lt_u32 s{S_HEAD}, 28", "salu", rd=regs("s", S_HEAD)))
    e(salu("s_cselect_b32", S(SRD_H + 2), S(SRD_H + 2), 0))
    return s

def touches2(part=0):
    s = []; e = s.append
    e(valu("v_lshrrev_b32", V(U1), 3, V(1)))
    e(valu("v_lshlrev_b32", V(U1), 18, V(U1)))
    e(valu("v_bfe_u32", V(U2), V(1), 1, 2))
    e(valu("v_lshl_add_u32", V(U1), V(U2), 13, V(U1)))
    e(valu("v_and_b32", V(U2), 1, V(1)))
    e(valu("v_lshl_add_u32", V(U1), V(U2), 7, V(U1)))
    e(salu("s_lshl_b32", S(S_T + 1), S(S_QB), 15))
    if part == 0:
        e(raw(f"s_cmp_eq_u32 s{S_WAVE}, 2", "salu", rd=regs("s", S_WAVE)))
        e(salu("s_cselect_b32", S(S_T), 8*262144, 0))
    else:
        e(salu("s_mov_b32", S(S_T), 0 if part == 1 else 8*262144))
    e(salu("s_add_u32", S(S_T), S(S_T), S(S_T + 1)))
    for i in range(3): e(salu("s_mov_b32", S(60 + i), S(SRD_W + i)))
    e(salu("s_mov_b32", S(63), "0x00020000"))
    if part == 0:
        e(salu("s_sub_u32", S(S_T + 2), S(S_WAVE), 1))
        e(raw(f"s_cmp_lt_u32 s{S_T+2}, 2", "salu", rd=regs("s", S_T + 2)))
    else:
        e(raw(f"s_cmp_eq_u32 s{S_WAVE}, 2", "salu", rd=regs("s", S_WAVE)))
    e(salu("s_cselect_b32", S(62), S(62), 0))
    e(buf_load(V(PFD), V(U1), S(60, 4), S(S_T), n=1, tag="PF"))
    if part == 0:
        e(valu("v_mov_b32", V(U2), 3584)); e(valu("v_mul_lo_u32", V(U2), V(U2), V(1)))
        e(salu("s_mul_i32", S(S_T), S(S_QB), 64*3584))
    else:
        e(valu("v_and_b32", V(U1), 31, V(1)))
        e(valu("v_mov_b32", V(U2), 3584)); e(valu("v_mul_lo_u32", V(U2), V(U2), V(U1)))
        e(salu("s_mul_i32", S(S_T), S(S_QB), 32*3584))
        if part == 2: e(salu("s_add_u32", S(S_T), S(S_T), 256*3584))
    for i in range(3): e(salu("s_mov_b32", S(60 + i), S(SRD_E + i)))
    e(salu("s_and_b32", S(S_T + 2), S(S_WAVE), 1))
    e(raw(f"s_cmp_eq_u32 s{S_T+2}, 1", "salu", rd=regs("s", S_T + 2)))
    e(salu("s_cselect_b32", S(62), S(62), 0))
    e(buf_load(V(PFD + 1), V(U2), S(60, 4), S(S_T), n=1, tag="PF"))
    return s

def kv_touch():
    s = []; e = s.append
    e(valu("v_and_b32", V(U2), 31, V(1)))
    e(valu("v_lshlrev_b32", V(U2), 7, V(U2)))
    e(salu("s_lshl_b32", S(S_T), S(S_QB), 12))
    e(raw(f"s_cmp_eq_u32 s{S_WAVE}, 3", "salu", rd=regs("s", S_WAVE)))
    for i in range(3): e(salu("s_cselect_b32", S(60 + i), S(SRD_K + i), S(SRD_V + i)))
    e(salu("s_mov_b32", S(63), "0x00020000"))
    e(raw(f"s_cmp_ge_u32 s{S_WAVE}, 2", "salu", rd=regs("s", S_WAVE)))
    e(salu("s_cselect_b32", S(62), S(62), 0))
    e(buf_load(V(PFD + 2), V(U2), S(60, 4), S(S_T), n=1, tag="PF"))
    return s

def dmaW2(t):
    p1 = salu("s_add_u32", "m0", S(S_W2K), ringslot(t))
    d1 = [buf_dma(V(VOFFW + i), S(SRD_W, 4), S(S_SOFFW), offset=i*1024, tag=("W", t)) for i in range(2)]
    a1 = [salu("s_add_u32", S(S_SOFFW), S(S_SOFFW), 262144)]
    p2 = salu("s_add_u32", "m0", S(S_W2K), ringslot(t) + 8192)
    d2 = [buf_dma(V(VOFFE + i), S(SRD_E, 4), S(S_SOFFE), offset=i*1024, tag=("W", t)) for i in range(2)]
    a2 = [salu("s_add_u32", S(S_SOFFE), S(S_SOFFE), WSTEP_E)]
    return p1, d1, a1, p2, d2, a2
def flatW2(t):
    p1, d1, a1, p2, d2, a2 = dmaW2(t)
    return [p1, nop(0)] + d1 + a1 + [p2, nop(0)] + d2 + a2
def advB2(): return [salu("s_add_u32", S(S_SOFFB), S(S_SOFFB), 1024)]

def rdA2(t, db, rd):
    off = ringslot(t) - rbase(t)
    if db < 8:
        ds, u = db >> 1, db & 1
        return ds_read("ds_read_b64_tr_b16", sub(AFB(db), 2*rd, 2), V(ADDRW + ds), offset=off + rd*4096 + 8*u)
    mat, b = (db - 8) >> 2, (db - 8) & 3
    return ds_read("ds_read_b64_tr_b16", sub(AFB(db), 2*rd, 2), V(ADDRE + b), offset=off + mat*4096 + rd*2048)

def qconv(ds):
    o = []
    for qb in range(4):
        a0, a1 = ACCR(2*ds, qb), ACCR(2*ds + 1, qb)
        for r in range(4):
            o.append(valu("v_mul_f32", sub(a0, r), S(S_T), sub(a0, r))); o.append(valu("v_mul_f32", sub(a1, r), S(S_T), sub(a1, r)))
        o.append(valu("v_cvt_pk_bf16_f32", sub(a1, 3), sub(a1, 2), sub(a1, 3)))
        o.append(valu("v_cvt_pk_bf16_f32", sub(a1, 2), sub(a1, 0), sub(a1, 1)))
        o.append(valu("v_cvt_pk_bf16_f32", sub(a1, 1), sub(a0, 2), sub(a0, 3)))
        o.append(valu("v_cvt_pk_bf16_f32", sub(a1, 0), sub(a0, 0), sub(a0, 1)))
    return o

def fused_phase():
    s = []; e = s.append
    e(wait_vm(("W", 0), ("W", 1), ("W", 2))); e(barrier())
    for db in range(16):
        for rd in range(2): e(rdA2(0, db, rd))
    for t in range(16):
        s += sstamp("A", t)
        F = Fill(64)
        def addW(k, gi, sp):
            p1, d1, a1, p2, d2, a2 = dmaW2(k)
            F.add(gi - 1, p1); F.add(gi, d1[0]); F.add(gi + sp, d1[1]); F.add(gi + sp + 1, a1)
            F.add(gi + 2*sp - 1, p2); F.add(gi + 2*sp, d2[0]); F.add(gi + 3*sp, d2[1]); F.add(gi + 3*sp + 1, a2)
        if t >= 2 and t % 2 == 0:
            if t in (6, 8): s += cstamp("B")
            e(wait_vm(("W", t + 1), ("W", t + 2) if t + 2 < 16 else ("W", t + 1)))
            e(barrier())
        if t == 0: addW(4, 6, 4); addW(5, 24, 4)
        elif t == 1: addW(6, 6, 4); addW(7, 24, 4)
        elif t + 6 < 16: addW(t + 6, 6, 6)
        kv = {4: dmaK(0), 5: dmaK(1), 10: dmaK(2), 11: dmaK(3), 12: dmaV(0), 13: dmaV(1), 14: dmaV(2)}.get(t)
        if kv:
            pre, d, adv = kv
            F.add(29, pre)
            for k, x in enumerate(d): F.add(30 + 6*k, x)
            F.add(49, adv)
        if t + 1 < 16 and rbase(t + 1) != rbase(t):
            d = rbase(t + 1) - rbase(t)
            for i in range(4):
                F.add(4, valu("v_add_u32", V(ADDRW + i), d & 0xffffffff, V(ADDRW + i)))
                F.add(4, valu("v_add_u32", V(ADDRE + i), d & 0xffffffff, V(ADDRE + i)))
        if t >= 1:
            F.add(1, rdA2(t, 15, 0)); F.add(3, rdA2(t, 15, 1))
        if t + 1 < 16:
            for db in range(15):
                F.add(4*db + 5, rdA2(t + 1, db, 0)); F.add(4*db + 7, rdA2(t + 1, db, 1))
        if t == 14 and CONV2: F.add(40, salu("s_mov_b32", S(S_T), f2h(QSCALE)))
        if t == 15 and CONV2:
            q = qconv(0) + qconv(1)
            g = 10
            kgaps = {33 + 4*f if 33 + 4*f < 64 else 63 for f in range(8)}
            while q:
                for _ in range(1 if g in kgaps else 2):
                    if q: F.add(g, q.pop(0))
                g += 1
            assert g <= 64, g
            for f in range(8):
                kb, ds = f >> 2, f & 3
                F.add(33 + 4*f if 33 + 4*f < 64 else 63, ds_read("ds_read_b128", KF(f), V(ADDRK + ds), offset=kb*4096))
        if t >= 1 and t + 3 < 16:
            for qb, x in enumerate(loadB(t + 3)): F.add(52 + 4*qb - (2 if qb == 3 else 0), x)
            F.add(63, advB2())
        for db in range(16):
            if t == 6 and db in (4, 8, 12): s += cstamp("B")
            if t == 7 and db == 0: s += cstamp("B")
            for qb in range(4):
                g = 4*db + qb
                acc = ACCQ(db, qb) if db < 8 else ACCE(db - 8, qb)
                e(mfma16(acc, AFB(db), BF(t, qb), 0 if t == 0 else acc))
                s += F.emit(g)
    return s

def h_epilogue2():
    s = []; e = s.append
    for qb in range(4): e(salu("s_mov_b32", S(S_T + qb), qb*57344))
    k = 0
    for qb in range(4):
        for tp in range(2):
            t = SREG + 16*(k % 2); pk = PREG + 4*(k % 8)
            for u in range(2):
                b = 2*tp + u
                for r in range(4):
                    e(valu("v_accvgpr_read_b32", V(t + 8*u + r), sub(ACCE(b, qb), r)))
                    e(valu("v_accvgpr_read_b32", V(t + 8*u + 4 + r), sub(ACCE(4 + b, qb), r)))
            for u in range(2):
                for r in range(4): e(valu("v_max_f32", V(t + 8*u + r), 0, V(t + 8*u + r)))
            for u in range(2):
                for r in range(4): e(valu("v_mul_f32", V(t + 8*u + r), V(t + 8*u + r), V(t + 8*u + 4 + r)))
            for u in range(2):
                for hh in range(2): e(valu("v_cvt_pk_bf16_f32", V(pk + 2*u + hh), V(t + 8*u + 2*hh), V(t + 8*u + 2*hh + 1)))
            e(buf_store(V(pk, 4), V(VLANE16), S(SRD_H, 4), S(S_T + qb), offset=tp*1024, tag="H", flags="sc1"))
            for u in range(2):
                b = 2*tp + u
                for r in range(4):
                    e(valu("v_accvgpr_write_b32", sub(ACCE(b, qb), r), 0)); e(valu("v_accvgpr_write_b32", sub(ACCE(4 + b, qb), r), 0))
            k += 1
    return s


def h_unit(k):
    qb, tp = k >> 1, k & 1
    t = PREG + 16*(k % 2); pk = NEGM_T + 4*(k % 2)
    o = []
    for u in range(2):
        b = 2*tp + u
        for r in range(4):
            o.append(valu("v_accvgpr_read_b32", V(t + 8*u + r), sub(ACCE(b, qb), r)))
            o.append(valu("v_accvgpr_read_b32", V(t + 8*u + 4 + r), sub(ACCE(4 + b, qb), r)))
    for u in range(2):
        for r in range(4): o.append(valu("v_max_f32", V(t + 8*u + r), 0, V(t + 8*u + r)))
    for u in range(2):
        for r in range(4): o.append(valu("v_mul_f32", V(t + 8*u + r), V(t + 8*u + r), V(t + 8*u + 4 + r)))
    for u in range(2):
        for hh in range(2): o.append(valu("v_cvt_pk_bf16_f32", V(pk + 2*u + hh), V(t + 8*u + 2*hh), V(t + 8*u + 2*hh + 1)))
    o.append(buf_store(V(pk, 4), V(VLANE16), S(SRD_H, 4), S(S_T + qb), offset=tp*1024, tag="H", flags="sc1"))
    return o
NEGM_T = 104

def conv_phase():
    s = []; e = s.append
    for i in range(16): e(valu("v_mov_b32", V(LREG + i), 0))
    for i in range(4): e(valu("v_mov_b32", V(ONES + i), "0x3f803f80"))
    q2, q3 = qconv(2), qconv(3)
    for ds in range(4):
        for kb in range(2):
            for qb in range(4):
                e(mfma16(SR(kb, qb), KF(4*kb + ds), QF(qb, ds), 0 if ds == 0 else SR(kb, qb)))
                src = q2 if ds < 2 and q2 else (q3 if ds < 3 else [])
                n = 3 if ds < 2 else 6
                for _ in range(n):
                    if src: s.append(src.pop(0))
        if ds == 1: assert not q2
        if ds == 2:
            assert not q3
            e(nop(1))
    for qb in range(4): e(salu("s_mov_b32", S(S_T + qb), qb*57344))
    hu = [h_unit(k) for k in range(8)]
    s += hu[0] + hu[1]
    M = TMP
    mx = []
    for qb in range(4):
        mx.append(valu("v_max3_f32", V(M + qb), SR(0, qb, 0), SR(0, qb, 1), SR(0, qb, 2)))
        mx.append(valu("v_max3_f32", V(M + qb), V(M + qb), SR(0, qb, 3), SR(1, qb, 0)))
        mx.append(valu("v_max3_f32", V(M + qb), V(M + qb), SR(1, qb, 1), SR(1, qb, 2)))
        mx.append(valu("v_max_f32", V(M + qb), V(M + qb), SR(1, qb, 3)))
    s += mx
    rest = sum(hu[2:], [])
    for swp in ("v_permlane16_swap_b32", "v_permlane32_swap_b32"):
        for qb in range(4): e(valu("v_mov_b32", V(M + 4 + qb), V(M + qb)))
        s += [rest.pop(0), rest.pop(0)]
        for qb in range(4): e(valu(swp, V(M + 4 + qb), V(M + qb), dst_is_src=True, wr_extra=regs("v", M + qb)))
        s += [rest.pop(0), rest.pop(0)]
        for qb in range(4): e(valu("v_max_f32", V(M + qb), V(M + qb), V(M + 4 + qb)))
    for qb in range(4): e(valu("v_sub_f32", V(M + qb), f2h(-DOFF), V(M + qb)))
    s += rest
    for qb in range(4):
        for r in range(4): e(valu("v_mov_b32", V(NEGM + 4*qb + r), V(M + qb)))
    return s

def window_m1():
    w = window(-1, 0, last_qk=True, do_pv=False, do_kread=True, exp_tail=False)
    out = []; k = 0; nm = 0
    for x in w:
        if x.kind == "mfma": nm += 1
        if x.kind == "nop" and x.text == "s_nop 0" and nm >= 32 and k < 32:
            out.append(mfma16(A(4*k, 4), V(LREG, 4), V(LREG, 4), 0)); k += 1
        else: out.append(x)
    assert k == 32
    return out

NT_O, NT_H, NSLOT = 32, 14, 8
def final2(name):
    ADDRA, VOFW, VOFB, VB = 2, 6, 10, 12
    ACCS, ACCF = 128, 192
    NT = NT_O + NT_H
    def part(t): return 1 if t < NT_H else 0
    def tl(t): return t if t < NT_H else t - NT_H
    def ACC(p, nb, qb): return V((ACCS if p == 0 else ACCF) + 16*nb + 4*qb, 4)
    def AF(t, nb): return V(64 + 16*(t & 1) + 4*nb, 4)
    def BFf(t, qb): return A(128 + 16*(t % NSLOT) + 4*qb, 4)
    SRD_A0, SRD_A1, SRD_W0, SRD_W1 = 8, 12, 16, 20
    SRD_O2 = 24
    S_RB, S_CB, S_LDSW, S_SA, S_SW = 32, 33, 34, 35, 36
    pre = []; e = pre.append
    e(salu("s_lshl_b32", S(T3_), S(S_QB), 4)); e(salu("s_lshl_b32", S(T2_), S(S_WAVE), 2)); e(salu("s_add_u32", S(T3_), S(T3_), S(T2_)))
    e(salu("s_lshl_b32", S(T0_), S(T3_), 7)); e(salu("s_lshl_b32", S(T1_), S(S_HEAD), 2)); e(salu("s_add_u32", S(T0_), S(T0_), S(T1_)))
    e(salu("s_lshl_b32", S(T0_), S(T0_), 10)); e(salu("s_add_u32", S(T0_), S(T0_), O_OFF))
    pre += mksrd(SRD_O, P_WS, T0_, 3*131072 + 4096)
    e(salu("s_and_b32", S(T0_), S(S_HEAD), 7)); e(salu("s_lshr_b32", S(T1_), S(S_HEAD), 3))
    e(salu("s_lshr_b32", S(T2_), S(T0_), 1)); e(salu("s_lshl_b32", S(S_RB), S(S_QB), 2)); e(salu("s_add_u32", S(S_RB), S(S_RB), S(T2_)))
    e(salu("s_and_b32", S(T0_), S(T0_), 1)); e(salu("s_lshl_b32", S(T0_), S(T0_), 2)); e(salu("s_add_u32", S(S_CB), S(T0_), S(T1_)))
    e(salu("s_lshl_b32", S(T0_), S(S_RB), 9)); e(salu("s_lshl_b32", S(T1_), S(S_WAVE), 5)); e(salu("s_add_u32", S(T0_), S(T0_), S(T1_)))
    e(salu("s_lshl_b32", S(T0_), S(T0_), 10)); e(salu("s_add_u32", S(T0_), S(T0_), O_OFF))
    pre += mksrd(SRD_A0, P_WS, T0_, 3*131072 + 32*1024)
    e(salu("s_mul_i32", S(T0_), S(S_RB), 224)); e(salu("s_mul_i32", S(T1_), S(S_WAVE), 14)); e(salu("s_add_u32", S(T0_), S(T0_), S(T1_)))
    e(salu("s_lshl_b32", S(T0_), S(T0_), 10)); e(salu("s_add_u32", S(T0_), S(T0_), H_OFF))
    pre += mksrd(SRD_A1, P_WS, T0_, 3*57344 + 14*1024)
    e(salu("s_lshl_b32", S(T0_), S(S_WAVE), 20)); e(salu("s_lshl_b32", S(T1_), S(S_CB), 7)); e(salu("s_add_u32", S(T0_), S(T0_), S(T1_)))
    e(salu("s_sub_u32", S(T2_), 4096*1024, S(T0_)))
    pre += mksrd(SRD_W0, P_WO, T0_, S(T2_))
    e(salu("s_mul_i32", S(T0_), S(S_WAVE), 448*1024)); e(salu("s_add_u32", S(T0_), S(T0_), S(T1_)))
    e(salu("s_sub_u32", S(T2_), 1792*1024, S(T0_)))
    pre += mksrd(SRD_W1, P_WD, T0_, S(T2_))
    e(salu("s_lshl_b32", S(S_LDSW), S(S_WAVE), 15))
    G, RR, C, T1, T2, X = 20, 21, 22, 23, 24, 25
    e(valu("v_lshrrev_b32", V(G), 4, V(1))); e(valu("v_bfe_u32", V(RR), V(1), 2, 2)); e(valu("v_and_b32", V(C), 3, V(1)))
    e(valu("v_lshl_add_u32", V(T2), V(G), 2, V(RR))); e(valu("v_lshlrev_b32", V(T2), 7, V(T2)))
    e(valu("v_lshl_add_u32", V(T2), V(C), 3, V(T2))); e(valu("v_add_u32", V(T2), S(S_LDSW), V(T2)))
    e(valu("v_and_b32", V(X), 1, V(G))); e(valu("v_lshlrev_b32", V(X), 1, V(X))); e(valu("v_lshrrev_b32", V(T1), 1, V(RR))); e(valu("v_add_u32", V(X), V(X), V(T1)))
    for b in range(4):
        e(valu("v_xor_b32", V(T1), b, V(X))); e(valu("v_lshl_add_u32", V(ADDRA + b), V(T1), 5, V(T2)))
    e(valu("v_lshrrev_b32", V(T1), 3, V(1))); e(valu("v_lshlrev_b32", V(T2), 10, V(T1)))
    e(valu("v_lshlrev_b32", V(X), 1, V(G))); e(valu("v_and_b32", V(T1), 7, V(1))); e(valu("v_xor_b32", V(T1), V(T1), V(X)))
    e(valu("v_lshl_add_u32", V(VOFW), V(T1), 4, V(T2)))
    for i in range(1, 4): e(valu("v_add_u32", V(VOFW + i), i*7168, V(VOFW)))
    e(valu("v_lshlrev_b32", V(VOFB), 4, V(1)))
    for qb in range(4):
        e(valu("v_add_u32", V(VB + qb), qb*131072, V(VOFB))); e(valu("v_add_u32", V(VB + 4 + qb), qb*57344, V(VOFB)))
    e(salu("s_mov_b32", S(S_SA), 0)); e(salu("s_mov_b32", S(S_SW), 0))
    D = FD
    def ldW(t):
        p = part(t); o = []
        if t == NT_H: o.append(salu("s_mov_b32", S(S_SW), 0))
        o.append(salu("s_add_u32", "m0", S(S_LDSW), (t % NSLOT)*4096))
        d = [buf_dma(V(VOFW + i), S(SRD_W0 if p == 0 else SRD_W1, 4), S(S_SW), offset=i*1024, tag=("FW", t)) for i in range(4)]
        return o, d, [salu("s_add_u32", S(S_SW), S(S_SW), 32768)]
    def ldB(t):
        p = part(t); o = []
        if t == NT_H: o.append(salu("s_mov_b32", S(S_SA), 0))
        d = [buf_load(BFf(t, qb), V(VB + 4*p + qb), S(SRD_A0 if p == 0 else SRD_A1, 4), S(S_SA), tag=("FB", t), flags="sc1") for qb in range(4)]
        return o, d, [salu("s_add_u32", S(S_SA), S(S_SA), 1024)]
    def rdA(t, nb, rd):
        return ds_read("ds_read_b64_tr_b16", sub(AF(t, nb), 2*rd, 2), V(ADDRA + nb), offset=(t % NSLOT)*4096 + rd*2048)
    def o_unit2(k):
        qb, dp = k >> 2, k & 3
        t = 32 + 8*(k % 2); pk = 48 + 4*(k % 4)
        o = []
        for u in range(2):
            for r in range(4): o.append(valu("v_accvgpr_read_b32", V(t + 4*u + r), sub(OACC(2*dp + u, qb), r)))
        for i in range(8): o.append(valu("v_mul_f32", V(t + i), V(t + i), V(RI + qb)))
        for i in range(4): o.append(valu("v_cvt_pk_bf16_f32", V(pk + i), V(t + 2*i), V(t + 2*i + 1)))
        o.append(buf_store(V(pk, 4), V(VLANE16), S(SRD_O, 4), S(S_T + qb), offset=dp*1024, tag="O", flags="sc1"))
        return o
    def wnext(t):
        if t < NT_H:
            return t + D if t + D < NT_H + D else None
        tw = t + 7 if WPRE else t + D
        return tw if tw < NT else None
    def steps(s, t0, t1, units):
        e = s.append
        for t in range(t0, t1):
            p = part(t)
            if t < 15: s += sstamp("F", t + 1)
            if NT_H <= t < NT_H + 16: s += sstamp("G", t - NT_H)
            F = Fill(16); post = []
            if t + 1 < NT:
                F.add(0, wait_vm(("FW", t + 1)))
                for nb in range(4):
                    F.add(1 + 4*nb, rdA(t + 1, nb, 0)); F.add(3 + 4*nb, rdA(t + 1, nb, 1))
            tw = wnext(t)
            if tw is not None:
                o, d, pp = ldW(tw)
                F.add(0, o)
                for k, x in enumerate(d): F.add(2 + 2*k, x)
                F.add(9, pp)
            if t + D < NT and not (t < NT_H and t + D >= NT_H):
                o, d, pp = ldB(t + D)
                if o: F.add(9, o)
                for k, x in enumerate(d): F.add(10 + 2*k if k < 3 else 15, x)
                post = pp
            u = units.get(t, [])
            for nb in range(4):
                for qb in range(4):
                    g = 4*nb + qb
                    e(mfma16(ACC(p, nb, qb), AF(t, nb), BFf(t, qb), 0 if tl(t) == 0 else ACC(p, nb, qb)))
                    s += F.emit(g)
                    n = 2 if len(u) > 1 else len(u)
                    for _ in range(n):
                        if u: s.append(u.pop(0))
            s += u
            s += post
    f = []; e = f.append
    f += sstamp("F", 0)
    for qb in range(4): e(salu("s_mov_b32", S(S_T + qb), qb*131072))
    def both(t):
        o, d, p = ldW(t); r = o + [nop(0)] + d + p
        o, d, p = ldB(t); return r + o + d + p
    for t in range(2): f += both(t)
    for k in range(16): f += o_unit2(k)
    for t in range(2, D): f += both(t)
    e(wait_vm(("FW", 0)))
    for nb in range(4):
        for rd in range(2): e(rdA(0, nb, rd))
    steps(f, 0, NT_H, {})
    if WPRE:
        for t in range(NT_H + D, NT_H + 7):
            o, d, p = ldW(t); f += o + [nop(0)] + d + p
    sp = []; e = sp.append
    for t in range(NT_H, NT_H + D):
        o, d, p = ldB(t); sp += o; sp += d; sp += p
    steps(sp, NT_H, NT, {})
    SRD_X, SRD_OUT = 8, 12
    e(sload(44, 0, 2)); e(sload(46, 72, 2))
    e(valu("v_lshlrev_b32", V(20), 4, V(1)))
    e(valu("v_add_u32", V(21), S(S_LDSW), V(20)))
    e(valu("v_and_b32", V(23), 15, V(1)))
    e(salu("s_lshl_b32", S(T0_), S(S_RB), 6)); e(salu("s_lshl_b32", S(T1_), S(S_WAVE), 4)); e(salu("s_add_u32", S(T0_), S(T0_), S(T1_)))
    e(valu("v_add_u32", V(23), S(T0_), V(23))); e(valu("v_lshlrev_b32", V(23), 10, V(23)))
    e(valu("v_lshrrev_b32", V(24), 4, V(1))); e(valu("v_lshl_add_u32", V(23), V(24), 3, V(23)))
    e(salu("s_lshl_b32", S(T1_), S(S_CB), 7)); e(valu("v_add_u32", V(23), S(T1_), V(23)))
    e(raw("s_waitcnt lgkmcnt(0)", "wait")); sp[-1].tag = (None, 0)
    sp += mksrd(SRD_X, 44, None, 2097152); sp += mksrd(SRD_OUT, 46, None, 2097152)
    XR_ = 160 - 128 + 2
    XR_ = 12
    for nb in range(4): e(buf_load(V(XR_ + 2*nb, 2), V(23), S(SRD_X, 4), 0, offset=nb*32, n=2))
    for i in list(range(16, 32)): e(ds_write("ds_write_b128", V(21), V(128 + 4*i, 4), offset=i*1024))
    e(nop(3))
    for i in list(range(16)): e(ds_write("ds_write_b128", V(21), V(128 + 4*i, 4), offset=i*1024))
    e(wait_raw(lgkm=0)); e(barrier())
    e(salu("s_lshl_b32", S(T0_), S(S_WAVE), 10))
    e(valu("v_add_u32", V(21), S(T0_), V(20))); e(valu("v_add_u32", V(22), 65536, V(21)))
    for p in (1, 0):
        for nb in range(4):
            for src in range(4):
                off = (src & 1)*32768 + (p*16 + nb*4)*1024
                e(ds_read("ds_read_b128", V(32 + ((p*4 + nb)*4 + src)*4, 4), V(21 if src < 2 else 22), offset=off))
    def red(p, nb):
        b = 32 + (p*4 + nb)*16; o = []
        for r in range(4):
            o.append(valu("v_add_f32", V(b + r), V(b + r), V(b + 4 + r))); o.append(valu("v_add_f32", V(b + 8 + r), V(b + 8 + r), V(b + 12 + r)))
        for r in range(4): o.append(valu("v_add_f32", V(b + r), V(b + r), V(b + 8 + r)))
        return o
    T = 168
    for nb in range(4):
        sp += red(1, nb)
    for nb in range(4):
        fb = 96 + nb*16; t = T + 8*nb
        e(valu("v_cvt_pk_bf16_f32", V(t), V(fb), V(fb + 1))); e(valu("v_cvt_pk_bf16_f32", V(t + 1), V(fb + 2), V(fb + 3)))
        for h in range(2):
            e(valu("v_lshlrev_b32", V(fb + 2*h), 16, V(t + h))); e(valu("v_and_b32", V(fb + 2*h + 1), "0xffff0000", V(t + h)))
        for r in range(4): e(valu("v_mul_f32", V(t + 4 + r), f2h(-1.4426950408889634), V(fb + r)))
    for nb in range(4):
        t = T + 8*nb
        for r in range(4): e(trans("v_exp_f32", V(t + 4 + r), V(t + 4 + r)))
    for nb in range(4): sp += red(0, nb)
    for nb in range(4):
        t = T + 8*nb
        for r in range(4): e(valu("v_add_f32", V(t + 4 + r), 1.0, V(t + 4 + r)))
    for nb in range(4):
        t = T + 8*nb
        for r in range(4): e(trans("v_rcp_f32", V(t + 4 + r), V(t + 4 + r)))
    for nb in range(4):
        sb, fb = 32 + nb*16, 96 + nb*16; t = T + 8*nb
        e(valu("v_cvt_pk_bf16_f32", V(t), V(sb), V(sb + 1))); e(valu("v_cvt_pk_bf16_f32", V(t + 1), V(sb + 2), V(sb + 3)))
        for h in range(2):
            e(valu("v_lshlrev_b32", V(sb + 2*h), 16, V(t + h))); e(valu("v_and_b32", V(sb + 2*h + 1), "0xffff0000", V(t + h)))
        for r in range(4): e(valu("v_mul_f32", V(sb + r), V(sb + r), V(fb + r)))
        for h in range(2):
            e(valu("v_lshlrev_b32", V(fb + 2*h), 16, V(XR_ + 2*nb + h))); e(valu("v_and_b32", V(fb + 2*h + 1), "0xffff0000", V(XR_ + 2*nb + h)))
        for r in range(4): e(valu("v_fma_f32", V(sb + r), V(sb + r), V(t + 4 + r), V(fb + r)))
        e(valu("v_cvt_pk_bf16_f32", V(t + 2), V(sb), V(sb + 1))); e(valu("v_cvt_pk_bf16_f32", V(t + 3), V(sb + 2), V(sb + 3)))
        e(buf_store(V(t + 2, 2), V(23), S(SRD_OUT, 4), 0, offset=nb*32, n=2, flags=OUTFLAGS))
    return pre, f, sp

def fb_check2(name):
    c = mega.fb_check(name)
    i = [k for k, x in enumerate(c) if x.kind == "barrier"][0]
    L = f"{name}_hp"
    p = []; e = p.append
    e(raw(f"s_cmp_lg_u32 s{S_WAVE}, 0", "salu", rd=regs("s", S_WAVE)))
    e(raw(f"s_cbranch_scc1 {L}_skip", "branch"))
    e(salu("s_lshl_b32", S(T0_), S(S_QB), 7)); e(salu("s_add_u32", S(T0_), S(T0_), 4096*3))
    e(raw("s_mov_b32 exec_lo, -1", "salu")); e(raw("s_mov_b32 exec_hi, 0", "salu"))
    e(raw(f"v_lshlrev_b32 v{TMP+11}, 2, v1", "other"))
    e(salu("s_mov_b32", S(T2_), SPIN_MAX))
    e(label(f"{L}_poll"))
    e(raw(f"buffer_load_dword v{TMP+12}, v{TMP+11}, s[{SRD_SY}:{SRD_SY+3}], s{T0_} offen sc1", "other"))
    e(raw("s_waitcnt vmcnt(0)", "other"))
    e(raw(f"v_cmp_ne_u32 vcc, s{S_EPOCH}, v{TMP+12}", "other")); e(raw("s_nop 4", "other"))
    e(raw(f"s_cbranch_vccz {L}_done", "branch"))
    e(raw(f"s_sub_u32 s{T2_}, s{T2_}, 1", "other")); e(raw(f"s_cbranch_scc1 {L}_done", "branch"))
    e(raw("s_sleep 1", "other")); e(raw(f"s_branch {L}_poll", "branch"))
    e(label(f"{L}_done"))
    e(raw("s_mov_b64 exec, -1", "salu"))
    e(label(f"{L}_skip"))
    return c[:i + 1] + p + c[i + 1:]

def gen_mega2(name):
    k1.SC1 = True
    k1._cs[0] = 0
    mega.FB_LDS = XR
    s = stamp(0); e = s.append
    if k1.STEPSTAMP: s += [raw('s_memtime s[96:97]', 'smem'), raw('s_waitcnt lgkmcnt(0)', 'other'), raw('s_mov_b32 s80, s96', 'salu')]
    e(raw("s_cmp_ge_u32 s2, 256", "salu", rd=regs("s", 2)))
    e(raw(f"s_cbranch_scc1 {name}_end", "branch"))
    e(sload(60, 0, 2))
    e(raw("s_getpc_b64 s[100:101]", "salu", wr=regs("s", 100, 2))); e(label(f"{name}_pc"))
    s += setup_mega2()
    s += setup_addr2()
    s += flatW2(0)
    if WTOUCH == 1: s += touches2()
    if WTOUCH == 3: s += touches2(1)
    s += flatW2(1)
    s += epoch_fix()
    s += ln_compute()
    s += flatW2(2); s += flatW2(3)
    if CODEPF: s += code_touch(name, PFD + 3)
    s += setupK()
    s += setup_addr3()
    e(wait_vm("XN"))
    s += stamp(1)
    s += poll_barrier(name, 0)
    s += stamp(2)
    for t in range(4): s += loadB(t) + advB2()
    if WTOUCH == 2: s += touches2()
    if WTOUCH == 3: s += touches2(2)
    s += kv_touch()
    s += fused_phase()
    s += stamp(3)
    s += cstamp('M')
    if CONV2:
        s += conv_phase()
        s += window_m1()
    else:
        s += qconvert()
        s += h_epilogue2()
        for i in range(16): e(valu("v_mov_b32", V(LREG + i), 0))
        for i in range(4): e(valu("v_mov_b32", V(ONES + i), "0x3f803f80"))
        s += first_max()
        s += window(-1, 0, last_qk=True, do_pv=False, do_kread=True, exp_tail=False)
    s += stamp(4)
    s += cstamp('M')
    e(salu("s_mov_b32", S(S_LOOP), 0))
    s += flag_addr_setup(2, TMP + 10, TMP + 11)
    e(salu("s_lshl_b32", S(7), S(2), 2)); e(salu("s_add_u32", S(7), S(7), S(S_WAVE))); e(salu("s_lshl_b32", S(7), S(7), 12))
    e(valu("v_and_b32", V(PFD + 3), 31, V(1))); e(valu("v_lshlrev_b32", V(PFD + 3), 7, V(PFD + 3)))
    s += [salu("s_mov_b32", S(60), S(P_WD)), salu("s_mov_b32", S(61), S(P_WD + 1)), salu("s_mov_b32", S(62), 1792*1024), salu("s_mov_b32", S(63), "0x00020000")]
    if CODEPF:
        s += [salu("s_mov_b32", S(76), S(100)), salu("s_mov_b32", S(77), S(101)), raw(f"s_mov_b32 s78, {name}_codeend-{name}_pc", "salu", wr=regs("s", 78)), salu("s_mov_b32", S(79), "0x00020000")]
        e(salu("s_lshr_b32", S(90), S(2), 3)); e(salu("s_and_b32", S(90), S(90), 15)); e(salu("s_lshl_b32", S(90), S(90), 12))
        e(valu("v_lshlrev_b32", V(PFD + 2), 6, V(1)))
    def pf_next():
        b = [[raw(f"s_cmp_eq_u32 s{S_LOOP}, 0", "salu", rd=regs("s", S_LOOP)), salu("s_cselect_b32", S(60), S(P_WO), S(60)), salu("s_cselect_b32", S(61), S(P_WO + 1), S(61))],
             [raw(f"s_cmp_lt_u32 s{S_LOOP}, 1", "salu", rd=regs("s", S_LOOP)), salu("s_cselect_b32", S(62), 4096*1024, 0)]]
        return b
    e(LoopBegin(f"{name}_loop"))
    for T in range(4):
        d0, d1 = tile_dma(T)
        x0, x1 = [], []
        if T == 0: x1.append((39, buf_load(V(PFD), V(PFD + 3), S(60, 4), S(7), n=1, tag="PF")))
        if T == 1:
            for k, b in enumerate(pf_next()): x1.append((15 + 2*k, b))
        if T == 2:
            if CODEPF: x1.append((39, buf_load(V(PFD + 1), V(PFD + 2), S(76, 4), S(90), n=1, tag="PF")))
            x0.append((39, buf_store(V(TMP + 11), V(TMP + 10), S(SRD_SY, 4), 0, n=1, tag="HF", flags="sc1")))
        w0 = window(2*T, T, dma=d0, bar=True, extra=x0)
        if T == 2:
            for x in w0:
                if x.kind == "waitvm": x.need = set(x.need) | {"H"}
        s += w0
        s += window(2*T + 1, T, dma=d1, extra=x1)
    e(salu("s_add_u32", S(S_LOOP), S(S_LOOP), 1))
    e(raw(f"s_cmp_lt_u32 s{S_LOOP}, 7", "salu", rd=regs("s", S_LOOP)))
    e(raw(f"s_cbranch_scc1 {name}_loop", "branch"))
    e(LoopEnd(f"{name}_loop"))
    s += cstamp('M')
    for T in range(28, 32):
        d0, d1 = tile_dma(T, doK=False, doV=(T + 3 <= 31))
        j = 2*T
        s += window(j, T, dma=d0, bar=(T < 31), do_kread=(j + 2 <= 63))
        j = 2*T + 1
        s += window(j, T, dma=d1, last_qk=(j + 1 <= 63), do_kread=(j + 2 <= 63))
    s += stamp(5)
    s += cstamp('M')
    s += fb_check2(name)
    s += o_rinv()[:-4]
    pre, f, sp = final2(name)
    s += pre
    s += stamp(6)
    s += cstamp('M')
    s += f
    s += cstamp('M')
    e(wait_vm("O"))
    s += stamp(7)
    s += cstamp('M')
    s += poll_barrier(name, 1)
    s += stamp(8)
    s += cstamp('M')
    s += sp
    s += cstamp('M')
    if k1.STAMPS: e(raw("s_waitcnt vmcnt(0)", "other"))
    s += stamp(9)
    s += stamp_dump(16 if k1.STEPSTAMP else 10)
    main, res = finish(s, name)
    return main + [label(f"{name}_codeend")] + fallback(name), res
```

```python
import sys
from ir import render
import k0, k1, k2, mega, mega2

NAME = "recurrent_scan__mha_block_cached__glu_gated_reglu__prompt"
HDR = open("cdna_kernels/" + NAME + ".s.ref").read().split("\n")

def build(stop=None, kernels=("k0", "k1", "k2")):
    head = [l for l in HDR if l.startswith(";") and "@launch" not in l and "Override launch" not in l and "grid=ceil" not in l]
    launches = {"k0": "; @launch kernel=ln_kernel grid=(256,1,1) block=(128,1,1) lds=0",
                "k1": f"; @launch kernel=attn_kernel grid=(256,1,1) block=(256,1,1) lds={k1.LDS_BYTES}",
                "k2": "; @launch kernel=final_kernel grid=(256,1,1) block=(256,1,1) lds=131072",
                "mega": f"; @launch kernel=mega_kernel grid=(256,1,1) block=(256,1,1) lds={k1.LDS_BYTES}",
                "mega2": f"; @launch kernel=mega_kernel grid=(256,1,1) block=(256,1,1) lds={k1.LDS_BYTES}",
                "single2": f"; @launch grid=(256,1,1) block=(256,1,1) lds={k1.LDS_BYTES}",
                "single": f"; @launch grid=(256,1,1) block=(256,1,1) lds={k1.LDS_BYTES}"}
    out = head + [launches[k] for k in kernels]
    out.append('.amdgcn_target "amdgcn-amd-amdhsa--gfx950"')
    out.append(".text")
    descs = []
    for k, nm, fn in (("k0", "ln_kernel", lambda n: k0.gen_k0(n)), ("k1", "attn_kernel", lambda n: k1.gen_k1(n, stop=stop)), ("k2", "final_kernel", lambda n: k2.gen_k2(n)), ("mega", "mega_kernel", lambda n: mega.gen_mega(n)), ("single", NAME + "_kernel", lambda n: mega.gen_mega("mk")), ("mega2", "mega_kernel", lambda n: mega2.gen_mega2(n)), ("single2", NAME + "_kernel", lambda n: mega2.gen_mega2("mk"))):
        if k not in kernels: continue
        st, res = fn(nm)
        if k == "single":
            pass
        out.append(f".globl {nm}\n.p2align 8\n.type {nm},@function\n{nm}:")
        out.append(render(st))
        descs.append(f""".amdhsa_kernel {nm}
  .amdhsa_next_free_vgpr {res['vgpr']}
  .amdhsa_next_free_sgpr {res['sgpr']}
  .amdhsa_accum_offset {res['accum']}
  .amdhsa_group_segment_fixed_size 0
  .amdhsa_kernarg_size 96
  .amdhsa_user_sgpr_count 2
  .amdhsa_user_sgpr_kernarg_segment_ptr 1
  .amdhsa_system_sgpr_workgroup_id_x 1
.end_amdhsa_kernel""")
    out.append('.section .rodata,"a"')
    for d in descs:
        out.append(".p2align 6"); out.append(d)
    return "\n".join(out) + "\n"

if __name__ == "__main__":
    import argparse
    ap = argparse.ArgumentParser()
    ap.add_argument("-o", default="full.s")
    ap.add_argument("--stop", default=None)
    ap.add_argument("--kernels", default="k0,k1,k2")
    ap.add_argument("--stamps", action="store_true")
    ap.add_argument("--delta", type=int, default=1)
    ap.add_argument("--stepstamp", default=None)
    ap.add_argument("--norot", action="store_true")
    ap.add_argument("--forcefb", action="store_true")
    ap.add_argument("--m2", default="")
    ap.add_argument("--nocodepf", action="store_true")
    ap.add_argument("--fin", default="")
    a = ap.parse_args()
    k1.STAMPS = a.stamps; k2.STAMPS = a.stamps
    k2.DELTA = a.delta
    k1.STEPSTAMP = a.stepstamp
    if a.stepstamp: k1.STAMPS = True
    k1.ROT = not a.norot
    mega.FORCE_FB = a.forcefb
    for kv in a.m2.split(','):
        if kv:
            k, v = kv.split('='); setattr(mega2, k, int(v) if v.lstrip('-').isdigit() else v.replace('+', ' '))
    mega.CODEPF = not a.nocodepf
    for kv in a.fin.split(','):
        if kv:
            k, v = kv.split('='); mega.FIN[k] = int(v)
    t = build(stop=a.stop, kernels=a.kernels.split(","))
    open(a.o, "w").write(t)
    print("wrote", a.o, len(t), "bytes")
```

```python
from ir import *
from k0 import sload, XN_OFF, O_OFF, H_OFF, DBG_OFF
import k1
from k1 import *
import mega
from mega import SYNC_OFF, S_EPOCH, SRD_SY, SPIN_MAX, ln_loads, ln_compute, code_touch, poll_barrier, fallback
def epoch_fix():
    return [valu("v_readfirstlane_b32", S(S_EPOCH), V(TMP + 9)), nop(3), salu("s_add_u32", S(S_EPOCH), S(S_EPOCH), 1)]

CODEPF = True
OBURST = True
WTOUCH = 4
WPRE = 1
CONV2 = 1
FTAIL = 1
FVMOUT = 1
KVT = 1
OUTFLAGS = ''
FD = 3
ADDRE, VOFFE = 96, 100
SRD_E = 24
S_SOFFE = 38
RING0 = 32768
def ringslot(t): return RING0 + 16384*(t % 8)
def rbase(t): return RING0 if (t % 8) < 4 else RING0 + 65536
def ACCQ(db, qb): return V(128 + 16*db + 4*qb, 4)
def ACCE(db, qb): return A(16*db + 4*qb, 4)
def AFB(db): return A(192 + 4*db, 4)
WSTEP_E = 32*3584

def flag_addr_setup(idx, vaddr, vval):
    s = []; e = s.append
    e(salu("s_lshl_b32", S(S_T), S(S_QB), 7)); e(salu("s_add_u32", S(S_T), S(S_T), 4096*(1 + idx)))
    e(salu("s_lshl_b32", S(S_T + 1), S(S_HEAD), 2)); e(salu("s_add_u32", S(S_T), S(S_T), S(S_T + 1)))
    e(valu("v_mov_b32", V(vaddr), S(S_T)))
    e(valu("v_lshlrev_b32", V(vval), 20, V(1)))
    e(valu("v_add_u32", V(vaddr), V(vaddr), V(vval)))
    e(valu("v_mov_b32", V(vval), S(S_EPOCH)))
    return s

def setup_mega2():
    s = []; e = s.append
    e(sload(P_WS, 88, 2))
    e(sload(P_WQ, 24, 4)); e(sload(SRD_K, 8, 2)); e(sload(SRD_V, 16, 2)); e(sload(P_WG, 48, 4)); e(sload(P_WD, 64, 2))
    e(valu("v_and_b32", V(1), 63, V(0)))
    e(valu("v_lshrrev_b32", V(30), 6, V(0)))
    e(salu("s_and_b32", S(S_HEAD), S(2), 31))
    e(valu("v_readfirstlane_b32", S(S_WAVE), V(30)))
    e(salu("s_lshr_b32", S(S_QB), S(2), 5))
    e(salu("s_mov_b32", S(62), 2097152)); e(salu("s_mov_b32", S(63), "0x00020000"))
    e(raw("s_waitcnt lgkmcnt(0)", "wait")); s[-1].tag = (None, 0)
    s += ln_loads()
    e(salu("s_add_u32", S(SRD_SY), S(P_WS), SYNC_OFF)); e(salu("s_addc_u32", S(SRD_SY + 1), S(P_WS + 1), 0))
    e(salu("s_mov_b32", S(SRD_SY + 2), 16384)); e(salu("s_mov_b32", S(SRD_SY + 3), "0x00020000"))
    e(salu("s_lshl_b32", S(S_T + 2), S(S_QB), 7))
    e(valu("v_mov_b32", V(TMP + 11), 0))
    e(buf_load(V(TMP + 9), V(TMP + 11), S(SRD_SY, 4), S(S_T + 2), n=1, flags="sc1"))
    e(valu("v_lshrrev_b32", V(G_), 4, V(1)))
    e(valu("v_and_b32", V(N_), 15, V(1)))
    for i in range(2):
        e(valu("v_add_u32", V(U1), 4*i, V(G_)))
        e(valu("v_lshlrev_b32", V(U2), 13, V(U1)))
        e(valu("v_lshlrev_b32", V(U1), 1, V(U1)))
        e(valu("v_xor_b32", V(U1), V(U1), V(N_)))
        e(valu("v_lshl_add_u32", V(VOFFW + i), V(U1), 4, V(U2)))
        if i: e(valu("v_subrev_u32", V(VOFFW + i), 1024, V(VOFFW + i)))
    e(valu("v_lshlrev_b32", V(VLANE16), 4, V(1)))
    e(valu("v_mov_b32", V(VOFFB), V(VLANE16)))
    for qb in range(1, 4): e(valu("v_add_u32", V(VOFFB + qb), qb*16384, V(VLANE16)))
    e(salu("s_lshl_b32", S(S_W4K), S(S_WAVE), 12))
    e(salu("s_lshl_b32", S(S_W2K), S(S_WAVE), 11))
    e(salu("s_mov_b32", S(S_SOFFB), 0))
    e(salu("s_lshl_b32", S(S_SOFFW), S(S_WAVE), 16))
    e(salu("s_lshl_b32", S(S_T), S(S_HEAD), 8))
    e(salu("s_sub_u32", S(S_T + 1), 4194304, S(S_T)))
    s += mksrd(SRD_W, P_WQ, S_T, S(S_T + 1))
    e(salu("s_lshl_b32", S(S_T), S(S_QB), 4)); e(salu("s_lshl_b32", S(S_T + 1), S(S_WAVE), 2)); e(salu("s_add_u32", S(S_T), S(S_T), S(S_T + 1)))
    e(salu("s_lshl_b32", S(S_T), S(S_T), 14))
    if XN_OFF: e(salu("s_add_u32", S(S_T), S(S_T), XN_OFF))
    s += mksrd(SRD_XN, P_WS, S_T, 65536)
    e(salu("s_lshl_b32", S(S_T), S(S_HEAD), 19))
    for b in (SRD_K, SRD_V):
        e(salu("s_add_u32", S(b), S(b), S(S_T))); e(salu("s_addc_u32", S(b + 1), S(b + 1), 0))
        e(salu("s_mov_b32", S(b + 2), 524288)); e(salu("s_mov_b32", S(b + 3), "0x00020000"))
    e(raw(f"s_cmp_ge_u32 s{S_WAVE}, 2", "salu", rd=regs("s", S_WAVE)))
    e(salu("s_cselect_b32", S(S_T), S(P_WG + 2), S(P_WG)))
    e(salu("s_cselect_b32", S(S_T + 1), S(P_WG + 3), S(P_WG + 1)))
    e(salu("s_lshl_b32", S(S_T + 2), S(S_HEAD), 7))
    e(salu("s_add_u32", S(SRD_E), S(S_T), S(S_T + 2)))
    e(salu("s_addc_u32", S(SRD_E + 1), S(S_T + 1), 0))
    e(salu("s_sub_u32", S(SRD_E + 2), 512*3584, S(S_T + 2)))
    e(raw(f"s_cmp_lt_u32 s{S_HEAD}, 28", "salu", rd=regs("s", S_HEAD)))
    e(salu("s_cselect_b32", S(SRD_E + 2), S(SRD_E + 2), 0))
    e(salu("s_mov_b32", S(SRD_E + 3), "0x00020000"))
    e(salu("s_and_b32", S(S_T), S(S_WAVE), 1))
    e(salu("s_mul_i32", S(S_SOFFE), S(S_T), 16*3584))
    return s

def setup_addr2():
    s = []; e = s.append
    e(valu("v_bfe_u32", V(RR_), V(1), 2, 2))
    e(valu("v_and_b32", V(C_), 3, V(1)))
    e(valu("v_and_b32", V(ROW8), 1, V(G_)))
    e(valu("v_lshl_add_u32", V(ROW8), V(ROW8), 2, V(RR_)))
    e(valu("v_lshl_add_u32", V(ROWB), V(G_), 2, V(RR_)))
    e(valu("v_lshrrev_b32", V(U1), 3, V(1)))
    e(salu("s_mov_b32", S(S_T + 2), 3584))
    e(valu("v_mul_lo_u32", V(U2), V(U1), S(S_T + 2)))
    e(valu("v_lshlrev_b32", V(CH), 1, V(G_)))
    e(valu("v_and_b32", V(U1), 7, V(1)))
    e(valu("v_xor_b32", V(U1), V(U1), V(CH)))
    e(valu("v_lshl_add_u32", V(VOFFE), V(U1), 4, V(U2)))
    e(valu("v_add_u32", V(VOFFE + 1), 8*3584 - 1024, V(VOFFE)))
    return s

def setup_addr3():
    s = []; e = s.append
    e(valu("v_lshlrev_b32", V(U2), 8, V(ROWB)))
    e(valu("v_and_b32", V(U1), 1, V(C_)))
    e(valu("v_lshl_add_u32", V(U2), V(U1), 4, V(U2)))
    e(valu("v_add_u32", V(U2), RING0, V(U2)))
    e(valu("v_lshrrev_b32", V(CH), 1, V(C_)))
    for ds in range(4):
        e(valu("v_add_u32", V(U1), 2*ds, V(CH)))
        e(valu("v_xor_b32", V(U1), V(U1), V(ROW8)))
        e(valu("v_lshl_add_u32", V(ADDRW + ds), V(U1), 5, V(U2)))
    e(valu("v_lshlrev_b32", V(U2), 7, V(ROWB)))
    e(valu("v_lshl_add_u32", V(U2), V(C_), 3, V(U2)))
    e(valu("v_add_u32", V(U2), RING0 + 8192, V(U2)))
    e(valu("v_and_b32", V(CH), 1, V(G_)))
    e(valu("v_lshlrev_b32", V(CH), 1, V(CH)))
    e(valu("v_lshrrev_b32", V(U1), 1, V(RR_)))
    e(valu("v_add_u32", V(CH), V(CH), V(U1)))
    for b in range(4):
        e(valu("v_xor_b32", V(U1), b, V(CH)))
        e(valu("v_lshl_add_u32", V(ADDRE + b), V(U1), 5, V(U2)))
    for ds in range(4):
        e(valu("v_add_u32", V(U1), 4*ds, V(G_)))
        e(valu("v_xor_b32", V(U1), V(U1), V(N_)))
        e(valu("v_lshlrev_b32", V(U1), 4, V(U1)))
        e(valu("v_lshl_add_u32", V(ADDRK + ds), V(N_), 8, V(U1)))
    e(valu("v_lshlrev_b32", V(U2), 8, V(ROWB)))
    e(valu("v_lshl_add_u32", V(U2), V(C_), 3, V(U2)))
    e(valu("v_add_u32", V(U2), VR, V(U2)))
    for db in range(8):
        e(valu("v_xor_b32", V(U1), db, V(ROW8)))
        e(valu("v_lshl_add_u32", V(ADDRV + db), V(U1), 5, V(U2)))
    for i in range(2):
        e(valu("v_add_u32", V(U1), 4*i, V(G_)))
        e(valu("v_lshlrev_b32", V(U1), 1, V(U1)))
        e(valu("v_xor_b32", V(U1), V(U1), V(N_)))
        e(valu("v_lshlrev_b32", V(U1), 4, V(U1)))
        e(valu("v_lshl_add_u32", V(VOFFV + i), V(G_), 8, V(U1)))
    e(salu("s_lshl_b32", S(T3_), S(S_QB), 4)); e(salu("s_lshl_b32", S(T2_), S(S_WAVE), 2)); e(salu("s_add_u32", S(T3_), S(T3_), S(T2_)))
    e(salu("s_mul_i32", S(T0_), S(T3_), 56))
    e(salu("s_lshl_b32", S(T1_), S(S_HEAD), 1))
    e(salu("s_add_u32", S(T0_), S(T0_), S(T1_)))
    e(salu("s_lshl_b32", S(T0_), S(T0_), 10))
    e(salu("s_add_u32", S(T0_), S(T0_), H_OFF))
    s += mksrd(SRD_H, P_WS, T0_, 3*57344 + 2048)
    e(raw(f"s_cmp_lt_u32 s{S_HEAD}, 28", "salu", rd=regs("s", S_HEAD)))
    e(salu("s_cselect_b32", S(SRD_H + 2), S(SRD_H + 2), 0))
    return s

def touches2(part=0):
    s = []; e = s.append
    e(valu("v_lshrrev_b32", V(U1), 3, V(1)))
    e(valu("v_lshlrev_b32", V(U1), 18, V(U1)))
    e(valu("v_bfe_u32", V(U2), V(1), 1, 2))
    e(valu("v_lshl_add_u32", V(U1), V(U2), 13, V(U1)))
    e(valu("v_and_b32", V(U2), 1, V(1)))
    e(valu("v_lshl_add_u32", V(U1), V(U2), 7, V(U1)))
    e(salu("s_lshl_b32", S(S_T + 1), S(S_QB), 15))
    if part == 0:
        e(raw(f"s_cmp_eq_u32 s{S_WAVE}, 2", "salu", rd=regs("s", S_WAVE)))
        e(salu("s_cselect_b32", S(S_T), 8*262144, 0))
    else:
        e(salu("s_mov_b32", S(S_T), 0 if part == 1 else 8*262144))
    e(salu("s_add_u32", S(S_T), S(S_T), S(S_T + 1)))
    for i in range(3): e(salu("s_mov_b32", S(60 + i), S(SRD_W + i)))
    e(salu("s_mov_b32", S(63), "0x00020000"))
    if part == 0:
        e(salu("s_sub_u32", S(S_T + 2), S(S_WAVE), 1))
        e(raw(f"s_cmp_lt_u32 s{S_T+2}, 2", "salu", rd=regs("s", S_T + 2)))
    else:
        e(raw(f"s_cmp_eq_u32 s{S_WAVE}, 2", "salu", rd=regs("s", S_WAVE)))
    e(salu("s_cselect_b32", S(62), S(62), 0))
    e(buf_load(V(PFD), V(U1), S(60, 4), S(S_T), n=1, tag="PF"))
    if part == 0:
        e(valu("v_mov_b32", V(U2), 3584)); e(valu("v_mul_lo_u32", V(U2), V(U2), V(1)))
        e(salu("s_mul_i32", S(S_T), S(S_QB), 64*3584))
    else:
        e(valu("v_and_b32", V(U1), 31, V(1)))
        e(valu("v_mov_b32", V(U2), 3584)); e(valu("v_mul_lo_u32", V(U2), V(U2), V(U1)))
        e(salu("s_mul_i32", S(S_T), S(S_QB), 32*3584))
        if part == 2: e(salu("s_add_u32", S(S_T), S(S_T), 256*3584))
    for i in range(3): e(salu("s_mov_b32", S(60 + i), S(SRD_E + i)))
    e(salu("s_and_b32", S(S_T + 2), S(S_WAVE), 1))
    e(raw(f"s_cmp_eq_u32 s{S_T+2}, 1", "salu", rd=regs("s", S_T + 2)))
    e(salu("s_cselect_b32", S(62), S(62), 0))
    e(buf_load(V(PFD + 1), V(U2), S(60, 4), S(S_T), n=1, tag="PF"))
    return s

def kv_touch():
    s = []; e = s.append
    e(valu("v_and_b32", V(U2), 31, V(1)))
    e(valu("v_lshlrev_b32", V(U2), 7, V(U2)))
    e(salu("s_lshl_b32", S(S_T), S(S_QB), 12))
    e(raw(f"s_cmp_eq_u32 s{S_WAVE}, 3", "salu", rd=regs("s", S_WAVE)))
    for i in range(3): e(salu("s_cselect_b32", S(60 + i), S(SRD_K + i), S(SRD_V + i)))
    e(salu("s_mov_b32", S(63), "0x00020000"))
    e(raw(f"s_cmp_ge_u32 s{S_WAVE}, 2", "salu", rd=regs("s", S_WAVE)))
    e(salu("s_cselect_b32", S(62), S(62), 0))
    e(buf_load(V(PFD + 2), V(U2), S(60, 4), S(S_T), n=1, tag="PF"))
    return s

def touch_prep():
    s = []; e = s.append
    e(valu("v_lshrrev_b32", V(112), 3, V(1)))
    e(valu("v_lshlrev_b32", V(112), 18, V(112)))
    e(valu("v_bfe_u32", V(113), V(1), 1, 2))
    e(valu("v_lshl_add_u32", V(112), V(113), 13, V(112)))
    e(valu("v_and_b32", V(113), 1, V(1)))
    e(valu("v_lshl_add_u32", V(112), V(113), 7, V(112)))
    e(salu("s_lshl_b32", S(36), S(S_QB), 15)); e(salu("s_add_u32", S(36), S(36), 8*262144))
    for i in range(3): e(salu("s_mov_b32", S(84 + i), S(SRD_W + i)))
    e(salu("s_mov_b32", S(87), "0x00020000"))
    e(raw(f"s_cmp_eq_u32 s{S_WAVE}, 2", "salu", rd=regs("s", S_WAVE)))
    e(salu("s_cselect_b32", S(86), S(86), 0))
    e(valu("v_and_b32", V(114), 31, V(1)))
    e(valu("v_mov_b32", V(113), 3584)); e(valu("v_mul_lo_u32", V(113), V(113), V(114)))
    e(salu("s_mul_i32", S(39), S(S_QB), 32*3584)); e(salu("s_add_u32", S(39), S(39), 256*3584))
    for i in range(3): e(salu("s_mov_b32", S(72 + i), S(SRD_E + i)))
    e(salu("s_mov_b32", S(75), "0x00020000"))
    e(salu("s_and_b32", S(S_T + 2), S(S_WAVE), 1))
    e(raw(f"s_cmp_eq_u32 s{S_T+2}, 1", "salu", rd=regs("s", S_T + 2)))
    e(salu("s_cselect_b32", S(74), S(74), 0))
    e(valu("v_lshlrev_b32", V(114), 7, V(114)))
    e(salu("s_lshl_b32", S(42), S(S_QB), 12))
    e(raw(f"s_cmp_eq_u32 s{S_WAVE}, 3", "salu", rd=regs("s", S_WAVE)))
    for i in range(3): e(salu("s_cselect_b32", S(76 + i), S(SRD_K + i), S(SRD_V + i)))
    e(salu("s_mov_b32", S(79), "0x00020000"))
    e(raw(f"s_cmp_ge_u32 s{S_WAVE}, 2", "salu", rd=regs("s", S_WAVE)))
    e(salu("s_cselect_b32", S(78), S(78), 0))
    return s

def dmaW2(t):
    p1 = salu("s_add_u32", "m0", S(S_W2K), ringslot(t))
    d1 = [buf_dma(V(VOFFW + i), S(SRD_W, 4), S(S_SOFFW), offset=i*1024, tag=("W", t)) for i in range(2)]
    a1 = [salu("s_add_u32", S(S_SOFFW), S(S_SOFFW), 262144)]
    p2 = salu("s_add_u32", "m0", S(S_W2K), ringslot(t) + 8192)
    d2 = [buf_dma(V(VOFFE + i), S(SRD_E, 4), S(S_SOFFE), offset=i*1024, tag=("W", t)) for i in range(2)]
    a2 = [salu("s_add_u32", S(S_SOFFE), S(S_SOFFE), WSTEP_E)]
    return p1, d1, a1, p2, d2, a2
def flatW2(t):
    p1, d1, a1, p2, d2, a2 = dmaW2(t)
    return [p1, nop(0)] + d1 + a1 + [p2, nop(0)] + d2 + a2
def advB2(): return [salu("s_add_u32", S(S_SOFFB), S(S_SOFFB), 1024)]

def rdA2(t, db, rd):
    off = ringslot(t) - rbase(t)
    if db < 8:
        ds, u = db >> 1, db & 1
        return ds_read("ds_read_b64_tr_b16", sub(AFB(db), 2*rd, 2), V(ADDRW + ds), offset=off + rd*4096 + 8*u)
    mat, b = (db - 8) >> 2, (db - 8) & 3
    return ds_read("ds_read_b64_tr_b16", sub(AFB(db), 2*rd, 2), V(ADDRE + b), offset=off + mat*4096 + rd*2048)

def qconv(ds):
    o = []
    for qb in range(4):
        a0, a1 = ACCR(2*ds, qb), ACCR(2*ds + 1, qb)
        for r in range(4):
            o.append(valu("v_mul_f32", sub(a0, r), S(S_T), sub(a0, r))); o.append(valu("v_mul_f32", sub(a1, r), S(S_T), sub(a1, r)))
        o.append(valu("v_cvt_pk_bf16_f32", sub(a1, 3), sub(a1, 2), sub(a1, 3)))
        o.append(valu("v_cvt_pk_bf16_f32", sub(a1, 2), sub(a1, 0), sub(a1, 1)))
        o.append(valu("v_cvt_pk_bf16_f32", sub(a1, 1), sub(a0, 2), sub(a0, 3)))
        o.append(valu("v_cvt_pk_bf16_f32", sub(a1, 0), sub(a0, 0), sub(a0, 1)))
    return o

def fused_phase():
    s = []; e = s.append
    e(wait_vm(("W", 0), ("W", 1), ("W", 2))); e(barrier())
    for db in range(16):
        for rd in range(2): e(rdA2(0, db, rd))
    for t in range(16):
        s += sstamp("A", t)
        F = Fill(64)
        def addW(k, gi, sp):
            p1, d1, a1, p2, d2, a2 = dmaW2(k)
            F.add(gi - 1, p1); F.add(gi, d1[0]); F.add(gi + sp, d1[1]); F.add(gi + sp + 1, a1)
            F.add(gi + 2*sp - 1, p2); F.add(gi + 2*sp, d2[0]); F.add(gi + 3*sp, d2[1]); F.add(gi + 3*sp + 1, a2)
        if t >= 2 and t % 2 == 0:
            if t in (6, 8): s += cstamp("B")
            e(wait_vm(("W", t + 1), ("W", t + 2) if t + 2 < 16 else ("W", t + 1)))
            e(barrier())
        if t == 0:
            g = 0
            for k in (1, 2, 3):
                for x in loadB(k): F.add(g, x); g += 2
                F.add(g - 1, advB2())
            addW(4, 26, 4); addW(5, 44, 4)
        elif t == 1:
            addW(6, 6, 4); addW(7, 24, 4)
            if KVT == 1: F.add(42, buf_load(V(PFD + 2), V(114), S(76, 4), S(42), n=1, tag="PF"))
            if WTOUCH == 3:
                F.add(46, buf_load(V(PFD), V(112), S(84, 4), S(36), n=1, tag="PF"))
                F.add(50, buf_load(V(PFD + 1), V(113), S(72, 4), S(39), n=1, tag="PF"))

        elif t + 6 < 16: addW(t + 6, 6, 6)
        kv = {4: dmaK(0), 5: dmaK(1), 10: dmaK(2), 11: dmaK(3), 12: dmaV(0), 13: dmaV(1), 14: dmaV(2)}.get(t)
        if kv:
            pre, d, adv = kv
            F.add(29, pre)
            for k, x in enumerate(d): F.add(30 + 6*k, x)
            F.add(49, adv)
        if t + 1 < 16 and rbase(t + 1) != rbase(t):
            d = rbase(t + 1) - rbase(t)
            for i in range(4):
                F.add(4, valu("v_add_u32", V(ADDRW + i), d & 0xffffffff, V(ADDRW + i)))
                F.add(4, valu("v_add_u32", V(ADDRE + i), d & 0xffffffff, V(ADDRE + i)))
        if t >= 1:
            F.add(1, rdA2(t, 15, 0)); F.add(3, rdA2(t, 15, 1))
        if t + 1 < 16:
            for db in range(15):
                F.add(4*db + 5, rdA2(t + 1, db, 0)); F.add(4*db + 7, rdA2(t + 1, db, 1))
        if t == 14 and CONV2: F.add(40, salu("s_mov_b32", S(S_T), f2h(QSCALE)))
        if t == 15 and CONV2:
            q = qconv(0) + qconv(1)
            g = 10
            kgaps = {33 + 4*f if 33 + 4*f < 64 else 63 for f in range(8)}
            while q:
                for _ in range(1 if g in kgaps else 2):
                    if q: F.add(g, q.pop(0))
                g += 1
            assert g <= 64, g
            for f in range(8):
                kb, ds = f >> 2, f & 3
                F.add(33 + 4*f if 33 + 4*f < 64 else 63, ds_read("ds_read_b128", KF(f), V(ADDRK + ds), offset=kb*4096))
        if t >= 1 and t + 3 < 16:
            for qb, x in enumerate(loadB(t + 3)): F.add(52 + 4*qb - (2 if qb == 3 else 0), x)
            F.add(63, advB2())
        for db in range(16):
            if t == 6 and db in (4, 8, 12): s += cstamp("B")
            if t == 7 and db == 0: s += cstamp("B")
            for qb in range(4):
                g = 4*db + qb
                acc = ACCQ(db, qb) if db < 8 else ACCE(db - 8, qb)
                e(mfma16(acc, AFB(db), BF(t, qb), 0 if t == 0 else acc))
                s += F.emit(g)
    return s

def h_epilogue2():
    s = []; e = s.append
    for qb in range(4): e(salu("s_mov_b32", S(S_T + qb), qb*57344))
    k = 0
    for qb in range(4):
        for tp in range(2):
            t = SREG + 16*(k % 2); pk = PREG + 4*(k % 8)
            for u in range(2):
                b = 2*tp + u
                for r in range(4):
                    e(valu("v_accvgpr_read_b32", V(t + 8*u + r), sub(ACCE(b, qb), r)))
                    e(valu("v_accvgpr_read_b32", V(t + 8*u + 4 + r), sub(ACCE(4 + b, qb), r)))
            for u in range(2):
                for r in range(4): e(valu("v_max_f32", V(t + 8*u + r), 0, V(t + 8*u + r)))
            for u in range(2):
                for r in range(4): e(valu("v_mul_f32", V(t + 8*u + r), V(t + 8*u + r), V(t + 8*u + 4 + r)))
            for u in range(2):
                for hh in range(2): e(valu("v_cvt_pk_bf16_f32", V(pk + 2*u + hh), V(t + 8*u + 2*hh), V(t + 8*u + 2*hh + 1)))
            e(buf_store(V(pk, 4), V(VLANE16), S(SRD_H, 4), S(S_T + qb), offset=tp*1024, tag="H", flags="sc1"))
            for u in range(2):
                b = 2*tp + u
                for r in range(4):
                    e(valu("v_accvgpr_write_b32", sub(ACCE(b, qb), r), 0)); e(valu("v_accvgpr_write_b32", sub(ACCE(4 + b, qb), r), 0))
            k += 1
    return s


def h_unit(k):
    qb, tp = k >> 1, k & 1
    t = PREG + 16*(k % 2); pk = NEGM_T + 4*(k % 2)
    o = []
    for u in range(2):
        b = 2*tp + u
        for r in range(4):
            o.append(valu("v_accvgpr_read_b32", V(t + 8*u + r), sub(ACCE(b, qb), r)))
            o.append(valu("v_accvgpr_read_b32", V(t + 8*u + 4 + r), sub(ACCE(4 + b, qb), r)))
    for u in range(2):
        for r in range(4): o.append(valu("v_max_f32", V(t + 8*u + r), 0, V(t + 8*u + r)))
    for u in range(2):
        for r in range(4): o.append(valu("v_mul_f32", V(t + 8*u + r), V(t + 8*u + r), V(t + 8*u + 4 + r)))
    for u in range(2):
        for hh in range(2): o.append(valu("v_cvt_pk_bf16_f32", V(pk + 2*u + hh), V(t + 8*u + 2*hh), V(t + 8*u + 2*hh + 1)))
    o.append(buf_store(V(pk, 4), V(VLANE16), S(SRD_H, 4), S(S_T + qb), offset=tp*1024, tag="H", flags="sc1"))
    return o
NEGM_T = 104

def conv_phase():
    s = []; e = s.append
    for i in range(16): e(valu("v_mov_b32", V(LREG + i), 0))
    for i in range(4): e(valu("v_mov_b32", V(ONES + i), "0x3f803f80"))
    q2, q3 = qconv(2), qconv(3)
    for ds in range(4):
        for kb in range(2):
            for qb in range(4):
                e(mfma16(SR(kb, qb), KF(4*kb + ds), QF(qb, ds), 0 if ds == 0 else SR(kb, qb)))
                src = q2 if ds < 2 and q2 else (q3 if ds < 3 else [])
                n = 3 if ds < 2 else 6
                for _ in range(n):
                    if src: s.append(src.pop(0))
        if ds == 1: assert not q2
        if ds == 2:
            assert not q3
            e(nop(1))
    for qb in range(4): e(salu("s_mov_b32", S(S_T + qb), qb*57344))
    hu = [h_unit(k) for k in range(8)]
    s += hu[0] + hu[1]
    M = TMP
    mx = []
    for qb in range(4):
        mx.append(valu("v_max3_f32", V(M + qb), SR(0, qb, 0), SR(0, qb, 1), SR(0, qb, 2)))
        mx.append(valu("v_max3_f32", V(M + qb), V(M + qb), SR(0, qb, 3), SR(1, qb, 0)))
        mx.append(valu("v_max3_f32", V(M + qb), V(M + qb), SR(1, qb, 1), SR(1, qb, 2)))
        mx.append(valu("v_max_f32", V(M + qb), V(M + qb), SR(1, qb, 3)))
    s += mx
    rest = sum(hu[2:], [])
    for swp in ("v_permlane16_swap_b32", "v_permlane32_swap_b32"):
        for qb in range(4): e(valu("v_mov_b32", V(M + 4 + qb), V(M + qb)))
        s += [rest.pop(0), rest.pop(0)]
        for qb in range(4): e(valu(swp, V(M + 4 + qb), V(M + qb), dst_is_src=True, wr_extra=regs("v", M + qb)))
        s += [rest.pop(0), rest.pop(0)]
        for qb in range(4): e(valu("v_max_f32", V(M + qb), V(M + qb), V(M + 4 + qb)))
    for qb in range(4): e(valu("v_sub_f32", V(M + qb), f2h(-DOFF), V(M + qb)))
    s += rest
    for qb in range(4):
        for r in range(4): e(valu("v_mov_b32", V(NEGM + 4*qb + r), V(M + qb)))
    return s

def window_m1():
    w = window(-1, 0, last_qk=True, do_pv=False, do_kread=True, exp_tail=False)
    out = []; k = 0; nm = 0
    for x in w:
        if x.kind == "mfma": nm += 1
        if x.kind == "nop" and x.text == "s_nop 0" and nm >= 32 and k < 32:
            out.append(mfma16(A(4*k, 4), V(LREG, 4), V(LREG, 4), 0)); k += 1
        else: out.append(x)
    assert k == 32
    return out

NT_O, NT_H, NSLOT = 32, 14, 8

FA, FA2, FVW = 20, 164, 24
FAF = 112
F_SRDW, F_SRDH = 16, 20
F_SW, F_SB = 41, (36, 37, 39, 42)
F_LW = 38
HFV, HFA = 28, 29
def FACC(nb, qb): return A(128 + 16*nb + 4*qb, 4)
def FBF(i, qb): return V((192 if i % 2 == 0 else 224) + 4*qb, 4)
def FAFR(nb): return V(FAF + 4*nb, 4)
def fslot(i): return (XR, XR + 16384, 0)[i % 3]
def f_rd(i, nb, rd):
    b = fslot(i)
    if b >= XR: return ds_read("ds_read_b64_tr_b16", sub(FAFR(nb), 2*rd, 2), V(FA + nb), offset=b - XR + rd*2048)
    return ds_read("ds_read_b64_tr_b16", sub(FAFR(nb), 2*rd, 2), V(FA2 + nb), offset=b + rd*2048)
def f_ldW(i):
    pre = salu("s_add_u32", "m0", S(F_LW), fslot(i))
    d = [buf_dma(V(FVW + k), S(F_SRDW, 4), S(F_SW), offset=k*1024, tag=("FW", i)) for k in range(4)]
    return pre, d, salu("s_add_u32", S(F_SW), S(F_SW), 32768)
def f_ldB(i):
    return [(buf_load(FBF(i, qb), V(VLANE16), S(F_SRDH, 4), S(F_SB[qb]), tag=("FB", i), flags="sc1"), salu("s_add_u32", S(F_SB[qb]), S(F_SB[qb]), 1024)) for qb in range(4)]

def f_setup():
    s = []; e = s.append
    RB, CB = T2_, T3_
    e(salu("s_and_b32", S(T0_), S(S_HEAD), 7)); e(salu("s_lshr_b32", S(T1_), S(S_HEAD), 3))
    e(salu("s_lshr_b32", S(RB), S(T0_), 1)); e(salu("s_lshl_b32", S(S_T), S(S_QB), 2)); e(salu("s_add_u32", S(RB), S(RB), S(S_T)))
    e(salu("s_and_b32", S(T0_), S(T0_), 1)); e(salu("s_lshl_b32", S(T0_), S(T0_), 2)); e(salu("s_add_u32", S(CB), S(T0_), S(T1_)))
    e(salu("s_mul_i32", S(T0_), S(RB), 224)); e(salu("s_mul_i32", S(T1_), S(S_WAVE), 14)); e(salu("s_add_u32", S(T0_), S(T0_), S(T1_)))
    e(salu("s_lshl_b32", S(T0_), S(T0_), 10)); e(salu("s_add_u32", S(T0_), S(T0_), H_OFF))
    s += mksrd(F_SRDH, P_WS, T0_, 3*57344 + 14*1024)
    e(salu("s_lshl_b32", S(T1_), S(CB), 7)); e(salu("s_mul_i32", S(T0_), S(S_WAVE), 448*1024)); e(salu("s_add_u32", S(T0_), S(T0_), S(T1_)))
    e(salu("s_sub_u32", S(T1_), 1792*1024, S(T0_)))
    s += mksrd(F_SRDW, P_WD, T0_, S(T1_))
    e(salu("s_mov_b32", S(F_SW), 0))
    for qb in range(4): e(salu("s_mov_b32", S(F_SB[qb]), qb*57344))
    e(salu("s_lshl_b32", S(F_LW), S(S_WAVE), 12))
    G, RR, C, T1, T2, X = 168, 169, 170, 171, 172, 173
    e(valu("v_lshrrev_b32", V(G), 4, V(1))); e(valu("v_bfe_u32", V(RR), V(1), 2, 2)); e(valu("v_and_b32", V(C), 3, V(1)))
    e(valu("v_lshl_add_u32", V(T2), V(G), 2, V(RR))); e(valu("v_lshlrev_b32", V(T2), 7, V(T2)))
    e(valu("v_lshl_add_u32", V(T2), V(C), 3, V(T2))); e(valu("v_add_u32", V(T2), S(F_LW), V(T2)))
    e(valu("v_and_b32", V(X), 1, V(G))); e(valu("v_lshlrev_b32", V(X), 1, V(X))); e(valu("v_lshrrev_b32", V(T1), 1, V(RR))); e(valu("v_add_u32", V(X), V(X), V(T1)))
    for b in range(4):
        e(valu("v_xor_b32", V(T1), b, V(X))); e(valu("v_lshl_add_u32", V(FA2 + b), V(T1), 5, V(T2)))
        e(valu("v_add_u32", V(FA + b), XR, V(FA2 + b)))
    e(valu("v_lshrrev_b32", V(T1), 3, V(1))); e(valu("v_lshlrev_b32", V(T2), 10, V(T1)))
    e(valu("v_lshlrev_b32", V(X), 1, V(G))); e(valu("v_and_b32", V(T1), 7, V(1))); e(valu("v_xor_b32", V(T1), V(T1), V(X)))
    e(valu("v_lshl_add_u32", V(FVW), V(T1), 4, V(T2)))
    for i in range(1, 4): e(valu("v_add_u32", V(FVW + i), i*7168, V(FVW)))
    e(valu("v_and_b32", V(HFA), 31, V(1))); e(valu("v_lshlrev_b32", V(HFA), 2, V(HFA)))
    e(salu("s_lshl_b32", S(T0_), S(S_QB), 7)); e(salu("s_add_u32", S(T0_), S(T0_), 4096*3))
    e(valu("v_add_u32", V(HFA), S(T0_), V(HFA)))
    return s

def h_flag_load():
    return buf_load(V(HFV), V(HFA), S(SRD_SY, 4), 0, n=1, tag="HFL", flags="sc1")

def h_flag_check(name):
    s = []; e = s.append
    L = f"{name}_hc"
    e(raw(f"v_cmp_ne_u32_e64 vcc, s{S_EPOCH}, v{HFV}", "valu", rd=regs("v", HFV) + regs("s", S_EPOCH), wr=[("s", "vcc")]))
    e(raw("s_nop 4", "other"))
    e(raw(f"s_cbranch_vccz {L}_ok", "branch"))
    e(salu("s_mov_b32", S(T2_), SPIN_MAX))
    e(label(f"{L}_poll"))
    e(raw(f"buffer_load_dword v{HFV}, v{HFA}, s[{SRD_SY}:{SRD_SY+3}], 0 offen sc1", "other"))
    e(raw("s_waitcnt vmcnt(0)", "other"))
    e(raw(f"v_cmp_ne_u32_e64 vcc, s{S_EPOCH}, v{HFV}", "other")); e(raw("s_nop 4", "other"))
    e(raw(f"s_cbranch_vccz {L}_ok", "branch"))
    e(raw(f"s_sub_u32 s{T2_}, s{T2_}, 1", "other")); e(raw(f"s_cbranch_scc1 {L}_ok", "branch"))
    e(raw("s_sleep 1", "other")); e(raw(f"s_branch {L}_poll", "branch"))
    e(label(f"{L}_ok"))
    return s

def f_block(i):
    s = []; e = s.append
    s += sstamp('T', i)
    F = Fill(16)
    N = NT_H
    F.add(0, f_rd(i, 3, 0)); F.add(1, f_rd(i, 3, 1))
    if i + 1 < N:
        F.add(3, wait_vm(("FW", i + 1)))
        for nb in range(3):
            F.add(4*nb + 4, f_rd(i + 1, nb, 0)); F.add(4*nb + 5, f_rd(i + 1, nb, 1))
    if not FVMOUT:
        if i + 3 < N:
            pre, d, adv = f_ldW(i + 3)
            F.add(1, pre); F.add(2, d[0]); F.add(3, d[1]); F.add(6, d[2]); F.add(7, d[3]); F.add(8, adv)
        if i + 2 < N:
            for qb, (ld, adv) in enumerate(f_ldB(i + 2)):
                F.add(12 + qb, ld)
    for nb in range(4):
        for qb in range(4):
            g = 4*nb + qb
            e(mfma16(FACC(nb, qb), FAFR(nb), FBF(i, qb), 0 if i == 0 else FACC(nb, qb)))
            s += F.emit(g)
    if i + 2 < N and not FVMOUT:
        for qb, (ld, adv) in enumerate(f_ldB(i + 2)): e(adv)
    if i in (4, 5): s += sstamp('T', 14 + (i - 4))
    return s

def tail_F(name):
    s = []; e = s.append
    s += h_flag_check(name)
    for i in range(2):
        pre, d, adv = f_ldW(i); s += [pre, nop(0)] + d + [adv]
        for ld, adv in f_ldB(i): s += [ld, adv]
    def fvm(i, half):
        if not FVMOUT: return []
        gaps = [35, 39, 43, 47, 51, 55, 59, 63] if half == "pv" else [3, 7, 11, 15, 17, 19, 23, 27]
        x = []
        if i + 2 < NT_H:
            for qb, (ld, adv) in enumerate(f_ldB(i + 2)):
                x.append((gaps[qb], ld)); x.append((gaps[qb] + 1, adv))
        if i + 3 < NT_H:
            pre, d, adv = f_ldW(i + 3)
            x.append((gaps[4] - 1, pre))
            for k in range(4): x.append((gaps[4 + k], d[k]))
            x.append((gaps[7] + 1, adv))
        return x
    blk = 0
    pend = []
    for T in range(28, 32):
        d0, d1 = tile_dma(T, doK=False, doV=False)
        x0 = list(pend); pend = []
        if T == 28:
            pre, d, adv = dmaV(3)
            x0 += [(34, pre)] + [(35 + 4*k, x) for k, x in enumerate(d)] + [(48, adv)]
            pre, d, adv = f_ldW(2)
            x0 += [(50, pre)] + [(51 + 4*k, x) for k, x in enumerate(d)] + [(66, adv)]
            x0.append((40, wait_vm(("FW", 0))))
            for nb in range(3):
                x0 += [(41 + 8*nb, f_rd(0, nb, 0)), (41 + 8*nb, f_rd(0, nb, 1))]
        j = 2*T
        mid = None
        if T > 28:
            mid = f_block(blk); x0 += fvm(blk, "pv"); blk += 1
        s += window(j, T, dma=d0, bar=(T < 31), do_kread=(j + 2 <= 63), extra=x0, mid=mid)
        s += f_block(blk); x1 = fvm(blk, "qk"); blk += 1
        j = 2*T + 1
        mid = f_block(blk); x1 += fvm(blk, "pv"); blk += 1
        s += window(j, T, dma=d1, last_qk=(j + 1 <= 63), do_kread=(j + 2 <= 63), mid=mid, extra=x1)
        if blk < NT_H:
            s += f_block(blk); pend = fvm(blk, "qk"); blk += 1
    assert blk == NT_H, blk
    return s

def final2(name):
    ADDRA, VOFW, VOFB, VB = 2, 6, 10, 12
    ACCS, ACCF = 128, 192
    NT = NT_O + NT_H
    def part(t): return 1 if t < NT_H else 0
    def tl(t): return t if t < NT_H else t - NT_H
    def ACC(p, nb, qb): return V((ACCS if p == 0 else ACCF) + 16*nb + 4*qb, 4)
    def AF(t, nb): return V(64 + 16*(t & 1) + 4*nb, 4)
    def BFf(t, qb): return A(128 + 16*(t % NSLOT) + 4*qb, 4)
    SRD_A0, SRD_A1, SRD_W0, SRD_W1 = 8, 12, 16, 20
    SRD_O2 = 24
    S_RB, S_CB, S_LDSW, S_SA, S_SW = 32, 33, 34, 35, 36
    pre = []; e = pre.append
    e(salu("s_lshl_b32", S(T3_), S(S_QB), 4)); e(salu("s_lshl_b32", S(T2_), S(S_WAVE), 2)); e(salu("s_add_u32", S(T3_), S(T3_), S(T2_)))
    e(salu("s_lshl_b32", S(T0_), S(T3_), 7)); e(salu("s_lshl_b32", S(T1_), S(S_HEAD), 2)); e(salu("s_add_u32", S(T0_), S(T0_), S(T1_)))
    e(salu("s_lshl_b32", S(T0_), S(T0_), 10)); e(salu("s_add_u32", S(T0_), S(T0_), O_OFF))
    pre += mksrd(SRD_O, P_WS, T0_, 3*131072 + 4096)
    e(salu("s_and_b32", S(T0_), S(S_HEAD), 7)); e(salu("s_lshr_b32", S(T1_), S(S_HEAD), 3))
    e(salu("s_lshr_b32", S(T2_), S(T0_), 1)); e(salu("s_lshl_b32", S(S_RB), S(S_QB), 2)); e(salu("s_add_u32", S(S_RB), S(S_RB), S(T2_)))
    e(salu("s_and_b32", S(T0_), S(T0_), 1)); e(salu("s_lshl_b32", S(T0_), S(T0_), 2)); e(salu("s_add_u32", S(S_CB), S(T0_), S(T1_)))
    e(salu("s_lshl_b32", S(T0_), S(S_RB), 9)); e(salu("s_lshl_b32", S(T1_), S(S_WAVE), 5)); e(salu("s_add_u32", S(T0_), S(T0_), S(T1_)))
    e(salu("s_lshl_b32", S(T0_), S(T0_), 10)); e(salu("s_add_u32", S(T0_), S(T0_), O_OFF))
    pre += mksrd(SRD_A0, P_WS, T0_, 3*131072 + 32*1024)
    e(salu("s_mul_i32", S(T0_), S(S_RB), 224)); e(salu("s_mul_i32", S(T1_), S(S_WAVE), 14)); e(salu("s_add_u32", S(T0_), S(T0_), S(T1_)))
    e(salu("s_lshl_b32", S(T0_), S(T0_), 10)); e(salu("s_add_u32", S(T0_), S(T0_), H_OFF))
    pre += mksrd(SRD_A1, P_WS, T0_, 3*57344 + 14*1024)
    e(salu("s_lshl_b32", S(T0_), S(S_WAVE), 20)); e(salu("s_lshl_b32", S(T1_), S(S_CB), 7)); e(salu("s_add_u32", S(T0_), S(T0_), S(T1_)))
    e(salu("s_sub_u32", S(T2_), 4096*1024, S(T0_)))
    pre += mksrd(SRD_W0, P_WO, T0_, S(T2_))
    e(salu("s_mul_i32", S(T0_), S(S_WAVE), 448*1024)); e(salu("s_add_u32", S(T0_), S(T0_), S(T1_)))
    e(salu("s_sub_u32", S(T2_), 1792*1024, S(T0_)))
    pre += mksrd(SRD_W1, P_WD, T0_, S(T2_))
    e(salu("s_lshl_b32", S(S_LDSW), S(S_WAVE), 15))
    G, RR, C, T1, T2, X = 20, 21, 22, 23, 24, 25
    e(valu("v_lshrrev_b32", V(G), 4, V(1))); e(valu("v_bfe_u32", V(RR), V(1), 2, 2)); e(valu("v_and_b32", V(C), 3, V(1)))
    e(valu("v_lshl_add_u32", V(T2), V(G), 2, V(RR))); e(valu("v_lshlrev_b32", V(T2), 7, V(T2)))
    e(valu("v_lshl_add_u32", V(T2), V(C), 3, V(T2))); e(valu("v_add_u32", V(T2), S(S_LDSW), V(T2)))
    e(valu("v_and_b32", V(X), 1, V(G))); e(valu("v_lshlrev_b32", V(X), 1, V(X))); e(valu("v_lshrrev_b32", V(T1), 1, V(RR))); e(valu("v_add_u32", V(X), V(X), V(T1)))
    for b in range(4):
        e(valu("v_xor_b32", V(T1), b, V(X))); e(valu("v_lshl_add_u32", V(ADDRA + b), V(T1), 5, V(T2)))
    e(valu("v_lshrrev_b32", V(T1), 3, V(1))); e(valu("v_lshlrev_b32", V(T2), 10, V(T1)))
    e(valu("v_lshlrev_b32", V(X), 1, V(G))); e(valu("v_and_b32", V(T1), 7, V(1))); e(valu("v_xor_b32", V(T1), V(T1), V(X)))
    e(valu("v_lshl_add_u32", V(VOFW), V(T1), 4, V(T2)))
    for i in range(1, 4): e(valu("v_add_u32", V(VOFW + i), i*7168, V(VOFW)))
    e(valu("v_lshlrev_b32", V(VOFB), 4, V(1)))
    for qb in range(4):
        e(valu("v_add_u32", V(VB + qb), qb*131072, V(VOFB))); e(valu("v_add_u32", V(VB + 4 + qb), qb*57344, V(VOFB)))
    e(salu("s_mov_b32", S(S_SA), 0)); e(salu("s_mov_b32", S(S_SW), 0))
    D = FD
    def ldW(t):
        p = part(t); o = []
        if t == NT_H: o.append(salu("s_mov_b32", S(S_SW), 0))
        o.append(salu("s_add_u32", "m0", S(S_LDSW), (t % NSLOT)*4096))
        d = [buf_dma(V(VOFW + i), S(SRD_W0 if p == 0 else SRD_W1, 4), S(S_SW), offset=i*1024, tag=("FW", t)) for i in range(4)]
        return o, d, [salu("s_add_u32", S(S_SW), S(S_SW), 32768)]
    def ldB(t):
        p = part(t); o = []
        if t == NT_H: o.append(salu("s_mov_b32", S(S_SA), 0))
        d = [buf_load(BFf(t, qb), V(VB + 4*p + qb), S(SRD_A0 if p == 0 else SRD_A1, 4), S(S_SA), tag=("FB", t), flags="sc1") for qb in range(4)]
        return o, d, [salu("s_add_u32", S(S_SA), S(S_SA), 1024)]
    def rdA(t, nb, rd):
        return ds_read("ds_read_b64_tr_b16", sub(AF(t, nb), 2*rd, 2), V(ADDRA + nb), offset=(t % NSLOT)*4096 + rd*2048)
    def o_unit2(k):
        qb, dp = k >> 2, k & 3
        t = 32 + 8*(k % 2); pk = 48 + 4*(k % 4)
        o = []
        for u in range(2):
            for r in range(4): o.append(valu("v_accvgpr_read_b32", V(t + 4*u + r), sub(OACC(2*dp + u, qb), r)))
        for i in range(8): o.append(valu("v_mul_f32", V(t + i), V(t + i), V(RI + qb)))
        for i in range(4): o.append(valu("v_cvt_pk_bf16_f32", V(pk + i), V(t + 2*i), V(t + 2*i + 1)))
        o.append(buf_store(V(pk, 4), V(VLANE16), S(SRD_O, 4), S(S_T + qb), offset=dp*1024, tag="O", flags="sc1"))
        return o
    def wnext(t):
        if t < NT_H:
            return t + D if t + D < NT_H + D else None
        tw = t + 7 if WPRE else t + D
        return tw if tw < NT else None
    def steps(s, t0, t1, units):
        e = s.append
        for t in range(t0, t1):
            p = part(t)
            if t < 15: s += sstamp("F", t + 1)
            if NT_H <= t < NT_H + 16: s += sstamp("G", t - NT_H)
            F = Fill(16); post = []
            if t + 1 < NT:
                F.add(0, wait_vm(("FW", t + 1)))
                for nb in range(4):
                    F.add(1 + 4*nb, rdA(t + 1, nb, 0)); F.add(3 + 4*nb, rdA(t + 1, nb, 1))
            tw = wnext(t)
            if tw is not None:
                o, d, pp = ldW(tw)
                F.add(0, o)
                for k, x in enumerate(d): F.add(2 + 2*k, x)
                F.add(9, pp)
            if t + D < NT and not (t < NT_H and t + D >= NT_H):
                o, d, pp = ldB(t + D)
                if o: F.add(9, o)
                for k, x in enumerate(d): F.add(10 + 2*k if k < 3 else 15, x)
                post = pp
            u = units.get(t, [])
            for nb in range(4):
                for qb in range(4):
                    g = 4*nb + qb
                    e(mfma16(ACC(p, nb, qb), AF(t, nb), BFf(t, qb), 0 if tl(t) == 0 else ACC(p, nb, qb)))
                    s += F.emit(g)
                    n = 2 if len(u) > 1 else len(u)
                    for _ in range(n):
                        if u: s.append(u.pop(0))
            s += u
            s += post
    f = []; e = f.append
    f += sstamp("F", 0)
    for qb in range(4): e(salu("s_mov_b32", S(S_T + qb), qb*131072))
    def both(t):
        o, d, p = ldW(t); r = o + [nop(0)] + d + p
        o, d, p = ldB(t); return r + o + d + p
    for t in range(2): f += both(t)
    for k in range(16): f += o_unit2(k)
    for t in range(2, D): f += both(t)
    e(wait_vm(("FW", 0)))
    for nb in range(4):
        for rd in range(2): e(rdA(0, nb, rd))
    steps(f, 0, NT_H, {})
    if WPRE:
        for t in range(NT_H + D, NT_H + 7):
            o, d, p = ldW(t); f += o + [nop(0)] + d + p
    sp = []; e = sp.append
    for t in range(NT_H, NT_H + D):
        o, d, p = ldB(t); sp += o; sp += d; sp += p
    steps(sp, NT_H, NT, {})
    SRD_X, SRD_OUT = 8, 12
    e(sload(44, 0, 2)); e(sload(46, 72, 2))
    e(valu("v_lshlrev_b32", V(20), 4, V(1)))
    e(valu("v_add_u32", V(21), S(S_LDSW), V(20)))
    e(valu("v_and_b32", V(23), 15, V(1)))
    e(salu("s_lshl_b32", S(T0_), S(S_RB), 6)); e(salu("s_lshl_b32", S(T1_), S(S_WAVE), 4)); e(salu("s_add_u32", S(T0_), S(T0_), S(T1_)))
    e(valu("v_add_u32", V(23), S(T0_), V(23))); e(valu("v_lshlrev_b32", V(23), 10, V(23)))
    e(valu("v_lshrrev_b32", V(24), 4, V(1))); e(valu("v_lshl_add_u32", V(23), V(24), 3, V(23)))
    e(salu("s_lshl_b32", S(T1_), S(S_CB), 7)); e(valu("v_add_u32", V(23), S(T1_), V(23)))
    e(raw("s_waitcnt lgkmcnt(0)", "wait")); sp[-1].tag = (None, 0)
    sp += mksrd(SRD_X, 44, None, 2097152); sp += mksrd(SRD_OUT, 46, None, 2097152)
    XR_ = 160 - 128 + 2
    XR_ = 12
    for nb in range(4): e(buf_load(V(XR_ + 2*nb, 2), V(23), S(SRD_X, 4), 0, offset=nb*32, n=2))
    for i in list(range(16, 32)): e(ds_write("ds_write_b128", V(21), V(128 + 4*i, 4), offset=i*1024))
    e(nop(3))
    for i in list(range(16)): e(ds_write("ds_write_b128", V(21), V(128 + 4*i, 4), offset=i*1024))
    e(wait_raw(lgkm=0)); e(barrier())
    e(salu("s_lshl_b32", S(T0_), S(S_WAVE), 10))
    e(valu("v_add_u32", V(21), S(T0_), V(20))); e(valu("v_add_u32", V(22), 65536, V(21)))
    for p in (1, 0):
        for nb in range(4):
            for src in range(4):
                off = (src & 1)*32768 + (p*16 + nb*4)*1024
                e(ds_read("ds_read_b128", V(32 + ((p*4 + nb)*4 + src)*4, 4), V(21 if src < 2 else 22), offset=off))
    def red(p, nb):
        b = 32 + (p*4 + nb)*16; o = []
        for r in range(4):
            o.append(valu("v_add_f32", V(b + r), V(b + r), V(b + 4 + r))); o.append(valu("v_add_f32", V(b + 8 + r), V(b + 8 + r), V(b + 12 + r)))
        for r in range(4): o.append(valu("v_add_f32", V(b + r), V(b + r), V(b + 8 + r)))
        return o
    T = 168
    for nb in range(4):
        sp += red(1, nb)
    for nb in range(4):
        fb = 96 + nb*16; t = T + 8*nb
        e(valu("v_cvt_pk_bf16_f32", V(t), V(fb), V(fb + 1))); e(valu("v_cvt_pk_bf16_f32", V(t + 1), V(fb + 2), V(fb + 3)))
        for h in range(2):
            e(valu("v_lshlrev_b32", V(fb + 2*h), 16, V(t + h))); e(valu("v_and_b32", V(fb + 2*h + 1), "0xffff0000", V(t + h)))
        for r in range(4): e(valu("v_mul_f32", V(t + 4 + r), f2h(-1.4426950408889634), V(fb + r)))
    for nb in range(4):
        t = T + 8*nb
        for r in range(4): e(trans("v_exp_f32", V(t + 4 + r), V(t + 4 + r)))
    for nb in range(4): sp += red(0, nb)
    for nb in range(4):
        t = T + 8*nb
        for r in range(4): e(valu("v_add_f32", V(t + 4 + r), 1.0, V(t + 4 + r)))
    for nb in range(4):
        t = T + 8*nb
        for r in range(4): e(trans("v_rcp_f32", V(t + 4 + r), V(t + 4 + r)))
    for nb in range(4):
        sb, fb = 32 + nb*16, 96 + nb*16; t = T + 8*nb
        e(valu("v_cvt_pk_bf16_f32", V(t), V(sb), V(sb + 1))); e(valu("v_cvt_pk_bf16_f32", V(t + 1), V(sb + 2), V(sb + 3)))
        for h in range(2):
            e(valu("v_lshlrev_b32", V(sb + 2*h), 16, V(t + h))); e(valu("v_and_b32", V(sb + 2*h + 1), "0xffff0000", V(t + h)))
        for r in range(4): e(valu("v_mul_f32", V(sb + r), V(sb + r), V(fb + r)))
        for h in range(2):
            e(valu("v_lshlrev_b32", V(fb + 2*h), 16, V(XR_ + 2*nb + h))); e(valu("v_and_b32", V(fb + 2*h + 1), "0xffff0000", V(XR_ + 2*nb + h)))
        for r in range(4): e(valu("v_fma_f32", V(sb + r), V(sb + r), V(t + 4 + r), V(fb + r)))
        e(valu("v_cvt_pk_bf16_f32", V(t + 2), V(sb), V(sb + 1))); e(valu("v_cvt_pk_bf16_f32", V(t + 3), V(sb + 2), V(sb + 3)))
        e(buf_store(V(t + 2, 2), V(23), S(SRD_OUT, 4), 0, offset=nb*32, n=2, flags=OUTFLAGS))
    return pre, f, sp

def final3(name):
    ADDRA, VOFW, VOFB, VB = 2, 6, 10, 12
    ACCS, ACCF = 128, 192
    NT = NT_O
    NT_H = 0
    def part(t): return 0
    def tl(t): return t
    def ACC(p, nb, qb): return V((ACCS if p == 0 else ACCF) + 16*nb + 4*qb, 4)
    def AF(t, nb): return V(64 + 16*(t & 1) + 4*nb, 4)
    def BFf(t, qb): return A(16*(t % NSLOT) + 4*qb, 4)
    SRD_A0, SRD_A1, SRD_W0, SRD_W1 = 8, 12, 16, 20
    SRD_O2 = 24
    S_RB, S_CB, S_LDSW, S_SA, S_SW = 32, 33, 34, 35, 36
    pre = []; e = pre.append
    e(salu("s_lshl_b32", S(T3_), S(S_QB), 4)); e(salu("s_lshl_b32", S(T2_), S(S_WAVE), 2)); e(salu("s_add_u32", S(T3_), S(T3_), S(T2_)))
    e(salu("s_lshl_b32", S(T0_), S(T3_), 7)); e(salu("s_lshl_b32", S(T1_), S(S_HEAD), 2)); e(salu("s_add_u32", S(T0_), S(T0_), S(T1_)))
    e(salu("s_lshl_b32", S(T0_), S(T0_), 10)); e(salu("s_add_u32", S(T0_), S(T0_), O_OFF))
    pre += mksrd(SRD_O, P_WS, T0_, 3*131072 + 4096)
    e(salu("s_and_b32", S(T0_), S(S_HEAD), 7)); e(salu("s_lshr_b32", S(T1_), S(S_HEAD), 3))
    e(salu("s_lshr_b32", S(T2_), S(T0_), 1)); e(salu("s_lshl_b32", S(S_RB), S(S_QB), 2)); e(salu("s_add_u32", S(S_RB), S(S_RB), S(T2_)))
    e(salu("s_and_b32", S(T0_), S(T0_), 1)); e(salu("s_lshl_b32", S(T0_), S(T0_), 2)); e(salu("s_add_u32", S(S_CB), S(T0_), S(T1_)))
    e(salu("s_lshl_b32", S(T0_), S(S_RB), 9)); e(salu("s_lshl_b32", S(T1_), S(S_WAVE), 5)); e(salu("s_add_u32", S(T0_), S(T0_), S(T1_)))
    e(salu("s_lshl_b32", S(T0_), S(T0_), 10)); e(salu("s_add_u32", S(T0_), S(T0_), O_OFF))
    pre += mksrd(SRD_A0, P_WS, T0_, 3*131072 + 32*1024)
    e(salu("s_mul_i32", S(T0_), S(S_RB), 224)); e(salu("s_mul_i32", S(T1_), S(S_WAVE), 14)); e(salu("s_add_u32", S(T0_), S(T0_), S(T1_)))
    e(salu("s_lshl_b32", S(T0_), S(T0_), 10)); e(salu("s_add_u32", S(T0_), S(T0_), H_OFF))
    pre += mksrd(SRD_A1, P_WS, T0_, 3*57344 + 14*1024)
    e(salu("s_lshl_b32", S(T0_), S(S_WAVE), 20)); e(salu("s_lshl_b32", S(T1_), S(S_CB), 7)); e(salu("s_add_u32", S(T0_), S(T0_), S(T1_)))
    e(salu("s_sub_u32", S(T2_), 4096*1024, S(T0_)))
    pre += mksrd(SRD_W0, P_WO, T0_, S(T2_))
    e(salu("s_mul_i32", S(T0_), S(S_WAVE), 448*1024)); e(salu("s_add_u32", S(T0_), S(T0_), S(T1_)))
    e(salu("s_sub_u32", S(T2_), 1792*1024, S(T0_)))
    pre += mksrd(SRD_W1, P_WD, T0_, S(T2_))
    e(salu("s_lshl_b32", S(S_LDSW), S(S_WAVE), 15))
    G, RR, C, T1, T2, X = 20, 21, 22, 23, 24, 25
    e(valu("v_lshrrev_b32", V(G), 4, V(1))); e(valu("v_bfe_u32", V(RR), V(1), 2, 2)); e(valu("v_and_b32", V(C), 3, V(1)))
    e(valu("v_lshl_add_u32", V(T2), V(G), 2, V(RR))); e(valu("v_lshlrev_b32", V(T2), 7, V(T2)))
    e(valu("v_lshl_add_u32", V(T2), V(C), 3, V(T2))); e(valu("v_add_u32", V(T2), S(S_LDSW), V(T2)))
    e(valu("v_and_b32", V(X), 1, V(G))); e(valu("v_lshlrev_b32", V(X), 1, V(X))); e(valu("v_lshrrev_b32", V(T1), 1, V(RR))); e(valu("v_add_u32", V(X), V(X), V(T1)))
    for b in range(4):
        e(valu("v_xor_b32", V(T1), b, V(X))); e(valu("v_lshl_add_u32", V(ADDRA + b), V(T1), 5, V(T2)))
    e(valu("v_lshrrev_b32", V(T1), 3, V(1))); e(valu("v_lshlrev_b32", V(T2), 10, V(T1)))
    e(valu("v_lshlrev_b32", V(X), 1, V(G))); e(valu("v_and_b32", V(T1), 7, V(1))); e(valu("v_xor_b32", V(T1), V(T1), V(X)))
    e(valu("v_lshl_add_u32", V(VOFW), V(T1), 4, V(T2)))
    for i in range(1, 4): e(valu("v_add_u32", V(VOFW + i), i*7168, V(VOFW)))
    e(valu("v_lshlrev_b32", V(VOFB), 4, V(1)))
    for qb in range(4):
        e(valu("v_add_u32", V(VB + qb), qb*131072, V(VOFB))); e(valu("v_add_u32", V(VB + 4 + qb), qb*57344, V(VOFB)))
    e(salu("s_mov_b32", S(S_SA), 0)); e(salu("s_mov_b32", S(S_SW), 0))
    D = FD
    def ldW(t):
        p = part(t); o = []
        o.append(salu("s_add_u32", "m0", S(S_LDSW), (t % NSLOT)*4096))
        d = [buf_dma(V(VOFW + i), S(SRD_W0 if p == 0 else SRD_W1, 4), S(S_SW), offset=i*1024, tag=("FW", t)) for i in range(4)]
        return o, d, [salu("s_add_u32", S(S_SW), S(S_SW), 32768)]
    def ldB(t):
        p = part(t); o = []
        d = [buf_load(BFf(t, qb), V(VB + 4*p + qb), S(SRD_A0 if p == 0 else SRD_A1, 4), S(S_SA), tag=("FB", t), flags="sc1") for qb in range(4)]
        return o, d, [salu("s_add_u32", S(S_SA), S(S_SA), 1024)]
    def rdA(t, nb, rd):
        return ds_read("ds_read_b64_tr_b16", sub(AF(t, nb), 2*rd, 2), V(ADDRA + nb), offset=(t % NSLOT)*4096 + rd*2048)
    def o_unit2(k):
        qb, dp = k >> 2, k & 3
        t = 32 + 8*(k % 2); pk = 48 + 4*(k % 4)
        o = []
        for u in range(2):
            for r in range(4): o.append(valu("v_accvgpr_read_b32", V(t + 4*u + r), sub(OACC(2*dp + u, qb), r)))
        for i in range(8): o.append(valu("v_mul_f32", V(t + i), V(t + i), V(RI + qb)))
        for i in range(4): o.append(valu("v_cvt_pk_bf16_f32", V(pk + i), V(t + 2*i), V(t + 2*i + 1)))
        o.append(buf_store(V(pk, 4), V(VLANE16), S(SRD_O, 4), S(S_T + qb), offset=dp*1024, tag="O", flags="sc1"))
        return o
    def wnext(t):
        tw = t + 7
        return tw if tw < NT else None
    def steps(s, t0, t1, units):
        e = s.append
        for t in range(t0, t1):
            p = part(t)
            if t < 16: s += sstamp("G", t)
            F = Fill(16); post = []
            if t + 1 < NT:
                F.add(0, wait_vm(("FW", t + 1)))
                for nb in range(4):
                    F.add(1 + 4*nb, rdA(t + 1, nb, 0)); F.add(3 + 4*nb, rdA(t + 1, nb, 1))
            tw = wnext(t)
            if tw is not None:
                o, d, pp = ldW(tw)
                F.add(0, o)
                for k, x in enumerate(d): F.add(2 + 2*k, x)
                F.add(9, pp)
            if t + D < NT:
                o, d, pp = ldB(t + D)
                if o: F.add(9, o)
                for k, x in enumerate(d): F.add(10 + 2*k if k < 3 else 15, x)
                post = pp
            u = units.get(t, [])
            for nb in range(4):
                for qb in range(4):
                    g = 4*nb + qb
                    e(mfma16(ACC(p, nb, qb), AF(t, nb), BFf(t, qb), 0 if tl(t) == 0 else ACC(p, nb, qb)))
                    s += F.emit(g)
                    n = 2 if len(u) > 1 else len(u)
                    for _ in range(n):
                        if u: s.append(u.pop(0))
            s += u
            s += post
    f = []; e = f.append
    for qb in range(4): e(salu("s_mov_b32", S(S_T + qb), qb*131072))
    for t in range(2):
        o, d, p = ldW(t); f += o + [nop(0)] + d + p
    for k in range(16): f += o_unit2(k)
    for t in range(2, 7):
        o, d, p = ldW(t); f += o + [nop(0)] + d + p
    sp = []; e = sp.append
    for t in range(D):
        o, d, p = ldB(t); sp += o; sp += d; sp += p
    e(wait_vm(("FW", 0)))
    for nb in range(4):
        for rd in range(2): e(rdA(0, nb, rd))
    steps(sp, 0, NT, {})
    SRD_X, SRD_OUT = 8, 12
    e(sload(44, 0, 2)); e(sload(46, 72, 2))
    e(valu("v_lshlrev_b32", V(20), 4, V(1)))
    e(valu("v_add_u32", V(21), S(S_LDSW), V(20)))
    e(valu("v_and_b32", V(23), 15, V(1)))
    e(salu("s_lshl_b32", S(T0_), S(S_RB), 6)); e(salu("s_lshl_b32", S(T1_), S(S_WAVE), 4)); e(salu("s_add_u32", S(T0_), S(T0_), S(T1_)))
    e(valu("v_add_u32", V(23), S(T0_), V(23))); e(valu("v_lshlrev_b32", V(23), 10, V(23)))
    e(valu("v_lshrrev_b32", V(24), 4, V(1))); e(valu("v_lshl_add_u32", V(23), V(24), 3, V(23)))
    e(salu("s_lshl_b32", S(T1_), S(S_CB), 7)); e(valu("v_add_u32", V(23), S(T1_), V(23)))
    e(raw("s_waitcnt lgkmcnt(0)", "wait")); sp[-1].tag = (None, 0)
    sp += mksrd(SRD_X, 44, None, 2097152); sp += mksrd(SRD_OUT, 46, None, 2097152)
    XR_ = 160 - 128 + 2
    XR_ = 12
    for nb in range(4): e(buf_load(V(XR_ + 2*nb, 2), V(23), S(SRD_X, 4), 0, offset=nb*32, n=2))
    for i in list(range(16, 32)): e(ds_write("ds_write_b128", V(21), A(128 + 4*(i - 16), 4), offset=i*1024))
    e(nop(3))
    for i in list(range(16)): e(ds_write("ds_write_b128", V(21), V(128 + 4*i, 4), offset=i*1024))
    e(wait_raw(lgkm=0)); e(barrier())
    e(salu("s_lshl_b32", S(T0_), S(S_WAVE), 10))
    e(valu("v_add_u32", V(21), S(T0_), V(20))); e(valu("v_add_u32", V(22), 65536, V(21)))
    for p in (1, 0):
        for nb in range(4):
            for src in range(4):
                off = (src & 1)*32768 + (p*16 + nb*4)*1024
                e(ds_read("ds_read_b128", V(32 + ((p*4 + nb)*4 + src)*4, 4), V(21 if src < 2 else 22), offset=off))
    def red(p, nb):
        b = 32 + (p*4 + nb)*16; o = []
        for r in range(4):
            o.append(valu("v_add_f32", V(b + r), V(b + r), V(b + 4 + r))); o.append(valu("v_add_f32", V(b + 8 + r), V(b + 8 + r), V(b + 12 + r)))
        for r in range(4): o.append(valu("v_add_f32", V(b + r), V(b + r), V(b + 8 + r)))
        return o
    T = 168
    for nb in range(4):
        sp += red(1, nb)
    for nb in range(4):
        fb = 96 + nb*16; t = T + 8*nb
        e(valu("v_cvt_pk_bf16_f32", V(t), V(fb), V(fb + 1))); e(valu("v_cvt_pk_bf16_f32", V(t + 1), V(fb + 2), V(fb + 3)))
        for h in range(2):
            e(valu("v_lshlrev_b32", V(fb + 2*h), 16, V(t + h))); e(valu("v_and_b32", V(fb + 2*h + 1), "0xffff0000", V(t + h)))
        for r in range(4): e(valu("v_mul_f32", V(t + 4 + r), f2h(-1.4426950408889634), V(fb + r)))
    for nb in range(4):
        t = T + 8*nb
        for r in range(4): e(trans("v_exp_f32", V(t + 4 + r), V(t + 4 + r)))
    for nb in range(4): sp += red(0, nb)
    for nb in range(4):
        t = T + 8*nb
        for r in range(4): e(valu("v_add_f32", V(t + 4 + r), 1.0, V(t + 4 + r)))
    for nb in range(4):
        t = T + 8*nb
        for r in range(4): e(trans("v_rcp_f32", V(t + 4 + r), V(t + 4 + r)))
    for nb in range(4):
        sb, fb = 32 + nb*16, 96 + nb*16; t = T + 8*nb
        e(valu("v_cvt_pk_bf16_f32", V(t), V(sb), V(sb + 1))); e(valu("v_cvt_pk_bf16_f32", V(t + 1), V(sb + 2), V(sb + 3)))
        for h in range(2):
            e(valu("v_lshlrev_b32", V(sb + 2*h), 16, V(t + h))); e(valu("v_and_b32", V(sb + 2*h + 1), "0xffff0000", V(t + h)))
        for r in range(4): e(valu("v_mul_f32", V(sb + r), V(sb + r), V(fb + r)))
        for h in range(2):
            e(valu("v_lshlrev_b32", V(fb + 2*h), 16, V(XR_ + 2*nb + h))); e(valu("v_and_b32", V(fb + 2*h + 1), "0xffff0000", V(XR_ + 2*nb + h)))
        for r in range(4): e(valu("v_fma_f32", V(sb + r), V(sb + r), V(t + 4 + r), V(fb + r)))
        e(valu("v_cvt_pk_bf16_f32", V(t + 2), V(sb), V(sb + 1))); e(valu("v_cvt_pk_bf16_f32", V(t + 3), V(sb + 2), V(sb + 3)))
        e(buf_store(V(t + 2, 2), V(23), S(SRD_OUT, 4), 0, offset=nb*32, n=2, flags=OUTFLAGS))
    return pre, f, sp


def fb_check2(name):
    c = mega.fb_check(name)
    i = [k for k, x in enumerate(c) if x.kind == "barrier"][0]
    L = f"{name}_hp"
    p = []; e = p.append
    e(raw(f"s_cmp_lg_u32 s{S_WAVE}, 0", "salu", rd=regs("s", S_WAVE)))
    e(raw(f"s_cbranch_scc1 {L}_skip", "branch"))
    e(salu("s_lshl_b32", S(T0_), S(S_QB), 7)); e(salu("s_add_u32", S(T0_), S(T0_), 4096*3))
    e(raw("s_mov_b32 exec_lo, -1", "salu")); e(raw("s_mov_b32 exec_hi, 0", "salu"))
    e(raw(f"v_lshlrev_b32 v{TMP+11}, 2, v1", "other"))
    e(salu("s_mov_b32", S(T2_), SPIN_MAX))
    e(label(f"{L}_poll"))
    e(raw(f"buffer_load_dword v{TMP+12}, v{TMP+11}, s[{SRD_SY}:{SRD_SY+3}], s{T0_} offen sc1", "other"))
    e(raw("s_waitcnt vmcnt(0)", "other"))
    e(raw(f"v_cmp_ne_u32 vcc, s{S_EPOCH}, v{TMP+12}", "other")); e(raw("s_nop 4", "other"))
    e(raw(f"s_cbranch_vccz {L}_done", "branch"))
    e(raw(f"s_sub_u32 s{T2_}, s{T2_}, 1", "other")); e(raw(f"s_cbranch_scc1 {L}_done", "branch"))
    e(raw("s_sleep 1", "other")); e(raw(f"s_branch {L}_poll", "branch"))
    e(label(f"{L}_done"))
    e(raw("s_mov_b64 exec, -1", "salu"))
    e(label(f"{L}_skip"))
    return c[:i + 1] + p + c[i + 1:]

def gen_mega2(name):
    k1.SC1 = True
    k1._cs[0] = 0
    mega.FB_LDS = XR
    s = stamp(0); e = s.append
    if k1.STEPSTAMP: s += [raw('s_memtime s[96:97]', 'smem'), raw('s_waitcnt lgkmcnt(0)', 'other'), raw('s_mov_b32 s80, s96', 'salu')]
    e(raw("s_cmp_ge_u32 s2, 256", "salu", rd=regs("s", 2)))
    e(raw(f"s_cbranch_scc1 {name}_end", "branch"))
    e(sload(60, 0, 2))
    e(raw("s_getpc_b64 s[100:101]", "salu", wr=regs("s", 100, 2))); e(label(f"{name}_pc"))
    s += setup_mega2()
    s += setup_addr2()
    s += flatW2(0)
    if WTOUCH == 1: s += touches2()
    if WTOUCH in (3, 4): s += touches2(1)
    s += flatW2(1)
    s += epoch_fix()
    s += ln_compute()
    s += flatW2(2); s += flatW2(3)
    if CODEPF: s += code_touch(name, PFD + 3)
    s += setupK()
    s += setup_addr3()
    s += touch_prep()
    e(wait_vm("XN"))
    s += stamp(1)
    s += poll_barrier(name, 0)
    s += stamp(2)
    s += loadB(0) + advB2()
    s += fused_phase()
    s += stamp(3)
    s += cstamp('M')
    if CONV2:
        s += conv_phase()
        s += window_m1()
    else:
        s += qconvert()
        s += h_epilogue2()
        for i in range(16): e(valu("v_mov_b32", V(LREG + i), 0))
        for i in range(4): e(valu("v_mov_b32", V(ONES + i), "0x3f803f80"))
        s += first_max()
        s += window(-1, 0, last_qk=True, do_pv=False, do_kread=True, exp_tail=False)
    s += stamp(4)
    s += cstamp('M')
    e(salu("s_mov_b32", S(S_LOOP), 0))
    if FTAIL: s += f_setup()
    s += flag_addr_setup(2, TMP + 10, TMP + 11)
    e(salu("s_lshl_b32", S(7), S(2), 2)); e(salu("s_add_u32", S(7), S(7), S(S_WAVE))); e(salu("s_lshl_b32", S(7), S(7), 12))
    e(valu("v_and_b32", V(PFD + 3), 31, V(1))); e(valu("v_lshlrev_b32", V(PFD + 3), 7, V(PFD + 3)))
    s += [salu("s_mov_b32", S(60), S(P_WD)), salu("s_mov_b32", S(61), S(P_WD + 1)), salu("s_mov_b32", S(62), 1792*1024), salu("s_mov_b32", S(63), "0x00020000")]
    if CODEPF:
        s += [salu("s_mov_b32", S(76), S(100)), salu("s_mov_b32", S(77), S(101)), raw(f"s_mov_b32 s78, {name}_codeend-{name}_pc", "salu", wr=regs("s", 78)), salu("s_mov_b32", S(79), "0x00020000")]
        e(salu("s_lshr_b32", S(90), S(2), 3)); e(salu("s_and_b32", S(90), S(90), 15)); e(salu("s_lshl_b32", S(90), S(90), 12))
        e(valu("v_lshlrev_b32", V(PFD + 2), 6, V(1)))
    def pf_next():
        b = [[raw(f"s_cmp_eq_u32 s{S_LOOP}, 0", "salu", rd=regs("s", S_LOOP)), salu("s_cselect_b32", S(60), S(P_WO), S(60)), salu("s_cselect_b32", S(61), S(P_WO + 1), S(61))],
             [raw(f"s_cmp_lt_u32 s{S_LOOP}, 1", "salu", rd=regs("s", S_LOOP)), salu("s_cselect_b32", S(62), 4096*1024, 0)]]
        return b
    e(LoopBegin(f"{name}_loop"))
    for T in range(4):
        d0, d1 = tile_dma(T)
        x0, x1 = [], []
        if T == 0: x1.append((39, buf_load(V(PFD), V(PFD + 3), S(60, 4), S(7), n=1, tag="PF")))
        if T == 1:
            for k, b in enumerate(pf_next()): x1.append((15 + 2*k, b))
        if T == 2:
            if CODEPF: x1.append((39, buf_load(V(PFD + 1), V(PFD + 2), S(76, 4), S(90), n=1, tag="PF")))
            x0.append((39, buf_store(V(TMP + 11), V(TMP + 10), S(SRD_SY, 4), 0, n=1, tag="HF", flags="sc1")))
        if T == 3 and FTAIL: x0.append((39, h_flag_load()))
        w0 = window(2*T, T, dma=d0, bar=True, extra=x0)
        if T == 2:
            for x in w0:
                if x.kind == "waitvm": x.need = set(x.need) | {"H"}
        s += w0
        s += window(2*T + 1, T, dma=d1, extra=x1)
    e(salu("s_add_u32", S(S_LOOP), S(S_LOOP), 1))
    e(raw(f"s_cmp_lt_u32 s{S_LOOP}, 7", "salu", rd=regs("s", S_LOOP)))
    e(raw(f"s_cbranch_scc1 {name}_loop", "branch"))
    e(LoopEnd(f"{name}_loop"))
    s += cstamp('M')
    if FTAIL:
        s += tail_F(name)
    else:
        for T in range(28, 32):
            d0, d1 = tile_dma(T, doK=False, doV=(T + 3 <= 31))
            j = 2*T
            s += window(j, T, dma=d0, bar=(T < 31), do_kread=(j + 2 <= 63))
            j = 2*T + 1
            s += window(j, T, dma=d1, last_qk=(j + 1 <= 63), do_kread=(j + 2 <= 63))
    s += stamp(5)
    s += cstamp('M')
    s += (mega.fb_check(name) if FTAIL else fb_check2(name))
    s += o_rinv()[:-4]
    pre, f, sp = (final3 if FTAIL else final2)(name)
    s += pre
    s += stamp(6)
    s += cstamp('M')
    s += f
    s += cstamp('M')
    e(wait_vm("O"))
    s += stamp(7)
    s += cstamp('M')
    s += poll_barrier(name, 1)
    s += stamp(8)
    s += cstamp('M')
    s += sp
    s += cstamp('M')
    if k1.STAMPS: e(raw("s_waitcnt vmcnt(0)", "other"))
    s += stamp(9)
    s += stamp_dump(16 if k1.STEPSTAMP else 10)
    main, res = finish(s, name)
    return main + [label(f"{name}_codeend")] + fallback(name), res
```

```python
from ir import *
from k0 import srd, sload, XN_OFF, O_OFF, H_OFF, DBG_OFF

KR, VR, XR = 0, 65536, 131072
LDS_BYTES = 163840
ADDRK, ADDRV, VOFFK, VOFFV, ADDRW, VOFFW, VOFFB = 2, 6, 14, 18, 20, 24, 26
SREG, PREG, NEGM, TMP = 32, 64, 96, 112
VLANE16 = 30
PFD = 124
ACC = 128
LREG, ONES = 128, 160
def QF(qb, ds): return V(ACC + 16*(2*ds + 1) + 4*qb, 4)
def ACCR(db, qb): return V(ACC + 16*db + 4*qb, 4)
def OACC(db, qb): return A(16*db + 4*qb, 4)
def KF(f): return A(192 + 4*f, 4)
def VF(f): return A(224 + 4*f, 4)
def AF(t, db): return A(192 + 32*(t & 1) + 4*db, 4)
BRING_E = False
def BF(t, qb):
    if BRING_E:
        k = t % 6
        if k < 4: return A(128 + 16*k + 4*qb, 4)
        return V((96 if k == 4 else 2) + 4*qb, 4)
    return A(128 + 16*(t & 3) + 4*qb, 4)
def SR(kb, qb, r=None): return V(SREG + 16*kb + 4*qb, 4) if r is None else V(SREG + 16*kb + 4*qb + r)
def PR(buf, qb, i=None): return V(PREG + 16*buf + 4*qb, 4) if i is None else V(PREG + 16*buf + 4*qb + i)
S_WAVE, S_HEAD, S_QB = 3, 4, 5
SRD_K, SRD_V, SRD_W, SRD_XN, SRD_O, SRD_H = 8, 12, 16, 20, 24, 28
S_SOFFK, S_SOFFV, S_W4K, S_W2K, S_PHI, S_SOFFB, S_LOOP, S_SOFFW, S_TMPW = 32, 33, 34, 35, 36, 37, 40, 41, 43
S_T = 44
P_KV, P_WQ, P_WO, P_WG, P_WD, P_WS = 44, 48, 50, 52, 56, 58
T0_, T1_, T2_, T3_ = 60, 61, 62, 63
DOFF = 40.0
QSCALE = 1.4426950408889634 / (128 ** 0.5)
STAMPS = False
ROT = True
PREFETCH = True
QKCHAIN = True
SUMMODE = 0
SC1 = False
def sc(): return 'sc1' if SC1 else ''

def f2h(x):
    import struct
    return "0x%08x" % struct.unpack("<I", struct.pack("<f", x))[0]

def slotW(t):
    if t < 4: return XR + 8192*t
    if t < 12: return VR + 8192*(t - 4)
    return 32768 + 8192*(t - 12)

def sub(x, off, n=1):
    k, b, _ = x
    return (k, b + off, n)

class Fill:
    def __init__(self, n): self.g = [dict(S=[], M=[], V=[]) for _ in range(n)]
    def add(self, g, x):
        xs = x if isinstance(x, list) else [x]
        k = xs[0].kind
        c = "S" if k in ("salu", "waitvm", "wait") else ("M" if k in ("lds", "dma", "vmem", "store", "ldsw") else "V")
        self.g[g][c] += xs
    def emit(self, g): return self.g[g]["S"] + self.g[g]["M"] + self.g[g]["V"]

STEPSTAMP = None
def sstamp(kind, t):
    if STEPSTAMP != kind: return []
    return [raw("s_memtime s[96:97]", "smem"), raw("s_waitcnt lgkmcnt(0)", "other"), raw(f"s_mov_b32 s{64+t}, s96", "salu")]
_cs = [0]
def cstamp(mode):
    if STEPSTAMP != mode: return []
    i = _cs[0]; _cs[0] += 1
    assert i < 11
    return [raw("s_memtime s[96:97]", "smem"), raw("s_waitcnt lgkmcnt(0)", "other"), raw(f"s_mov_b32 s{64+i}, s96", "salu")]
def stamp(i):
    if not STAMPS or STEPSTAMP: return []
    return [raw("s_memtime s[96:97]", "smem"), raw("s_memrealtime s[98:99]", "smem"), raw("s_waitcnt lgkmcnt(0)", "other"),
            raw(f"s_mov_b32 s{64+i}, s96", "salu"), raw(f"s_mov_b32 s{80+i}, s98", "salu")]
def stamp_dump(n):
    if not STAMPS: return []
    s = []; e = s.append
    e(salu("s_lshl_b32", S(T0_), S(2), 2)); e(salu("s_add_u32", S(T0_), S(T0_), S(S_WAVE)))
    e(salu("s_lshl_b32", S(T0_), S(T0_), 7))
    e(salu("s_add_u32", S(T0_), S(T0_), DBG_OFF))
    e(salu("s_add_u32", S(8), S(P_WS), S(T0_))); e(salu("s_addc_u32", S(9), S(P_WS + 1), 0))
    e(salu("s_mov_b32", S(10), 128)); e(salu("s_mov_b32", S(11), "0x00020000"))
    e(valu("v_mov_b32", V(31), 0))
    for i in range(n):
        e(valu("v_mov_b32", V(30), S(64 + i))); e(buf_store(V(30), V(31), S(8, 4), 0, offset=4*i, n=1)); e(nop(1))
        e(valu("v_mov_b32", V(30), S(80 + i))); e(buf_store(V(30), V(31), S(8, 4), 0, offset=64 + 4*i, n=1)); e(nop(1))
    return s

def mksrd(base, ptr, off_s, size):
    o = []
    if off_s is None:
        o += [salu("s_mov_b32", S(base), S(ptr)), salu("s_mov_b32", S(base + 1), S(ptr + 1))]
    else:
        o += [salu("s_add_u32", S(base), S(ptr), S(off_s)), salu("s_addc_u32", S(base + 1), S(ptr + 1), 0)]
    o += [salu("s_mov_b32", S(base + 2), size), salu("s_mov_b32", S(base + 3), "0x00020000")]
    return o

G_, N_, RR_, C_, U1, U2, ROW8, ROWB, CH = 112, 113, 114, 115, 116, 117, 118, 119, 120

def setup1(name):
    s = []; e = s.append
    e(raw("s_cmp_ge_u32 s2, 256", "salu", rd=regs("s", 2)))
    e(raw(f"s_cbranch_scc1 {name}_end", "branch"))
    e(sload(P_WQ, 24, 4))
    e(sload(P_WS, 88, 2))
    e(sload(P_KV, 8, 4))
    e(sload(P_WG, 48, 4))
    e(sload(P_WD, 64, 2))
    e(valu("v_and_b32", V(1), 63, V(0)))
    e(valu("v_lshrrev_b32", V(30), 6, V(0)))
    e(salu("s_and_b32", S(S_HEAD), S(2), 31))
    e(valu("v_readfirstlane_b32", S(S_WAVE), V(30)))
    e(salu("s_lshr_b32", S(S_QB), S(2), 5))
    e(valu("v_lshrrev_b32", V(G_), 4, V(1)))
    e(valu("v_and_b32", V(N_), 15, V(1)))
    for i in range(2):
        e(valu("v_add_u32", V(U1), 4*i, V(G_)))
        e(valu("v_lshlrev_b32", V(U2), 13, V(U1)))
        e(valu("v_lshlrev_b32", V(U1), 1, V(U1)))
        e(valu("v_xor_b32", V(U1), V(U1), V(N_)))
        e(valu("v_lshl_add_u32", V(VOFFW + i), V(U1), 4, V(U2)))
        if i: e(valu("v_subrev_u32", V(VOFFW + i), 1024, V(VOFFW + i)))
    e(valu("v_lshlrev_b32", V(VLANE16), 4, V(1)))
    e(valu("v_mov_b32", V(VOFFB), V(VLANE16)))
    for qb in range(1, 4):
        e(valu("v_add_u32", V(VOFFB + qb), qb*16384, V(VLANE16)))
    e(salu("s_lshr_b32", S(T0_), S(S_HEAD), 3))
    e(salu("s_lshl_b32", S(T0_), S(T0_), 2))
    e(salu("s_lshl_b32", S(T1_), S(S_QB), 1))
    e(salu("s_add_u32", S(S_PHI), S(T0_), S(T1_)))
    e(salu("s_and_b32", S(S_PHI), S(S_PHI), 15 if ROT else 0))
    e(salu("s_lshl_b32", S(S_W4K), S(S_WAVE), 12))
    e(salu("s_lshl_b32", S(S_W2K), S(S_WAVE), 11))
    e(salu("s_lshl_b32", S(S_SOFFB), S(S_PHI), 10))
    e(salu("s_lshl_b32", S(S_SOFFW), S(S_PHI), 18))
    e(salu("s_lshl_b32", S(T0_), S(S_WAVE), 16))
    e(salu("s_add_u32", S(S_SOFFW), S(S_SOFFW), S(T0_)))
    e(salu("s_lshl_b32", S(T3_), S(S_QB), 4))
    e(salu("s_lshl_b32", S(T2_), S(S_WAVE), 2))
    e(salu("s_add_u32", S(T3_), S(T3_), S(T2_)))
    e(raw("s_waitcnt lgkmcnt(0)", "wait")); s[-1].tag = (None, 0)
    e(salu("s_lshl_b32", S(T0_), S(S_HEAD), 8))
    e(salu("s_sub_u32", S(T1_), 4194304, S(T0_)))
    s += mksrd(SRD_W, P_WQ, T0_, S(T1_))
    e(salu("s_lshl_b32", S(T0_), S(T3_), 14))
    e(salu("s_add_u32", S(T0_), S(T0_), XN_OFF)) if XN_OFF else None
    s += mksrd(SRD_XN, P_WS, T0_, 65536)
    e(salu("s_lshl_b32", S(T0_), S(S_HEAD), 19))
    s += mksrd(SRD_K, P_KV, T0_, 524288)
    s += mksrd(SRD_V, P_KV + 2, T0_, 524288)
    return s

def setup2():
    s = []; e = s.append
    e(salu("s_lshl_b32", S(T3_), S(S_QB), 4))
    e(salu("s_lshl_b32", S(T2_), S(S_WAVE), 2))
    e(salu("s_add_u32", S(T3_), S(T3_), S(T2_)))
    e(salu("s_lshl_b32", S(T0_), S(T3_), 7))
    e(salu("s_lshl_b32", S(T1_), S(S_HEAD), 2))
    e(salu("s_add_u32", S(T0_), S(T0_), S(T1_)))
    e(salu("s_lshl_b32", S(T0_), S(T0_), 10))
    e(salu("s_add_u32", S(T0_), S(T0_), O_OFF))
    s += mksrd(SRD_O, P_WS, T0_, 3*131072 + 4096)
    e(salu("s_mul_i32", S(T0_), S(T3_), 56))
    e(salu("s_lshl_b32", S(T1_), S(S_HEAD), 1))
    e(salu("s_add_u32", S(T0_), S(T0_), S(T1_)))
    e(salu("s_lshl_b32", S(T0_), S(T0_), 10))
    e(salu("s_add_u32", S(T0_), S(T0_), H_OFF))
    s += mksrd(SRD_H, P_WS, T0_, 3*57344 + 2048)
    e(valu("v_bfe_u32", V(RR_), V(1), 2, 2))
    e(valu("v_and_b32", V(C_), 3, V(1)))
    e(valu("v_and_b32", V(ROW8), 1, V(G_)))
    e(valu("v_lshl_add_u32", V(ROW8), V(ROW8), 2, V(RR_)))
    e(valu("v_lshl_add_u32", V(ROWB), V(G_), 2, V(RR_)))
    e(valu("v_lshlrev_b32", V(U2), 8, V(ROWB)))
    e(valu("v_and_b32", V(U1), 1, V(C_)))
    e(valu("v_lshl_add_u32", V(U2), V(U1), 4, V(U2)))
    e(valu("v_add_u32", V(U2), XR, V(U2)))
    e(valu("v_lshrrev_b32", V(CH), 1, V(C_)))
    for ds in range(4):
        e(valu("v_add_u32", V(U1), 2*ds, V(CH)))
        e(valu("v_xor_b32", V(U1), V(U1), V(ROW8)))
        e(valu("v_lshl_add_u32", V(ADDRW + ds), V(U1), 5, V(U2)))
    for ds in range(4):
        e(valu("v_add_u32", V(U1), 4*ds, V(G_)))
        e(valu("v_xor_b32", V(U1), V(U1), V(N_)))
        e(valu("v_lshlrev_b32", V(U1), 4, V(U1)))
        e(valu("v_lshl_add_u32", V(ADDRK + ds), V(N_), 8, V(U1)))
    e(valu("v_lshlrev_b32", V(U2), 8, V(ROWB)))
    e(valu("v_lshl_add_u32", V(U2), V(C_), 3, V(U2)))
    e(valu("v_add_u32", V(U2), VR, V(U2)))
    for db in range(8):
        e(valu("v_xor_b32", V(U1), db, V(ROW8)))
        e(valu("v_lshl_add_u32", V(ADDRV + db), V(U1), 5, V(U2)))
    for i in range(2):
        e(valu("v_add_u32", V(U1), 4*i, V(G_)))
        e(valu("v_lshlrev_b32", V(U1), 1, V(U1)))
        e(valu("v_xor_b32", V(U1), V(U1), V(N_)))
        e(valu("v_lshlrev_b32", V(U1), 4, V(U1)))
        e(valu("v_lshl_add_u32", V(VOFFV + i), V(G_), 8, V(U1)))
    return s

def setupK():
    s = []; e = s.append
    for i in range(4):
        e(valu("v_add_u32", V(U1), 4*i, V(G_)))
        e(valu("v_xor_b32", V(U1), V(U1), V(N_)))
        e(valu("v_lshlrev_b32", V(U1), 4, V(U1)))
        e(valu("v_lshl_add_u32", V(VOFFK + i), V(G_), 8, V(U1)))
    e(salu("s_mov_b32", S(S_SOFFK), S(S_W4K)))
    e(salu("s_mov_b32", S(S_SOFFV), S(S_W4K)))
    return s

def dmaK(slot):
    pre = salu("s_add_u32", "m0", S(S_W4K), KR + slot*16384)
    d = [buf_dma(V(VOFFK + i), S(SRD_K, 4), S(S_SOFFK), offset=i*1024, tag=("K", slot)) for i in range(4)]
    adv = salu("s_add_u32", S(S_SOFFK), S(S_SOFFK), 16384)
    return pre, d, adv
def dmaV(slot):
    pre = salu("s_add_u32", "m0", S(S_W4K), VR + slot*16384)
    d = [buf_dma(V(VOFFV + (i & 1)), S(SRD_V, 4), S(S_SOFFV), offset=i*1024, tag=("V", slot)) for i in range(4)]
    adv = salu("s_add_u32", S(S_SOFFV), S(S_SOFFV), 16384)
    return pre, d, adv
def dmaW(t):
    pre = salu("s_add_u32", "m0", S(S_W2K), slotW(t))
    d = [buf_dma(V(VOFFW + i), S(SRD_W, 4), S(S_SOFFW), offset=i*1024, tag=("W", t)) for i in range(2)]
    return pre, d
def loadB(t):
    return [buf_load(BF(t, qb), V(VOFFB + qb), S(SRD_XN, 4), S(S_SOFFB), tag=("B", t), flags=sc()) for qb in range(4)]
def advB():
    return [salu("s_add_u32", S(S_SOFFB), S(S_SOFFB), 1024), salu("s_and_b32", S(S_SOFFB), S(S_SOFFB), 16383)]
def advW(kind):
    if kind == "A":
        return [salu("s_add_u32", S(S_SOFFW), S(S_SOFFW), 262144), salu("s_and_b32", S(S_SOFFW), S(S_SOFFW), 16*262144 - 1)]
    ws = 32*3584
    return [salu("s_add_u32", S(S_SOFFW), S(S_SOFFW), ws), salu("s_sub_u32", S(S_TMPW), S(S_SOFFW), 16*ws),
            raw(f"s_cmp_ge_u32 s{S_SOFFW}, {16*ws}", "salu", rd=regs("s", S_SOFFW)), salu("s_cselect_b32", S(S_SOFFW), S(S_TMPW), S(S_SOFFW))]
def flatW(t, kind):
    pre, d = dmaW(t); return [pre, nop(0)] + d + advW(kind)
def flatB(t): return loadB(t) + advB()
def flatKV(p):
    pre, d, adv = p; return [pre, nop(0)] + d + [adv]

def readA_q(t, db, rd):
    ds, u = db >> 1, db & 1
    base = XR if t < 4 else (VR if t < 12 else 0)
    return ds_read("ds_read_b64_tr_b16", sub(AF(t, db), 2*rd, 2), V(ADDRW + ds), offset=slotW(t) - base + rd*4096 + 8*u)
def readA_e(t, db, rd):
    mat, b = db >> 2, db & 3
    base = XR if t < 4 else (VR if t < 12 else 0)
    return ds_read("ds_read_b64_tr_b16", sub(AF(t, db), 2*rd, 2), V(ADDRW + b), offset=slotW(t) - base + mat*4096 + rd*2048)

def gemm_phase(kind, wplan, bars, extra_fill=None, post_bar=None, first_bar=True):
    s = []; e = s.append
    rdA = readA_q if kind == "A" else readA_e
    e(wait_vm(("W", 0), ("W", 1)))
    e(barrier())
    for db in range(8):
        for rd in range(2): e(rdA(0, db, rd))
    for t in range(16):
        s += sstamp(kind, t)
        if t in bars:
            e(wait_vm(*[("W", k) for k in bars[t]])); e(barrier())
        F = Fill(32)
        gi = 0
        for p in (post_bar or {}).get(t, []):
            pre, d, adv = p
            F.add(gi, pre)
            for k, x in enumerate(d): F.add(gi + 2 + 2*k, x)
            F.add(gi + 9, adv)
            gi += 10
        if t + 1 in (4, 12):
            for i in range(4): e(valu("v_subrev_u32", V(ADDRW + i), 65536, V(ADDRW + i)))
        if t + 1 < 16:
            for db in range(8):
                F.add(4*db + 1, rdA(t + 1, db, 0)); F.add(4*db + 3, rdA(t + 1, db, 1))
        la = 5 if BRING_E else 3
        if t >= 1 and t + la < 16:
            for qb, x in enumerate(loadB(t + la)): F.add(22 + 2*qb, x)
            F.add(29, advB())
        for k in wplan.get(t, []):
            pre, d = dmaW(k)
            F.add(gi, pre); F.add(gi + 2, d[0]); F.add(gi + 4, d[1]); F.add(gi + 5, advW(kind))
            gi += 6
        assert gi <= 22
        if extra_fill:
            for g, x in extra_fill(t): F.add(g, x)
        for db in range(8):
            for qb in range(4):
                g = 4*db + qb
                e(mfma16(ACCR(db, qb), AF(t, db), BF(t, qb), 0 if t == 0 else ACCR(db, qb)))
                s += F.emit(g)
    return s

def window(j, T, last_qk=True, do_pv=True, do_kread=True, dma=None, bar=False, exp_tail=True, extra=None, mid=None):
    s = []; e = s.append
    par = j & 1
    NG = 68
    F = Fill(NG)
    pb_cur = par; pb_nxt = par ^ 1
    def ex(kb, idx):
        qb, r = idx >> 2, idx & 3
        return trans("v_exp_f32", SR(kb, qb, r), SR(kb, qb, r))
    def cv(kb, pair, pb):
        qb, h = pair >> 1, pair & 1
        return valu("v_cvt_pk_bf16_f32", PR(pb, qb, 2*kb + h), SR(kb, qb, 2*h), SR(kb, qb, 2*h + 1))
    if do_pv:
        voff = ((j >> 1) & 3)*16384 + (j & 1)*8192
        for db in range(8):
            for rd in range(2):
                F.add(4*db + 1 + 2*rd, ds_read("ds_read_b64_tr_b16", sub(VF(db), 2*rd, 2), V(ADDRV + db), offset=voff + rd*4096))
    if do_kread:
        b = j + 2
        koff = ((b >> 1) & 3)*16384 + (b & 1)*8192
        for f in range(8):
            kb, ds = f >> 2, f & 3
            F.add(33 + 4*f, ds_read("ds_read_b128", KF(f), V(ADDRK + ds), offset=koff + kb*4096))
    if exp_tail:
        for i in range(7): F.add(2*i, ex(1, 9 + i))
        for pair, g in ((4, 1), (5, 5), (6, 9), (7, 13)): F.add(g, cv(1, pair, pb_cur))
    if last_qk:
        for i in range(16): F.add(18 + 2*i, ex(0, i))
        for i in range(9): F.add(50 + 2*i, ex(1, i))
        for pair in range(8): F.add(18 + 4*pair + 3, cv(0, pair, pb_nxt))
        for pair in range(4): F.add(50 + 4*pair + 3, cv(1, pair, pb_nxt))
    def vsum(qb): return SUMMODE == 2 or (SUMMODE == 1 and qb >= 2)
    def ad(kb, idx):
        qb, r = idx >> 2, idx & 3
        return valu("v_add_f32", V(LREG + 4*qb), V(LREG + 4*qb), SR(kb, qb, r))
    if SUMMODE:
        if exp_tail:
            for i in range(7):
                if vsum((9 + i) >> 2): F.add(2*i + 1, ad(1, 9 + i))
        if last_qk:
            for i in range(16):
                if vsum(i >> 2): F.add(18 + 2*i + 1, ad(0, i))
            for i in range(9):
                if vsum(i >> 2): F.add(50 + 2*i + 1, ad(1, i))
    for g, x in (dma or []): F.add(g, x)
    for g, x in (extra or []): F.add(g, x)
    mf = []
    for kb in range(2):
        order = [(ds, qb) for qb in range(4) for ds in range(4)] if QKCHAIN else [(ds, qb) for ds in range(4) for qb in range(4)]
        for ds, qb in order:
            mf.append(mfma16(SR(kb, qb), KF(4*kb + ds), QF(qb, ds), V(NEGM + 4*qb, 4) if ds == 0 else SR(kb, qb)) if last_qk else None)
    for db in range(8):
        for qb in range(4):
            mf.append(mfma16(OACC(db, qb), VF(db), PR(pb_cur, qb), OACC(db, qb)) if do_pv else None)
        if db & 1:
            qb = db >> 1
            mf.append("SKIP" if vsum(qb) else (mfma16(V(LREG + 4*qb, 4), V(ONES, 4), PR(pb_cur, qb), V(LREG + 4*qb, 4)) if do_pv else None))
    assert len(mf) == NG
    for g in range(NG):
        if g == 32 and mid: s += mid
        if g == 32 and bar:
            e(wait_vm(("K", (T + 1) & 3), ("V", (T + 1) & 3))); e(barrier())
        if mf[g] == "SKIP": e(nop(0))
        elif mf[g] is not None: e(mf[g])
        else: e(nop(0))
        if j == -1 and g == 16: e(nop(3))
        s += F.emit(g)
    return s

def tile_dma(T, doK=True, doV=True):
    w0, w1 = [], []
    if doK:
        pre, d, adv = dmaK(T & 3)
        w0.append((34, pre))
        for k, x in enumerate(d): w0.append((35 + 8*k, x))
        w0.append((66, adv))
    if doV:
        pre, d, adv = dmaV((T + 3) & 3)
        w1.append((34, pre))
        for k, x in enumerate(d): w1.append((35 + 8*k, x))
        w1.append((66, adv))
    return w0, w1

def first_max():
    s = []; e = s.append
    e(wait_vm(("K", 0), ("K", 1))); e(barrier())
    for f in range(8):
        kb, ds = f >> 2, f & 3
        e(ds_read("ds_read_b128", KF(f), V(ADDRK + ds), offset=kb*4096))
    for kb in range(2):
        for ds in range(4):
            for qb in range(4):
                e(mfma16(SR(kb, qb), KF(4*kb + ds), QF(qb, ds), 0 if ds == 0 else SR(kb, qb)))
    e(nop(7))
    M = TMP
    for qb in range(4):
        e(valu("v_max3_f32", V(M + qb), SR(0, qb, 0), SR(0, qb, 1), SR(0, qb, 2)))
        e(valu("v_max3_f32", V(M + qb), V(M + qb), SR(0, qb, 3), SR(1, qb, 0)))
        e(valu("v_max3_f32", V(M + qb), V(M + qb), SR(1, qb, 1), SR(1, qb, 2)))
        e(valu("v_max_f32", V(M + qb), V(M + qb), SR(1, qb, 3)))
    for swp in ("v_permlane16_swap_b32", "v_permlane32_swap_b32"):
        for qb in range(4): e(valu("v_mov_b32", V(M + 4 + qb), V(M + qb)))
        e(nop(1))
        for qb in range(4): e(valu(swp, V(M + 4 + qb), V(M + qb), dst_is_src=True, wr_extra=regs("v", M + qb)))
        e(nop(1))
        for qb in range(4): e(valu("v_max_f32", V(M + qb), V(M + qb), V(M + 4 + qb)))
    for qb in range(4):
        e(valu("v_sub_f32", V(M + qb), f2h(-DOFF), V(M + qb)))
    for qb in range(4):
        for r in range(4): e(valu("v_mov_b32", V(NEGM + 4*qb + r), V(M + qb)))
    return s

def qconvert():
    s = []; e = s.append
    e(salu("s_mov_b32", S(S_T), f2h(QSCALE)))
    e(nop(7))
    for ds in range(4):
        for qb in range(4):
            a0, a1 = ACCR(2*ds, qb), ACCR(2*ds + 1, qb)
            for r in range(4):
                e(valu("v_mul_f32", sub(a0, r), S(S_T), sub(a0, r)))
                e(valu("v_mul_f32", sub(a1, r), S(S_T), sub(a1, r)))
            e(valu("v_cvt_pk_bf16_f32", sub(a1, 3), sub(a1, 2), sub(a1, 3)))
            e(valu("v_cvt_pk_bf16_f32", sub(a1, 2), sub(a1, 0), sub(a1, 1)))
            e(valu("v_cvt_pk_bf16_f32", sub(a1, 1), sub(a0, 2), sub(a0, 3)))
            e(valu("v_cvt_pk_bf16_f32", sub(a1, 0), sub(a0, 0), sub(a0, 1)))
    return s

RI = TMP
def o_rinv():
    s = []; e = s.append
    e(nop(7))
    if SUMMODE:
        qs = [qb for qb in range(4) if SUMMODE == 2 or qb >= 2]
        for swp in ("v_permlane16_swap_b32", "v_permlane32_swap_b32"):
            for qb in qs: e(valu("v_mov_b32", V(RI + 4 + qb), V(LREG + 4*qb)))
            e(nop(1))
            for qb in qs: e(valu(swp, V(RI + 4 + qb), V(LREG + 4*qb), dst_is_src=True, wr_extra=regs("v", LREG + 4*qb)))
            e(nop(1))
            for qb in qs: e(valu("v_add_f32", V(LREG + 4*qb), V(LREG + 4*qb), V(RI + 4 + qb)))
    for qb in range(4): e(trans("v_rcp_f32", V(RI + qb), V(LREG + 4*qb)))
    e(nop(0))
    for qb in range(4): e(valu("v_fma_f32", V(RI + 4 + qb), f"-v{LREG + 4*qb}", V(RI + qb), 2.0, rd_extra=regs("v", LREG + 4*qb)))
    for qb in range(4): e(valu("v_mul_f32", V(RI + qb), V(RI + qb), V(RI + 4 + qb)))
    for qb in range(4): e(salu("s_mov_b32", S(S_T + qb), qb*131072))
    return s
def o_unit(k):
    qb, dp = k >> 2, k & 3
    t = SREG + 8*(k % 4); pk = PREG + 4*(k % 8)
    o = []
    for u in range(2):
        for r in range(4): o.append(valu("v_accvgpr_read_b32", V(t + 4*u + r), sub(OACC(2*dp + u, qb), r)))
    for i in range(8): o.append(valu("v_mul_f32", V(t + i), V(t + i), V(RI + qb)))
    for i in range(4): o.append(valu("v_cvt_pk_bf16_f32", V(pk + i), V(t + 2*i), V(t + 2*i + 1)))
    o.append(buf_store(V(pk, 4), V(VLANE16), S(SRD_O, 4), S(S_T + qb), offset=dp*1024, tag="O", flags=sc()))
    return o

def setup_E():
    s = []; e = s.append
    e(raw(f"s_cmp_ge_u32 s{S_WAVE}, 2", "salu", rd=regs("s", S_WAVE)))
    e(salu("s_cselect_b32", S(T0_), S(P_WG + 2), S(P_WG)))
    e(salu("s_cselect_b32", S(T1_), S(P_WG + 3), S(P_WG + 1)))
    e(salu("s_lshl_b32", S(T2_), S(S_HEAD), 7))
    e(salu("s_add_u32", S(SRD_W), S(T0_), S(T2_)))
    e(salu("s_addc_u32", S(SRD_W + 1), S(T1_), 0))
    e(salu("s_sub_u32", S(SRD_W + 2), 512*3584, S(T2_)))
    e(salu("s_mov_b32", S(SRD_W + 3), "0x00020000"))
    e(salu("s_and_b32", S(T2_), S(S_WAVE), 1))
    e(salu("s_mul_i32", S(S_SOFFW), S(T2_), 16*3584))
    e(salu("s_mul_i32", S(T2_), S(S_PHI), 32*3584))
    e(salu("s_add_u32", S(S_SOFFW), S(S_SOFFW), S(T2_)))
    e(salu("s_lshl_b32", S(S_SOFFB), S(S_PHI), 10))
    X = ROW8
    e(valu("v_lshlrev_b32", V(U2), 7, V(ROWB)))
    e(valu("v_lshl_add_u32", V(U2), V(C_), 3, V(U2)))
    e(valu("v_add_u32", V(U2), XR, V(U2)))
    e(valu("v_and_b32", V(CH), 1, V(G_)))
    e(valu("v_lshlrev_b32", V(CH), 1, V(CH)))
    e(valu("v_lshrrev_b32", V(U1), 1, V(RR_)))
    e(valu("v_add_u32", V(CH), V(CH), V(U1)))
    for b in range(4):
        e(valu("v_xor_b32", V(U1), b, V(CH)))
        e(valu("v_lshl_add_u32", V(ADDRW + b), V(U1), 5, V(U2)))
    e(valu("v_lshrrev_b32", V(U1), 3, V(1)))
    e(salu("s_mov_b32", S(T2_), 3584))
    e(valu("v_mul_lo_u32", V(U2), V(U1), S(T2_)))
    e(valu("v_lshlrev_b32", V(CH), 1, V(G_)))
    e(valu("v_and_b32", V(U1), 7, V(1)))
    e(valu("v_xor_b32", V(U1), V(U1), V(CH)))
    e(valu("v_lshl_add_u32", V(VOFFW), V(U1), 4, V(U2)))
    e(valu("v_add_u32", V(VOFFW + 1), 8*3584 - 1024, V(VOFFW)))
    return s

def mall_prefetch():
    out = []
    pre = [salu("s_lshl_b32", S(S_T), S(2), 2), salu("s_add_u32", S(S_T), S(S_T), S(S_WAVE)), salu("s_lshl_b32", S(S_T), S(S_T), 7)]
    out.append(pre)
    out.append([valu("v_lshlrev_b32", V(PFD + 3), 17, V(1))])
    for i, (p, size) in enumerate(((P_WO, 4096*1024), (P_WD, 1792*1024), (P_WG, 512*3584), (P_WG + 2, 512*3584))):
        out.append([salu("s_mov_b32", S(60), S(p)), salu("s_mov_b32", S(61), S(p + 1)), salu("s_mov_b32", S(62), size), salu("s_mov_b32", S(63), "0x00020000")])
        out.append([buf_load(V(PFD + (i % 3)), V(PFD + 3), S(60, 4), S(S_T), n=1, tag="PF")])
    return out

def h_epilogue():
    s = []; e = s.append
    e(nop(7))
    for qb in range(4): e(salu("s_mov_b32", S(S_T + qb), qb*57344))
    k = 0
    for qb in range(4):
        for tp in range(2):
            pk = PREG + 4*(k % 8)
            for u in range(2):
                b = 2*tp + u
                for r in range(4):
                    gr, up = sub(ACCR(b, qb), r), sub(ACCR(4 + b, qb), r)
                    e(valu("v_max_f32", gr, 0, gr))
                    e(valu("v_mul_f32", gr, gr, up))
            for u in range(2):
                b = 2*tp + u
                for hh in range(2):
                    e(valu("v_cvt_pk_bf16_f32", V(pk + 2*u + hh), sub(ACCR(b, qb), 2*hh), sub(ACCR(b, qb), 2*hh + 1)))
            e(buf_store(V(pk, 4), V(VLANE16), S(SRD_H, 4), S(S_T + qb), offset=tp*1024, tag="H", flags=sc()))
            k += 1
    return s

def tail_windows():
    s = []
    for T in range(28, 32):
        d0, d1 = tile_dma(T, doK=False, doV=(T + 3 <= 31))
        x0, x1 = [], []
        if T == 28 and PREFETCH and not SC1:
            pf = mall_prefetch()
            x0.append((34, pf[0])); x0.append((35, pf[1]))
            gi = 38
            for k in range(4):
                x0.append((gi, pf[2 + 2*k])); x0.append((gi + 5, pf[3 + 2*k])); gi += 8 if k < 3 else 0
        if T == 29:
            gi = 34
            for k in range(2):
                pre, d = dmaW(k); x0.append((gi, pre)); x0.append((gi + 1, d[0])); x0.append((gi + 9, d[1])); x0.append((gi + 10, advW("E"))); gi += 16
            gi = 34
            for k in range(2, 4):
                pre, d = dmaW(k); x1.append((gi, pre)); x1.append((gi + 1, d[0])); x1.append((gi + 9, d[1])); x1.append((gi + 10, advW("E"))); gi += 16
        if T == 30:
            for k in range(2):
                for qb, x in enumerate(loadB(k)): x0.append((35 + 16*k + 4*qb if 35 + 16*k + 4*qb < 67 else 67, x))
                x0.append((50 if k == 0 else 66, advB()))
            for k in range(2, 4):
                kk = k - 2
                for qb, x in enumerate(loadB(k)): x1.append((35 + 16*kk + 4*qb, x))
                x1.append((50 if kk == 0 else 66, advB()))
        j = 2*T
        s += window(j, T, dma=d0, bar=(T < 31), do_kread=(j + 2 <= 63), extra=x0)
        j = 2*T + 1
        s += window(j, T, dma=d1, last_qk=(j + 1 <= 63), do_kread=(j + 2 <= 63), extra=x1)
    return s

def gen_k1(name, stop=None):
    s = stamp(0) + ([raw('s_memtime s[96:97]', 'smem'), raw('s_waitcnt lgkmcnt(0)', 'other'), raw('s_mov_b32 s80, s96', 'salu')] if STEPSTAMP else []) + setup1(name)
    e = s.append
    s += flatW(0, "A"); s += flatW(1, "A"); s += flatB(0); s += flatB(1)
    s += flatW(2, "A"); s += flatW(3, "A"); s += flatW(4, "A"); s += flatB(2); s += flatB(3)
    s += setupK()
    s += flatKV(dmaK(0)); s += flatKV(dmaK(1))
    s += setup2()
    zl = [valu("v_accvgpr_write_b32", A(i), 0) for i in range(128)]
    def xf(t): return [(4*k + 2 if k < 5 else 4*k, zl[8*t + k]) for k in range(8)]
    s += stamp(1)
    wplanA = {0: [5, 6], 1: [7, 8], 2: [9, 10], 3: [11, 12], 4: [13], 5: [14], 6: [15]}
    barsA = {1: range(2, 5), 4: range(5, 9), 8: range(9, 13), 12: range(13, 16)}
    s += gemm_phase("A", wplanA, barsA, extra_fill=xf, post_bar={8: [dmaV(0), dmaV(1)], 12: [dmaV(2)]})
    s += stamp(2)
    e(barrier())
    s += flatKV(dmaK(2)); s += flatKV(dmaK(3))
    s += setup_E()
    s += qconvert()
    for i in range(16): e(valu("v_mov_b32", V(LREG + i), 0))
    for i in range(4): e(valu("v_mov_b32", V(ONES + i), "0x3f803f80"))
    s += first_max()
    s += window(-1, 0, last_qk=True, do_pv=False, do_kread=True, exp_tail=False)
    s += stamp(3)
    e(salu("s_mov_b32", S(S_LOOP), 0))
    e(LoopBegin(f"{name}_loop"))
    for T in range(4):
        d0, d1 = tile_dma(T)
        s += window(2*T, T, dma=d0, bar=True)
        s += window(2*T + 1, T, dma=d1)
    e(salu("s_add_u32", S(S_LOOP), S(S_LOOP), 1))
    e(raw(f"s_cmp_lt_u32 s{S_LOOP}, 7", "salu", rd=regs("s", S_LOOP)))
    e(raw(f"s_cbranch_scc1 {name}_loop", "branch"))
    e(LoopEnd(f"{name}_loop"))
    s += stamp(4)
    s += tail_windows()
    s += stamp(5)
    s += o_rinv()
    e(raw(f"s_cmp_ge_u32 s{S_HEAD}, 28", "salu", rd=regs("s", S_HEAD)))
    e(raw(f"s_cbranch_scc1 {name}_noE", "branch"))
    e(barrier())
    for k in range(4, 16): s += flatW(k, "E")
    s += stamp(6)
    def of(t):
        u = o_unit(t)
        pos = [2, 2, 4, 4, 6, 6, 8, 8, 10, 10, 12, 12, 14, 14, 16, 16, 18, 18, 20, 20, 30]
        return list(zip(pos, u))
    s += gemm_phase("E", {}, {1: range(2, 5), 4: range(5, 9), 8: range(9, 13), 12: range(13, 16)}, extra_fill=of)
    s += stamp(7)
    s += h_epilogue()
    e(raw(f"s_branch {name}_fin", "branch"))
    e(label(f"{name}_noE"))
    for k in range(16): s += o_unit(k)
    e(label(f"{name}_fin"))
    s += stamp(8)
    if STAMPS: e(raw("s_waitcnt vmcnt(0)", "other"))
    s += stamp(9)
    s += stamp_dump(16 if STEPSTAMP else 10)
    return finish(s, name)

def finish(s, name):
    s = [x for x in s if x is not None]
    s.append(label(f"{name}_end"))
    s.append(raw("s_endpgm", "end"))
    s = insert_waits(s)
    pr = check_hazards(s, name)
    for p in pr[:40]: print("HAZARD", p)
    if pr: print("total hazards", len(pr))
    return s, dict(vgpr=512, sgpr=102, accum=256)
```

```python
from ir import *
from k0 import sload, XN_OFF, O_OFF, H_OFF, DBG_OFF
import k1
from k1 import *

SYNC_OFF = 30 << 20
S_EPOCH = 6
S_GRP = 5
SRD_SY = 92
SPIN_MAX = 400000
TOUCH = True
NT_O, NT_H, NSLOT = 32, 14, 8
FIN = dict(sc1=True, noB=False, noW=False, map=0, rot=0)

def poll_barrier(name, idx, mid=None):
    s = []; e = s.append
    L = f"{name}_gb{idx}"
    e(barrier())
    e(raw(f"s_cmp_lg_u32 s{S_WAVE}, 0", "salu", rd=regs("s", S_WAVE)))
    e(raw(f"s_cbranch_scc1 {L}_sig" if mid is not None else f"s_cbranch_scc1 {L}_skip", "branch"))
    e(salu("s_lshl_b32", S(T0_), S(S_QB), 7))
    e(salu("s_add_u32", S(T0_), S(T0_), 4096*(1 + idx)))
    e(salu("s_lshl_b32", S(T1_), S(S_HEAD), 2))
    e(salu("s_add_u32", S(T1_), S(T1_), S(T0_)))
    e(valu("v_mov_b32", V(TMP + 10), S(S_EPOCH)))
    e(valu("v_mov_b32", V(TMP + 11), 0))
    e(raw("s_mov_b64 exec, 1", "salu"))
    e(raw(f"buffer_store_dword v{TMP+10}, v{TMP+11}, s[{SRD_SY}:{SRD_SY+3}], s{T1_} offen sc1", "other"))
    if mid is not None:
        e(raw("s_mov_b64 exec, -1", "salu"))
        e(label(f"{L}_sig"))
        s += mid
        e(raw(f"s_cmp_lg_u32 s{S_WAVE}, 0", "salu", rd=regs("s", S_WAVE)))
        e(raw(f"s_cbranch_scc1 {L}_skip", "branch"))
        e(salu("s_lshl_b32", S(T0_), S(S_QB), 7))
        e(salu("s_add_u32", S(T0_), S(T0_), 4096*(1 + idx)))
        e(valu("v_mov_b32", V(TMP + 10), S(S_EPOCH)))
    e(raw("s_mov_b32 exec_lo, -1", "salu")); e(raw("s_mov_b32 exec_hi, 0", "salu"))
    e(valu("v_lshlrev_b32", V(TMP + 11), 2, V(1)))
    e(salu("s_mov_b32", S(T2_), SPIN_MAX))
    e(label(f"{L}_poll"))
    e(raw(f"buffer_load_dword v{TMP+12}, v{TMP+11}, s[{SRD_SY}:{SRD_SY+3}], s{T0_} offen sc1", "other"))
    e(raw("s_waitcnt vmcnt(0)", "other"))
    e(raw(f"v_cmp_ne_u32 vcc, s{S_EPOCH}, v{TMP+12}", "other"))
    e(raw("s_nop 4", "other"))
    e(raw(f"s_cbranch_vccz {L}_done", "branch"))
    e(raw(f"s_sub_u32 s{T2_}, s{T2_}, 1", "other"))
    e(raw(f"s_cbranch_scc1 {L}_done", "branch"))
    e(raw("s_sleep 1", "other"))
    e(raw(f"s_branch {L}_poll", "branch"))
    e(label(f"{L}_done"))
    if idx == 0:
        e(raw(f"s_cmp_lg_u32 s{S_HEAD}, 0", "salu", rd=regs("s", S_HEAD)))
        e(raw(f"s_cbranch_scc1 {L}_noep", "branch"))
        e(raw("s_mov_b64 exec, 1", "salu"))
        e(salu("s_lshl_b32", S(T0_), S(S_QB), 7))
        e(raw(f"v_mov_b32 v{TMP+11}, 0", "other"))
        e(raw(f"buffer_store_dword v{TMP+10}, v{TMP+11}, s[{SRD_SY}:{SRD_SY+3}], s{T0_} offen sc1", "other"))
        e(label(f"{L}_noep"))
    e(raw("s_mov_b64 exec, -1", "salu"))
    e(label(f"{L}_skip"))
    e(barrier())
    return s

LX = 32
def ln_loads():
    s = []; e = s.append
    e(valu("v_and_b32", V(60), 7, V(1)))
    e(valu("v_bfe_u32", V(61), V(1), 3, 2))
    e(valu("v_lshrrev_b32", V(62), 5, V(1)))
    e(salu("s_lshl_b32", S(S_T), S(S_QB), 8)); e(salu("s_lshl_b32", S(S_T + 1), S(S_HEAD), 3)); e(salu("s_add_u32", S(S_T), S(S_T), S(S_T + 1)))
    e(salu("s_lshl_b32", S(S_T), S(S_T), 10)); e(salu("s_lshl_b32", S(S_T + 1), S(S_WAVE), 8)); e(salu("s_add_u32", S(S_T), S(S_T), S(S_T + 1)))
    e(valu("v_lshlrev_b32", V(63), 10, V(60)))
    e(valu("v_lshl_add_u32", V(63), V(62), 7, V(63)))
    e(valu("v_lshl_add_u32", V(63), V(61), 3, V(63)))
    for i in range(2):
        for rd in range(2):
            e(buf_load(V(LX + 4*i + 2*rd, 2), V(63), S(60, 4), S(S_T), offset=i*64 + rd*32, n=2))
    return s

def ln_compute():
    s = []; e = s.append
    X = 40
    for p in range(8):
        e(valu("v_lshlrev_b32", V(X + 2*p), 16, V(LX + p)))
        e(valu("v_and_b32", V(X + 2*p + 1), "0xffff0000", V(LX + p)))
    def red(r, t, slot):
        o = []
        o.append(nop(1))
        o.append(valu("v_add_f32_dpp", V(r), V(r), V(r), extra="row_ror:8 row_mask:0xf bank_mask:0xf"))
        for swp in ("v_permlane16_swap_b32", "v_permlane32_swap_b32"):
            o.append(valu("v_mov_b32", V(t), V(r))); o.append(nop(1))
            o.append(valu(swp, V(t), V(r), dst_is_src=True, wr_extra=regs("v", r))); o.append(nop(1))
            o.append(valu("v_add_f32", V(r), V(r), V(t)))
        o.append(ds_write("ds_write_b32", V(58), V(r), offset=slot*128))
        o.append(wait_raw(lgkm=0)); o.append(barrier())
        for w in range(4): o.append(ds_read("ds_read_b32", V(t + w), V(59), offset=slot*128 + w*32))
        o.append(valu("v_add_f32", V(t), V(t), V(t + 1)))
        o.append(valu("v_add_f32", V(t + 2), V(t + 2), V(t + 3)))
        o.append(valu("v_add_f32", V(r), V(t), V(t + 2)))
        return o
    e(valu("v_lshlrev_b32", V(59), 2, V(60)))
    e(salu("s_lshl_b32", S(S_T + 1), S(S_WAVE), 5))
    e(valu("v_add_u32", V(58), S(S_T + 1), V(59)))
    e(valu("v_add_f32", V(56), V(X), V(X + 1)))
    e(valu("v_add_f32", V(57), V(X + 2), V(X + 3)))
    for k in range(4, 16, 2):
        e(valu("v_add_f32", V(56), V(56), V(X + k))); e(valu("v_add_f32", V(57), V(57), V(X + k + 1)))
    e(valu("v_add_f32", V(56), V(56), V(57)))
    s += red(56, 64, 0)
    e(valu("v_mul_f32", V(56), "0x3b000000", V(56)))
    e(valu("v_sub_f32", V(68), V(X), V(56))); e(valu("v_sub_f32", V(69), V(X + 1), V(56)))
    e(valu("v_mul_f32", V(70), V(68), V(68))); e(valu("v_mul_f32", V(71), V(69), V(69)))
    for k in range(2, 16, 2):
        e(valu("v_sub_f32", V(68), V(X + k), V(56))); e(valu("v_sub_f32", V(69), V(X + k + 1), V(56)))
        e(valu("v_fmac_f32", V(70), V(68), V(68), dst_is_src=True)); e(valu("v_fmac_f32", V(71), V(69), V(69), dst_is_src=True))
    e(valu("v_add_f32", V(70), V(70), V(71)))
    s += red(70, 64, 1)
    e(valu("v_mul_f32", V(70), "0x3b000000", V(70)))
    def rbf(dst, src): return [valu("v_cvt_pk_bf16_f32", V(dst), V(src), V(src)), valu("v_lshlrev_b32", V(dst), 16, V(dst))]
    s += rbf(56, 56); s += rbf(70, 70)
    e(valu("v_add_f32", V(70), "0x3727c5ac", V(70)))
    s += rbf(70, 70)
    e(trans("v_sqrt_f32", V(70), V(70))); e(nop(0))
    s += rbf(70, 70)
    e(trans("v_rcp_f32", V(71), V(70))); e(nop(0))
    e(valu("v_fma_f32", V(69), "-v70", V(71), 2.0, rd_extra=regs("v", 70)))
    e(valu("v_mul_f32", V(71), V(71), V(69)))
    for k in range(16): e(valu("v_sub_f32", V(X + k), V(X + k), V(56)))
    for p in range(8): e(valu("v_cvt_pk_bf16_f32", V(LX + p), V(X + 2*p), V(X + 2*p + 1)))
    for p in range(8):
        e(valu("v_lshlrev_b32", V(X + 2*p), 16, V(LX + p))); e(valu("v_and_b32", V(X + 2*p + 1), "0xffff0000", V(LX + p)))
    for k in range(16): e(valu("v_mul_f32", V(X + k), V(X + k), V(71)))
    for p in range(8): e(valu("v_cvt_pk_bf16_f32", V(LX + p), V(X + 2*p), V(X + 2*p + 1)))
    e(salu("s_lshl_b32", S(S_T), S(S_QB), 4)); e(salu("s_lshr_b32", S(S_T + 1), S(S_HEAD), 1)); e(salu("s_add_u32", S(S_T), S(S_T), S(S_T + 1)))
    e(salu("s_lshl_b32", S(S_T), S(S_T), 14))
    e(salu("s_lshl_b32", S(S_T + 1), S(S_WAVE), 12)); e(salu("s_add_u32", S(S_T), S(S_T), S(S_T + 1)))
    e(salu("s_and_b32", S(S_T + 1), S(S_HEAD), 1)); e(salu("s_lshl_b32", S(S_T + 1), S(S_T + 1), 7)); e(salu("s_add_u32", S(S_T), S(S_T), S(S_T + 1)))
    if XN_OFF: e(salu("s_add_u32", S(S_T), S(S_T), XN_OFF))
    e(valu("v_lshlrev_b32", V(63), 4, V(60)))
    e(valu("v_lshl_add_u32", V(63), V(61), 8, V(63)))
    e(valu("v_lshl_add_u32", V(63), V(62), 11, V(63)))
    s += mksrd(60, P_WS, None, 32 << 20)
    for i in range(2):
        e(buf_store(V(LX + 4*i, 4), V(63), S(60, 4), S(S_T), offset=i*1024, tag="XN", flags="sc1"))
    return s

CODEPF = True
SRD_C = 100 - 12
SRD_C = 72
def code_srd(name):
    return [raw("s_getpc_b64 s[100:101]", "salu", wr=regs("s", 100, 2))]
def code_touch(name, dest, srd=60):
    s = []; e = s.append
    e(salu("s_mov_b32", S(srd), S(100))); e(salu("s_mov_b32", S(srd + 1), S(101)))
    e(raw(f"s_mov_b32 s{srd+2}, {name}_codeend-{name}_pc", "salu", wr=regs("s", srd + 2))); e(salu("s_mov_b32", S(srd + 3), "0x00020000"))
    e(salu("s_lshr_b32", S(S_T + 2), S(2), 3)); e(salu("s_and_b32", S(S_T + 2), S(S_T + 2), 15)); e(salu("s_lshl_b32", S(S_T + 2), S(S_T + 2), 12))
    e(valu("v_lshlrev_b32", V(U1), 6, V(1)))
    e(buf_load(V(dest), V(U1), S(srd, 4), S(S_T + 2), n=1, tag="PF"))
    return s

def touches():
    s = []; e = s.append
    if not TOUCH: return s
    e(valu("v_lshrrev_b32", V(U1), 3, V(1)))
    e(valu("v_lshlrev_b32", V(U1), 18, V(U1)))
    e(valu("v_bfe_u32", V(U2), V(1), 1, 2))
    e(valu("v_lshl_add_u32", V(U1), V(U2), 13, V(U1)))
    e(valu("v_and_b32", V(U2), 1, V(1)))
    e(valu("v_lshl_add_u32", V(U1), V(U2), 7, V(U1)))
    e(salu("s_lshl_b32", S(S_T + 1), S(S_QB), 15))
    e(raw(f"s_cmp_eq_u32 s{S_WAVE}, 2", "salu", rd=regs("s", S_WAVE)))
    e(salu("s_cselect_b32", S(S_T), 8*262144, 0))
    e(salu("s_add_u32", S(S_T), S(S_T), S(S_T + 1)))
    for i in range(4): e(salu("s_mov_b32", S(60 + i), S(SRD_W + i)))
    e(salu("s_mov_b32", S(63), "0x00020000"))
    e(salu("s_sub_u32", S(S_T + 2), S(S_WAVE), 1))
    e(raw(f"s_cmp_lt_u32 s{S_T+2}, 2", "salu", rd=regs("s", S_T + 2)))
    e(salu("s_cselect_b32", S(62), S(62), 0))
    e(buf_load(V(PFD), V(U1), S(60, 4), S(S_T), n=1, tag="PF"))
    e(valu("v_and_b32", V(U2), 31, V(1)))
    e(valu("v_lshlrev_b32", V(U2), 7, V(U2)))
    e(salu("s_lshl_b32", S(S_T), S(S_QB), 12))
    for srdb in (SRD_K, SRD_V):
        for i in range(3): e(salu("s_mov_b32", S(60 + i), S(srdb + i)))
        e(raw(f"s_cmp_eq_u32 s{S_WAVE}, 3", "salu", rd=regs("s", S_WAVE)))
        e(salu("s_cselect_b32", S(62), S(62), 0))
        e(buf_load(V(PFD + 1 + (srdb == SRD_V)), V(U2), S(60, 4), S(S_T), n=1, tag="PF"))
    return s


FB_THRESH = 4096.0
FB_LDS = 0
FORCE_FB = False
def fb_check(name):
    s = []; e = s.append
    e(nop(7))
    e(salu("s_mov_b32", S(S_T), f2h(-1.0 if FORCE_FB else FB_THRESH)))
    e(salu("s_mov_b64", S(S_T + 2, 2), 0))
    for qb in range(4):
        e(raw(f"v_cmp_nle_f32 vcc, v{LREG + 4*qb}, s{S_T}", "valu", rd=regs("v", LREG + 4*qb) + regs("s", S_T), wr=[("s", "vcc")]))
        s[-1].text = f"v_cmp_nle_f32_e64 vcc, v{LREG + 4*qb}, s{S_T}"
        e(nop(4))
        e(raw(f"s_or_b64 s[{S_T+2}:{S_T+3}], s[{S_T+2}:{S_T+3}], vcc", "salu"))
    e(raw(f"s_or_b32 s{S_T+2}, s{S_T+2}, s{S_T+3}", "salu"))
    e(raw(f"s_cmp_lg_u32 s{S_T+2}, 0", "salu"))
    e(salu("s_cselect_b32", S(S_T + 2), 1, 0))
    e(valu("v_mov_b32", V(TMP + 8), S(S_T + 2)))
    e(salu("s_lshl_b32", S(S_T + 3), S(S_WAVE), 2))
    if FB_LDS: e(salu("s_add_u32", S(S_T + 3), S(S_T + 3), FB_LDS))
    e(valu("v_mov_b32", V(TMP + 9), S(S_T + 3)))
    e(barrier())
    e(ds_write("ds_write_b32", V(TMP + 9), V(TMP + 8), offset=0))
    e(wait_raw(lgkm=0)); e(barrier())
    e(valu("v_mov_b32", V(TMP + 9), FB_LDS))
    e(ds_read("ds_read_b128", V(TMP + 4, 4), V(TMP + 9), offset=0))
    e(valu("v_or_b32", V(TMP + 4), V(TMP + 4), V(TMP + 5)))
    e(valu("v_or_b32", V(TMP + 6), V(TMP + 6), V(TMP + 7)))
    e(valu("v_or_b32", V(TMP + 4), V(TMP + 4), V(TMP + 6)))
    e(nop(0))
    e(valu("v_readfirstlane_b32", S(S_T + 2), V(TMP + 4)))
    e(nop(3))
    e(raw(f"s_cmp_lg_u32 s{S_T+2}, 0", "salu"))
    e(raw(f"s_cbranch_scc1 {name}_fb", "branch"))
    e(label(f"{name}_fbret"))
    return s

def fallback(name):
    s = []; e = s.append
    M, MN, AL = TMP, TMP + 4, TMP + 8
    e(label(f"{name}_fb"))
    e(wait_raw(vm=0, lgkm=0)); e(barrier())
    for i in range(128): e(valu("v_accvgpr_write_b32", A(i), 0))
    for i in range(16): e(valu("v_mov_b32", V(LREG + i), 0))
    for qb in range(4): e(valu("v_mov_b32", V(M + qb), "0xff800000"))
    e(salu("s_mov_b32", S(S_SOFFK), S(S_W4K))); e(salu("s_mov_b32", S(S_SOFFV), S(S_W4K)))
    e(salu("s_mov_b32", S(S_LOOP), 0))
    e(label(f"{name}_fbloop"))
    s += flatKV(dmaK(0)); s += flatKV(dmaV(0))
    e(wait_raw(vm=0)); e(barrier())
    for half in range(2):
        for f in range(8):
            kb, ds = f >> 2, f & 3
            e(ds_read("ds_read_b128", KF(f), V(ADDRK + ds), offset=half*8192 + kb*4096))
        for db in range(8):
            for rd in range(2):
                e(ds_read("ds_read_b64_tr_b16", sub(VF(db), 2*rd, 2), V(ADDRV + db), offset=half*8192 + rd*4096))
        e(wait_raw(lgkm=0))
        for kb in range(2):
            for ds in range(4):
                for qb in range(4):
                    e(mfma16(SR(kb, qb), KF(4*kb + ds), QF(qb, ds), 0 if ds == 0 else SR(kb, qb)))
        e(nop(7))
        for qb in range(4):
            e(valu("v_max3_f32", V(MN + qb), SR(0, qb, 0), SR(0, qb, 1), SR(0, qb, 2)))
            e(valu("v_max3_f32", V(MN + qb), V(MN + qb), SR(0, qb, 3), SR(1, qb, 0)))
            e(valu("v_max3_f32", V(MN + qb), V(MN + qb), SR(1, qb, 1), SR(1, qb, 2)))
            e(valu("v_max3_f32", V(MN + qb), V(MN + qb), SR(1, qb, 3), V(M + qb)))
        for swp in ("v_permlane16_swap_b32", "v_permlane32_swap_b32"):
            for qb in range(4): e(valu("v_mov_b32", V(AL + qb), V(MN + qb)))
            e(nop(1))
            for qb in range(4): e(valu(swp, V(AL + qb), V(MN + qb), dst_is_src=True, wr_extra=regs("v", MN + qb)))
            e(nop(1))
            for qb in range(4): e(valu("v_max_f32", V(MN + qb), V(MN + qb), V(AL + qb)))
        for qb in range(4): e(valu("v_sub_f32", V(AL + qb), V(M + qb), V(MN + qb)))
        for qb in range(4): e(trans("v_exp_f32", V(AL + qb), V(AL + qb)))
        for qb in range(4): e(valu("v_mov_b32", V(M + qb), V(MN + qb)))
        for kb in range(2):
            for qb in range(4):
                for r in range(4): e(valu("v_sub_f32", SR(kb, qb, r), SR(kb, qb, r), V(M + qb)))
        for kb in range(2):
            for qb in range(4):
                for r in range(4): e(trans("v_exp_f32", SR(kb, qb, r), SR(kb, qb, r)))
        e(nop(0))
        for kb in range(2):
            for qb in range(4):
                for h in range(2): e(valu("v_cvt_pk_bf16_f32", PR(0, qb, 2*kb + h), SR(kb, qb, 2*h), SR(kb, qb, 2*h + 1)))
        for db in range(8):
            for qb in range(4):
                for r in range(4): e(valu("v_accvgpr_read_b32", V(SREG + 4*qb + r), sub(OACC(db, qb), r)))
            for qb in range(4):
                for r in range(4): e(valu("v_mul_f32", V(SREG + 4*qb + r), V(SREG + 4*qb + r), V(AL + qb)))
            for qb in range(4):
                for r in range(4): e(valu("v_accvgpr_write_b32", sub(OACC(db, qb), r), V(SREG + 4*qb + r)))
        for qb in range(4):
            for r in range(4): e(valu("v_mul_f32", V(LREG + 4*qb + r), V(LREG + 4*qb + r), V(AL + qb)))
        e(nop(1))
        for db in range(8):
            for qb in range(4): e(mfma16(OACC(db, qb), VF(db), PR(0, qb), OACC(db, qb)))
        for qb in range(4): e(mfma16(V(LREG + 4*qb, 4), V(ONES, 4), PR(0, qb), V(LREG + 4*qb, 4)))
        e(nop(7))
    e(barrier())
    e(raw(f"s_add_u32 s{S_LOOP}, s{S_LOOP}, 1", "salu")); e(raw(f"s_cmp_lt_u32 s{S_LOOP}, 32", "salu"))
    e(raw(f"s_cbranch_scc1 {name}_fbloop", "branch"))
    e(raw("s_mov_b32 s7, 1", "salu"))
    e(raw(f"s_branch {name}_fbret", "branch"))
    s = insert_waits(s)
    for p in check_hazards(s, name + "_fb")[:20]: print("HAZARD", p)
    return s

def final_phase(name):
    s = []; e = s.append
    ADDRA, VOFW, VOFB, VB = 2, 6, 10, 12
    ACCS, ACCF = 128, 192
    def ACC(part, nb, qb): return V((ACCS if part == 0 else ACCF) + 16*nb + 4*qb, 4)
    def AF(t, nb): return A(16*(t & 1) + 4*nb, 4)
    def BF(t, qb): return A(128 + 16*(t % NSLOT) + 4*qb, 4)
    SRD_A0, SRD_A1, SRD_W0, SRD_W1, SRD_X, SRD_OUT = 8, 12, 16, 20, 24, 28
    S_RB, S_CB, S_LDSW, S_SA, S_SW = 32, 33, 34, 35, 36
    pre = []; e = pre.append
    e(sload(44, 0, 2)); e(sload(46, 72, 2))
    if FIN["map"] == 0:
        e(salu("s_and_b32", S(T0_), S(S_HEAD), 7)); e(salu("s_lshr_b32", S(T1_), S(S_HEAD), 3))
        e(salu("s_lshr_b32", S(T2_), S(T0_), 1)); e(salu("s_lshl_b32", S(S_RB), S(S_QB), 2)); e(salu("s_add_u32", S(S_RB), S(S_RB), S(T2_)))
        e(salu("s_and_b32", S(T0_), S(T0_), 1)); e(salu("s_lshl_b32", S(T0_), S(T0_), 2)); e(salu("s_add_u32", S(S_CB), S(T0_), S(T1_)))
    elif FIN["map"] == 1:
        e(salu("s_lshr_b32", S(T2_), S(S_HEAD), 3)); e(salu("s_lshl_b32", S(S_RB), S(S_QB), 2)); e(salu("s_add_u32", S(S_RB), S(S_RB), S(T2_)))
        e(salu("s_and_b32", S(S_CB), S(S_HEAD), 7))
    elif FIN["map"] == 2:
        e(salu("s_and_b32", S(T0_), S(S_HEAD), 7)); e(salu("s_lshr_b32", S(T1_), S(S_HEAD), 3))
        e(salu("s_and_b32", S(T2_), S(T0_), 3)); e(salu("s_lshl_b32", S(S_RB), S(S_QB), 2)); e(salu("s_add_u32", S(S_RB), S(S_RB), S(T2_)))
        e(salu("s_lshr_b32", S(T0_), S(T0_), 2)); e(salu("s_lshl_b32", S(T0_), S(T0_), 2)); e(salu("s_add_u32", S(S_CB), S(T0_), S(T1_)))
    e(salu("s_lshl_b32", S(T0_), S(S_RB), 9)); e(salu("s_lshl_b32", S(T1_), S(S_WAVE), 5)); e(salu("s_add_u32", S(T0_), S(T0_), S(T1_)))
    e(salu("s_lshl_b32", S(T0_), S(T0_), 10)); e(salu("s_add_u32", S(T0_), S(T0_), O_OFF))
    pre += mksrd(SRD_A0, P_WS, T0_, 3*131072 + 32*1024)
    e(salu("s_mul_i32", S(T0_), S(S_RB), 224)); e(salu("s_mul_i32", S(T1_), S(S_WAVE), 14)); e(salu("s_add_u32", S(T0_), S(T0_), S(T1_)))
    e(salu("s_lshl_b32", S(T0_), S(T0_), 10)); e(salu("s_add_u32", S(T0_), S(T0_), H_OFF))
    pre += mksrd(SRD_A1, P_WS, T0_, 3*57344 + 14*1024)
    e(salu("s_lshl_b32", S(T0_), S(S_WAVE), 20)); e(salu("s_lshl_b32", S(T1_), S(S_CB), 7)); e(salu("s_add_u32", S(T0_), S(T0_), S(T1_)))
    e(salu("s_sub_u32", S(T2_), 4096*1024, S(T0_)))
    pre += mksrd(SRD_W0, P_WO, T0_, S(T2_))
    e(salu("s_mul_i32", S(T0_), S(S_WAVE), 448*1024)); e(salu("s_add_u32", S(T0_), S(T0_), S(T1_)))
    e(salu("s_sub_u32", S(T2_), 1792*1024, S(T0_)))
    pre += mksrd(SRD_W1, P_WD, T0_, S(T2_))
    e(salu("s_lshl_b32", S(S_LDSW), S(S_WAVE), 15))
    G, RR, C, T1, T2, X = 20, 21, 22, 23, 24, 25
    e(valu("v_lshrrev_b32", V(G), 4, V(1))); e(valu("v_bfe_u32", V(RR), V(1), 2, 2)); e(valu("v_and_b32", V(C), 3, V(1)))
    e(valu("v_lshl_add_u32", V(T2), V(G), 2, V(RR))); e(valu("v_lshlrev_b32", V(T2), 7, V(T2)))
    e(valu("v_lshl_add_u32", V(T2), V(C), 3, V(T2))); e(valu("v_add_u32", V(T2), S(S_LDSW), V(T2)))
    e(valu("v_and_b32", V(X), 1, V(G))); e(valu("v_lshlrev_b32", V(X), 1, V(X))); e(valu("v_lshrrev_b32", V(T1), 1, V(RR))); e(valu("v_add_u32", V(X), V(X), V(T1)))
    for b in range(4):
        e(valu("v_xor_b32", V(T1), b, V(X))); e(valu("v_lshl_add_u32", V(ADDRA + b), V(T1), 5, V(T2)))
    e(valu("v_lshrrev_b32", V(T1), 3, V(1))); e(valu("v_lshlrev_b32", V(T2), 10, V(T1)))
    e(valu("v_lshlrev_b32", V(X), 1, V(G))); e(valu("v_and_b32", V(T1), 7, V(1))); e(valu("v_xor_b32", V(T1), V(T1), V(X)))
    e(valu("v_lshl_add_u32", V(VOFW), V(T1), 4, V(T2)))
    for i in range(1, 4): e(valu("v_add_u32", V(VOFW + i), i*7168, V(VOFW)))
    e(valu("v_lshlrev_b32", V(VOFB), 4, V(1)))
    for qb in range(4):
        e(valu("v_add_u32", V(VB + qb), qb*131072, V(VOFB))); e(valu("v_add_u32", V(VB + 4 + qb), qb*57344, V(VOFB)))
    e(salu("s_mov_b32", S(S_SA), 0)); e(salu("s_mov_b32", S(S_SW), 0))
    e(raw("s_waitcnt lgkmcnt(0)", "wait")); pre[-1].tag = (None, 0)
    pre += mksrd(SRD_X, 44, None, 2097152); pre += mksrd(SRD_OUT, 46, None, 2097152)
    NT = NT_O + NT_H
    D = NSLOT - 1
    def ldW(t):
        part = 0 if t < NT_O else 1
        o = []
        if t == NT_O: o.append(salu("s_mov_b32", S(S_SW), 0))
        o.append(salu("s_add_u32", "m0", S(S_LDSW), (t % NSLOT)*4096))
        d = [buf_dma(V(VOFW + i), S(SRD_W0 if part == 0 else SRD_W1, 4), S(S_SW), offset=i*1024, tag=("FW", t)) for i in range(4)]
        if FIN["noW"]: d = d[:1]
        return o, d, [salu("s_add_u32", S(S_SW), S(S_SW), 32768)]
    def ldB(t):
        part = 0 if t < NT_O else 1
        o = []
        if t == NT_O: o.append(salu("s_mov_b32", S(S_SA), 0))
        d = [buf_load(BF(t, qb), V(VB + 4*part + qb), S(SRD_A0 if part == 0 else SRD_A1, 4), S(S_SA), tag=("FB", t), flags="sc1" if FIN["sc1"] else "") for qb in range(4)]
        if FIN["noB"]: d = d[:1]
        return o, d, [salu("s_add_u32", S(S_SA), S(S_SA), 1024)]
    def rdA(t, nb, rd):
        return ds_read("ds_read_b64_tr_b16", sub(AF(t, nb), 2*rd, 2), V(ADDRA + nb), offset=(t % NSLOT)*4096 + rd*2048)
    for t in range(D):
        o, d, p = ldW(t); pre += o; pre.append(nop(0)); pre += d; pre += p
    e = s.append
    for t in range(D):
        o, d, p = ldB(t); s += o; s += d; s += p
    for nb in range(4):
        for rd in range(2):
            if nb == 0 and rd == 0: e(wait_vm(("FW", 0)))
            e(rdA(0, nb, rd))
    for t in range(NT):
        part = 0 if t < NT_O else 1
        tl = t if part == 0 else t - NT_O
        F = Fill(16)
        post = []
        if t + 1 < NT:
            F.add(0, wait_vm(("FW", t + 1)))
            for nb in range(4):
                F.add(1 + 4*nb, rdA(t + 1, nb, 0)); F.add(3 + 4*nb, rdA(t + 1, nb, 1))
        if t + D < NT:
            o, d, p = ldW(t + D)
            F.add(0, o)
            for k, x in enumerate(d): F.add(2 + 2*k, x)
            F.add(9, p)
            o, d, p = ldB(t + D)
            if o: F.add(9, o)
            for k, x in enumerate(d): F.add(10 + 2*k if k < 3 else 15, x)
            post = p
        for nb in range(4):
            for qb in range(4):
                g = 4*nb + qb
                e(mfma16(ACC(part, nb, qb), AF(t, nb), BF(t, qb), 0 if tl == 0 else ACC(part, nb, qb)))
                s += F.emit(g)
        s += post
    s += cstamp('M')
    e(nop(7)); e(barrier())
    e(valu("v_lshlrev_b32", V(20), 4, V(1)))
    e(valu("v_add_u32", V(21), S(S_LDSW), V(20)))
    for i in range(32): e(ds_write("ds_write_b128", V(21), V(128 + 4*i, 4), offset=i*1024))
    e(valu("v_and_b32", V(23), 15, V(1)))
    e(salu("s_lshl_b32", S(T0_), S(S_RB), 6)); e(salu("s_lshl_b32", S(T1_), S(S_WAVE), 4)); e(salu("s_add_u32", S(T0_), S(T0_), S(T1_)))
    e(valu("v_add_u32", V(23), S(T0_), V(23))); e(valu("v_lshlrev_b32", V(23), 10, V(23)))
    e(valu("v_lshrrev_b32", V(24), 4, V(1))); e(valu("v_lshl_add_u32", V(23), V(24), 3, V(23)))
    e(salu("s_lshl_b32", S(T1_), S(S_CB), 7)); e(valu("v_add_u32", V(23), S(T1_), V(23)))
    XR_ = 160
    for nb in range(4): e(buf_load(V(XR_ + 2*nb, 2), V(23), S(SRD_X, 4), 0, offset=nb*32, n=2))
    e(wait_raw(lgkm=0)); e(barrier())
    e(salu("s_lshl_b32", S(T0_), S(S_WAVE), 10))
    e(valu("v_add_u32", V(21), S(T0_), V(20))); e(valu("v_add_u32", V(22), 65536, V(21)))
    for part in range(2):
        for nb in range(4):
            for src in range(4):
                off = (src & 1)*32768 + (part*16 + nb*4)*1024
                e(ds_read("ds_read_b128", V(32 + ((part*4 + nb)*4 + src)*4, 4), V(21 if src < 2 else 22), offset=off))
    for part in range(2):
        for nb in range(4):
            b = 32 + (part*4 + nb)*16
            for r in range(4):
                e(valu("v_add_f32", V(b + r), V(b + r), V(b + 4 + r))); e(valu("v_add_f32", V(b + 8 + r), V(b + 8 + r), V(b + 12 + r)))
            for r in range(4): e(valu("v_add_f32", V(b + r), V(b + r), V(b + 8 + r)))
    T = 168
    for nb in range(4):
        sb, fb = 32 + nb*16, 96 + nb*16
        e(valu("v_cvt_pk_bf16_f32", V(T), V(sb), V(sb + 1))); e(valu("v_cvt_pk_bf16_f32", V(T + 1), V(sb + 2), V(sb + 3)))
        e(valu("v_cvt_pk_bf16_f32", V(T + 2), V(fb), V(fb + 1))); e(valu("v_cvt_pk_bf16_f32", V(T + 3), V(fb + 2), V(fb + 3)))
        for h in range(2):
            e(valu("v_lshlrev_b32", V(sb + 2*h), 16, V(T + h))); e(valu("v_and_b32", V(sb + 2*h + 1), "0xffff0000", V(T + h)))
            e(valu("v_lshlrev_b32", V(fb + 2*h), 16, V(T + 2 + h))); e(valu("v_and_b32", V(fb + 2*h + 1), "0xffff0000", V(T + 2 + h)))
        for r in range(4): e(valu("v_mul_f32", V(T + 4 + r), f2h(-1.4426950408889634), V(fb + r)))
        for r in range(4): e(trans("v_exp_f32", V(T + 4 + r), V(T + 4 + r)))
        e(nop(0))
        for r in range(4): e(valu("v_add_f32", V(T + 4 + r), 1.0, V(T + 4 + r)))
        for r in range(4): e(trans("v_rcp_f32", V(T + 4 + r), V(T + 4 + r)))
        e(nop(0))
        for r in range(4): e(valu("v_mul_f32", V(fb + r), V(fb + r), V(T + 4 + r)))
        e(valu("v_cvt_pk_bf16_f32", V(T + 2), V(fb), V(fb + 1))); e(valu("v_cvt_pk_bf16_f32", V(T + 3), V(fb + 2), V(fb + 3)))
        for h in range(2):
            e(valu("v_lshlrev_b32", V(fb + 2*h), 16, V(T + 2 + h))); e(valu("v_and_b32", V(fb + 2*h + 1), "0xffff0000", V(T + 2 + h)))
        for r in range(4): e(valu("v_mul_f32", V(sb + r), V(sb + r), V(fb + r)))
        e(valu("v_cvt_pk_bf16_f32", V(T), V(sb), V(sb + 1))); e(valu("v_cvt_pk_bf16_f32", V(T + 1), V(sb + 2), V(sb + 3)))
        for h in range(2):
            e(valu("v_lshlrev_b32", V(sb + 2*h), 16, V(T + h))); e(valu("v_and_b32", V(sb + 2*h + 1), "0xffff0000", V(T + h)))
            e(valu("v_lshlrev_b32", V(fb + 2*h), 16, V(XR_ + 2*nb + h))); e(valu("v_and_b32", V(fb + 2*h + 1), "0xffff0000", V(XR_ + 2*nb + h)))
        for r in range(4): e(valu("v_add_f32", V(sb + r), V(sb + r), V(fb + r)))
        e(valu("v_cvt_pk_bf16_f32", V(T + 8 + 2*nb), V(sb), V(sb + 1))); e(valu("v_cvt_pk_bf16_f32", V(T + 9 + 2*nb), V(sb + 2), V(sb + 3)))
        e(buf_store(V(T + 8 + 2*nb, 2), V(23), S(SRD_OUT, 4), 0, offset=nb*32, n=2))
    return pre, s

def gen_mega(name):
    k1.SC1 = True
    s = stamp(0); e = s.append
    if k1.STEPSTAMP: s += [raw('s_memtime s[96:97]', 'smem'), raw('s_waitcnt lgkmcnt(0)', 'other'), raw('s_mov_b32 s80, s96', 'salu')]
    e(raw("s_cmp_ge_u32 s2, 256", "salu", rd=regs("s", 2)))
    e(raw(f"s_cbranch_scc1 {name}_end", "branch"))
    e(sload(60, 0, 2))
    if CODEPF:
        e(raw("s_getpc_b64 s[100:101]", "salu", wr=regs("s", 100, 2))); e(label(f"{name}_pc"))
    st = setup1_mega()
    s += st
    s += cstamp('S')
    s += epoch_fix()
    s += cstamp('S')
    s += ln_compute()
    s += cstamp('S')
    s += touches()
    if CODEPF: s += code_touch(name, PFD + 3)
    s += setupK()
    s += setup2()
    s += cstamp('S')
    e(wait_vm("XN"))
    s += cstamp('S')
    s += stamp(1)
    s += poll_barrier(name, 0)
    s += cstamp('S')
    s += stamp(2)
    s += flatW(0, "A"); s += flatW(1, "A"); s += flatB(0); s += flatB(1)
    s += flatW(2, "A"); s += flatW(3, "A"); s += flatW(4, "A"); s += flatB(2); s += flatB(3)
    zl = [valu("v_accvgpr_write_b32", A(i), 0) for i in range(128)]
    def xf(t): return [(4*k + 2 if k < 5 else 4*k, zl[8*t + k]) for k in range(8)]
    wplanA = {0: [5, 6], 1: [7, 8], 2: [9, 10], 3: [11, 12], 4: [13], 5: [14], 6: [15]}
    barsA = {1: range(2, 5), 4: range(5, 9), 8: range(9, 13), 12: range(13, 16)}
    s += gemm_phase("A", wplanA, barsA, extra_fill=xf, post_bar={4: [dmaK(0)], 5: [dmaK(1)], 8: [dmaV(0), dmaV(1)], 12: [dmaV(2)]})
    s += stamp(3)
    s += cstamp('S')
    e(barrier())
    s += flatKV(dmaK(2)); s += flatKV(dmaK(3))
    s += setup_E()
    s += qconvert()
    for i in range(16): e(valu("v_mov_b32", V(LREG + i), 0))
    for i in range(4): e(valu("v_mov_b32", V(ONES + i), "0x3f803f80"))
    s += first_max()
    s += window(-1, 0, last_qk=True, do_pv=False, do_kread=True, exp_tail=False)
    s += stamp(4)
    s += cstamp('M')
    e(salu("s_mov_b32", S(S_LOOP), 0))
    e(salu("s_lshl_b32", S(7), S(2), 2)); e(salu("s_add_u32", S(7), S(7), S(S_WAVE))); e(salu("s_lshl_b32", S(7), S(7), 12))
    e(valu("v_and_b32", V(PFD + 3), 31, V(1))); e(valu("v_lshlrev_b32", V(PFD + 3), 7, V(PFD + 3)))
    s += [salu("s_mov_b32", S(60), S(P_WO)), salu("s_mov_b32", S(61), S(P_WO + 1)), salu("s_mov_b32", S(62), 4096*1024), salu("s_mov_b32", S(63), "0x00020000")]
    if CODEPF:
        s += [salu("s_mov_b32", S(76), S(100)), salu("s_mov_b32", S(77), S(101)), raw(f"s_mov_b32 s78, {name}_codeend-{name}_pc", "salu", wr=regs("s", 78)), salu("s_mov_b32", S(79), "0x00020000")]
        e(salu("s_lshr_b32", S(90), S(2), 3)); e(salu("s_and_b32", S(90), S(90), 15)); e(salu("s_lshl_b32", S(90), S(90), 12))
        e(valu("v_lshlrev_b32", V(PFD + 2), 6, V(1)))
    def pf_next():
        b = []
        for it, p in ((0, P_WD), (1, P_WG), (2, P_WG + 2)):
            b.append([raw(f"s_cmp_eq_u32 s{S_LOOP}, {it}", "salu", rd=regs("s", S_LOOP)), salu("s_cselect_b32", S(60), S(p), S(60)), salu("s_cselect_b32", S(61), S(p + 1), S(61))])
        b.append([raw(f"s_cmp_lt_u32 s{S_LOOP}, 3", "salu", rd=regs("s", S_LOOP)), salu("s_cselect_b32", S(62), 1792*1024, 0)])
        return b
    e(LoopBegin(f"{name}_loop"))
    for T in range(4):
        d0, d1 = tile_dma(T)
        x0, x1 = [], []
        if T == 0 and k1.PREFETCH:
            x1.append((39, buf_load(V(PFD), V(PFD + 3), S(60, 4), S(7), n=1, tag="PF")))
        if T == 2 and CODEPF:
            x1.append((39, buf_load(V(PFD + 1), V(PFD + 2), S(76, 4), S(90), n=1, tag="PF")))
        if T == 1 and k1.PREFETCH:
            for k, b in enumerate(pf_next()): x1.append((13 + 2*k + 2, b))
        s += window(2*T, T, dma=d0, bar=True, extra=x0)
        s += window(2*T + 1, T, dma=d1, extra=x1)
    e(salu("s_add_u32", S(S_LOOP), S(S_LOOP), 1))
    e(raw(f"s_cmp_lt_u32 s{S_LOOP}, 7", "salu", rd=regs("s", S_LOOP)))
    e(raw(f"s_cbranch_scc1 {name}_loop", "branch"))
    e(LoopEnd(f"{name}_loop"))
    s += cstamp('M')
    s += tail_windows()
    s += cstamp('M')
    s += stamp(5)
    s += fb_check(name)
    s += cstamp('M')
    s += o_rinv()
    e(raw(f"s_cmp_ge_u32 s{S_HEAD}, 28", "salu", rd=regs("s", S_HEAD)))
    e(raw(f"s_cbranch_scc1 {name}_noE", "branch"))
    k1.BRING_E = True
    s += flatB(4); s += flatB(5)
    for k in range(4, 16): s += flatW(k, "E")
    s += cstamp('M')
    def of(t):
        u = o_unit(t)
        pos = [2, 2, 4, 4, 6, 6, 8, 8, 10, 10, 12, 12, 14, 14, 16, 16, 18, 18, 20, 20, 30]
        return list(zip(pos, u))
    s += gemm_phase("E", {}, {1: range(2, 5), 4: range(5, 9), 8: range(9, 13), 12: range(13, 16)}, extra_fill=of)
    k1.BRING_E = False
    s += stamp(6)
    s += cstamp('M')
    s += h_epilogue()
    s += cstamp('M')
    e(raw(f"s_branch {name}_fin", "branch"))
    e(label(f"{name}_noE"))
    for k in range(16): s += o_unit(k)
    s += stamp(6)
    e(label(f"{name}_fin"))
    pre, fin = final_phase(name)
    e(barrier())
    s += pre[:]
    e(wait_vm("O", "H"))
    s += stamp(7)
    s += cstamp('M')
    s += poll_barrier(name, 1)
    s += stamp(8)
    s += cstamp('M')
    s += fin
    s += cstamp('M')
    if k1.STAMPS: e(raw("s_waitcnt vmcnt(0)", "other"))
    s += stamp(9)
    s += stamp_dump(16 if k1.STEPSTAMP else 10)
    main, res = finish(s, name)
    return main + [label(f"{name}_codeend")] + fallback(name), res

def setup1_mega():
    s = []; e = s.append
    e(sload(P_WS, 88, 2))
    e(sload(P_WQ, 24, 4)); e(sload(SRD_K, 8, 2)); e(sload(SRD_V, 16, 2)); e(sload(P_WG, 48, 4)); e(sload(P_WD, 64, 2))
    e(valu("v_and_b32", V(1), 63, V(0)))
    e(valu("v_lshrrev_b32", V(30), 6, V(0)))
    e(salu("s_and_b32", S(S_HEAD), S(2), 31))
    e(valu("v_readfirstlane_b32", S(S_WAVE), V(30)))
    e(salu("s_lshr_b32", S(S_QB), S(2), 5))
    e(salu("s_mov_b32", S(62), 2097152)); e(salu("s_mov_b32", S(63), "0x00020000"))
    e(raw("s_waitcnt lgkmcnt(0)", "wait")); s[-1].tag = (None, 0)
    s += ln_loads()
    e(salu("s_add_u32", S(SRD_SY), S(P_WS), SYNC_OFF)); e(salu("s_addc_u32", S(SRD_SY + 1), S(P_WS + 1), 0))
    e(salu("s_mov_b32", S(SRD_SY + 2), 16384)); e(salu("s_mov_b32", S(SRD_SY + 3), "0x00020000"))
    e(salu("s_lshl_b32", S(S_T + 2), S(S_QB), 7))
    e(valu("v_mov_b32", V(TMP + 11), 0))
    e(buf_load(V(TMP + 12), V(TMP + 11), S(SRD_SY, 4), S(S_T + 2), n=1, flags="sc1"))
    e(valu("v_lshrrev_b32", V(G_), 4, V(1)))
    e(valu("v_and_b32", V(N_), 15, V(1)))
    for i in range(2):
        e(valu("v_add_u32", V(U1), 4*i, V(G_)))
        e(valu("v_lshlrev_b32", V(U2), 13, V(U1)))
        e(valu("v_lshlrev_b32", V(U1), 1, V(U1)))
        e(valu("v_xor_b32", V(U1), V(U1), V(N_)))
        e(valu("v_lshl_add_u32", V(VOFFW + i), V(U1), 4, V(U2)))
        if i: e(valu("v_subrev_u32", V(VOFFW + i), 1024, V(VOFFW + i)))
    e(valu("v_lshlrev_b32", V(VLANE16), 4, V(1)))
    e(valu("v_mov_b32", V(VOFFB), V(VLANE16)))
    for qb in range(1, 4): e(valu("v_add_u32", V(VOFFB + qb), qb*16384, V(VLANE16)))
    e(salu("s_mov_b32", S(S_PHI), 0))
    e(salu("s_lshl_b32", S(S_W4K), S(S_WAVE), 12))
    e(salu("s_lshl_b32", S(S_W2K), S(S_WAVE), 11))
    e(salu("s_mov_b32", S(S_SOFFB), 0))
    e(salu("s_lshl_b32", S(S_SOFFW), S(S_WAVE), 16))
    e(salu("s_lshl_b32", S(S_T), S(S_HEAD), 8))
    e(salu("s_sub_u32", S(S_T + 1), 4194304, S(S_T)))
    s += mksrd(SRD_W, P_WQ, S_T, S(S_T + 1))
    e(salu("s_lshl_b32", S(S_T), S(S_QB), 4)); e(salu("s_lshl_b32", S(S_T + 1), S(S_WAVE), 2)); e(salu("s_add_u32", S(S_T), S(S_T), S(S_T + 1)))
    e(salu("s_lshl_b32", S(S_T), S(S_T), 14))
    if XN_OFF: e(salu("s_add_u32", S(S_T), S(S_T), XN_OFF))
    s += mksrd(SRD_XN, P_WS, S_T, 65536)
    e(salu("s_lshl_b32", S(S_T), S(S_HEAD), 19))
    for b in (SRD_K, SRD_V):
        e(salu("s_add_u32", S(b), S(b), S(S_T))); e(salu("s_addc_u32", S(b + 1), S(b + 1), 0))
        e(salu("s_mov_b32", S(b + 2), 524288)); e(salu("s_mov_b32", S(b + 3), "0x00020000"))
    return s

def epoch_fix():
    return [valu("v_readfirstlane_b32", S(S_EPOCH), V(TMP + 12)), nop(3), salu("s_add_u32", S(S_EPOCH), S(S_EPOCH), 1)]
```

```python
from ir import *
from k0 import sload, XN_OFF, O_OFF, H_OFF, DBG_OFF
import k1
from k1 import *
import mega
from mega import SYNC_OFF, S_EPOCH, SRD_SY, SPIN_MAX, ln_loads, ln_compute, code_touch, poll_barrier, fallback
S_EPC = 91
def epoch_fix():
    o = [valu("v_readfirstlane_b32", S(S_EPOCH), V(TMP + 9)), nop(3), salu("s_add_u32", S(S_EPOCH), S(S_EPOCH), 1)]
    if PK3 == 2: o += [valu("v_readfirstlane_b32", S(S_EPC), V(TMP + 8)), nop(3), salu("s_add_u32", S(S_EPC), S(S_EPC), 1)]
    return o

CODEPF = True
OBURST = True
WTOUCH = 4
WPRE = 1
CONV2 = 1
FTAIL = 1
CBX = 0
PK3 = 2
PK_OFF = 28 << 20
L2W3 = 0
L2W3_IT = 6
ROTW = 1
COLSPLIT = 0
WO_IT = 1
WD_IT = 0
MALLPF = 1
CBM = 0
KVLATE = 0
SIGEARLY = 1
FVMOUT = 1
KVT = 1
OUTFLAGS = ''
FD = 3
ADDRE, VOFFE = 96, 100
SRD_E = 24
S_SOFFE = 38
RING0 = 32768
def ringslot(t): return RING0 + 16384*(t % 8)
def rbase(t): return RING0 if (t % 8) < 4 else RING0 + 65536
def ACCQ(db, qb): return V(128 + 16*db + 4*qb, 4)
def ACCE(db, qb): return A(16*db + 4*qb, 4)
def AFB(db): return A(192 + 4*db, 4)
WSTEP_E = 32*3584

def flag_addr_setup(idx, vaddr, vval):
    s = []; e = s.append
    e(salu("s_lshl_b32", S(S_T), S(S_QB), 7)); e(salu("s_add_u32", S(S_T), S(S_T), 4096*(1 + idx)))
    e(salu("s_lshl_b32", S(S_T + 1), S(S_HEAD), 2)); e(salu("s_add_u32", S(S_T), S(S_T), S(S_T + 1)))
    e(valu("v_mov_b32", V(vaddr), S(S_T)))
    e(valu("v_lshlrev_b32", V(vval), 14, V(0)))
    e(valu("v_add_u32", V(vaddr), V(vaddr), V(vval)))
    e(valu("v_mov_b32", V(vval), S(S_EPOCH)))
    return s

def setup_mega2():
    s = []; e = s.append
    e(sload(P_WS, 88, 2))
    e(sload(P_WQ, 24, 4)); e(sload(SRD_K, 8, 2)); e(sload(SRD_V, 16, 2)); e(sload(P_WG, 48, 4)); e(sload(P_WD, 64, 2))
    e(valu("v_and_b32", V(1), 63, V(0)))
    e(valu("v_lshrrev_b32", V(30), 6, V(0)))
    e(salu("s_and_b32", S(S_HEAD), S(2), 31))
    e(valu("v_readfirstlane_b32", S(S_WAVE), V(30)))
    e(salu("s_lshr_b32", S(S_QB), S(2), 5))
    e(salu("s_mov_b32", S(62), 2097152)); e(salu("s_mov_b32", S(63), "0x00020000"))
    e(raw("s_waitcnt lgkmcnt(0)", "wait")); s[-1].tag = (None, 0)
    s += ln_loads()
    e(salu("s_add_u32", S(SRD_SY), S(P_WS), SYNC_OFF)); e(salu("s_addc_u32", S(SRD_SY + 1), S(P_WS + 1), 0))
    e(salu("s_mov_b32", S(SRD_SY + 2), 16384)); e(salu("s_mov_b32", S(SRD_SY + 3), "0x00020000"))
    e(salu("s_lshl_b32", S(S_T + 2), S(S_QB), 7))
    e(valu("v_mov_b32", V(TMP + 11), 0))
    e(buf_load(V(TMP + 9), V(TMP + 11), S(SRD_SY, 4), S(S_T + 2), n=1, flags="sc1"))
    if PK3 == 2: e(buf_load(V(TMP + 8), V(TMP + 11), S(SRD_SY, 4), 0, offset=1024, n=1, flags="sc1"))
    e(valu("v_lshrrev_b32", V(G_), 4, V(1)))
    e(valu("v_and_b32", V(N_), 15, V(1)))
    for i in range(2):
        e(valu("v_add_u32", V(U1), 4*i, V(G_)))
        e(valu("v_lshlrev_b32", V(U2), 13, V(U1)))
        e(valu("v_lshlrev_b32", V(U1), 1, V(U1)))
        e(valu("v_xor_b32", V(U1), V(U1), V(N_)))
        e(valu("v_lshl_add_u32", V(VOFFW + i), V(U1), 4, V(U2)))
        if i: e(valu("v_subrev_u32", V(VOFFW + i), 1024, V(VOFFW + i)))
    e(valu("v_lshlrev_b32", V(VLANE16), 4, V(1)))
    e(valu("v_mov_b32", V(VOFFB), V(VLANE16)))
    for qb in range(1, 4): e(valu("v_add_u32", V(VOFFB + qb), qb*16384, V(VLANE16)))
    e(salu("s_lshl_b32", S(S_W4K), S(S_WAVE), 12))
    e(salu("s_lshl_b32", S(S_W2K), S(S_WAVE), 11))
    e(salu("s_mov_b32", S(S_SOFFB), 0))
    e(salu("s_lshl_b32", S(S_SOFFW), S(S_WAVE), 16))
    e(salu("s_lshl_b32", S(S_T), S(S_HEAD), 8))
    e(salu("s_sub_u32", S(S_T + 1), 4194304, S(S_T)))
    s += mksrd(SRD_W, P_WQ, S_T, S(S_T + 1))
    e(salu("s_lshl_b32", S(S_T), S(S_QB), 4)); e(salu("s_lshl_b32", S(S_T + 1), S(S_WAVE), 2)); e(salu("s_add_u32", S(S_T), S(S_T), S(S_T + 1)))
    e(salu("s_lshl_b32", S(S_T), S(S_T), 14))
    if XN_OFF: e(salu("s_add_u32", S(S_T), S(S_T), XN_OFF))
    s += mksrd(SRD_XN, P_WS, S_T, 65536)
    e(salu("s_lshl_b32", S(S_T), S(S_HEAD), 19))
    for b in (SRD_K, SRD_V):
        e(salu("s_add_u32", S(b), S(b), S(S_T))); e(salu("s_addc_u32", S(b + 1), S(b + 1), 0))
        e(salu("s_mov_b32", S(b + 2), 524288)); e(salu("s_mov_b32", S(b + 3), "0x00020000"))
    e(raw(f"s_cmp_ge_u32 s{S_WAVE}, 2", "salu", rd=regs("s", S_WAVE)))
    e(salu("s_cselect_b32", S(S_T), S(P_WG + 2), S(P_WG)))
    e(salu("s_cselect_b32", S(S_T + 1), S(P_WG + 3), S(P_WG + 1)))
    e(salu("s_lshl_b32", S(S_T + 2), S(S_HEAD), 7))
    e(salu("s_add_u32", S(SRD_E), S(S_T), S(S_T + 2)))
    e(salu("s_addc_u32", S(SRD_E + 1), S(S_T + 1), 0))
    e(salu("s_sub_u32", S(SRD_E + 2), 512*3584, S(S_T + 2)))
    e(raw(f"s_cmp_lt_u32 s{S_HEAD}, 28", "salu", rd=regs("s", S_HEAD)))
    e(salu("s_cselect_b32", S(SRD_E + 2), S(SRD_E + 2), 0))
    e(salu("s_mov_b32", S(SRD_E + 3), "0x00020000"))
    e(salu("s_and_b32", S(S_T), S(S_WAVE), 1))
    e(salu("s_mul_i32", S(S_SOFFE), S(S_T), 16*3584))
    return s

def setup_addr2():
    s = []; e = s.append
    e(valu("v_bfe_u32", V(RR_), V(1), 2, 2))
    e(valu("v_and_b32", V(C_), 3, V(1)))
    e(valu("v_and_b32", V(ROW8), 1, V(G_)))
    e(valu("v_lshl_add_u32", V(ROW8), V(ROW8), 2, V(RR_)))
    e(valu("v_lshl_add_u32", V(ROWB), V(G_), 2, V(RR_)))
    e(valu("v_lshrrev_b32", V(U1), 3, V(1)))
    e(salu("s_mov_b32", S(S_T + 2), 3584))
    e(valu("v_mul_lo_u32", V(U2), V(U1), S(S_T + 2)))
    e(valu("v_lshlrev_b32", V(CH), 1, V(G_)))
    e(valu("v_and_b32", V(U1), 7, V(1)))
    e(valu("v_xor_b32", V(U1), V(U1), V(CH)))
    e(valu("v_lshl_add_u32", V(VOFFE), V(U1), 4, V(U2)))
    e(valu("v_add_u32", V(VOFFE + 1), 8*3584 - 1024, V(VOFFE)))
    return s

def setup_addr3():
    s = []; e = s.append
    e(valu("v_lshlrev_b32", V(U2), 8, V(ROWB)))
    e(valu("v_and_b32", V(U1), 1, V(C_)))
    e(valu("v_lshl_add_u32", V(U2), V(U1), 4, V(U2)))
    e(valu("v_add_u32", V(U2), RING0, V(U2)))
    e(valu("v_lshrrev_b32", V(CH), 1, V(C_)))
    for ds in range(4):
        e(valu("v_add_u32", V(U1), 2*ds, V(CH)))
        e(valu("v_xor_b32", V(U1), V(U1), V(ROW8)))
        e(valu("v_lshl_add_u32", V(ADDRW + ds), V(U1), 5, V(U2)))
    e(valu("v_lshlrev_b32", V(U2), 7, V(ROWB)))
    e(valu("v_lshl_add_u32", V(U2), V(C_), 3, V(U2)))
    e(valu("v_add_u32", V(U2), RING0 + 8192, V(U2)))
    e(valu("v_and_b32", V(CH), 1, V(G_)))
    e(valu("v_lshlrev_b32", V(CH), 1, V(CH)))
    e(valu("v_lshrrev_b32", V(U1), 1, V(RR_)))
    e(valu("v_add_u32", V(CH), V(CH), V(U1)))
    for b in range(4):
        e(valu("v_xor_b32", V(U1), b, V(CH)))
        e(valu("v_lshl_add_u32", V(ADDRE + b), V(U1), 5, V(U2)))
    for ds in range(4):
        e(valu("v_add_u32", V(U1), 4*ds, V(G_)))
        e(valu("v_xor_b32", V(U1), V(U1), V(N_)))
        e(valu("v_lshlrev_b32", V(U1), 4, V(U1)))
        e(valu("v_lshl_add_u32", V(ADDRK + ds), V(N_), 8, V(U1)))
    e(valu("v_lshlrev_b32", V(U2), 8, V(ROWB)))
    e(valu("v_lshl_add_u32", V(U2), V(C_), 3, V(U2)))
    e(valu("v_add_u32", V(U2), VR, V(U2)))
    for db in range(8):
        e(valu("v_xor_b32", V(U1), db, V(ROW8)))
        e(valu("v_lshl_add_u32", V(ADDRV + db), V(U1), 5, V(U2)))
    for i in range(2):
        e(valu("v_add_u32", V(U1), 4*i, V(G_)))
        e(valu("v_lshlrev_b32", V(U1), 1, V(U1)))
        e(valu("v_xor_b32", V(U1), V(U1), V(N_)))
        e(valu("v_lshlrev_b32", V(U1), 4, V(U1)))
        e(valu("v_lshl_add_u32", V(VOFFV + i), V(G_), 8, V(U1)))
    e(salu("s_lshl_b32", S(T3_), S(S_QB), 4)); e(salu("s_lshl_b32", S(T2_), S(S_WAVE), 2)); e(salu("s_add_u32", S(T3_), S(T3_), S(T2_)))
    e(salu("s_mul_i32", S(T0_), S(T3_), 56))
    e(salu("s_lshl_b32", S(T1_), S(S_HEAD), 1))
    e(salu("s_add_u32", S(T0_), S(T0_), S(T1_)))
    e(salu("s_lshl_b32", S(T0_), S(T0_), 10))
    e(salu("s_add_u32", S(T0_), S(T0_), H_OFF))
    s += mksrd(SRD_H, P_WS, T0_, 3*57344 + 2048)
    e(raw(f"s_cmp_lt_u32 s{S_HEAD}, 28", "salu", rd=regs("s", S_HEAD)))
    e(salu("s_cselect_b32", S(SRD_H + 2), S(SRD_H + 2), 0))
    return s

def touches2(part=0):
    s = []; e = s.append
    e(valu("v_lshrrev_b32", V(U1), 3, V(1)))
    e(valu("v_lshlrev_b32", V(U1), 18, V(U1)))
    e(valu("v_bfe_u32", V(U2), V(1), 1, 2))
    e(valu("v_lshl_add_u32", V(U1), V(U2), 13, V(U1)))
    e(valu("v_and_b32", V(U2), 1, V(1)))
    e(valu("v_lshl_add_u32", V(U1), V(U2), 7, V(U1)))
    e(salu("s_lshl_b32", S(S_T + 1), S(S_QB), 15))
    if part == 0:
        e(raw(f"s_cmp_eq_u32 s{S_WAVE}, 2", "salu", rd=regs("s", S_WAVE)))
        e(salu("s_cselect_b32", S(S_T), 8*262144, 0))
    else:
        e(salu("s_mov_b32", S(S_T), 0 if part == 1 else 8*262144))
    e(salu("s_add_u32", S(S_T), S(S_T), S(S_T + 1)))
    for i in range(3): e(salu("s_mov_b32", S(60 + i), S(SRD_W + i)))
    e(salu("s_mov_b32", S(63), "0x00020000"))
    if part == 0:
        e(salu("s_sub_u32", S(S_T + 2), S(S_WAVE), 1))
        e(raw(f"s_cmp_lt_u32 s{S_T+2}, 2", "salu", rd=regs("s", S_T + 2)))
    else:
        e(raw(f"s_cmp_eq_u32 s{S_WAVE}, 2", "salu", rd=regs("s", S_WAVE)))
    e(salu("s_cselect_b32", S(62), S(62), 0))
    e(buf_load(V(PFD), V(U1), S(60, 4), S(S_T), n=1, tag="PF"))
    if part == 0:
        e(valu("v_mov_b32", V(U2), 3584)); e(valu("v_mul_lo_u32", V(U2), V(U2), V(1)))
        e(salu("s_mul_i32", S(S_T), S(S_QB), 64*3584))
    else:
        e(valu("v_and_b32", V(U1), 31, V(1)))
        e(valu("v_mov_b32", V(U2), 3584)); e(valu("v_mul_lo_u32", V(U2), V(U2), V(U1)))
        e(salu("s_mul_i32", S(S_T), S(S_QB), 32*3584))
        if part == 2: e(salu("s_add_u32", S(S_T), S(S_T), 256*3584))
    for i in range(3): e(salu("s_mov_b32", S(60 + i), S(SRD_E + i)))
    e(salu("s_and_b32", S(S_T + 2), S(S_WAVE), 1))
    e(raw(f"s_cmp_eq_u32 s{S_T+2}, 1", "salu", rd=regs("s", S_T + 2)))
    e(salu("s_cselect_b32", S(62), S(62), 0))
    e(buf_load(V(PFD + 1), V(U2), S(60, 4), S(S_T), n=1, tag="PF"))
    return s

def kv_touch():
    s = []; e = s.append
    e(valu("v_and_b32", V(U2), 31, V(1)))
    e(valu("v_lshlrev_b32", V(U2), 7, V(U2)))
    e(salu("s_lshl_b32", S(S_T), S(S_QB), 12))
    e(raw(f"s_cmp_eq_u32 s{S_WAVE}, 3", "salu", rd=regs("s", S_WAVE)))
    for i in range(3): e(salu("s_cselect_b32", S(60 + i), S(SRD_K + i), S(SRD_V + i)))
    e(salu("s_mov_b32", S(63), "0x00020000"))
    e(raw(f"s_cmp_ge_u32 s{S_WAVE}, 2", "salu", rd=regs("s", S_WAVE)))
    e(salu("s_cselect_b32", S(62), S(62), 0))
    e(buf_load(V(PFD + 2), V(U2), S(60, 4), S(S_T), n=1, tag="PF"))
    return s

def touch_prep():
    s = []; e = s.append
    e(valu("v_lshrrev_b32", V(112), 3, V(1)))
    e(valu("v_lshlrev_b32", V(112), 18, V(112)))
    e(valu("v_bfe_u32", V(113), V(1), 1, 2))
    e(valu("v_lshl_add_u32", V(112), V(113), 13, V(112)))
    e(valu("v_and_b32", V(113), 1, V(1)))
    e(valu("v_lshl_add_u32", V(112), V(113), 7, V(112)))
    e(salu("s_lshl_b32", S(36), S(S_QB), 15)); e(salu("s_add_u32", S(36), S(36), 8*262144))
    for i in range(3): e(salu("s_mov_b32", S(84 + i), S(SRD_W + i)))
    e(salu("s_mov_b32", S(87), "0x00020000"))
    e(raw(f"s_cmp_eq_u32 s{S_WAVE}, 2", "salu", rd=regs("s", S_WAVE)))
    e(salu("s_cselect_b32", S(86), S(86), 0))
    e(valu("v_and_b32", V(114), 31, V(1)))
    e(valu("v_mov_b32", V(113), 3584)); e(valu("v_mul_lo_u32", V(113), V(113), V(114)))
    e(salu("s_mul_i32", S(39), S(S_QB), 32*3584)); e(salu("s_add_u32", S(39), S(39), 256*3584))
    if WTOUCH == 3:
        for i in range(3): e(salu("s_mov_b32", S(72 + i), S(SRD_E + i)))
        e(salu("s_mov_b32", S(75), "0x00020000"))
        e(salu("s_and_b32", S(S_T + 2), S(S_WAVE), 1))
        e(raw(f"s_cmp_eq_u32 s{S_T+2}, 1", "salu", rd=regs("s", S_T + 2)))
        e(salu("s_cselect_b32", S(74), S(74), 0))
    e(valu("v_lshlrev_b32", V(114), 7, V(114)))
    e(salu("s_lshl_b32", S(42), S(S_QB), 12))
    e(raw(f"s_cmp_eq_u32 s{S_WAVE}, 3", "salu", rd=regs("s", S_WAVE)))
    for i in range(3): e(salu("s_cselect_b32", S(76 + i), S(SRD_K + i), S(SRD_V + i)))
    e(salu("s_mov_b32", S(79), "0x00020000"))
    e(raw(f"s_cmp_ge_u32 s{S_WAVE}, 2", "salu", rd=regs("s", S_WAVE)))
    e(salu("s_cselect_b32", S(78), S(78), 0))
    return s

def dmaW2(t):
    p1 = salu("s_add_u32", "m0", S(S_W2K), ringslot(t))
    d1 = [buf_dma(V(VOFFW + i), S(SRD_W, 4), S(S_SOFFW), offset=i*1024, tag=("W", t)) for i in range(2)]
    a1 = [salu("s_add_u32", S(S_SOFFW), S(S_SOFFW), 262144)]
    p2 = salu("s_add_u32", "m0", S(S_W2K), ringslot(t) + 8192)
    d2 = [buf_dma(V(VOFFE + i), S(SRD_E, 4), S(S_SOFFE), offset=i*1024, tag=("W", t)) for i in range(2)]
    a2 = [salu("s_add_u32", S(S_SOFFE), S(S_SOFFE), WSTEP_E)]
    return p1, d1, a1, p2, d2, a2
def flatW2(t):
    p1, d1, a1, p2, d2, a2 = dmaW2(t)
    return [p1, nop(0)] + d1 + a1 + [p2, nop(0)] + d2 + a2
def advB2(): return [salu("s_add_u32", S(S_SOFFB), S(S_SOFFB), 1024)]

def rdA2(t, db, rd):
    off = ringslot(t) - rbase(t)
    if db < 8:
        ds, u = db >> 1, db & 1
        return ds_read("ds_read_b64_tr_b16", sub(AFB(db), 2*rd, 2), V(ADDRW + ds), offset=off + rd*4096 + 8*u)
    mat, b = (db - 8) >> 2, (db - 8) & 3
    return ds_read("ds_read_b64_tr_b16", sub(AFB(db), 2*rd, 2), V(ADDRE + b), offset=off + mat*4096 + rd*2048)

def qconv(ds):
    o = []
    for qb in range(4):
        a0, a1 = ACCR(2*ds, qb), ACCR(2*ds + 1, qb)
        for r in range(4):
            o.append(valu("v_mul_f32", sub(a0, r), S(S_T), sub(a0, r))); o.append(valu("v_mul_f32", sub(a1, r), S(S_T), sub(a1, r)))
        o.append(valu("v_cvt_pk_bf16_f32", sub(a1, 3), sub(a1, 2), sub(a1, 3)))
        o.append(valu("v_cvt_pk_bf16_f32", sub(a1, 2), sub(a1, 0), sub(a1, 1)))
        o.append(valu("v_cvt_pk_bf16_f32", sub(a1, 1), sub(a0, 2), sub(a0, 3)))
        o.append(valu("v_cvt_pk_bf16_f32", sub(a1, 0), sub(a0, 0), sub(a0, 1)))
    return o

def fused_phase():
    s = []; e = s.append
    e(wait_vm(("W", 0), ("W", 1), ("W", 2))); e(barrier())
    for db in range(16):
        for rd in range(2): e(rdA2(0, db, rd))
    for t in range(16):
        s += sstamp("A", t)
        F = Fill(64)
        def addW(k, gi, sp):
            p1, d1, a1, p2, d2, a2 = dmaW2(k)
            F.add(gi - 1, p1); F.add(gi, d1[0]); F.add(gi + sp, d1[1]); F.add(gi + sp + 1, a1)
            F.add(gi + 2*sp - 1, p2); F.add(gi + 2*sp, d2[0]); F.add(gi + 3*sp, d2[1]); F.add(gi + 3*sp + 1, a2)
        if t >= 2 and t % 2 == 0:
            if t in (6, 8): s += cstamp("B")
            e(wait_vm(("W", t + 1), ("W", t + 2) if t + 2 < 16 else ("W", t + 1)))
            e(barrier())
        if t == 0:
            g = 0
            for k in (1, 2, 3):
                for x in loadB(k): F.add(g, x); g += 2
                F.add(g - 1, advB2())
            addW(4, 26, 4); addW(5, 44, 4)
        elif t == 1:
            addW(6, 6, 4); addW(7, 24, 4)
            if KVT == 1: F.add(42, buf_load(V(PFD + 2), V(114), S(76, 4), S(42), n=1, tag="PF"))
            if WTOUCH == 3:
                F.add(46, buf_load(V(PFD), V(112), S(84, 4), S(36), n=1, tag="PF"))
                F.add(50, buf_load(V(PFD + 1), V(113), S(72, 4), S(39), n=1, tag="PF"))

        elif t + 6 < 16: addW(t + 6, 6, 6)
        kv = ({4: dmaK(0), 5: dmaK(1), 12: dmaV(0), 13: dmaV(1)} if KVLATE else {4: dmaK(0), 5: dmaK(1), 10: dmaK(2), 11: dmaK(3), 12: dmaV(0), 13: dmaV(1), 14: dmaV(2)}).get(t)
        if kv:
            pre, d, adv = kv
            F.add(29, pre)
            for k, x in enumerate(d): F.add(30 + 6*k, x)
            F.add(49, adv)
        if t + 1 < 16 and rbase(t + 1) != rbase(t):
            d = rbase(t + 1) - rbase(t)
            for i in range(4):
                F.add(4, valu("v_add_u32", V(ADDRW + i), d & 0xffffffff, V(ADDRW + i)))
                F.add(4, valu("v_add_u32", V(ADDRE + i), d & 0xffffffff, V(ADDRE + i)))
        if t >= 1:
            F.add(1, rdA2(t, 15, 0)); F.add(3, rdA2(t, 15, 1))
        if t + 1 < 16:
            for db in range(15):
                F.add(4*db + 5, rdA2(t + 1, db, 0)); F.add(4*db + 7, rdA2(t + 1, db, 1))
        if t == 14 and CONV2: F.add(40, salu("s_mov_b32", S(S_T), f2h(QSCALE)))
        if t == 15 and CONV2:
            q = qconv(0) + qconv(1)
            g = 10
            kgaps = {33 + 4*f if 33 + 4*f < 64 else 63 for f in range(8)}
            while q:
                for _ in range(1 if g in kgaps else 2):
                    if q: F.add(g, q.pop(0))
                g += 1
            assert g <= 64, g
            for f in range(8):
                kb, ds = f >> 2, f & 3
                F.add(33 + 4*f if 33 + 4*f < 64 else 63, ds_read("ds_read_b128", KF(f), V(ADDRK + ds), offset=kb*4096))
        if t >= 1 and t + 3 < 16:
            for qb, x in enumerate(loadB(t + 3)): F.add(52 + 4*qb - (2 if qb == 3 else 0), x)
            F.add(63, advB2())
        for db in range(16):
            if t == 6 and db in (4, 8, 12): s += cstamp("B")
            if t == 7 and db == 0: s += cstamp("B")
            for qb in range(4):
                g = 4*db + qb
                acc = ACCQ(db, qb) if db < 8 else ACCE(db - 8, qb)
                e(mfma16(acc, AFB(db), BF(t, qb), 0 if t == 0 else acc))
                s += F.emit(g)
    return s

def h_epilogue2():
    s = []; e = s.append
    for qb in range(4): e(salu("s_mov_b32", S(S_T + qb), qb*57344))
    k = 0
    for qb in range(4):
        for tp in range(2):
            t = SREG + 16*(k % 2); pk = PREG + 4*(k % 8)
            for u in range(2):
                b = 2*tp + u
                for r in range(4):
                    e(valu("v_accvgpr_read_b32", V(t + 8*u + r), sub(ACCE(b, qb), r)))
                    e(valu("v_accvgpr_read_b32", V(t + 8*u + 4 + r), sub(ACCE(4 + b, qb), r)))
            for u in range(2):
                for r in range(4): e(valu("v_max_f32", V(t + 8*u + r), 0, V(t + 8*u + r)))
            for u in range(2):
                for r in range(4): e(valu("v_mul_f32", V(t + 8*u + r), V(t + 8*u + r), V(t + 8*u + 4 + r)))
            for u in range(2):
                for hh in range(2): e(valu("v_cvt_pk_bf16_f32", V(pk + 2*u + hh), V(t + 8*u + 2*hh), V(t + 8*u + 2*hh + 1)))
            e(buf_store(V(pk, 4), V(VLANE16), S(SRD_H, 4), S(S_T + qb), offset=tp*1024, tag="H", flags="sc1"))
            for u in range(2):
                b = 2*tp + u
                for r in range(4):
                    e(valu("v_accvgpr_write_b32", sub(ACCE(b, qb), r), 0)); e(valu("v_accvgpr_write_b32", sub(ACCE(4 + b, qb), r), 0))
            k += 1
    return s


def h_unit(k):
    qb, tp = k >> 1, k & 1
    t = PREG + 16*(k % 2); pk = NEGM_T + 4*(k % 2)
    o = []
    for u in range(2):
        b = 2*tp + u
        for r in range(4):
            o.append(valu("v_accvgpr_read_b32", V(t + 8*u + r), sub(ACCE(b, qb), r)))
            o.append(valu("v_accvgpr_read_b32", V(t + 8*u + 4 + r), sub(ACCE(4 + b, qb), r)))
    for u in range(2):
        for r in range(4): o.append(valu("v_max_f32", V(t + 8*u + r), 0, V(t + 8*u + r)))
    for u in range(2):
        for r in range(4): o.append(valu("v_mul_f32", V(t + 8*u + r), V(t + 8*u + r), V(t + 8*u + 4 + r)))
    for u in range(2):
        for hh in range(2): o.append(valu("v_cvt_pk_bf16_f32", V(pk + 2*u + hh), V(t + 8*u + 2*hh), V(t + 8*u + 2*hh + 1)))
    o.append(buf_store(V(pk, 4), V(VLANE16), S(SRD_H, 4), S(S_T + qb), offset=tp*1024, tag="H", flags="sc1"))
    return o
NEGM_T = 104

def conv_phase():
    s = []; e = s.append
    for i in range(16): e(valu("v_mov_b32", V(LREG + i), 0))
    for i in range(4): e(valu("v_mov_b32", V(ONES + i), "0x3f803f80"))
    if k1.SUMMODE:
        for i in range(4): e(valu("v_mov_b32", V(168 + i), 0))
    q2, q3 = qconv(2), qconv(3)
    for ds in range(4):
        for kb in range(2):
            for qb in range(4):
                e(mfma16(SR(kb, qb), KF(4*kb + ds), QF(qb, ds), 0 if ds == 0 else SR(kb, qb)))
                src = q2 if ds < 2 and q2 else (q3 if ds < 3 else [])
                n = 3 if ds < 2 else 6
                for _ in range(n):
                    if src: s.append(src.pop(0))
        if ds == 1: assert not q2
        if ds == 2:
            assert not q3
            e(nop(1))
    for qb in range(4): e(salu("s_mov_b32", S(S_T + qb), qb*57344))
    hu = [h_unit(k) for k in range(8)]
    s += hu[0] + hu[1]
    M = TMP
    mx = []
    for qb in range(4):
        mx.append(valu("v_max3_f32", V(M + qb), SR(0, qb, 0), SR(0, qb, 1), SR(0, qb, 2)))
        mx.append(valu("v_max3_f32", V(M + qb), V(M + qb), SR(0, qb, 3), SR(1, qb, 0)))
        mx.append(valu("v_max3_f32", V(M + qb), V(M + qb), SR(1, qb, 1), SR(1, qb, 2)))
        mx.append(valu("v_max_f32", V(M + qb), V(M + qb), SR(1, qb, 3)))
    s += mx
    rest = sum(hu[2:], [])
    for swp in ("v_permlane16_swap_b32", "v_permlane32_swap_b32"):
        for qb in range(4): e(valu("v_mov_b32", V(M + 4 + qb), V(M + qb)))
        s += [rest.pop(0), rest.pop(0)]
        for qb in range(4): e(valu(swp, V(M + 4 + qb), V(M + qb), dst_is_src=True, wr_extra=regs("v", M + qb)))
        s += [rest.pop(0), rest.pop(0)]
        for qb in range(4): e(valu("v_max_f32", V(M + qb), V(M + qb), V(M + 4 + qb)))
    for qb in range(4): e(valu("v_sub_f32", V(M + qb), f2h(-DOFF), V(M + qb)))
    s += rest
    for qb in range(4):
        for r in range(4): e(valu("v_mov_b32", V(NEGM + 4*qb + r), V(M + qb)))
    return s

def window_m1():
    w = window(-1, 0, last_qk=True, do_pv=False, do_kread=True, exp_tail=False)
    out = []; k = 0; nm = 0
    for x in w:
        if x.kind == "mfma": nm += 1
        if x.kind == "nop" and x.text == "s_nop 0" and nm >= 32 and k < 32:
            z = V(LREG + 4 + 0, 4) if False else (V(168, 4) if k1.SUMMODE else V(LREG, 4))
            out.append(mfma16(A(4*k, 4), z, z, 0)); k += 1
        else: out.append(x)
    assert k == 32
    return out


CPV = 172
def pk_load():
    s = []; e = s.append
    e(salu("s_lshl_b32", S(T0_), S(2), 2)); e(salu("s_add_u32", S(T0_), S(T0_), S(S_WAVE)))
    e(salu("s_mov_b32", S(72), S(P_WO))); e(salu("s_mov_b32", S(73), S(P_WO + 1))); e(salu("s_mov_b32", S(75), "0x00020000"))
    e(raw(f"s_cmp_lt_u32 s{T0_}, 512", "salu", rd=regs("s", T0_)))
    e(salu("s_cselect_b32", S(74), 4096*1024, 0))
    e(salu("s_lshl_b32", S(T1_), S(T0_), 13)); e(salu("s_add_u32", S(T1_), S(T1_), 384))
    e(valu("v_lshrrev_b32", V(CPV), 3, V(1))); e(valu("v_lshlrev_b32", V(CPV), 10, V(CPV)))
    e(valu("v_and_b32", V(CPV + 1), 7, V(1))); e(valu("v_lshl_add_u32", V(CPV), V(CPV + 1), 4, V(CPV)))
    e(valu("v_mov_b32", V(171), V(CPV)))
    e(buf_load(V(CPV, 4), V(171), S(72, 4), S(T1_), tag="CPL"))
    return s
def pk_store():
    s = []; e = s.append
    e(salu("s_lshl_b32", S(T0_), S(2), 2)); e(salu("s_add_u32", S(T0_), S(T0_), S(S_WAVE)))
    e(salu("s_add_u32", S(72), S(P_WS), PK_OFF)); e(salu("s_addc_u32", S(73), S(P_WS + 1), 0))
    e(raw(f"s_cmp_lt_u32 s{T0_}, 512", "salu", rd=regs("s", T0_)))
    e(salu("s_cselect_b32", S(74), 524288, 0))
    e(salu("s_mov_b32", S(75), "0x00020000"))
    e(salu("s_lshl_b32", S(T1_), S(T0_), 10))
    e(buf_store(V(CPV, 4), V(VLANE16), S(72, 4), S(T1_), tag="CP", flags="sc1"))
    return s
def pk_flag_setup(vaddr, vval):
    s = []; e = s.append
    e(salu("s_lshl_b32", S(T0_), S(2), 2)); e(salu("s_add_u32", S(T0_), S(T0_), 14336))
    e(valu("v_lshlrev_b32", V(vval), 14, V(0))); e(valu("v_add_u32", V(vaddr), S(T0_), V(vval)))
    e(valu("v_mov_b32", V(vval), S(S_EPC)))
    return s
def pk_flag_load():
    return buf_load(V(168, 4), V(VLANE16), S(SRD_SY, 4), S(75), tag="PKL", flags="sc1")
def pk_check(name):
    s = []; e = s.append
    L = f"{name}_pk"
    def cmp(kind):
        o = []
        for i in range(4): o.append(raw(f"v_xor_b32 v{168+i}, s{S_EPC}, v{168+i}", kind, rd=regs("v", 168 + i) if kind == "valu" else (), wr=regs("v", 168 + i) if kind == "valu" else ()))
        o.append(raw("v_or3_b32 v168, v168, v169, v170", "other")); o.append(raw("v_or_b32 v168, v168, v171", "other"))
        o.append(raw("v_cmp_ne_u32 vcc, 0, v168", "other")); o.append(raw("s_nop 4", "other"))
        return o
    e(salu("s_and_b32", S(T0_), S(S_HEAD), 0x19)); e(raw(f"s_cmp_eq_u32 s{T0_}, 0x18", "salu", rd=regs("s", T0_)))
    e(raw(f"s_cbranch_scc0 {L}_ok", "branch"))
    s += cmp("valu")
    e(raw(f"s_cbranch_vccz {L}_done", "branch"))
    e(salu("s_mov_b32", S(T2_), SPIN_MAX))
    e(label(f"{L}_poll"))
    e(raw(f"buffer_load_dwordx4 v[168:171], v{VLANE16}, s[{SRD_SY}:{SRD_SY+3}], s75 offen sc1", "other"))
    e(raw("s_waitcnt vmcnt(0)", "other"))
    s += cmp("other")
    e(raw(f"s_cbranch_vccz {L}_done", "branch"))
    e(raw(f"s_sub_u32 s{T2_}, s{T2_}, 1", "other")); e(raw(f"s_cbranch_scc1 {L}_done", "branch"))
    e(raw("s_sleep 1", "other")); e(raw(f"s_branch {L}_poll", "branch"))
    e(label(f"{L}_done"))
    e(raw("s_cmp_lg_u32 s2, 24", "other")); e(raw(f"s_cbranch_scc1 {L}_ok", "branch"))
    e(raw(f"s_cmp_lg_u32 s{S_WAVE}, 0", "other")); e(raw(f"s_cbranch_scc1 {L}_ok", "branch"))
    e(raw(f"v_mov_b32 v168, s{S_EPC}", "other")); e(raw("v_lshlrev_b32 v169, 20, v1", "other"))
    e(raw(f"buffer_store_dword v168, v169, s[{SRD_SY}:{SRD_SY+3}], 0 offen offset:1024 sc1", "other"))
    e(label(f"{L}_ok"))
    return s

NT_O, NT_H, NSLOT = 32, 14, 8

FA, FA2, FVW = 20, 164, 24
FAF = 112
F_SRDW, F_SRDH = 16, 20
F_SW, F_SB = 41, (36, 37, 39, 42)
F_LW = 38
HFV, HFA = 28, 29
def FACC(nb, qb): return A(128 + 16*nb + 4*qb, 4)
def FBF(i, qb): return V((192 if i % 2 == 0 else 224) + 4*qb, 4)
def FAFR(nb): return V(FAF + 4*nb, 4)
def fslot(i): return (XR, XR + 16384, 0)[i % 3]
def f_rd(i, nb, rd):
    b = fslot(i)
    if b >= XR: return ds_read("ds_read_b64_tr_b16", sub(FAFR(nb), 2*rd, 2), V(FA + nb), offset=b - XR + rd*2048)
    return ds_read("ds_read_b64_tr_b16", sub(FAFR(nb), 2*rd, 2), V(FA2 + nb), offset=b + rd*2048)
def f_ldW(i):
    pre = salu("s_add_u32", "m0", S(F_LW), fslot(i))
    d = [buf_dma(V(FVW + k), S(F_SRDW, 4), S(F_SW), offset=k*1024, tag=("FW", i)) for k in range(4)]
    return pre, d, salu("s_add_u32", S(F_SW), S(F_SW), 32768)
def f_ldB(i):
    return [(buf_load(FBF(i, qb), V(VLANE16), S(F_SRDH, 4), S(F_SB[qb]), tag=("FB", i), flags="sc1"), salu("s_add_u32", S(F_SB[qb]), S(F_SB[qb]), 1024)) for qb in range(4)]

def f_setup():
    s = []; e = s.append
    RB, CB = T2_, T3_
    e(salu("s_and_b32", S(T0_), S(S_HEAD), 7)); e(salu("s_lshr_b32", S(T1_), S(S_HEAD), 3))
    e(salu("s_lshr_b32", S(RB), S(T0_), 1)); e(salu("s_lshl_b32", S(S_T), S(S_QB), 2)); e(salu("s_add_u32", S(RB), S(RB), S(S_T)))
    if CBX: e(salu("s_xor_b32", S(T1_), S(T1_), CBX))
    e(salu("s_and_b32", S(T0_), S(T0_), 1))
    if CBM == 0: e(salu("s_lshl_b32", S(T0_), S(T0_), 2))
    else: e(salu("s_lshl_b32", S(T1_), S(T1_), 1))
    e(salu("s_add_u32", S(CB), S(T0_), S(T1_)))
    e(salu("s_mul_i32", S(T0_), S(RB), 224)); e(salu("s_mul_i32", S(T1_), S(S_WAVE), 14)); e(salu("s_add_u32", S(T0_), S(T0_), S(T1_)))
    e(salu("s_lshl_b32", S(T0_), S(T0_), 10)); e(salu("s_add_u32", S(T0_), S(T0_), H_OFF))
    s += mksrd(F_SRDH, P_WS, T0_, 3*57344 + 14*1024)
    e(salu("s_lshl_b32", S(T1_), S(CB), 6 if COLSPLIT else 7)); e(salu("s_mul_i32", S(T0_), S(S_WAVE), 448*1024)); e(salu("s_add_u32", S(T0_), S(T0_), S(T1_)))
    e(salu("s_sub_u32", S(T1_), 1792*1024, S(T0_)))
    s += mksrd(F_SRDW, P_WD, T0_, S(T1_))
    e(salu("s_mov_b32", S(F_SW), 0))
    for qb in range(4): e(salu("s_mov_b32", S(F_SB[qb]), qb*57344))
    e(salu("s_lshl_b32", S(F_LW), S(S_WAVE), 12))
    G, RR, C, T1, T2, X = 168, 169, 170, 171, 172, 173
    e(valu("v_lshrrev_b32", V(G), 4, V(1))); e(valu("v_bfe_u32", V(RR), V(1), 2, 2)); e(valu("v_and_b32", V(C), 3, V(1)))
    e(valu("v_lshl_add_u32", V(T2), V(G), 2, V(RR))); e(valu("v_lshlrev_b32", V(T2), 7, V(T2)))
    e(valu("v_lshl_add_u32", V(T2), V(C), 3, V(T2))); e(valu("v_add_u32", V(T2), S(F_LW), V(T2)))
    e(valu("v_and_b32", V(X), 1, V(G))); e(valu("v_lshlrev_b32", V(X), 1, V(X))); e(valu("v_lshrrev_b32", V(T1), 1, V(RR))); e(valu("v_add_u32", V(X), V(X), V(T1)))
    for b in range(4):
        e(valu("v_xor_b32", V(T1), b, V(X))); e(valu("v_lshl_add_u32", V(FA2 + b), V(T1), 5, V(T2)))
        e(valu("v_add_u32", V(FA + b), XR, V(FA2 + b)))
    e(valu("v_lshrrev_b32", V(T1), 3, V(1))); e(valu("v_lshlrev_b32", V(T2), 10, V(T1)))
    e(valu("v_lshlrev_b32", V(X), 1, V(G))); e(valu("v_and_b32", V(T1), 7, V(1))); e(valu("v_xor_b32", V(T1), V(T1), V(X)))
    if COLSPLIT:
        e(valu("v_lshrrev_b32", V(X), 2, V(T1))); e(valu("v_lshl_add_u32", V(T2), V(X), 9, V(T2))); e(valu("v_and_b32", V(T1), 3, V(T1)))
    e(valu("v_lshl_add_u32", V(FVW), V(T1), 4, V(T2)))
    for i in range(1, 4): e(valu("v_add_u32", V(FVW + i), i*7168, V(FVW)))
    e(valu("v_and_b32", V(HFA), 31, V(1))); e(valu("v_lshlrev_b32", V(HFA), 2, V(HFA)))
    e(salu("s_lshl_b32", S(T0_), S(S_QB), 7)); e(salu("s_add_u32", S(T0_), S(T0_), 4096*3))
    e(valu("v_add_u32", V(HFA), S(T0_), V(HFA)))
    return s

def h_flag_load():
    return buf_load(V(HFV), V(HFA), S(SRD_SY, 4), 0, n=1, tag="HFL", flags="sc1")

def h_flag_check(name):
    s = []; e = s.append
    L = f"{name}_hc"
    e(raw(f"v_cmp_ne_u32_e64 vcc, s{S_EPOCH}, v{HFV}", "valu", rd=regs("v", HFV) + regs("s", S_EPOCH), wr=[("s", "vcc")]))
    e(raw("s_nop 4", "other"))
    e(raw(f"s_cbranch_vccz {L}_ok", "branch"))
    e(salu("s_mov_b32", S(T2_), SPIN_MAX))
    e(label(f"{L}_poll"))
    e(raw(f"buffer_load_dword v{HFV}, v{HFA}, s[{SRD_SY}:{SRD_SY+3}], 0 offen sc1", "other"))
    e(raw("s_waitcnt vmcnt(0)", "other"))
    e(raw(f"v_cmp_ne_u32_e64 vcc, s{S_EPOCH}, v{HFV}", "other")); e(raw("s_nop 4", "other"))
    e(raw(f"s_cbranch_vccz {L}_ok", "branch"))
    e(raw(f"s_sub_u32 s{T2_}, s{T2_}, 1", "other")); e(raw(f"s_cbranch_scc1 {L}_ok", "branch"))
    e(raw("s_sleep 1", "other")); e(raw(f"s_branch {L}_poll", "branch"))
    e(label(f"{L}_ok"))
    return s

def f_block(i):
    s = []; e = s.append
    s += sstamp('T', i)
    F = Fill(16)
    N = NT_H
    F.add(0, f_rd(i, 3, 0)); F.add(1, f_rd(i, 3, 1))
    if i + 1 < N:
        F.add(3, wait_vm(("FW", i + 1)))
        for nb in range(3):
            F.add(4*nb + 4, f_rd(i + 1, nb, 0)); F.add(4*nb + 5, f_rd(i + 1, nb, 1))
    if not FVMOUT:
        if i + 3 < N:
            pre, d, adv = f_ldW(i + 3)
            F.add(1, pre); F.add(2, d[0]); F.add(3, d[1]); F.add(6, d[2]); F.add(7, d[3]); F.add(8, adv)
        if i + 2 < N:
            for qb, (ld, adv) in enumerate(f_ldB(i + 2)):
                F.add(12 + qb, ld)
    for nb in range(4):
        for qb in range(4):
            g = 4*nb + qb
            e(mfma16(FACC(nb, qb), FAFR(nb), FBF(i, qb), 0 if i == 0 else FACC(nb, qb)))
            s += F.emit(g)
    if i + 2 < N and not FVMOUT:
        for qb, (ld, adv) in enumerate(f_ldB(i + 2)): e(adv)
    if i in (4, 5): s += sstamp('T', 14 + (i - 4))
    return s

def tail_F(name):
    s = []; e = s.append
    s += h_flag_check(name)
    if PK3 == 2: s += pk_check(name)
    for i in range(2):
        pre, d, adv = f_ldW(i); s += [pre, nop(0)] + d + [adv]
        for ld, adv in f_ldB(i): s += [ld, adv]
    def fvm(i, half):
        if not FVMOUT: return []
        gaps = [35, 39, 43, 47, 51, 55, 59, 63] if half == "pv" else [3, 7, 11, 15, 17, 19, 23, 27]
        x = []
        if i + 2 < NT_H:
            for qb, (ld, adv) in enumerate(f_ldB(i + 2)):
                x.append((gaps[qb], ld)); x.append((gaps[qb] + 1, adv))
        if i + 3 < NT_H:
            pre, d, adv = f_ldW(i + 3)
            x.append((gaps[4] - 1, pre))
            for k in range(4): x.append((gaps[4 + k], d[k]))
            x.append((gaps[7] + 1, adv))
        return x
    blk = 0
    pend = []
    for T in range(28, 32):
        d0, d1 = tile_dma(T, doK=False, doV=False)
        x0 = list(pend); pend = []
        if T == 28:
            pre, d, adv = dmaV(3)
            x0 += [(34, pre)] + [(35 + 4*k, x) for k, x in enumerate(d)] + [(48, adv)]
            pre, d, adv = f_ldW(2)
            x0 += [(50, pre)] + [(51 + 4*k, x) for k, x in enumerate(d)] + [(66, adv)]
            x0.append((40, wait_vm(("FW", 0))))
            for nb in range(3):
                x0 += [(41 + 8*nb, f_rd(0, nb, 0)), (41 + 8*nb, f_rd(0, nb, 1))]
        j = 2*T
        mid = None
        if T > 28:
            mid = f_block(blk); x0 += fvm(blk, "pv"); blk += 1
        s += window(j, T, dma=d0, bar=(T < 31), do_kread=(j + 2 <= 63), extra=x0, mid=mid)
        s += f_block(blk); x1 = fvm(blk, "qk"); blk += 1
        j = 2*T + 1
        mid = f_block(blk); x1 += fvm(blk, "pv"); blk += 1
        s += window(j, T, dma=d1, last_qk=(j + 1 <= 63), do_kread=(j + 2 <= 63), mid=mid, extra=x1)
        if blk < NT_H:
            s += f_block(blk); pend = fvm(blk, "qk"); blk += 1
    assert blk == NT_H, blk
    return s

def final2(name):
    ADDRA, VOFW, VOFB, VB = 2, 6, 10, 12
    ACCS, ACCF = 128, 192
    NT = NT_O + NT_H
    def part(t): return 1 if t < NT_H else 0
    def tl(t): return t if t < NT_H else t - NT_H
    def ACC(p, nb, qb): return V((ACCS if p == 0 else ACCF) + 16*nb + 4*qb, 4)
    def AF(t, nb): return V(64 + 16*(t & 1) + 4*nb, 4)
    def BFf(t, qb): return A(128 + 16*(t % NSLOT) + 4*qb, 4)
    SRD_A0, SRD_A1, SRD_W0, SRD_W1 = 8, 12, 16, 20
    SRD_O2 = 24
    S_RB, S_CB, S_LDSW, S_SA, S_SW = 32, 33, 34, 35, 36
    pre = []; e = pre.append
    e(salu("s_lshl_b32", S(T3_), S(S_QB), 4)); e(salu("s_lshl_b32", S(T2_), S(S_WAVE), 2)); e(salu("s_add_u32", S(T3_), S(T3_), S(T2_)))
    e(salu("s_lshl_b32", S(T0_), S(T3_), 7)); e(salu("s_lshl_b32", S(T1_), S(S_HEAD), 2)); e(salu("s_add_u32", S(T0_), S(T0_), S(T1_)))
    e(salu("s_lshl_b32", S(T0_), S(T0_), 10)); e(salu("s_add_u32", S(T0_), S(T0_), O_OFF))
    pre += mksrd(SRD_O, P_WS, T0_, 3*131072 + 4096)
    e(salu("s_and_b32", S(T0_), S(S_HEAD), 7)); e(salu("s_lshr_b32", S(T1_), S(S_HEAD), 3))
    e(salu("s_lshr_b32", S(T2_), S(T0_), 1)); e(salu("s_lshl_b32", S(S_RB), S(S_QB), 2)); e(salu("s_add_u32", S(S_RB), S(S_RB), S(T2_)))
    if CBX: e(salu("s_xor_b32", S(T1_), S(T1_), CBX))
    e(salu("s_and_b32", S(T0_), S(T0_), 1))
    if CBM == 0: e(salu("s_lshl_b32", S(T0_), S(T0_), 2))
    else: e(salu("s_lshl_b32", S(T1_), S(T1_), 1))
    e(salu("s_add_u32", S(S_CB), S(T0_), S(T1_)))
    e(salu("s_lshl_b32", S(T0_), S(S_RB), 9)); e(salu("s_lshl_b32", S(T1_), S(S_WAVE), 5)); e(salu("s_add_u32", S(T0_), S(T0_), S(T1_)))
    e(salu("s_lshl_b32", S(T0_), S(T0_), 10)); e(salu("s_add_u32", S(T0_), S(T0_), O_OFF))
    pre += mksrd(SRD_A0, P_WS, T0_, 3*131072 + 32*1024)
    e(salu("s_mul_i32", S(T0_), S(S_RB), 224)); e(salu("s_mul_i32", S(T1_), S(S_WAVE), 14)); e(salu("s_add_u32", S(T0_), S(T0_), S(T1_)))
    e(salu("s_lshl_b32", S(T0_), S(T0_), 10)); e(salu("s_add_u32", S(T0_), S(T0_), H_OFF))
    pre += mksrd(SRD_A1, P_WS, T0_, 3*57344 + 14*1024)
    e(salu("s_lshl_b32", S(T0_), S(S_WAVE), 20)); e(salu("s_lshl_b32", S(T1_), S(S_CB), 7)); e(salu("s_add_u32", S(T0_), S(T0_), S(T1_)))
    e(salu("s_sub_u32", S(T2_), 4096*1024, S(T0_)))
    pre += mksrd(SRD_W0, P_WO, T0_, S(T2_))
    e(salu("s_mul_i32", S(T0_), S(S_WAVE), 448*1024)); e(salu("s_add_u32", S(T0_), S(T0_), S(T1_)))
    e(salu("s_sub_u32", S(T2_), 1792*1024, S(T0_)))
    pre += mksrd(SRD_W1, P_WD, T0_, S(T2_))
    e(salu("s_lshl_b32", S(S_LDSW), S(S_WAVE), 15))
    G, RR, C, T1, T2, X = 20, 21, 22, 23, 24, 25
    e(valu("v_lshrrev_b32", V(G), 4, V(1))); e(valu("v_bfe_u32", V(RR), V(1), 2, 2)); e(valu("v_and_b32", V(C), 3, V(1)))
    e(valu("v_lshl_add_u32", V(T2), V(G), 2, V(RR))); e(valu("v_lshlrev_b32", V(T2), 7, V(T2)))
    e(valu("v_lshl_add_u32", V(T2), V(C), 3, V(T2))); e(valu("v_add_u32", V(T2), S(S_LDSW), V(T2)))
    e(valu("v_and_b32", V(X), 1, V(G))); e(valu("v_lshlrev_b32", V(X), 1, V(X))); e(valu("v_lshrrev_b32", V(T1), 1, V(RR))); e(valu("v_add_u32", V(X), V(X), V(T1)))
    for b in range(4):
        e(valu("v_xor_b32", V(T1), b, V(X))); e(valu("v_lshl_add_u32", V(ADDRA + b), V(T1), 5, V(T2)))
    e(valu("v_lshrrev_b32", V(T1), 3, V(1))); e(valu("v_lshlrev_b32", V(T2), 10, V(T1)))
    e(valu("v_lshlrev_b32", V(X), 1, V(G))); e(valu("v_and_b32", V(T1), 7, V(1))); e(valu("v_xor_b32", V(T1), V(T1), V(X)))
    e(valu("v_lshl_add_u32", V(VOFW), V(T1), 4, V(T2)))
    for i in range(1, 4): e(valu("v_add_u32", V(VOFW + i), i*7168, V(VOFW)))
    e(valu("v_lshlrev_b32", V(VOFB), 4, V(1)))
    for qb in range(4):
        e(valu("v_add_u32", V(VB + qb), qb*131072, V(VOFB))); e(valu("v_add_u32", V(VB + 4 + qb), qb*57344, V(VOFB)))
    e(salu("s_mov_b32", S(S_SA), 0)); e(salu("s_mov_b32", S(S_SW), 0))
    D = FD
    def ldW(t):
        p = part(t); o = []
        if t == NT_H: o.append(salu("s_mov_b32", S(S_SW), 0))
        o.append(salu("s_add_u32", "m0", S(S_LDSW), (t % NSLOT)*4096))
        d = [buf_dma(V(VOFW + i), S(SRD_W0 if p == 0 else SRD_W1, 4), S(S_SW), offset=i*1024, tag=("FW", t)) for i in range(4)]
        return o, d, [salu("s_add_u32", S(S_SW), S(S_SW), 32768)]
    def ldB(t):
        p = part(t); o = []
        if t == NT_H: o.append(salu("s_mov_b32", S(S_SA), 0))
        d = [buf_load(BFf(t, qb), V(VB + 4*p + qb), S(SRD_A0 if p == 0 else SRD_A1, 4), S(S_SA), tag=("FB", t), flags="sc1") for qb in range(4)]
        return o, d, [salu("s_add_u32", S(S_SA), S(S_SA), 1024)]
    def rdA(t, nb, rd):
        return ds_read("ds_read_b64_tr_b16", sub(AF(t, nb), 2*rd, 2), V(ADDRA + nb), offset=(t % NSLOT)*4096 + rd*2048)
    def o_unit2(k):
        qb, dp = k >> 2, k & 3
        t = 32 + 8*(k % 2); pk = 48 + 4*(k % 4)
        o = []
        for u in range(2):
            for r in range(4): o.append(valu("v_accvgpr_read_b32", V(t + 4*u + r), sub(OACC(2*dp + u, qb), r)))
        for i in range(8): o.append(valu("v_mul_f32", V(t + i), V(t + i), V(RI + qb)))
        for i in range(4): o.append(valu("v_cvt_pk_bf16_f32", V(pk + i), V(t + 2*i), V(t + 2*i + 1)))
        o.append(buf_store(V(pk, 4), V(VLANE16), S(SRD_O, 4), S(S_T + qb), offset=dp*1024, tag="O", flags="sc1"))
        return o
    def wnext(t):
        if t < NT_H:
            return t + D if t + D < NT_H + D else None
        tw = t + 7 if WPRE else t + D
        return tw if tw < NT else None
    def steps(s, t0, t1, units):
        e = s.append
        for t in range(t0, t1):
            p = part(t)
            if t < 15: s += sstamp("F", t + 1)
            if NT_H <= t < NT_H + 16: s += sstamp("G", t - NT_H)
            F = Fill(16); post = []
            if t + 1 < NT:
                F.add(0, wait_vm(("FW", t + 1)))
                for nb in range(4):
                    F.add(1 + 4*nb, rdA(t + 1, nb, 0)); F.add(3 + 4*nb, rdA(t + 1, nb, 1))
            tw = wnext(t)
            if tw is not None:
                o, d, pp = ldW(tw)
                F.add(0, o)
                for k, x in enumerate(d): F.add(2 + 2*k, x)
                F.add(9, pp)
            if t + D < NT and not (t < NT_H and t + D >= NT_H):
                o, d, pp = ldB(t + D)
                if o: F.add(9, o)
                for k, x in enumerate(d): F.add(10 + 2*k if k < 3 else 15, x)
                post = pp
            u = units.get(t, [])
            for nb in range(4):
                for qb in range(4):
                    g = 4*nb + qb
                    e(mfma16(ACC(p, nb, qb), AF(t, nb), BFf(t, qb), 0 if tl(t) == 0 else ACC(p, nb, qb)))
                    s += F.emit(g)
                    n = 2 if len(u) > 1 else len(u)
                    for _ in range(n):
                        if u: s.append(u.pop(0))
            s += u
            s += post
    f = []; e = f.append
    f += sstamp("F", 0)
    for qb in range(4): e(salu("s_mov_b32", S(S_T + qb), qb*131072))
    def both(t):
        o, d, p = ldW(t); r = o + [nop(0)] + d + p
        o, d, p = ldB(t); return r + o + d + p
    for t in range(2): f += both(t)
    for k in range(16): f += o_unit2(k)
    for t in range(2, D): f += both(t)
    e(wait_vm(("FW", 0)))
    for nb in range(4):
        for rd in range(2): e(rdA(0, nb, rd))
    steps(f, 0, NT_H, {})
    if WPRE:
        for t in range(NT_H + D, NT_H + 7):
            o, d, p = ldW(t); f += o + [nop(0)] + d + p
    sp = []; e = sp.append
    for t in range(NT_H, NT_H + D):
        o, d, p = ldB(t); sp += o; sp += d; sp += p
    steps(sp, NT_H, NT, {})
    sp += sstamp("H", 6)
    SRD_X, SRD_OUT = 8, 12
    e(sload(44, 0, 2)); e(sload(46, 72, 2))
    e(valu("v_lshlrev_b32", V(20), 4, V(1)))
    e(valu("v_add_u32", V(21), S(S_LDSW), V(20)))
    e(valu("v_and_b32", V(23), 15, V(1)))
    e(salu("s_lshl_b32", S(T0_), S(S_RB), 6)); e(salu("s_lshl_b32", S(T1_), S(S_WAVE), 4)); e(salu("s_add_u32", S(T0_), S(T0_), S(T1_)))
    e(valu("v_add_u32", V(23), S(T0_), V(23))); e(valu("v_lshlrev_b32", V(23), 10, V(23)))
    e(valu("v_lshrrev_b32", V(24), 4, V(1))); e(valu("v_lshl_add_u32", V(23), V(24), 3, V(23)))
    e(salu("s_lshl_b32", S(T1_), S(S_CB), 7)); e(valu("v_add_u32", V(23), S(T1_), V(23)))
    e(raw("s_waitcnt lgkmcnt(0)", "wait")); sp[-1].tag = (None, 0)
    sp += mksrd(SRD_X, 44, None, 2097152); sp += mksrd(SRD_OUT, 46, None, 2097152)
    XR_ = 160 - 128 + 2
    XR_ = 12
    for nb in range(4): e(buf_load(V(XR_ + 2*nb, 2), V(23), S(SRD_X, 4), 0, offset=nb*32, n=2))
    for i in list(range(16, 32)): e(ds_write("ds_write_b128", V(21), V(128 + 4*i, 4), offset=i*1024))
    e(nop(3))
    for i in list(range(16)): e(ds_write("ds_write_b128", V(21), V(128 + 4*i, 4), offset=i*1024))
    sp += sstamp("H", 7)
    e(wait_raw(lgkm=0)); e(barrier())
    sp += sstamp("H", 8)
    e(salu("s_lshl_b32", S(T0_), S(S_WAVE), 10))
    e(valu("v_add_u32", V(21), S(T0_), V(20))); e(valu("v_add_u32", V(22), 65536, V(21)))
    for p in (1, 0):
        for nb in range(4):
            for src in range(4):
                off = (src & 1)*32768 + (p*16 + nb*4)*1024
                e(ds_read("ds_read_b128", V(32 + ((p*4 + nb)*4 + src)*4, 4), V(21 if src < 2 else 22), offset=off))
    def red(p, nb):
        b = 32 + (p*4 + nb)*16; o = []
        for r in range(4):
            o.append(valu("v_add_f32", V(b + r), V(b + r), V(b + 4 + r))); o.append(valu("v_add_f32", V(b + 8 + r), V(b + 8 + r), V(b + 12 + r)))
        for r in range(4): o.append(valu("v_add_f32", V(b + r), V(b + r), V(b + 8 + r)))
        return o
    T = 168
    for nb in range(4):
        sp += red(1, nb)
    for nb in range(4):
        fb = 96 + nb*16; t = T + 8*nb
        e(valu("v_cvt_pk_bf16_f32", V(t), V(fb), V(fb + 1))); e(valu("v_cvt_pk_bf16_f32", V(t + 1), V(fb + 2), V(fb + 3)))
        for h in range(2):
            e(valu("v_lshlrev_b32", V(fb + 2*h), 16, V(t + h))); e(valu("v_and_b32", V(fb + 2*h + 1), "0xffff0000", V(t + h)))
        for r in range(4): e(valu("v_mul_f32", V(t + 4 + r), f2h(-1.4426950408889634), V(fb + r)))
    for nb in range(4):
        t = T + 8*nb
        for r in range(4): e(trans("v_exp_f32", V(t + 4 + r), V(t + 4 + r)))
    for nb in range(4): sp += red(0, nb)
    for nb in range(4):
        t = T + 8*nb
        for r in range(4): e(valu("v_add_f32", V(t + 4 + r), 1.0, V(t + 4 + r)))
    for nb in range(4):
        t = T + 8*nb
        for r in range(4): e(trans("v_rcp_f32", V(t + 4 + r), V(t + 4 + r)))
    for nb in range(4):
        sb, fb = 32 + nb*16, 96 + nb*16; t = T + 8*nb
        e(valu("v_cvt_pk_bf16_f32", V(t), V(sb), V(sb + 1))); e(valu("v_cvt_pk_bf16_f32", V(t + 1), V(sb + 2), V(sb + 3)))
        for h in range(2):
            e(valu("v_lshlrev_b32", V(sb + 2*h), 16, V(t + h))); e(valu("v_and_b32", V(sb + 2*h + 1), "0xffff0000", V(t + h)))
        for r in range(4): e(valu("v_mul_f32", V(sb + r), V(sb + r), V(fb + r)))
        for h in range(2):
            e(valu("v_lshlrev_b32", V(fb + 2*h), 16, V(XR_ + 2*nb + h))); e(valu("v_and_b32", V(fb + 2*h + 1), "0xffff0000", V(XR_ + 2*nb + h)))
        for r in range(4): e(valu("v_fma_f32", V(sb + r), V(sb + r), V(t + 4 + r), V(fb + r)))
        e(valu("v_cvt_pk_bf16_f32", V(t + 2), V(sb), V(sb + 1))); e(valu("v_cvt_pk_bf16_f32", V(t + 3), V(sb + 2), V(sb + 3)))
        e(buf_store(V(t + 2, 2), V(23), S(SRD_OUT, 4), 0, offset=nb*32, n=2, flags=OUTFLAGS))
    sp += sstamp("H", 9)
    return pre, f, sp

def final3(name):
    ADDRA, VOFW, VOFB, VB = 2, 6, 10, 12
    ACCS, ACCF = 128, 192
    NT = NT_O
    NT_H = 0
    def part(t): return 0
    def tl(t): return t
    def ACC(p, nb, qb): return V((ACCS if p == 0 else ACCF) + 16*nb + 4*qb, 4)
    def AF(t, nb): return V(64 + 16*(t & 1) + 4*nb, 4)
    def BFf(t, qb): return A(16*(t % NSLOT) + 4*qb, 4)
    SRD_A0, SRD_A1, SRD_W0, SRD_W1 = 8, 12, 16, 20
    SRD_O2 = 24
    S_RB, S_CB, S_LDSW, S_SA, S_SW = 32, 33, 34, 35, 36
    pre = []; e = pre.append
    e(salu("s_lshl_b32", S(T3_), S(S_QB), 4)); e(salu("s_lshl_b32", S(T2_), S(S_WAVE), 2)); e(salu("s_add_u32", S(T3_), S(T3_), S(T2_)))
    e(salu("s_lshl_b32", S(T0_), S(T3_), 7)); e(salu("s_lshl_b32", S(T1_), S(S_HEAD), 2)); e(salu("s_add_u32", S(T0_), S(T0_), S(T1_)))
    e(salu("s_lshl_b32", S(T0_), S(T0_), 10)); e(salu("s_add_u32", S(T0_), S(T0_), O_OFF))
    pre += mksrd(SRD_O, P_WS, T0_, 3*131072 + 4096)
    e(salu("s_and_b32", S(T0_), S(S_HEAD), 7)); e(salu("s_lshr_b32", S(T1_), S(S_HEAD), 3))
    e(salu("s_lshr_b32", S(T2_), S(T0_), 1)); e(salu("s_lshl_b32", S(S_RB), S(S_QB), 2)); e(salu("s_add_u32", S(S_RB), S(S_RB), S(T2_)))
    if CBX: e(salu("s_xor_b32", S(T1_), S(T1_), CBX))
    e(salu("s_and_b32", S(T0_), S(T0_), 1))
    if CBM == 0: e(salu("s_lshl_b32", S(T0_), S(T0_), 2))
    else: e(salu("s_lshl_b32", S(T1_), S(T1_), 1))
    e(salu("s_add_u32", S(S_CB), S(T0_), S(T1_)))
    e(salu("s_lshl_b32", S(T0_), S(S_RB), 9)); e(salu("s_lshl_b32", S(T1_), S(S_WAVE), 5)); e(salu("s_add_u32", S(T0_), S(T0_), S(T1_)))
    e(salu("s_lshl_b32", S(T0_), S(T0_), 10)); e(salu("s_add_u32", S(T0_), S(T0_), O_OFF))
    pre += mksrd(SRD_A0, P_WS, T0_, 3*131072 + 32*1024)
    e(salu("s_mul_i32", S(T0_), S(S_RB), 224)); e(salu("s_mul_i32", S(T1_), S(S_WAVE), 14)); e(salu("s_add_u32", S(T0_), S(T0_), S(T1_)))
    e(salu("s_lshl_b32", S(T0_), S(T0_), 10)); e(salu("s_add_u32", S(T0_), S(T0_), H_OFF))
    pre += mksrd(SRD_A1, P_WS, T0_, 3*57344 + 14*1024)
    e(salu("s_lshl_b32", S(T0_), S(S_WAVE), 20)); e(salu("s_lshl_b32", S(T1_), S(S_CB), 6 if COLSPLIT else 7)); e(salu("s_add_u32", S(T0_), S(T0_), S(T1_)))
    e(salu("s_sub_u32", S(T2_), 4096*1024, S(T0_)))
    pre += mksrd(SRD_W0, P_WO, T0_, S(T2_))
    if PK3:
        e(raw(f"s_cmp_eq_u32 s{S_CB}, 3", "salu", rd=regs("s", S_CB)))
        e(salu("s_mov_b32", S(39), 1024)); e(salu("s_mov_b32", S(42), 32768)); e(salu("s_mov_b32", S(37), 32*32768 - 1))
        e(salu("s_cselect_b32", S(39), 128, S(39))); e(salu("s_cselect_b32", S(42), 4096, S(42))); e(salu("s_cselect_b32", S(37), 32*4096 - 1, S(37)))
        if PK3 == 1:
            e(salu("s_lshl_b32", S(T0_), S(S_WAVE), 17)); e(salu("s_add_u32", S(T0_), S(T0_), S(P_WO))); e(salu("s_addc_u32", S(T1_), S(P_WO + 1), 0))
        else:
            e(salu("s_lshl_b32", S(T0_), S(S_WAVE), 17)); e(salu("s_add_u32", S(T0_), S(T0_), PK_OFF)); e(salu("s_add_u32", S(T0_), S(T0_), S(P_WS))); e(salu("s_addc_u32", S(T1_), S(P_WS + 1), 0))
        e(raw(f"s_cmp_eq_u32 s{S_CB}, 3", "salu", rd=regs("s", S_CB)))
        e(salu("s_cselect_b32", S(SRD_W0), S(T0_), S(SRD_W0))); e(salu("s_cselect_b32", S(SRD_W0 + 1), S(T1_), S(SRD_W0 + 1))); e(salu("s_cselect_b32", S(SRD_W0 + 2), 131072, S(SRD_W0 + 2)))
    e(salu("s_mul_i32", S(T0_), S(S_WAVE), 448*1024)); e(salu("s_add_u32", S(T0_), S(T0_), S(T1_)))
    e(salu("s_sub_u32", S(T2_), 1792*1024, S(T0_)))
    pre += mksrd(SRD_W1, P_WD, T0_, S(T2_))
    e(salu("s_lshl_b32", S(S_LDSW), S(S_WAVE), 15))
    G, RR, C, T1, T2, X = 20, 21, 22, 23, 24, 25
    e(valu("v_lshrrev_b32", V(G), 4, V(1))); e(valu("v_bfe_u32", V(RR), V(1), 2, 2)); e(valu("v_and_b32", V(C), 3, V(1)))
    e(valu("v_lshl_add_u32", V(T2), V(G), 2, V(RR))); e(valu("v_lshlrev_b32", V(T2), 7, V(T2)))
    e(valu("v_lshl_add_u32", V(T2), V(C), 3, V(T2))); e(valu("v_add_u32", V(T2), S(S_LDSW), V(T2)))
    e(valu("v_and_b32", V(X), 1, V(G))); e(valu("v_lshlrev_b32", V(X), 1, V(X))); e(valu("v_lshrrev_b32", V(T1), 1, V(RR))); e(valu("v_add_u32", V(X), V(X), V(T1)))
    for b in range(4):
        e(valu("v_xor_b32", V(T1), b, V(X))); e(valu("v_lshl_add_u32", V(ADDRA + b), V(T1), 5, V(T2)))
    e(valu("v_lshrrev_b32", V(T1), 3, V(1)))
    if PK3: e(valu("v_mul_lo_u32", V(T2), V(T1), S(39)))
    else: e(valu("v_lshlrev_b32", V(T2), 10, V(T1)))
    e(valu("v_lshlrev_b32", V(X), 1, V(G))); e(valu("v_and_b32", V(T1), 7, V(1))); e(valu("v_xor_b32", V(T1), V(T1), V(X)))
    if COLSPLIT:
        e(valu("v_lshrrev_b32", V(X), 2, V(T1))); e(valu("v_lshl_add_u32", V(T2), V(X), 9, V(T2))); e(valu("v_and_b32", V(T1), 3, V(T1)))
    e(valu("v_lshl_add_u32", V(VOFW), V(T1), 4, V(T2)))
    if PK3:
        e(salu("s_lshl_b32", S(T0_), S(39), 3)); e(salu("s_sub_u32", S(T0_), S(T0_), 1024))
        e(valu("v_add_u32", V(VOFW + 1), S(T0_), V(VOFW))); e(valu("v_add_u32", V(VOFW + 2), S(T0_), V(VOFW + 1))); e(valu("v_add_u32", V(VOFW + 3), S(T0_), V(VOFW + 2)))
    else:
        for i in range(1, 4): e(valu("v_add_u32", V(VOFW + i), i*7168, V(VOFW)))
    e(valu("v_lshlrev_b32", V(VOFB), 4, V(1)))
    for qb in range(4):
        e(valu("v_add_u32", V(VB + qb), qb*131072, V(VOFB))); e(valu("v_add_u32", V(VB + 4 + qb), qb*57344, V(VOFB)))
    if ROTW:
        e(salu("s_mul_i32", S(S_SA), S(S_WAVE), ROTW*1024)); e(salu("s_and_b32", S(S_SA), S(S_SA), 32767))
        if PK3:
            e(salu("s_lshr_b32", S(S_SW), S(S_SA), 10)); e(salu("s_mul_i32", S(S_SW), S(S_SW), S(42)))
        else: e(salu("s_lshl_b32", S(S_SW), S(S_SA), 5))
    else:
        e(salu("s_mov_b32", S(S_SA), 0)); e(salu("s_mov_b32", S(S_SW), 0))
    D = FD
    def ldW(t):
        p = part(t); o = []
        o.append(salu("s_add_u32", "m0", S(S_LDSW), (t % NSLOT)*4096))
        d = [buf_dma(V(VOFW + i), S(SRD_W0 if p == 0 else SRD_W1, 4), S(S_SW), offset=i*1024, tag=("FW", t)) for i in range(4)]
        if PK3: return o, d, [salu("s_add_u32", S(S_SW), S(S_SW), S(42)), salu("s_and_b32", S(S_SW), S(S_SW), S(37))]
        return o, d, [salu("s_add_u32", S(S_SW), S(S_SW), 32768)] + ([salu("s_and_b32", S(S_SW), S(S_SW), 32*32768 - 1)] if ROTW else [])
    def ldB(t):
        p = part(t); o = []
        d = [buf_load(BFf(t, qb), V(VB + 4*p + qb), S(SRD_A0 if p == 0 else SRD_A1, 4), S(S_SA), tag=("FB", t), flags="sc1") for qb in range(4)]
        return o, d, [salu("s_add_u32", S(S_SA), S(S_SA), 1024)] + ([salu("s_and_b32", S(S_SA), S(S_SA), 32767)] if ROTW else [])
    def rdA(t, nb, rd):
        return ds_read("ds_read_b64_tr_b16", sub(AF(t, nb), 2*rd, 2), V(ADDRA + nb), offset=(t % NSLOT)*4096 + rd*2048)
    def o_unit2(k):
        qb, dp = k >> 2, k & 3
        t = 32 + 8*(k % 2); pk = 48 + 4*(k % 4)
        o = []
        for u in range(2):
            for r in range(4): o.append(valu("v_accvgpr_read_b32", V(t + 4*u + r), sub(OACC(2*dp + u, qb), r)))
        for i in range(8): o.append(valu("v_mul_f32", V(t + i), V(t + i), V(RI + qb)))
        for i in range(4): o.append(valu("v_cvt_pk_bf16_f32", V(pk + i), V(t + 2*i), V(t + 2*i + 1)))
        o.append(buf_store(V(pk, 4), V(VLANE16), S(SRD_O, 4), S(S_T + qb), offset=dp*1024, tag="O", flags="sc1"))
        return o
    def wnext(t):
        tw = t + 7
        return tw if tw < NT else None
    def steps(s, t0, t1, units):
        e = s.append
        for t in range(t0, t1):
            p = part(t)
            if t < 16: s += sstamp("G", t)
            if t >= 20 and t % 2 == 0: s += sstamp("H", (t - 20)//2)
            F = Fill(16); post = []
            if t + 1 < NT:
                F.add(0, wait_vm(("FW", t + 1)))
                for nb in range(4):
                    F.add(1 + 4*nb, rdA(t + 1, nb, 0)); F.add(3 + 4*nb, rdA(t + 1, nb, 1))
            tw = wnext(t)
            if tw is not None:
                o, d, pp = ldW(tw)
                F.add(0, o)
                for k, x in enumerate(d): F.add(2 + 2*k, x)
                F.add(9, pp)
            if t + D < NT:
                o, d, pp = ldB(t + D)
                if o: F.add(9, o)
                for k, x in enumerate(d): F.add(10 + 2*k if k < 3 else 15, x)
                post = pp
            u = units.get(t, [])
            for nb in range(4):
                for qb in range(4):
                    g = 4*nb + qb
                    e(mfma16(ACC(p, nb, qb), AF(t, nb), BFf(t, qb), 0 if tl(t) == 0 else ACC(p, nb, qb)))
                    s += F.emit(g)
                    n = 2 if len(u) > 1 else len(u)
                    for _ in range(n):
                        if u: s.append(u.pop(0))
            s += u
            s += post
    f = []; e = f.append
    for qb in range(4): e(salu("s_mov_b32", S(S_T + qb), qb*131072))
    for t in range(2):
        o, d, p = ldW(t); f += o + [nop(0)] + d + p
    for k in range(16): f += o_unit2(k)
    for t in range(2, 7):
        o, d, p = ldW(t); f += o + [nop(0)] + d + p
    sp = []; e = sp.append
    for t in range(D):
        o, d, p = ldB(t); sp += o; sp += d; sp += p
    e(wait_vm(("FW", 0)))
    for nb in range(4):
        for rd in range(2): e(rdA(0, nb, rd))
    steps(sp, 0, NT, {})
    sp += sstamp("H", 6)
    SRD_X, SRD_OUT = 8, 12
    e(sload(44, 0, 2)); e(sload(46, 72, 2))
    e(valu("v_lshlrev_b32", V(20), 4, V(1)))
    e(valu("v_add_u32", V(21), S(S_LDSW), V(20)))
    e(valu("v_and_b32", V(23), 15, V(1)))
    e(salu("s_lshl_b32", S(T0_), S(S_RB), 6)); e(salu("s_lshl_b32", S(T1_), S(S_WAVE), 4)); e(salu("s_add_u32", S(T0_), S(T0_), S(T1_)))
    e(valu("v_add_u32", V(23), S(T0_), V(23))); e(valu("v_lshlrev_b32", V(23), 10, V(23)))
    e(valu("v_lshrrev_b32", V(24), 4, V(1))); e(valu("v_lshl_add_u32", V(23), V(24), 3, V(23)))
    e(salu("s_lshl_b32", S(T1_), S(S_CB), 6 if COLSPLIT else 7)); e(valu("v_add_u32", V(23), S(T1_), V(23)))
    e(raw("s_waitcnt lgkmcnt(0)", "wait")); sp[-1].tag = (None, 0)
    sp += mksrd(SRD_X, 44, None, 2097152); sp += mksrd(SRD_OUT, 46, None, 2097152)
    XR_ = 160 - 128 + 2
    XR_ = 12
    for nb in range(4): e(buf_load(V(XR_ + 2*nb, 2), V(23), S(SRD_X, 4), 0, offset=((nb & 1)*32 + (nb >> 1)*512) if COLSPLIT else nb*32, n=2))
    for i in list(range(16, 32)): e(ds_write("ds_write_b128", V(21), A(128 + 4*(i - 16), 4), offset=i*1024))
    e(nop(3))
    for i in list(range(16)): e(ds_write("ds_write_b128", V(21), V(128 + 4*i, 4), offset=i*1024))
    sp += sstamp("H", 7)
    e(wait_raw(lgkm=0)); e(barrier())
    sp += sstamp("H", 8)
    e(salu("s_lshl_b32", S(T0_), S(S_WAVE), 10))
    e(valu("v_add_u32", V(21), S(T0_), V(20))); e(valu("v_add_u32", V(22), 65536, V(21)))
    for p in (1, 0):
        for nb in range(4):
            for src in range(4):
                off = (src & 1)*32768 + (p*16 + nb*4)*1024
                e(ds_read("ds_read_b128", V(32 + ((p*4 + nb)*4 + src)*4, 4), V(21 if src < 2 else 22), offset=off))
    def red(p, nb):
        b = 32 + (p*4 + nb)*16; o = []
        for r in range(4):
            o.append(valu("v_add_f32", V(b + r), V(b + r), V(b + 4 + r))); o.append(valu("v_add_f32", V(b + 8 + r), V(b + 8 + r), V(b + 12 + r)))
        for r in range(4): o.append(valu("v_add_f32", V(b + r), V(b + r), V(b + 8 + r)))
        return o
    T = 168
    for nb in range(4):
        sp += red(1, nb)
    for nb in range(4):
        fb = 96 + nb*16; t = T + 8*nb
        e(valu("v_cvt_pk_bf16_f32", V(t), V(fb), V(fb + 1))); e(valu("v_cvt_pk_bf16_f32", V(t + 1), V(fb + 2), V(fb + 3)))
        for h in range(2):
            e(valu("v_lshlrev_b32", V(fb + 2*h), 16, V(t + h))); e(valu("v_and_b32", V(fb + 2*h + 1), "0xffff0000", V(t + h)))
        for r in range(4): e(valu("v_mul_f32", V(t + 4 + r), f2h(-1.4426950408889634), V(fb + r)))
    for nb in range(4):
        t = T + 8*nb
        for r in range(4): e(trans("v_exp_f32", V(t + 4 + r), V(t + 4 + r)))
    for nb in range(4): sp += red(0, nb)
    for nb in range(4):
        t = T + 8*nb
        for r in range(4): e(valu("v_add_f32", V(t + 4 + r), 1.0, V(t + 4 + r)))
    for nb in range(4):
        t = T + 8*nb
        for r in range(4): e(trans("v_rcp_f32", V(t + 4 + r), V(t + 4 + r)))
    for nb in range(4):
        sb, fb = 32 + nb*16, 96 + nb*16; t = T + 8*nb
        e(valu("v_cvt_pk_bf16_f32", V(t), V(sb), V(sb + 1))); e(valu("v_cvt_pk_bf16_f32", V(t + 1), V(sb + 2), V(sb + 3)))
        for h in range(2):
            e(valu("v_lshlrev_b32", V(sb + 2*h), 16, V(t + h))); e(valu("v_and_b32", V(sb + 2*h + 1), "0xffff0000", V(t + h)))
        for r in range(4): e(valu("v_mul_f32", V(sb + r), V(sb + r), V(fb + r)))
        for h in range(2):
            e(valu("v_lshlrev_b32", V(fb + 2*h), 16, V(XR_ + 2*nb + h))); e(valu("v_and_b32", V(fb + 2*h + 1), "0xffff0000", V(XR_ + 2*nb + h)))
        for r in range(4): e(valu("v_fma_f32", V(sb + r), V(sb + r), V(t + 4 + r), V(fb + r)))
        e(valu("v_cvt_pk_bf16_f32", V(t + 2), V(sb), V(sb + 1))); e(valu("v_cvt_pk_bf16_f32", V(t + 3), V(sb + 2), V(sb + 3)))
        e(buf_store(V(t + 2, 2), V(23), S(SRD_OUT, 4), 0, offset=((nb & 1)*32 + (nb >> 1)*512) if COLSPLIT else nb*32, n=2, flags=OUTFLAGS))
    sp += sstamp("H", 9)
    return pre, f, sp


def fb_check2(name):
    c = mega.fb_check(name)
    i = [k for k, x in enumerate(c) if x.kind == "barrier"][0]
    L = f"{name}_hp"
    p = []; e = p.append
    e(raw(f"s_cmp_lg_u32 s{S_WAVE}, 0", "salu", rd=regs("s", S_WAVE)))
    e(raw(f"s_cbranch_scc1 {L}_skip", "branch"))
    e(salu("s_lshl_b32", S(T0_), S(S_QB), 7)); e(salu("s_add_u32", S(T0_), S(T0_), 4096*3))
    e(raw("s_mov_b32 exec_lo, -1", "salu")); e(raw("s_mov_b32 exec_hi, 0", "salu"))
    e(raw(f"v_lshlrev_b32 v{TMP+11}, 2, v1", "other"))
    e(salu("s_mov_b32", S(T2_), SPIN_MAX))
    e(label(f"{L}_poll"))
    e(raw(f"buffer_load_dword v{TMP+12}, v{TMP+11}, s[{SRD_SY}:{SRD_SY+3}], s{T0_} offen sc1", "other"))
    e(raw("s_waitcnt vmcnt(0)", "other"))
    e(raw(f"v_cmp_ne_u32 vcc, s{S_EPOCH}, v{TMP+12}", "other")); e(raw("s_nop 4", "other"))
    e(raw(f"s_cbranch_vccz {L}_done", "branch"))
    e(raw(f"s_sub_u32 s{T2_}, s{T2_}, 1", "other")); e(raw(f"s_cbranch_scc1 {L}_done", "branch"))
    e(raw("s_sleep 1", "other")); e(raw(f"s_branch {L}_poll", "branch"))
    e(label(f"{L}_done"))
    e(raw("s_mov_b64 exec, -1", "salu"))
    e(label(f"{L}_skip"))
    return c[:i + 1] + p + c[i + 1:]

def gen_mega2(name):
    k1.SC1 = True
    k1._cs[0] = 0
    mega.FB_LDS = XR
    s = stamp(0); e = s.append
    if k1.STEPSTAMP: s += [raw('s_memtime s[96:97]', 'smem'), raw('s_waitcnt lgkmcnt(0)', 'other'), raw('s_mov_b32 s80, s96', 'salu')]
    e(raw("s_cmp_ge_u32 s2, 256", "salu", rd=regs("s", 2)))
    e(raw(f"s_cbranch_scc1 {name}_end", "branch"))
    e(sload(60, 0, 2))
    e(raw("s_getpc_b64 s[100:101]", "salu", wr=regs("s", 100, 2))); e(label(f"{name}_pc"))
    s += setup_mega2()
    s += cstamp('S')
    s += setup_addr2()
    s += flatW2(0)
    if WTOUCH == 1: s += touches2()
    if WTOUCH in (3, 4): s += touches2(1)
    s += flatW2(1)
    s += cstamp('S')
    s += epoch_fix()
    s += cstamp('S')
    s += ln_compute()
    s += cstamp('S')
    midl = flatW2(2) + flatW2(3) + (code_touch(name, PFD + 3) if CODEPF else []) + setupK() + setup_addr3() + touch_prep()
    if not SIGEARLY: s += midl
    s += cstamp('S')
    e(wait_vm("XN"))
    s += stamp(1)
    s += cstamp('S')
    s += poll_barrier(name, 0, mid=midl if SIGEARLY else None)
    s += stamp(2)
    s += cstamp('S')
    s += loadB(0) + advB2()
    s += fused_phase()
    s += stamp(3)
    s += cstamp('M')
    if PK3 == 2: s += pk_load()
    if KVLATE:
        s += flatKV(dmaV(2)); s += flatKV(dmaK(2)); s += flatKV(dmaK(3))
    if CONV2:
        s += conv_phase()
        s += window_m1()
    else:
        s += qconvert()
        s += h_epilogue2()
        for i in range(16): e(valu("v_mov_b32", V(LREG + i), 0))
        for i in range(4): e(valu("v_mov_b32", V(ONES + i), "0x3f803f80"))
        s += first_max()
        s += window(-1, 0, last_qk=True, do_pv=False, do_kread=True, exp_tail=False)
    s += stamp(4)
    s += cstamp('M')
    e(salu("s_mov_b32", S(S_LOOP), 0))
    if PK3 == 2:
        s += pk_store()
        s += pk_flag_setup(TMP + 6, TMP + 7)
        e(salu("s_mov_b32", S(75), 14336))
    if FTAIL: s += f_setup()
    s += flag_addr_setup(2, TMP + 10, TMP + 11)
    e(salu("s_lshl_b32", S(7), S(2), 2)); e(salu("s_add_u32", S(7), S(7), S(S_WAVE))); e(salu("s_lshl_b32", S(7), S(7), 12))
    if MALLPF == 2:
        e(valu("v_lshlrev_b32", V(PFD + 3), 6, V(1)))
    else:
        e(valu("v_and_b32", V(PFD + 3), 31, V(1))); e(valu("v_lshlrev_b32", V(PFD + 3), 7, V(PFD + 3)))
    s += [salu("s_mov_b32", S(60), S(P_WD)), salu("s_mov_b32", S(61), S(P_WD + 1)), salu("s_mov_b32", S(62), 1792*1024 if WD_IT == 0 else 0), salu("s_mov_b32", S(63), "0x00020000")]
    if CODEPF:
        s += [salu("s_mov_b32", S(76), S(100)), salu("s_mov_b32", S(77), S(101)), raw(f"s_mov_b32 s78, {name}_codeend-{name}_pc", "salu", wr=regs("s", 78)), salu("s_mov_b32", S(79), "0x00020000")]
        e(salu("s_lshr_b32", S(90), S(2), 3)); e(salu("s_and_b32", S(90), S(90), 15)); e(salu("s_lshl_b32", S(90), S(90), 12))
        e(valu("v_lshlrev_b32", V(PFD + 2), 6, V(1)))
    def pf_next():
        b = [[raw(f"s_cmp_eq_u32 s{S_LOOP}, {WO_IT - 1}", "salu", rd=regs("s", S_LOOP)), salu("s_cselect_b32", S(60), S(P_WO), S(P_WD)), salu("s_cselect_b32", S(61), S(P_WO + 1), S(P_WD + 1)),
              salu("s_cselect_b32", S(62), 4096*1024, 0)]]
        if WD_IT > 0:
            b.append([raw(f"s_cmp_eq_u32 s{S_LOOP}, {WD_IT - 1}", "salu", rd=regs("s", S_LOOP)), salu("s_cselect_b32", S(62), 1792*1024, S(62))])
        return b
    if L2W3:
        e(salu("s_mov_b32", S(28), S(P_WO))); e(salu("s_mov_b32", S(29), S(P_WO + 1))); e(salu("s_mov_b32", S(30), 0)); e(salu("s_mov_b32", S(31), "0x00020000"))
        e(salu("s_lshl_b32", S(91), S(S_WAVE), 20)); e(salu("s_lshl_b32", S(T0_ + 14), S(S_QB), 17)); e(salu("s_add_u32", S(91), S(91), S(T0_ + 14))); e(salu("s_add_u32", S(91), S(91), 384))
        e(valu("v_lshlrev_b32", V(168), 10, V(1))); e(valu("v_add_u32", V(169), 65536, V(168)))
        e(salu("s_and_b32", S(74), S(S_HEAD), 0x19)); e(raw("s_cmp_eq_u32 s74, 0x18", "salu", rd=regs("s", 74))); e(salu("s_cselect_b32", S(75), 4096*1024, 0))
    e(LoopBegin(f"{name}_loop"))
    for T in range(4):
        d0, d1 = tile_dma(T)
        x0, x1 = [], []
        if L2W3 and T == 0:
            x0.append((15, [raw(f"s_cmp_eq_u32 s{S_LOOP}, {L2W3_IT}", "salu", rd=regs("s", S_LOOP)), salu("s_cselect_b32", S(30), S(75), 0)]))
        if L2W3 and T == 1:
            x0.append((39, buf_load(V(170), V(168), S(28, 4), S(91), n=1, tag="PF")))
            x0.append((47, buf_load(V(171), V(169), S(28, 4), S(91), n=1, tag="PF")))
        if T == 0 and MALLPF: x1.append((39, buf_load(V(PFD), V(PFD + 3), S(60, 4), S(7), n=1, tag="PF")))
        if T == 1:
            for k, b in enumerate(pf_next()): x1.append((15 + 2*k, b))
        if T == 2:
            if CODEPF: x1.append((39, buf_load(V(PFD + 1), V(PFD + 2), S(76, 4), S(90), n=1, tag="PF")))
            x0.append((39, buf_store(V(TMP + 11), V(TMP + 10), S(SRD_SY, 4), 0, n=1, tag="HF", flags="sc1")))
            x0.append((41, valu("v_or_b32", V(TMP + 10), "0x40000000", V(TMP + 10))))
            if PK3 == 2:
                x0.append((47, buf_store(V(TMP + 7), V(TMP + 6), S(SRD_SY, 4), 0, n=1, tag="HF", flags="sc1")))
                x0.append((55, valu("v_or_b32", V(TMP + 6), "0x40000000", V(TMP + 6))))
        if T == 3 and FTAIL: x0.append((39, h_flag_load()))
        if T == 3 and PK3 == 2: x0.append((47, pk_flag_load()))
        w0 = window(2*T, T, dma=d0, bar=True, extra=x0)
        if T == 2:
            for x in w0:
                if x.kind == "waitvm": x.need = set(x.need) | {"H", "CP"}
        s += w0
        s += window(2*T + 1, T, dma=d1, extra=x1)
    e(salu("s_add_u32", S(S_LOOP), S(S_LOOP), 1))
    e(raw(f"s_cmp_lt_u32 s{S_LOOP}, 7", "salu", rd=regs("s", S_LOOP)))
    e(raw(f"s_cbranch_scc1 {name}_loop", "branch"))
    e(LoopEnd(f"{name}_loop"))
    s += cstamp('M')
    if FTAIL:
        s += tail_F(name)
    else:
        for T in range(28, 32):
            d0, d1 = tile_dma(T, doK=False, doV=(T + 3 <= 31))
            j = 2*T
            s += window(j, T, dma=d0, bar=(T < 31), do_kread=(j + 2 <= 63))
            j = 2*T + 1
            s += window(j, T, dma=d1, last_qk=(j + 1 <= 63), do_kread=(j + 2 <= 63))
    s += stamp(5)
    s += cstamp('M')
    s += (mega.fb_check(name) if FTAIL else fb_check2(name))
    s += o_rinv()[:-4]
    pre, f, sp = (final3 if FTAIL else final2)(name)
    s += pre
    s += stamp(6)
    s += cstamp('M')
    s += f
    s += cstamp('M')
    e(wait_vm("O"))
    s += stamp(7)
    s += cstamp('M')
    s += poll_barrier(name, 1)
    s += stamp(8)
    s += cstamp('M')
    s += sp
    s += cstamp('M')
    if k1.STAMPS: e(raw("s_waitcnt vmcnt(0)", "other"))
    s += stamp(9)
    s += stamp_dump(16 if k1.STEPSTAMP else 10)
    main, res = finish(s, name)
    return main + [label(f"{name}_codeend")] + fallback(name), res
```

```python
import sys
from ir import render
import k0, k1, k2, mega, mega2

NAME = "recurrent_scan__mha_block_cached__glu_gated_reglu__prompt"
HDR = open("cdna_kernels/" + NAME + ".s.ref").read().split("\n")

def build(stop=None, kernels=("k0", "k1", "k2")):
    head = [l for l in HDR if l.startswith(";") and "@launch" not in l and "Override launch" not in l and "grid=ceil" not in l]
    launches = {"k0": "; @launch kernel=ln_kernel grid=(256,1,1) block=(128,1,1) lds=0",
                "k1": f"; @launch kernel=attn_kernel grid=(256,1,1) block=(256,1,1) lds={k1.LDS_BYTES}",
                "k2": "; @launch kernel=final_kernel grid=(256,1,1) block=(256,1,1) lds=131072",
                "mega": f"; @launch kernel=mega_kernel grid=(256,1,1) block=(256,1,1) lds={k1.LDS_BYTES}",
                "mega2": f"; @launch kernel=mega_kernel grid=(256,1,1) block=(256,1,1) lds={k1.LDS_BYTES}",
                "single2": f"; @launch grid=(256,1,1) block=(256,1,1) lds={k1.LDS_BYTES}",
                "single": f"; @launch grid=(256,1,1) block=(256,1,1) lds={k1.LDS_BYTES}"}
    out = head + [launches[k] for k in kernels]
    out.append('.amdgcn_target "amdgcn-amd-amdhsa--gfx950"')
    out.append(".text")
    descs = []
    for k, nm, fn in (("k0", "ln_kernel", lambda n: k0.gen_k0(n)), ("k1", "attn_kernel", lambda n: k1.gen_k1(n, stop=stop)), ("k2", "final_kernel", lambda n: k2.gen_k2(n)), ("mega", "mega_kernel", lambda n: mega.gen_mega(n)), ("single", NAME + "_kernel", lambda n: mega.gen_mega("mk")), ("mega2", "mega_kernel", lambda n: mega2.gen_mega2(n)), ("single2", NAME + "_kernel", lambda n: mega2.gen_mega2("mk"))):
        if k not in kernels: continue
        st, res = fn(nm)
        if k == "single":
            pass
        out.append(f".globl {nm}\n.p2align 8\n.type {nm},@function\n{nm}:")
        out.append(render(st))
        descs.append(f""".amdhsa_kernel {nm}
  .amdhsa_next_free_vgpr {res['vgpr']}
  .amdhsa_next_free_sgpr {res['sgpr']}
  .amdhsa_accum_offset {res['accum']}
  .amdhsa_group_segment_fixed_size 0
  .amdhsa_kernarg_size 96
  .amdhsa_user_sgpr_count 2
  .amdhsa_user_sgpr_kernarg_segment_ptr 1
  .amdhsa_system_sgpr_workgroup_id_x 1
.end_amdhsa_kernel""")
    out.append('.section .rodata,"a"')
    for d in descs:
        out.append(".p2align 6"); out.append(d)
    return "\n".join(out) + "\n"

if __name__ == "__main__":
    import argparse
    ap = argparse.ArgumentParser()
    ap.add_argument("-o", default="full.s")
    ap.add_argument("--stop", default=None)
    ap.add_argument("--kernels", default="k0,k1,k2")
    ap.add_argument("--stamps", action="store_true")
    ap.add_argument("--delta", type=int, default=1)
    ap.add_argument("--stepstamp", default=None)
    ap.add_argument("--norot", action="store_true")
    ap.add_argument("--forcefb", action="store_true")
    ap.add_argument("--k1", default="")
    ap.add_argument("--m2", default="")
    ap.add_argument("--nocodepf", action="store_true")
    ap.add_argument("--fin", default="")
    a = ap.parse_args()
    k1.STAMPS = a.stamps; k2.STAMPS = a.stamps
    k2.DELTA = a.delta
    k1.STEPSTAMP = a.stepstamp
    if a.stepstamp: k1.STAMPS = True
    k1.ROT = not a.norot
    mega.FORCE_FB = a.forcefb
    for kv in a.k1.split(','):
        if kv:
            k, v = kv.split('='); setattr(k1, k, int(v))
    for kv in a.m2.split(','):
        if kv:
            k, v = kv.split('='); setattr(mega2, k, int(v) if v.lstrip('-').isdigit() else v.replace('+', ' '))
    mega.CODEPF = not a.nocodepf
    for kv in a.fin.split(','):
        if kv:
            k, v = kv.split('='); mega.FIN[k] = int(v)
    t = build(stop=a.stop, kernels=a.kernels.split(","))
    open(a.o, "w").write(t)
    print("wrote", a.o, len(t), "bytes")
```

```python
from ir import *
from k0 import sload, XN_OFF, O_OFF, H_OFF, DBG_OFF
import k1
from k1 import *
import mega
from mega import SYNC_OFF, S_EPOCH, SRD_SY, SPIN_MAX, ln_loads, ln_compute, code_touch, poll_barrier, fallback
S_EPC = 91
def epoch_fix():
    o = [valu("v_readfirstlane_b32", S(S_EPOCH), V(TMP + 9)), nop(3), salu("s_add_u32", S(S_EPOCH), S(S_EPOCH), 1)]
    if PK3 == 2: o += [valu("v_readfirstlane_b32", S(S_EPC), V(TMP + 8)), nop(3), salu("s_add_u32", S(S_EPC), S(S_EPC), 1)]
    return o

CODEPF = True
OBURST = True
WTOUCH = 4
WPRE = 1
CONV2 = 1
FTAIL = 1
CBX = 0
FASTPOST = 1
PK3 = 2
PK_OFF = 28 << 20
L2W3 = 0
L2W3_IT = 6
ROTW = 1
COLSPLIT = 0
WO_IT = 1
WD_IT = 0
MALLPF = 1
CBM = 0
KVLATE = 0
SIGEARLY = 1
FVMOUT = 1
KVT = 1
OUTFLAGS = ''
FD = 3
ADDRE, VOFFE = 96, 100
SRD_E = 24
S_SOFFE = 38
RING0 = 32768
def ringslot(t): return RING0 + 16384*(t % 8)
def rbase(t): return RING0 if (t % 8) < 4 else RING0 + 65536
def ACCQ(db, qb): return V(128 + 16*db + 4*qb, 4)
def ACCE(db, qb): return A(16*db + 4*qb, 4)
def AFB(db): return A(192 + 4*db, 4)
WSTEP_E = 32*3584

def flag_addr_setup(idx, vaddr, vval):
    s = []; e = s.append
    e(salu("s_lshl_b32", S(S_T), S(S_QB), 7)); e(salu("s_add_u32", S(S_T), S(S_T), 4096*(1 + idx)))
    e(salu("s_lshl_b32", S(S_T + 1), S(S_HEAD), 2)); e(salu("s_add_u32", S(S_T), S(S_T), S(S_T + 1)))
    e(valu("v_mov_b32", V(vaddr), S(S_T)))
    e(valu("v_lshlrev_b32", V(vval), 14, V(0)))
    e(valu("v_add_u32", V(vaddr), V(vaddr), V(vval)))
    e(valu("v_mov_b32", V(vval), S(S_EPOCH)))
    return s

def setup_mega2():
    s = []; e = s.append
    e(sload(P_WS, 88, 2))
    e(sload(P_WQ, 24, 4)); e(sload(SRD_K, 8, 2)); e(sload(SRD_V, 16, 2)); e(sload(P_WG, 48, 4)); e(sload(P_WD, 64, 2))
    e(valu("v_and_b32", V(1), 63, V(0)))
    e(valu("v_lshrrev_b32", V(30), 6, V(0)))
    e(salu("s_and_b32", S(S_HEAD), S(2), 31))
    e(valu("v_readfirstlane_b32", S(S_WAVE), V(30)))
    e(salu("s_lshr_b32", S(S_QB), S(2), 5))
    e(salu("s_mov_b32", S(62), 2097152)); e(salu("s_mov_b32", S(63), "0x00020000"))
    e(raw("s_waitcnt lgkmcnt(0)", "wait")); s[-1].tag = (None, 0)
    s += ln_loads()
    e(salu("s_add_u32", S(SRD_SY), S(P_WS), SYNC_OFF)); e(salu("s_addc_u32", S(SRD_SY + 1), S(P_WS + 1), 0))
    e(salu("s_mov_b32", S(SRD_SY + 2), 16384)); e(salu("s_mov_b32", S(SRD_SY + 3), "0x00020000"))
    e(salu("s_lshl_b32", S(S_T + 2), S(S_QB), 7))
    e(valu("v_mov_b32", V(TMP + 11), 0))
    e(buf_load(V(TMP + 9), V(TMP + 11), S(SRD_SY, 4), S(S_T + 2), n=1, flags="sc1"))
    if PK3 == 2: e(buf_load(V(TMP + 8), V(TMP + 11), S(SRD_SY, 4), 0, offset=1024, n=1, flags="sc1"))
    e(valu("v_lshrrev_b32", V(G_), 4, V(1)))
    e(valu("v_and_b32", V(N_), 15, V(1)))
    for i in range(2):
        e(valu("v_add_u32", V(U1), 4*i, V(G_)))
        e(valu("v_lshlrev_b32", V(U2), 13, V(U1)))
        e(valu("v_lshlrev_b32", V(U1), 1, V(U1)))
        e(valu("v_xor_b32", V(U1), V(U1), V(N_)))
        e(valu("v_lshl_add_u32", V(VOFFW + i), V(U1), 4, V(U2)))
        if i: e(valu("v_subrev_u32", V(VOFFW + i), 1024, V(VOFFW + i)))
    e(valu("v_lshlrev_b32", V(VLANE16), 4, V(1)))
    e(valu("v_mov_b32", V(VOFFB), V(VLANE16)))
    for qb in range(1, 4): e(valu("v_add_u32", V(VOFFB + qb), qb*16384, V(VLANE16)))
    e(salu("s_lshl_b32", S(S_W4K), S(S_WAVE), 12))
    e(salu("s_lshl_b32", S(S_W2K), S(S_WAVE), 11))
    e(salu("s_mov_b32", S(S_SOFFB), 0))
    e(salu("s_lshl_b32", S(S_SOFFW), S(S_WAVE), 16))
    e(salu("s_lshl_b32", S(S_T), S(S_HEAD), 8))
    e(salu("s_sub_u32", S(S_T + 1), 4194304, S(S_T)))
    s += mksrd(SRD_W, P_WQ, S_T, S(S_T + 1))
    e(salu("s_lshl_b32", S(S_T), S(S_QB), 4)); e(salu("s_lshl_b32", S(S_T + 1), S(S_WAVE), 2)); e(salu("s_add_u32", S(S_T), S(S_T), S(S_T + 1)))
    e(salu("s_lshl_b32", S(S_T), S(S_T), 14))
    if XN_OFF: e(salu("s_add_u32", S(S_T), S(S_T), XN_OFF))
    s += mksrd(SRD_XN, P_WS, S_T, 65536)
    e(salu("s_lshl_b32", S(S_T), S(S_HEAD), 19))
    for b in (SRD_K, SRD_V):
        e(salu("s_add_u32", S(b), S(b), S(S_T))); e(salu("s_addc_u32", S(b + 1), S(b + 1), 0))
        e(salu("s_mov_b32", S(b + 2), 524288)); e(salu("s_mov_b32", S(b + 3), "0x00020000"))
    e(raw(f"s_cmp_ge_u32 s{S_WAVE}, 2", "salu", rd=regs("s", S_WAVE)))
    e(salu("s_cselect_b32", S(S_T), S(P_WG + 2), S(P_WG)))
    e(salu("s_cselect_b32", S(S_T + 1), S(P_WG + 3), S(P_WG + 1)))
    e(salu("s_lshl_b32", S(S_T + 2), S(S_HEAD), 7))
    e(salu("s_add_u32", S(SRD_E), S(S_T), S(S_T + 2)))
    e(salu("s_addc_u32", S(SRD_E + 1), S(S_T + 1), 0))
    e(salu("s_sub_u32", S(SRD_E + 2), 512*3584, S(S_T + 2)))
    e(raw(f"s_cmp_lt_u32 s{S_HEAD}, 28", "salu", rd=regs("s", S_HEAD)))
    e(salu("s_cselect_b32", S(SRD_E + 2), S(SRD_E + 2), 0))
    e(salu("s_mov_b32", S(SRD_E + 3), "0x00020000"))
    e(salu("s_and_b32", S(S_T), S(S_WAVE), 1))
    e(salu("s_mul_i32", S(S_SOFFE), S(S_T), 16*3584))
    return s

def setup_addr2():
    s = []; e = s.append
    e(valu("v_bfe_u32", V(RR_), V(1), 2, 2))
    e(valu("v_and_b32", V(C_), 3, V(1)))
    e(valu("v_and_b32", V(ROW8), 1, V(G_)))
    e(valu("v_lshl_add_u32", V(ROW8), V(ROW8), 2, V(RR_)))
    e(valu("v_lshl_add_u32", V(ROWB), V(G_), 2, V(RR_)))
    e(valu("v_lshrrev_b32", V(U1), 3, V(1)))
    e(salu("s_mov_b32", S(S_T + 2), 3584))
    e(valu("v_mul_lo_u32", V(U2), V(U1), S(S_T + 2)))
    e(valu("v_lshlrev_b32", V(CH), 1, V(G_)))
    e(valu("v_and_b32", V(U1), 7, V(1)))
    e(valu("v_xor_b32", V(U1), V(U1), V(CH)))
    e(valu("v_lshl_add_u32", V(VOFFE), V(U1), 4, V(U2)))
    e(valu("v_add_u32", V(VOFFE + 1), 8*3584 - 1024, V(VOFFE)))
    return s

def setup_addr3():
    s = []; e = s.append
    e(valu("v_lshlrev_b32", V(U2), 8, V(ROWB)))
    e(valu("v_and_b32", V(U1), 1, V(C_)))
    e(valu("v_lshl_add_u32", V(U2), V(U1), 4, V(U2)))
    e(valu("v_add_u32", V(U2), RING0, V(U2)))
    e(valu("v_lshrrev_b32", V(CH), 1, V(C_)))
    for ds in range(4):
        e(valu("v_add_u32", V(U1), 2*ds, V(CH)))
        e(valu("v_xor_b32", V(U1), V(U1), V(ROW8)))
        e(valu("v_lshl_add_u32", V(ADDRW + ds), V(U1), 5, V(U2)))
    e(valu("v_lshlrev_b32", V(U2), 7, V(ROWB)))
    e(valu("v_lshl_add_u32", V(U2), V(C_), 3, V(U2)))
    e(valu("v_add_u32", V(U2), RING0 + 8192, V(U2)))
    e(valu("v_and_b32", V(CH), 1, V(G_)))
    e(valu("v_lshlrev_b32", V(CH), 1, V(CH)))
    e(valu("v_lshrrev_b32", V(U1), 1, V(RR_)))
    e(valu("v_add_u32", V(CH), V(CH), V(U1)))
    for b in range(4):
        e(valu("v_xor_b32", V(U1), b, V(CH)))
        e(valu("v_lshl_add_u32", V(ADDRE + b), V(U1), 5, V(U2)))
    for ds in range(4):
        e(valu("v_add_u32", V(U1), 4*ds, V(G_)))
        e(valu("v_xor_b32", V(U1), V(U1), V(N_)))
        e(valu("v_lshlrev_b32", V(U1), 4, V(U1)))
        e(valu("v_lshl_add_u32", V(ADDRK + ds), V(N_), 8, V(U1)))
    e(valu("v_lshlrev_b32", V(U2), 8, V(ROWB)))
    e(valu("v_lshl_add_u32", V(U2), V(C_), 3, V(U2)))
    e(valu("v_add_u32", V(U2), VR, V(U2)))
    for db in range(8):
        e(valu("v_xor_b32", V(U1), db, V(ROW8)))
        e(valu("v_lshl_add_u32", V(ADDRV + db), V(U1), 5, V(U2)))
    for i in range(2):
        e(valu("v_add_u32", V(U1), 4*i, V(G_)))
        e(valu("v_lshlrev_b32", V(U1), 1, V(U1)))
        e(valu("v_xor_b32", V(U1), V(U1), V(N_)))
        e(valu("v_lshlrev_b32", V(U1), 4, V(U1)))
        e(valu("v_lshl_add_u32", V(VOFFV + i), V(G_), 8, V(U1)))
    e(salu("s_lshl_b32", S(T3_), S(S_QB), 4)); e(salu("s_lshl_b32", S(T2_), S(S_WAVE), 2)); e(salu("s_add_u32", S(T3_), S(T3_), S(T2_)))
    e(salu("s_mul_i32", S(T0_), S(T3_), 56))
    e(salu("s_lshl_b32", S(T1_), S(S_HEAD), 1))
    e(salu("s_add_u32", S(T0_), S(T0_), S(T1_)))
    e(salu("s_lshl_b32", S(T0_), S(T0_), 10))
    e(salu("s_add_u32", S(T0_), S(T0_), H_OFF))
    s += mksrd(SRD_H, P_WS, T0_, 3*57344 + 2048)
    e(raw(f"s_cmp_lt_u32 s{S_HEAD}, 28", "salu", rd=regs("s", S_HEAD)))
    e(salu("s_cselect_b32", S(SRD_H + 2), S(SRD_H + 2), 0))
    return s

def touches2(part=0):
    s = []; e = s.append
    e(valu("v_lshrrev_b32", V(U1), 3, V(1)))
    e(valu("v_lshlrev_b32", V(U1), 18, V(U1)))
    e(valu("v_bfe_u32", V(U2), V(1), 1, 2))
    e(valu("v_lshl_add_u32", V(U1), V(U2), 13, V(U1)))
    e(valu("v_and_b32", V(U2), 1, V(1)))
    e(valu("v_lshl_add_u32", V(U1), V(U2), 7, V(U1)))
    e(salu("s_lshl_b32", S(S_T + 1), S(S_QB), 15))
    if part == 0:
        e(raw(f"s_cmp_eq_u32 s{S_WAVE}, 2", "salu", rd=regs("s", S_WAVE)))
        e(salu("s_cselect_b32", S(S_T), 8*262144, 0))
    else:
        e(salu("s_mov_b32", S(S_T), 0 if part == 1 else 8*262144))
    e(salu("s_add_u32", S(S_T), S(S_T), S(S_T + 1)))
    for i in range(3): e(salu("s_mov_b32", S(60 + i), S(SRD_W + i)))
    e(salu("s_mov_b32", S(63), "0x00020000"))
    if part == 0:
        e(salu("s_sub_u32", S(S_T + 2), S(S_WAVE), 1))
        e(raw(f"s_cmp_lt_u32 s{S_T+2}, 2", "salu", rd=regs("s", S_T + 2)))
    else:
        e(raw(f"s_cmp_eq_u32 s{S_WAVE}, 2", "salu", rd=regs("s", S_WAVE)))
    e(salu("s_cselect_b32", S(62), S(62), 0))
    e(buf_load(V(PFD), V(U1), S(60, 4), S(S_T), n=1, tag="PF"))
    if part == 0:
        e(valu("v_mov_b32", V(U2), 3584)); e(valu("v_mul_lo_u32", V(U2), V(U2), V(1)))
        e(salu("s_mul_i32", S(S_T), S(S_QB), 64*3584))
    else:
        e(valu("v_and_b32", V(U1), 31, V(1)))
        e(valu("v_mov_b32", V(U2), 3584)); e(valu("v_mul_lo_u32", V(U2), V(U2), V(U1)))
        e(salu("s_mul_i32", S(S_T), S(S_QB), 32*3584))
        if part == 2: e(salu("s_add_u32", S(S_T), S(S_T), 256*3584))
    for i in range(3): e(salu("s_mov_b32", S(60 + i), S(SRD_E + i)))
    e(salu("s_and_b32", S(S_T + 2), S(S_WAVE), 1))
    e(raw(f"s_cmp_eq_u32 s{S_T+2}, 1", "salu", rd=regs("s", S_T + 2)))
    e(salu("s_cselect_b32", S(62), S(62), 0))
    e(buf_load(V(PFD + 1), V(U2), S(60, 4), S(S_T), n=1, tag="PF"))
    return s

def kv_touch():
    s = []; e = s.append
    e(valu("v_and_b32", V(U2), 31, V(1)))
    e(valu("v_lshlrev_b32", V(U2), 7, V(U2)))
    e(salu("s_lshl_b32", S(S_T), S(S_QB), 12))
    e(raw(f"s_cmp_eq_u32 s{S_WAVE}, 3", "salu", rd=regs("s", S_WAVE)))
    for i in range(3): e(salu("s_cselect_b32", S(60 + i), S(SRD_K + i), S(SRD_V + i)))
    e(salu("s_mov_b32", S(63), "0x00020000"))
    e(raw(f"s_cmp_ge_u32 s{S_WAVE}, 2", "salu", rd=regs("s", S_WAVE)))
    e(salu("s_cselect_b32", S(62), S(62), 0))
    e(buf_load(V(PFD + 2), V(U2), S(60, 4), S(S_T), n=1, tag="PF"))
    return s

def touch_prep():
    s = []; e = s.append
    e(valu("v_lshrrev_b32", V(112), 3, V(1)))
    e(valu("v_lshlrev_b32", V(112), 18, V(112)))
    e(valu("v_bfe_u32", V(113), V(1), 1, 2))
    e(valu("v_lshl_add_u32", V(112), V(113), 13, V(112)))
    e(valu("v_and_b32", V(113), 1, V(1)))
    e(valu("v_lshl_add_u32", V(112), V(113), 7, V(112)))
    e(salu("s_lshl_b32", S(36), S(S_QB), 15)); e(salu("s_add_u32", S(36), S(36), 8*262144))
    for i in range(3): e(salu("s_mov_b32", S(84 + i), S(SRD_W + i)))
    e(salu("s_mov_b32", S(87), "0x00020000"))
    e(raw(f"s_cmp_eq_u32 s{S_WAVE}, 2", "salu", rd=regs("s", S_WAVE)))
    e(salu("s_cselect_b32", S(86), S(86), 0))
    e(valu("v_and_b32", V(114), 31, V(1)))
    e(valu("v_mov_b32", V(113), 3584)); e(valu("v_mul_lo_u32", V(113), V(113), V(114)))
    e(salu("s_mul_i32", S(39), S(S_QB), 32*3584)); e(salu("s_add_u32", S(39), S(39), 256*3584))
    if WTOUCH == 3:
        for i in range(3): e(salu("s_mov_b32", S(72 + i), S(SRD_E + i)))
        e(salu("s_mov_b32", S(75), "0x00020000"))
        e(salu("s_and_b32", S(S_T + 2), S(S_WAVE), 1))
        e(raw(f"s_cmp_eq_u32 s{S_T+2}, 1", "salu", rd=regs("s", S_T + 2)))
        e(salu("s_cselect_b32", S(74), S(74), 0))
    e(valu("v_lshlrev_b32", V(114), 7, V(114)))
    e(salu("s_lshl_b32", S(42), S(S_QB), 12))
    e(raw(f"s_cmp_eq_u32 s{S_WAVE}, 3", "salu", rd=regs("s", S_WAVE)))
    for i in range(3): e(salu("s_cselect_b32", S(76 + i), S(SRD_K + i), S(SRD_V + i)))
    e(salu("s_mov_b32", S(79), "0x00020000"))
    e(raw(f"s_cmp_ge_u32 s{S_WAVE}, 2", "salu", rd=regs("s", S_WAVE)))
    e(salu("s_cselect_b32", S(78), S(78), 0))
    return s

def dmaW2(t):
    p1 = salu("s_add_u32", "m0", S(S_W2K), ringslot(t))
    d1 = [buf_dma(V(VOFFW + i), S(SRD_W, 4), S(S_SOFFW), offset=i*1024, tag=("W", t)) for i in range(2)]
    a1 = [salu("s_add_u32", S(S_SOFFW), S(S_SOFFW), 262144)]
    p2 = salu("s_add_u32", "m0", S(S_W2K), ringslot(t) + 8192)
    d2 = [buf_dma(V(VOFFE + i), S(SRD_E, 4), S(S_SOFFE), offset=i*1024, tag=("W", t)) for i in range(2)]
    a2 = [salu("s_add_u32", S(S_SOFFE), S(S_SOFFE), WSTEP_E)]
    return p1, d1, a1, p2, d2, a2
def flatW2(t):
    p1, d1, a1, p2, d2, a2 = dmaW2(t)
    return [p1, nop(0)] + d1 + a1 + [p2, nop(0)] + d2 + a2
def advB2(): return [salu("s_add_u32", S(S_SOFFB), S(S_SOFFB), 1024)]

def rdA2(t, db, rd):
    off = ringslot(t) - rbase(t)
    if db < 8:
        ds, u = db >> 1, db & 1
        return ds_read("ds_read_b64_tr_b16", sub(AFB(db), 2*rd, 2), V(ADDRW + ds), offset=off + rd*4096 + 8*u)
    mat, b = (db - 8) >> 2, (db - 8) & 3
    return ds_read("ds_read_b64_tr_b16", sub(AFB(db), 2*rd, 2), V(ADDRE + b), offset=off + mat*4096 + rd*2048)

def qconv(ds):
    o = []
    for qb in range(4):
        a0, a1 = ACCR(2*ds, qb), ACCR(2*ds + 1, qb)
        for r in range(4):
            o.append(valu("v_mul_f32", sub(a0, r), S(S_T), sub(a0, r))); o.append(valu("v_mul_f32", sub(a1, r), S(S_T), sub(a1, r)))
        o.append(valu("v_cvt_pk_bf16_f32", sub(a1, 3), sub(a1, 2), sub(a1, 3)))
        o.append(valu("v_cvt_pk_bf16_f32", sub(a1, 2), sub(a1, 0), sub(a1, 1)))
        o.append(valu("v_cvt_pk_bf16_f32", sub(a1, 1), sub(a0, 2), sub(a0, 3)))
        o.append(valu("v_cvt_pk_bf16_f32", sub(a1, 0), sub(a0, 0), sub(a0, 1)))
    return o

def fused_phase():
    s = []; e = s.append
    e(wait_vm(("W", 0), ("W", 1), ("W", 2))); e(barrier())
    for db in range(16):
        for rd in range(2): e(rdA2(0, db, rd))
    for t in range(16):
        s += sstamp("A", t)
        F = Fill(64)
        def addW(k, gi, sp):
            p1, d1, a1, p2, d2, a2 = dmaW2(k)
            F.add(gi - 1, p1); F.add(gi, d1[0]); F.add(gi + sp, d1[1]); F.add(gi + sp + 1, a1)
            F.add(gi + 2*sp - 1, p2); F.add(gi + 2*sp, d2[0]); F.add(gi + 3*sp, d2[1]); F.add(gi + 3*sp + 1, a2)
        if t >= 2 and t % 2 == 0:
            if t in (6, 8): s += cstamp("B")
            e(wait_vm(("W", t + 1), ("W", t + 2) if t + 2 < 16 else ("W", t + 1)))
            e(barrier())
        if t == 0:
            g = 0
            for k in (1, 2, 3):
                for x in loadB(k): F.add(g, x); g += 2
                F.add(g - 1, advB2())
            addW(4, 26, 4); addW(5, 44, 4)
        elif t == 1:
            addW(6, 6, 4); addW(7, 24, 4)
            if KVT == 1: F.add(42, buf_load(V(PFD + 2), V(114), S(76, 4), S(42), n=1, tag="PF"))
            if WTOUCH == 3:
                F.add(46, buf_load(V(PFD), V(112), S(84, 4), S(36), n=1, tag="PF"))
                F.add(50, buf_load(V(PFD + 1), V(113), S(72, 4), S(39), n=1, tag="PF"))

        elif t + 6 < 16: addW(t + 6, 6, 6)
        kv = ({4: dmaK(0), 5: dmaK(1), 12: dmaV(0), 13: dmaV(1)} if KVLATE else {4: dmaK(0), 5: dmaK(1), 10: dmaK(2), 11: dmaK(3), 12: dmaV(0), 13: dmaV(1), 14: dmaV(2)}).get(t)
        if kv:
            pre, d, adv = kv
            F.add(29, pre)
            for k, x in enumerate(d): F.add(30 + 6*k, x)
            F.add(49, adv)
        if t + 1 < 16 and rbase(t + 1) != rbase(t):
            d = rbase(t + 1) - rbase(t)
            for i in range(4):
                F.add(4, valu("v_add_u32", V(ADDRW + i), d & 0xffffffff, V(ADDRW + i)))
                F.add(4, valu("v_add_u32", V(ADDRE + i), d & 0xffffffff, V(ADDRE + i)))
        if t >= 1:
            F.add(1, rdA2(t, 15, 0)); F.add(3, rdA2(t, 15, 1))
        if t + 1 < 16:
            for db in range(15):
                F.add(4*db + 5, rdA2(t + 1, db, 0)); F.add(4*db + 7, rdA2(t + 1, db, 1))
        if t == 14 and CONV2: F.add(40, salu("s_mov_b32", S(S_T), f2h(QSCALE)))
        if t == 15 and CONV2:
            q = qconv(0) + qconv(1)
            g = 10
            kgaps = {33 + 4*f if 33 + 4*f < 64 else 63 for f in range(8)}
            while q:
                for _ in range(1 if g in kgaps else 2):
                    if q: F.add(g, q.pop(0))
                g += 1
            assert g <= 64, g
            for f in range(8):
                kb, ds = f >> 2, f & 3
                F.add(33 + 4*f if 33 + 4*f < 64 else 63, ds_read("ds_read_b128", KF(f), V(ADDRK + ds), offset=kb*4096))
        if t >= 1 and t + 3 < 16:
            for qb, x in enumerate(loadB(t + 3)): F.add(52 + 4*qb - (2 if qb == 3 else 0), x)
            F.add(63, advB2())
        for db in range(16):
            if t == 6 and db in (4, 8, 12): s += cstamp("B")
            if t == 7 and db == 0: s += cstamp("B")
            for qb in range(4):
                g = 4*db + qb
                acc = ACCQ(db, qb) if db < 8 else ACCE(db - 8, qb)
                e(mfma16(acc, AFB(db), BF(t, qb), 0 if t == 0 else acc))
                s += F.emit(g)
    return s

def h_epilogue2():
    s = []; e = s.append
    for qb in range(4): e(salu("s_mov_b32", S(S_T + qb), qb*57344))
    k = 0
    for qb in range(4):
        for tp in range(2):
            t = SREG + 16*(k % 2); pk = PREG + 4*(k % 8)
            for u in range(2):
                b = 2*tp + u
                for r in range(4):
                    e(valu("v_accvgpr_read_b32", V(t + 8*u + r), sub(ACCE(b, qb), r)))
                    e(valu("v_accvgpr_read_b32", V(t + 8*u + 4 + r), sub(ACCE(4 + b, qb), r)))
            for u in range(2):
                for r in range(4): e(valu("v_max_f32", V(t + 8*u + r), 0, V(t + 8*u + r)))
            for u in range(2):
                for r in range(4): e(valu("v_mul_f32", V(t + 8*u + r), V(t + 8*u + r), V(t + 8*u + 4 + r)))
            for u in range(2):
                for hh in range(2): e(valu("v_cvt_pk_bf16_f32", V(pk + 2*u + hh), V(t + 8*u + 2*hh), V(t + 8*u + 2*hh + 1)))
            e(buf_store(V(pk, 4), V(VLANE16), S(SRD_H, 4), S(S_T + qb), offset=tp*1024, tag="H", flags="sc1"))
            for u in range(2):
                b = 2*tp + u
                for r in range(4):
                    e(valu("v_accvgpr_write_b32", sub(ACCE(b, qb), r), 0)); e(valu("v_accvgpr_write_b32", sub(ACCE(4 + b, qb), r), 0))
            k += 1
    return s


def h_unit(k):
    qb, tp = k >> 1, k & 1
    t = PREG + 16*(k % 2); pk = NEGM_T + 4*(k % 2)
    o = []
    for u in range(2):
        b = 2*tp + u
        for r in range(4):
            o.append(valu("v_accvgpr_read_b32", V(t + 8*u + r), sub(ACCE(b, qb), r)))
            o.append(valu("v_accvgpr_read_b32", V(t + 8*u + 4 + r), sub(ACCE(4 + b, qb), r)))
    for u in range(2):
        for r in range(4): o.append(valu("v_max_f32", V(t + 8*u + r), 0, V(t + 8*u + r)))
    for u in range(2):
        for r in range(4): o.append(valu("v_mul_f32", V(t + 8*u + r), V(t + 8*u + r), V(t + 8*u + 4 + r)))
    for u in range(2):
        for hh in range(2): o.append(valu("v_cvt_pk_bf16_f32", V(pk + 2*u + hh), V(t + 8*u + 2*hh), V(t + 8*u + 2*hh + 1)))
    o.append(buf_store(V(pk, 4), V(VLANE16), S(SRD_H, 4), S(S_T + qb), offset=tp*1024, tag="H", flags="sc1"))
    return o
NEGM_T = 104

def conv_phase():
    s = []; e = s.append
    for i in range(16): e(valu("v_mov_b32", V(LREG + i), 0))
    for i in range(4): e(valu("v_mov_b32", V(ONES + i), "0x3f803f80"))
    if k1.SUMMODE:
        for i in range(4): e(valu("v_mov_b32", V(168 + i), 0))
    q2, q3 = qconv(2), qconv(3)
    for ds in range(4):
        for kb in range(2):
            for qb in range(4):
                e(mfma16(SR(kb, qb), KF(4*kb + ds), QF(qb, ds), 0 if ds == 0 else SR(kb, qb)))
                src = q2 if ds < 2 and q2 else (q3 if ds < 3 else [])
                n = 3 if ds < 2 else 6
                for _ in range(n):
                    if src: s.append(src.pop(0))
        if ds == 1: assert not q2
        if ds == 2:
            assert not q3
            e(nop(1))
    for qb in range(4): e(salu("s_mov_b32", S(S_T + qb), qb*57344))
    hu = [h_unit(k) for k in range(8)]
    s += hu[0] + hu[1]
    M = TMP
    mx = []
    for qb in range(4):
        mx.append(valu("v_max3_f32", V(M + qb), SR(0, qb, 0), SR(0, qb, 1), SR(0, qb, 2)))
        mx.append(valu("v_max3_f32", V(M + qb), V(M + qb), SR(0, qb, 3), SR(1, qb, 0)))
        mx.append(valu("v_max3_f32", V(M + qb), V(M + qb), SR(1, qb, 1), SR(1, qb, 2)))
        mx.append(valu("v_max_f32", V(M + qb), V(M + qb), SR(1, qb, 3)))
    s += mx
    rest = sum(hu[2:], [])
    for swp in ("v_permlane16_swap_b32", "v_permlane32_swap_b32"):
        for qb in range(4): e(valu("v_mov_b32", V(M + 4 + qb), V(M + qb)))
        s += [rest.pop(0), rest.pop(0)]
        for qb in range(4): e(valu(swp, V(M + 4 + qb), V(M + qb), dst_is_src=True, wr_extra=regs("v", M + qb)))
        s += [rest.pop(0), rest.pop(0)]
        for qb in range(4): e(valu("v_max_f32", V(M + qb), V(M + qb), V(M + 4 + qb)))
    for qb in range(4): e(valu("v_sub_f32", V(M + qb), f2h(-DOFF), V(M + qb)))
    s += rest
    for qb in range(4):
        for r in range(4): e(valu("v_mov_b32", V(NEGM + 4*qb + r), V(M + qb)))
    return s

def window_m1():
    w = window(-1, 0, last_qk=True, do_pv=False, do_kread=True, exp_tail=False)
    out = []; k = 0; nm = 0
    for x in w:
        if x.kind == "mfma": nm += 1
        if x.kind == "nop" and x.text == "s_nop 0" and nm >= 32 and k < 32:
            z = V(LREG + 4 + 0, 4) if False else (V(168, 4) if k1.SUMMODE else V(LREG, 4))
            out.append(mfma16(A(4*k, 4), z, z, 0)); k += 1
        else: out.append(x)
    assert k == 32
    return out


CPV = 172
def pk_load():
    s = []; e = s.append
    e(salu("s_lshl_b32", S(T0_), S(2), 2)); e(salu("s_add_u32", S(T0_), S(T0_), S(S_WAVE)))
    e(raw(f"s_cmp_lt_u32 s{T0_}, 512", "salu", rd=regs("s", T0_)))
    e(salu("s_cselect_b32", S(72), S(P_WO), S(P_WD))); e(salu("s_cselect_b32", S(73), S(P_WO + 1), S(P_WD + 1)))
    e(salu("s_mov_b32", S(74), 1792*1024)); e(salu("s_cselect_b32", S(74), 4096*1024, S(74)))
    e(salu("s_mov_b32", S(75), "0x00020000"))
    e(salu("s_and_b32", S(T1_), S(T0_), 511))
    e(salu("s_lshl_b32", S(T1_), S(T1_), 13)); e(salu("s_add_u32", S(T1_), S(T1_), 384))
    e(valu("v_lshrrev_b32", V(CPV), 3, V(1))); e(valu("v_lshlrev_b32", V(CPV), 10, V(CPV)))
    e(valu("v_and_b32", V(CPV + 1), 7, V(1))); e(valu("v_lshl_add_u32", V(CPV), V(CPV + 1), 4, V(CPV)))
    e(valu("v_mov_b32", V(171), V(CPV)))
    e(buf_load(V(CPV, 4), V(171), S(72, 4), S(T1_), tag="CPL"))
    return s
def pk_store():
    s = []; e = s.append
    e(salu("s_lshl_b32", S(T0_), S(2), 2)); e(salu("s_add_u32", S(T0_), S(T0_), S(S_WAVE)))
    e(salu("s_add_u32", S(72), S(P_WS), PK_OFF)); e(salu("s_addc_u32", S(73), S(P_WS + 1), 0))
    e(salu("s_mov_b32", S(74), 736*1024))
    e(salu("s_mov_b32", S(75), "0x00020000"))
    e(salu("s_lshl_b32", S(T1_), S(T0_), 10))
    e(buf_store(V(CPV, 4), V(VLANE16), S(72, 4), S(T1_), tag="CP", flags="sc1"))
    return s
def pk_flag_setup(vaddr, vval):
    s = []; e = s.append
    e(salu("s_lshl_b32", S(T0_), S(2), 2)); e(salu("s_add_u32", S(T0_), S(T0_), 14336))
    e(valu("v_lshlrev_b32", V(vval), 14, V(0))); e(valu("v_add_u32", V(vaddr), S(T0_), V(vval)))
    e(valu("v_mov_b32", V(vval), S(S_EPC)))
    return s
def pk_flag_load():
    return buf_load(V(168, 4), V(VLANE16), S(SRD_SY, 4), S(75), tag="PKL", flags="sc1")
def pk_check(name):
    s = []; e = s.append
    L = f"{name}_pk"
    def cmp(kind):
        o = []
        for i in range(4): o.append(raw(f"v_xor_b32 v{168+i}, s{S_EPC}, v{168+i}", kind, rd=regs("v", 168 + i) if kind == "valu" else (), wr=regs("v", 168 + i) if kind == "valu" else ()))
        o.append(raw("v_or3_b32 v168, v168, v169, v170", "other")); o.append(raw("v_or_b32 v168, v168, v171", "other"))
        o.append(raw("v_cmp_ne_u32 vcc, 0, v168", "other")); o.append(raw("s_nop 4", "other"))
        return o
    e(salu("s_and_b32", S(T0_), S(S_HEAD), 0x19)); e(raw(f"s_cmp_eq_u32 s{T0_}, 0x18", "salu", rd=regs("s", T0_)))
    e(raw(f"s_cbranch_scc0 {L}_ok", "branch"))
    s += cmp("valu")
    e(raw(f"s_cbranch_vccz {L}_done", "branch"))
    e(salu("s_mov_b32", S(T2_), SPIN_MAX))
    e(label(f"{L}_poll"))
    e(raw(f"buffer_load_dwordx4 v[168:171], v{VLANE16}, s[{SRD_SY}:{SRD_SY+3}], s75 offen sc1", "other"))
    e(raw("s_waitcnt vmcnt(0)", "other"))
    s += cmp("other")
    e(raw(f"s_cbranch_vccz {L}_done", "branch"))
    e(raw(f"s_sub_u32 s{T2_}, s{T2_}, 1", "other")); e(raw(f"s_cbranch_scc1 {L}_done", "branch"))
    e(raw("s_sleep 1", "other")); e(raw(f"s_branch {L}_poll", "branch"))
    e(label(f"{L}_done"))
    e(raw("s_cmp_lg_u32 s2, 24", "other")); e(raw(f"s_cbranch_scc1 {L}_ok", "branch"))
    e(raw(f"s_cmp_lg_u32 s{S_WAVE}, 0", "other")); e(raw(f"s_cbranch_scc1 {L}_ok", "branch"))
    e(raw(f"v_mov_b32 v168, s{S_EPC}", "other")); e(raw("v_lshlrev_b32 v169, 20, v1", "other"))
    e(raw(f"buffer_store_dword v168, v169, s[{SRD_SY}:{SRD_SY+3}], 0 offen offset:1024 sc1", "other"))
    e(label(f"{L}_ok"))
    return s

NT_O, NT_H, NSLOT = 32, 14, 8

FA, FA2, FVW = 20, 164, 24
FAF = 112
F_SRDW, F_SRDH = 16, 20
F_SW, F_SB = 41, (36, 37, 39, 42)
F_LW = 38
F_RS, F_STEP = 28, 29
HFV, HFA = 28, 29
def FACC(nb, qb): return A(128 + 16*nb + 4*qb, 4)
def FBF(i, qb): return V((192 if i % 2 == 0 else 224) + 4*qb, 4)
def FAFR(nb): return V(FAF + 4*nb, 4)
def fslot(i): return (XR, XR + 16384, 0)[i % 3]
def f_rd(i, nb, rd):
    b = fslot(i)
    if b >= XR: return ds_read("ds_read_b64_tr_b16", sub(FAFR(nb), 2*rd, 2), V(FA + nb), offset=b - XR + rd*2048)
    return ds_read("ds_read_b64_tr_b16", sub(FAFR(nb), 2*rd, 2), V(FA2 + nb), offset=b + rd*2048)
def f_ldW(i):
    pre = salu("s_add_u32", "m0", S(F_LW), fslot(i))
    d = [buf_dma(V(FVW + k), S(F_SRDW, 4), S(F_SW), offset=k*1024, tag=("FW", i)) for k in range(4)]
    return pre, d, salu("s_add_u32", S(F_SW), S(F_SW), S(F_STEP) if PK3 == 2 else 32768)
def f_ldB(i):
    return [(buf_load(FBF(i, qb), V(VLANE16), S(F_SRDH, 4), S(F_SB[qb]), tag=("FB", i), flags="sc1"), salu("s_add_u32", S(F_SB[qb]), S(F_SB[qb]), 1024)) for qb in range(4)]

def f_setup():
    s = []; e = s.append
    RB, CB = T2_, T3_
    e(salu("s_and_b32", S(T0_), S(S_HEAD), 7)); e(salu("s_lshr_b32", S(T1_), S(S_HEAD), 3))
    e(salu("s_lshr_b32", S(RB), S(T0_), 1)); e(salu("s_lshl_b32", S(S_T), S(S_QB), 2)); e(salu("s_add_u32", S(RB), S(RB), S(S_T)))
    if CBX: e(salu("s_xor_b32", S(T1_), S(T1_), CBX))
    e(salu("s_and_b32", S(T0_), S(T0_), 1))
    if CBM == 0: e(salu("s_lshl_b32", S(T0_), S(T0_), 2))
    else: e(salu("s_lshl_b32", S(T1_), S(T1_), 1))
    e(salu("s_add_u32", S(CB), S(T0_), S(T1_)))
    e(salu("s_mul_i32", S(T0_), S(RB), 224)); e(salu("s_mul_i32", S(T1_), S(S_WAVE), 14)); e(salu("s_add_u32", S(T0_), S(T0_), S(T1_)))
    e(salu("s_lshl_b32", S(T0_), S(T0_), 10)); e(salu("s_add_u32", S(T0_), S(T0_), H_OFF))
    s += mksrd(F_SRDH, P_WS, T0_, 3*57344 + 14*1024)
    e(salu("s_lshl_b32", S(T1_), S(CB), 6 if COLSPLIT else 7)); e(salu("s_mul_i32", S(T0_), S(S_WAVE), 448*1024)); e(salu("s_add_u32", S(T0_), S(T0_), S(T1_)))
    e(salu("s_sub_u32", S(T1_), 1792*1024, S(T0_)))
    s += mksrd(F_SRDW, P_WD, T0_, S(T1_))
    if PK3 == 2:
        e(salu("s_mul_i32", S(T0_), S(S_WAVE), 448*128)); e(salu("s_add_u32", S(T0_), S(T0_), PK_OFF + 524288))
        e(salu("s_add_u32", S(T0_), S(T0_), S(P_WS))); e(salu("s_addc_u32", S(T1_), S(P_WS + 1), 0))
        e(raw(f"s_cmp_eq_u32 s{CB}, 3", "salu", rd=regs("s", CB)))
        e(salu("s_cselect_b32", S(F_SRDW), S(T0_), S(F_SRDW))); e(salu("s_cselect_b32", S(F_SRDW + 1), S(T1_), S(F_SRDW + 1)))
        e(salu("s_cselect_b32", S(F_SRDW + 2), 448*128, S(F_SRDW + 2)))
        e(salu("s_mov_b32", S(F_RS), 1024)); e(salu("s_cselect_b32", S(F_RS), 128, S(F_RS)))
        e(salu("s_lshl_b32", S(F_STEP), S(F_RS), 5))
    e(salu("s_mov_b32", S(F_SW), 0))
    for qb in range(4): e(salu("s_mov_b32", S(F_SB[qb]), qb*57344))
    e(salu("s_lshl_b32", S(F_LW), S(S_WAVE), 12))
    G, RR, C, T1, T2, X = 168, 169, 170, 171, 172, 173
    e(valu("v_lshrrev_b32", V(G), 4, V(1))); e(valu("v_bfe_u32", V(RR), V(1), 2, 2)); e(valu("v_and_b32", V(C), 3, V(1)))
    e(valu("v_lshl_add_u32", V(T2), V(G), 2, V(RR))); e(valu("v_lshlrev_b32", V(T2), 7, V(T2)))
    e(valu("v_lshl_add_u32", V(T2), V(C), 3, V(T2))); e(valu("v_add_u32", V(T2), S(F_LW), V(T2)))
    e(valu("v_and_b32", V(X), 1, V(G))); e(valu("v_lshlrev_b32", V(X), 1, V(X))); e(valu("v_lshrrev_b32", V(T1), 1, V(RR))); e(valu("v_add_u32", V(X), V(X), V(T1)))
    for b in range(4):
        e(valu("v_xor_b32", V(T1), b, V(X))); e(valu("v_lshl_add_u32", V(FA2 + b), V(T1), 5, V(T2)))
        e(valu("v_add_u32", V(FA + b), XR, V(FA2 + b)))
    e(valu("v_lshrrev_b32", V(T1), 3, V(1)))
    if PK3 == 2: e(valu("v_mul_lo_u32", V(T2), V(T1), S(F_RS)))
    else: e(valu("v_lshlrev_b32", V(T2), 10, V(T1)))
    e(valu("v_lshlrev_b32", V(X), 1, V(G))); e(valu("v_and_b32", V(T1), 7, V(1))); e(valu("v_xor_b32", V(T1), V(T1), V(X)))
    if COLSPLIT:
        e(valu("v_lshrrev_b32", V(X), 2, V(T1))); e(valu("v_lshl_add_u32", V(T2), V(X), 9, V(T2))); e(valu("v_and_b32", V(T1), 3, V(T1)))
    e(valu("v_lshl_add_u32", V(FVW), V(T1), 4, V(T2)))
    if PK3 == 2:
        e(salu("s_lshl_b32", S(T0_), S(F_RS), 3)); e(salu("s_sub_u32", S(T0_), S(T0_), 1024))
        e(valu("v_add_u32", V(FVW + 1), S(T0_), V(FVW))); e(valu("v_add_u32", V(FVW + 2), S(T0_), V(FVW + 1))); e(valu("v_add_u32", V(FVW + 3), S(T0_), V(FVW + 2)))
    else:
        for i in range(1, 4): e(valu("v_add_u32", V(FVW + i), i*7168, V(FVW)))
    e(valu("v_and_b32", V(HFA), 31, V(1))); e(valu("v_lshlrev_b32", V(HFA), 2, V(HFA)))
    e(salu("s_lshl_b32", S(T0_), S(S_QB), 7)); e(salu("s_add_u32", S(T0_), S(T0_), 4096*3))
    e(valu("v_add_u32", V(HFA), S(T0_), V(HFA)))
    return s

def h_flag_load():
    return buf_load(V(HFV), V(HFA), S(SRD_SY, 4), 0, n=1, tag="HFL", flags="sc1")

def h_flag_check(name):
    s = []; e = s.append
    L = f"{name}_hc"
    e(raw(f"v_cmp_ne_u32_e64 vcc, s{S_EPOCH}, v{HFV}", "valu", rd=regs("v", HFV) + regs("s", S_EPOCH), wr=[("s", "vcc")]))
    e(raw("s_nop 4", "other"))
    e(raw(f"s_cbranch_vccz {L}_ok", "branch"))
    e(salu("s_mov_b32", S(T2_), SPIN_MAX))
    e(label(f"{L}_poll"))
    e(raw(f"buffer_load_dword v{HFV}, v{HFA}, s[{SRD_SY}:{SRD_SY+3}], 0 offen sc1", "other"))
    e(raw("s_waitcnt vmcnt(0)", "other"))
    e(raw(f"v_cmp_ne_u32_e64 vcc, s{S_EPOCH}, v{HFV}", "other")); e(raw("s_nop 4", "other"))
    e(raw(f"s_cbranch_vccz {L}_ok", "branch"))
    e(raw(f"s_sub_u32 s{T2_}, s{T2_}, 1", "other")); e(raw(f"s_cbranch_scc1 {L}_ok", "branch"))
    e(raw("s_sleep 1", "other")); e(raw(f"s_branch {L}_poll", "branch"))
    e(label(f"{L}_ok"))
    return s

def f_block(i):
    s = []; e = s.append
    s += sstamp('T', i)
    F = Fill(16)
    N = NT_H
    F.add(0, f_rd(i, 3, 0)); F.add(1, f_rd(i, 3, 1))
    if i + 1 < N:
        F.add(3, wait_vm(("FW", i + 1)))
        for nb in range(3):
            F.add(4*nb + 4, f_rd(i + 1, nb, 0)); F.add(4*nb + 5, f_rd(i + 1, nb, 1))
    if not FVMOUT:
        if i + 3 < N:
            pre, d, adv = f_ldW(i + 3)
            F.add(1, pre); F.add(2, d[0]); F.add(3, d[1]); F.add(6, d[2]); F.add(7, d[3]); F.add(8, adv)
        if i + 2 < N:
            for qb, (ld, adv) in enumerate(f_ldB(i + 2)):
                F.add(12 + qb, ld)
    for nb in range(4):
        for qb in range(4):
            g = 4*nb + qb
            e(mfma16(FACC(nb, qb), FAFR(nb), FBF(i, qb), 0 if i == 0 else FACC(nb, qb)))
            s += F.emit(g)
    if i + 2 < N and not FVMOUT:
        for qb, (ld, adv) in enumerate(f_ldB(i + 2)): e(adv)
    if i in (4, 5): s += sstamp('T', 14 + (i - 4))
    return s

def tail_F(name):
    s = []; e = s.append
    e(salu("s_mov_b32", S(S_FBD), 0))
    s += h_flag_check(name)
    if PK3 == 2: s += pk_check(name)
    for i in range(2):
        pre, d, adv = f_ldW(i); s += [pre, nop(0)] + d + [adv]
        for ld, adv in f_ldB(i): s += [ld, adv]
    def fvm(i, half):
        if not FVMOUT: return []
        gaps = [35, 39, 43, 47, 51, 55, 59, 63] if half == "pv" else [3, 7, 11, 15, 17, 19, 23, 27]
        if FVMOUT == 2: gaps = [33, 35, 37, 39, 43, 47, 51, 55] if half == "pv" else [1, 3, 5, 7, 11, 15, 17, 19]
        x = []
        if i + 2 < NT_H:
            for qb, (ld, adv) in enumerate(f_ldB(i + 2)):
                x.append((gaps[qb], ld)); x.append((gaps[qb] + 1, adv))
        if i + 3 < NT_H:
            pre, d, adv = f_ldW(i + 3)
            x.append((gaps[4] - 1, pre))
            for k in range(4): x.append((gaps[4 + k], d[k]))
            x.append((gaps[7] + 1, adv))
        return x
    blk = 0
    pend = []
    for T in range(28, 32):
        d0, d1 = tile_dma(T, doK=False, doV=False)
        x0 = list(pend); pend = []
        if T == 28:
            pre, d, adv = dmaV(3)
            x0 += [(34, pre)] + [(35 + 4*k, x) for k, x in enumerate(d)] + [(48, adv)]
            pre, d, adv = f_ldW(2)
            x0 += [(50, pre)] + [(51 + 4*k, x) for k, x in enumerate(d)] + [(66, adv)]
            x0.append((40, wait_vm(("FW", 0))))
            for nb in range(3):
                x0 += [(41 + 8*nb, f_rd(0, nb, 0)), (41 + 8*nb, f_rd(0, nb, 1))]
        j = 2*T
        mid = None
        if T > 28:
            mid = f_block(blk); x0 += fvm(blk, "pv"); blk += 1
        s += window(j, T, dma=d0, bar=(T < 31), do_kread=(j + 2 <= 63), extra=x0, mid=mid)
        s += f_block(blk); x1 = fvm(blk, "qk"); blk += 1
        j = 2*T + 1
        mid = f_block(blk); x1 += fvm(blk, "pv"); blk += 1
        s += window(j, T, dma=d1, last_qk=(j + 1 <= 63), do_kread=(j + 2 <= 63), mid=mid, extra=x1)
        if blk < NT_H:
            s += f_block(blk); pend = fvm(blk, "qk"); blk += 1
    assert blk == NT_H, blk
    return s

def final2(name):
    ADDRA, VOFW, VOFB, VB = 2, 6, 10, 12
    ACCS, ACCF = 128, 192
    NT = NT_O + NT_H
    def part(t): return 1 if t < NT_H else 0
    def tl(t): return t if t < NT_H else t - NT_H
    def ACC(p, nb, qb): return V((ACCS if p == 0 else ACCF) + 16*nb + 4*qb, 4)
    def AF(t, nb): return V(64 + 16*(t & 1) + 4*nb, 4)
    def BFf(t, qb): return A(128 + 16*(t % NSLOT) + 4*qb, 4)
    SRD_A0, SRD_A1, SRD_W0, SRD_W1 = 8, 12, 16, 20
    SRD_O2 = 24
    S_RB, S_CB, S_LDSW, S_SA, S_SW = 32, 33, 34, 35, 36
    pre = []; e = pre.append
    e(salu("s_lshl_b32", S(T3_), S(S_QB), 4)); e(salu("s_lshl_b32", S(T2_), S(S_WAVE), 2)); e(salu("s_add_u32", S(T3_), S(T3_), S(T2_)))
    e(salu("s_lshl_b32", S(T0_), S(T3_), 7)); e(salu("s_lshl_b32", S(T1_), S(S_HEAD), 2)); e(salu("s_add_u32", S(T0_), S(T0_), S(T1_)))
    e(salu("s_lshl_b32", S(T0_), S(T0_), 10)); e(salu("s_add_u32", S(T0_), S(T0_), O_OFF))
    pre += mksrd(SRD_O, P_WS, T0_, 3*131072 + 4096)
    e(salu("s_and_b32", S(T0_), S(S_HEAD), 7)); e(salu("s_lshr_b32", S(T1_), S(S_HEAD), 3))
    e(salu("s_lshr_b32", S(T2_), S(T0_), 1)); e(salu("s_lshl_b32", S(S_RB), S(S_QB), 2)); e(salu("s_add_u32", S(S_RB), S(S_RB), S(T2_)))
    if CBX: e(salu("s_xor_b32", S(T1_), S(T1_), CBX))
    e(salu("s_and_b32", S(T0_), S(T0_), 1))
    if CBM == 0: e(salu("s_lshl_b32", S(T0_), S(T0_), 2))
    else: e(salu("s_lshl_b32", S(T1_), S(T1_), 1))
    e(salu("s_add_u32", S(S_CB), S(T0_), S(T1_)))
    e(salu("s_lshl_b32", S(T0_), S(S_RB), 9)); e(salu("s_lshl_b32", S(T1_), S(S_WAVE), 5)); e(salu("s_add_u32", S(T0_), S(T0_), S(T1_)))
    e(salu("s_lshl_b32", S(T0_), S(T0_), 10)); e(salu("s_add_u32", S(T0_), S(T0_), O_OFF))
    pre += mksrd(SRD_A0, P_WS, T0_, 3*131072 + 32*1024)
    e(salu("s_mul_i32", S(T0_), S(S_RB), 224)); e(salu("s_mul_i32", S(T1_), S(S_WAVE), 14)); e(salu("s_add_u32", S(T0_), S(T0_), S(T1_)))
    e(salu("s_lshl_b32", S(T0_), S(T0_), 10)); e(salu("s_add_u32", S(T0_), S(T0_), H_OFF))
    pre += mksrd(SRD_A1, P_WS, T0_, 3*57344 + 14*1024)
    e(salu("s_lshl_b32", S(T0_), S(S_WAVE), 20)); e(salu("s_lshl_b32", S(T1_), S(S_CB), 7)); e(salu("s_add_u32", S(T0_), S(T0_), S(T1_)))
    e(salu("s_sub_u32", S(T2_), 4096*1024, S(T0_)))
    pre += mksrd(SRD_W0, P_WO, T0_, S(T2_))
    e(salu("s_mul_i32", S(T0_), S(S_WAVE), 448*1024)); e(salu("s_add_u32", S(T0_), S(T0_), S(T1_)))
    e(salu("s_sub_u32", S(T2_), 1792*1024, S(T0_)))
    pre += mksrd(SRD_W1, P_WD, T0_, S(T2_))
    e(salu("s_lshl_b32", S(S_LDSW), S(S_WAVE), 15))
    G, RR, C, T1, T2, X = 20, 21, 22, 23, 24, 25
    e(valu("v_lshrrev_b32", V(G), 4, V(1))); e(valu("v_bfe_u32", V(RR), V(1), 2, 2)); e(valu("v_and_b32", V(C), 3, V(1)))
    e(valu("v_lshl_add_u32", V(T2), V(G), 2, V(RR))); e(valu("v_lshlrev_b32", V(T2), 7, V(T2)))
    e(valu("v_lshl_add_u32", V(T2), V(C), 3, V(T2))); e(valu("v_add_u32", V(T2), S(S_LDSW), V(T2)))
    e(valu("v_and_b32", V(X), 1, V(G))); e(valu("v_lshlrev_b32", V(X), 1, V(X))); e(valu("v_lshrrev_b32", V(T1), 1, V(RR))); e(valu("v_add_u32", V(X), V(X), V(T1)))
    for b in range(4):
        e(valu("v_xor_b32", V(T1), b, V(X))); e(valu("v_lshl_add_u32", V(ADDRA + b), V(T1), 5, V(T2)))
    e(valu("v_lshrrev_b32", V(T1), 3, V(1))); e(valu("v_lshlrev_b32", V(T2), 10, V(T1)))
    e(valu("v_lshlrev_b32", V(X), 1, V(G))); e(valu("v_and_b32", V(T1), 7, V(1))); e(valu("v_xor_b32", V(T1), V(T1), V(X)))
    e(valu("v_lshl_add_u32", V(VOFW), V(T1), 4, V(T2)))
    for i in range(1, 4): e(valu("v_add_u32", V(VOFW + i), i*7168, V(VOFW)))
    e(valu("v_lshlrev_b32", V(VOFB), 4, V(1)))
    for qb in range(4):
        e(valu("v_add_u32", V(VB + qb), qb*131072, V(VOFB))); e(valu("v_add_u32", V(VB + 4 + qb), qb*57344, V(VOFB)))
    e(salu("s_mov_b32", S(S_SA), 0)); e(salu("s_mov_b32", S(S_SW), 0))
    D = FD
    def ldW(t):
        p = part(t); o = []
        if t == NT_H: o.append(salu("s_mov_b32", S(S_SW), 0))
        o.append(salu("s_add_u32", "m0", S(S_LDSW), (t % NSLOT)*4096))
        d = [buf_dma(V(VOFW + i), S(SRD_W0 if p == 0 else SRD_W1, 4), S(S_SW), offset=i*1024, tag=("FW", t)) for i in range(4)]
        return o, d, [salu("s_add_u32", S(S_SW), S(S_SW), 32768)]
    def ldB(t):
        p = part(t); o = []
        if t == NT_H: o.append(salu("s_mov_b32", S(S_SA), 0))
        d = [buf_load(BFf(t, qb), V(VB + 4*p + qb), S(SRD_A0 if p == 0 else SRD_A1, 4), S(S_SA), tag=("FB", t), flags="sc1") for qb in range(4)]
        return o, d, [salu("s_add_u32", S(S_SA), S(S_SA), 1024)]
    def rdA(t, nb, rd):
        return ds_read("ds_read_b64_tr_b16", sub(AF(t, nb), 2*rd, 2), V(ADDRA + nb), offset=(t % NSLOT)*4096 + rd*2048)
    def o_unit2(k):
        qb, dp = k >> 2, k & 3
        t = 32 + 8*(k % 2); pk = 48 + 4*(k % 4)
        o = []
        for u in range(2):
            for r in range(4): o.append(valu("v_accvgpr_read_b32", V(t + 4*u + r), sub(OACC(2*dp + u, qb), r)))
        for i in range(8): o.append(valu("v_mul_f32", V(t + i), V(t + i), V(RI + qb)))
        for i in range(4): o.append(valu("v_cvt_pk_bf16_f32", V(pk + i), V(t + 2*i), V(t + 2*i + 1)))
        o.append(buf_store(V(pk, 4), V(VLANE16), S(SRD_O, 4), S(S_T + qb), offset=dp*1024, tag="O", flags="sc1"))
        return o
    def wnext(t):
        if t < NT_H:
            return t + D if t + D < NT_H + D else None
        tw = t + 7 if WPRE else t + D
        return tw if tw < NT else None
    def steps(s, t0, t1, units):
        e = s.append
        for t in range(t0, t1):
            p = part(t)
            if t < 15: s += sstamp("F", t + 1)
            if NT_H <= t < NT_H + 16: s += sstamp("G", t - NT_H)
            F = Fill(16); post = []
            if t + 1 < NT:
                F.add(0, wait_vm(("FW", t + 1)))
                for nb in range(4):
                    F.add(1 + 4*nb, rdA(t + 1, nb, 0)); F.add(3 + 4*nb, rdA(t + 1, nb, 1))
            tw = wnext(t)
            if tw is not None:
                o, d, pp = ldW(tw)
                F.add(0, o)
                for k, x in enumerate(d): F.add(2 + 2*k, x)
                F.add(9, pp)
            if t + D < NT and not (t < NT_H and t + D >= NT_H):
                o, d, pp = ldB(t + D)
                if o: F.add(9, o)
                for k, x in enumerate(d): F.add(10 + 2*k if k < 3 else 15, x)
                post = pp
            u = units.get(t, [])
            for nb in range(4):
                for qb in range(4):
                    g = 4*nb + qb
                    e(mfma16(ACC(p, nb, qb), AF(t, nb), BFf(t, qb), 0 if tl(t) == 0 else ACC(p, nb, qb)))
                    s += F.emit(g)
                    n = 2 if len(u) > 1 else len(u)
                    for _ in range(n):
                        if u: s.append(u.pop(0))
            s += u
            s += post
    f = []; e = f.append
    f += sstamp("F", 0)
    for qb in range(4): e(salu("s_mov_b32", S(S_T + qb), qb*131072))
    def both(t):
        o, d, p = ldW(t); r = o + [nop(0)] + d + p
        o, d, p = ldB(t); return r + o + d + p
    for t in range(2): f += both(t)
    for k in range(16): f += o_unit2(k)
    for t in range(2, D): f += both(t)
    e(wait_vm(("FW", 0)))
    for nb in range(4):
        for rd in range(2): e(rdA(0, nb, rd))
    steps(f, 0, NT_H, {})
    if WPRE:
        for t in range(NT_H + D, NT_H + 7):
            o, d, p = ldW(t); f += o + [nop(0)] + d + p
    sp = []; e = sp.append
    for t in range(NT_H, NT_H + D):
        o, d, p = ldB(t); sp += o; sp += d; sp += p
    steps(sp, NT_H, NT, {})
    sp += sstamp("H", 6)
    SRD_X, SRD_OUT = 8, 12
    e(sload(44, 0, 2)); e(sload(46, 72, 2))
    e(valu("v_lshlrev_b32", V(20), 4, V(1)))
    e(valu("v_add_u32", V(21), S(S_LDSW), V(20)))
    e(valu("v_and_b32", V(23), 15, V(1)))
    e(salu("s_lshl_b32", S(T0_), S(S_RB), 6)); e(salu("s_lshl_b32", S(T1_), S(S_WAVE), 4)); e(salu("s_add_u32", S(T0_), S(T0_), S(T1_)))
    e(valu("v_add_u32", V(23), S(T0_), V(23))); e(valu("v_lshlrev_b32", V(23), 10, V(23)))
    e(valu("v_lshrrev_b32", V(24), 4, V(1))); e(valu("v_lshl_add_u32", V(23), V(24), 3, V(23)))
    e(salu("s_lshl_b32", S(T1_), S(S_CB), 7)); e(valu("v_add_u32", V(23), S(T1_), V(23)))
    e(raw("s_waitcnt lgkmcnt(0)", "wait")); sp[-1].tag = (None, 0)
    sp += mksrd(SRD_X, 44, None, 2097152); sp += mksrd(SRD_OUT, 46, None, 2097152)
    XR_ = 160 - 128 + 2
    XR_ = 12
    for nb in range(4): e(buf_load(V(XR_ + 2*nb, 2), V(23), S(SRD_X, 4), 0, offset=nb*32, n=2))
    for i in list(range(16, 32)): e(ds_write("ds_write_b128", V(21), V(128 + 4*i, 4), offset=i*1024))
    e(nop(3))
    for i in list(range(16)): e(ds_write("ds_write_b128", V(21), V(128 + 4*i, 4), offset=i*1024))
    sp += sstamp("H", 7)
    e(wait_raw(lgkm=0)); e(barrier())
    sp += sstamp("H", 8)
    e(salu("s_lshl_b32", S(T0_), S(S_WAVE), 10))
    e(valu("v_add_u32", V(21), S(T0_), V(20))); e(valu("v_add_u32", V(22), 65536, V(21)))
    for p in (1, 0):
        for nb in range(4):
            for src in range(4):
                off = (src & 1)*32768 + (p*16 + nb*4)*1024
                e(ds_read("ds_read_b128", V(32 + ((p*4 + nb)*4 + src)*4, 4), V(21 if src < 2 else 22), offset=off))
    def red(p, nb):
        b = 32 + (p*4 + nb)*16; o = []
        for r in range(4):
            o.append(valu("v_add_f32", V(b + r), V(b + r), V(b + 4 + r))); o.append(valu("v_add_f32", V(b + 8 + r), V(b + 8 + r), V(b + 12 + r)))
        for r in range(4): o.append(valu("v_add_f32", V(b + r), V(b + r), V(b + 8 + r)))
        return o
    T = 168
    for nb in range(4):
        sp += red(1, nb)
    for nb in range(4):
        fb = 96 + nb*16; t = T + 8*nb
        e(valu("v_cvt_pk_bf16_f32", V(t), V(fb), V(fb + 1))); e(valu("v_cvt_pk_bf16_f32", V(t + 1), V(fb + 2), V(fb + 3)))
        for h in range(2):
            e(valu("v_lshlrev_b32", V(fb + 2*h), 16, V(t + h))); e(valu("v_and_b32", V(fb + 2*h + 1), "0xffff0000", V(t + h)))
        for r in range(4): e(valu("v_mul_f32", V(t + 4 + r), f2h(-1.4426950408889634), V(fb + r)))
    for nb in range(4):
        t = T + 8*nb
        for r in range(4): e(trans("v_exp_f32", V(t + 4 + r), V(t + 4 + r)))
    for nb in range(4): sp += red(0, nb)
    for nb in range(4):
        t = T + 8*nb
        for r in range(4): e(valu("v_add_f32", V(t + 4 + r), 1.0, V(t + 4 + r)))
    for nb in range(4):
        t = T + 8*nb
        for r in range(4): e(trans("v_rcp_f32", V(t + 4 + r), V(t + 4 + r)))
    for nb in range(4):
        sb, fb = 32 + nb*16, 96 + nb*16; t = T + 8*nb
        e(valu("v_cvt_pk_bf16_f32", V(t), V(sb), V(sb + 1))); e(valu("v_cvt_pk_bf16_f32", V(t + 1), V(sb + 2), V(sb + 3)))
        for h in range(2):
            e(valu("v_lshlrev_b32", V(sb + 2*h), 16, V(t + h))); e(valu("v_and_b32", V(sb + 2*h + 1), "0xffff0000", V(t + h)))
        for r in range(4): e(valu("v_mul_f32", V(sb + r), V(sb + r), V(fb + r)))
        for h in range(2):
            e(valu("v_lshlrev_b32", V(fb + 2*h), 16, V(XR_ + 2*nb + h))); e(valu("v_and_b32", V(fb + 2*h + 1), "0xffff0000", V(XR_ + 2*nb + h)))
        for r in range(4): e(valu("v_fma_f32", V(sb + r), V(sb + r), V(t + 4 + r), V(fb + r)))
        e(valu("v_cvt_pk_bf16_f32", V(t + 2), V(sb), V(sb + 1))); e(valu("v_cvt_pk_bf16_f32", V(t + 3), V(sb + 2), V(sb + 3)))
        e(buf_store(V(t + 2, 2), V(23), S(SRD_OUT, 4), 0, offset=nb*32, n=2, flags=OUTFLAGS))
    sp += sstamp("H", 9)
    return pre, f, sp

def final3(name):
    ADDRA, VOFW, VOFB, VB = 2, 6, 10, 12
    ACCS, ACCF = 128, 192
    NT = NT_O
    NT_H = 0
    def part(t): return 0
    def tl(t): return t
    def ACC(p, nb, qb): return V((ACCS if p == 0 else ACCF) + 16*nb + 4*qb, 4)
    def AF(t, nb): return V(64 + 16*(t & 1) + 4*nb, 4)
    def BFf(t, qb): return A(16*(t % NSLOT) + 4*qb, 4)
    SRD_A0, SRD_A1, SRD_W0, SRD_W1 = 8, 12, 16, 20
    SRD_O2 = 24
    S_RB, S_CB, S_LDSW, S_SA, S_SW = 32, 33, 34, 35, 36
    pre = []; e = pre.append
    e(salu("s_lshl_b32", S(T3_), S(S_QB), 4)); e(salu("s_lshl_b32", S(T2_), S(S_WAVE), 2)); e(salu("s_add_u32", S(T3_), S(T3_), S(T2_)))
    e(salu("s_lshl_b32", S(T0_), S(T3_), 7)); e(salu("s_lshl_b32", S(T1_), S(S_HEAD), 2)); e(salu("s_add_u32", S(T0_), S(T0_), S(T1_)))
    e(salu("s_lshl_b32", S(T0_), S(T0_), 10)); e(salu("s_add_u32", S(T0_), S(T0_), O_OFF))
    pre += mksrd(SRD_O, P_WS, T0_, 3*131072 + 4096)
    preO = list(pre); del pre[:]
    e(salu("s_and_b32", S(T0_), S(S_HEAD), 7)); e(salu("s_lshr_b32", S(T1_), S(S_HEAD), 3))
    e(salu("s_lshr_b32", S(T2_), S(T0_), 1)); e(salu("s_lshl_b32", S(S_RB), S(S_QB), 2)); e(salu("s_add_u32", S(S_RB), S(S_RB), S(T2_)))
    if CBX: e(salu("s_xor_b32", S(T1_), S(T1_), CBX))
    e(salu("s_and_b32", S(T0_), S(T0_), 1))
    if CBM == 0: e(salu("s_lshl_b32", S(T0_), S(T0_), 2))
    else: e(salu("s_lshl_b32", S(T1_), S(T1_), 1))
    e(salu("s_add_u32", S(S_CB), S(T0_), S(T1_)))
    e(salu("s_lshl_b32", S(T0_), S(S_RB), 9)); e(salu("s_lshl_b32", S(T1_), S(S_WAVE), 5)); e(salu("s_add_u32", S(T0_), S(T0_), S(T1_)))
    e(salu("s_lshl_b32", S(T0_), S(T0_), 10)); e(salu("s_add_u32", S(T0_), S(T0_), O_OFF))
    pre += mksrd(SRD_A0, P_WS, T0_, 3*131072 + 32*1024)
    e(salu("s_lshl_b32", S(T0_), S(S_WAVE), 20)); e(salu("s_lshl_b32", S(T1_), S(S_CB), 6 if COLSPLIT else 7)); e(salu("s_add_u32", S(T0_), S(T0_), S(T1_)))
    e(salu("s_sub_u32", S(T2_), 4096*1024, S(T0_)))
    pre += mksrd(SRD_W0, P_WO, T0_, S(T2_))
    if PK3:
        e(raw(f"s_cmp_eq_u32 s{S_CB}, 3", "salu", rd=regs("s", S_CB)))
        e(salu("s_mov_b32", S(39), 1024)); e(salu("s_mov_b32", S(42), 32768)); e(salu("s_mov_b32", S(37), 32*32768 - 1))
        e(salu("s_cselect_b32", S(39), 128, S(39))); e(salu("s_cselect_b32", S(42), 4096, S(42))); e(salu("s_cselect_b32", S(37), 32*4096 - 1, S(37)))
        if PK3 == 1:
            e(salu("s_lshl_b32", S(T0_), S(S_WAVE), 17)); e(salu("s_add_u32", S(T0_), S(T0_), S(P_WO))); e(salu("s_addc_u32", S(T1_), S(P_WO + 1), 0))
        else:
            e(salu("s_lshl_b32", S(T0_), S(S_WAVE), 17)); e(salu("s_add_u32", S(T0_), S(T0_), PK_OFF)); e(salu("s_add_u32", S(T0_), S(T0_), S(P_WS))); e(salu("s_addc_u32", S(T1_), S(P_WS + 1), 0))
        e(raw(f"s_cmp_eq_u32 s{S_CB}, 3", "salu", rd=regs("s", S_CB)))
        e(salu("s_cselect_b32", S(SRD_W0), S(T0_), S(SRD_W0))); e(salu("s_cselect_b32", S(SRD_W0 + 1), S(T1_), S(SRD_W0 + 1))); e(salu("s_cselect_b32", S(SRD_W0 + 2), 131072, S(SRD_W0 + 2)))
    e(salu("s_mul_i32", S(T0_), S(S_WAVE), 448*1024)); e(salu("s_add_u32", S(T0_), S(T0_), S(T1_)))
    e(salu("s_sub_u32", S(T2_), 1792*1024, S(T0_)))
    pre += mksrd(SRD_W1, P_WD, T0_, S(T2_))
    e(salu("s_lshl_b32", S(S_LDSW), S(S_WAVE), 15))
    G, RR, C, T1, T2, X = 20, 21, 22, 23, 24, 25
    e(valu("v_lshrrev_b32", V(G), 4, V(1))); e(valu("v_bfe_u32", V(RR), V(1), 2, 2)); e(valu("v_and_b32", V(C), 3, V(1)))
    e(valu("v_lshl_add_u32", V(T2), V(G), 2, V(RR))); e(valu("v_lshlrev_b32", V(T2), 7, V(T2)))
    e(valu("v_lshl_add_u32", V(T2), V(C), 3, V(T2))); e(valu("v_add_u32", V(T2), S(S_LDSW), V(T2)))
    e(valu("v_and_b32", V(X), 1, V(G))); e(valu("v_lshlrev_b32", V(X), 1, V(X))); e(valu("v_lshrrev_b32", V(T1), 1, V(RR))); e(valu("v_add_u32", V(X), V(X), V(T1)))
    for b in range(4):
        e(valu("v_xor_b32", V(T1), b, V(X))); e(valu("v_lshl_add_u32", V(ADDRA + b), V(T1), 5, V(T2)))
    e(valu("v_lshrrev_b32", V(T1), 3, V(1)))
    if PK3: e(valu("v_mul_lo_u32", V(T2), V(T1), S(39)))
    else: e(valu("v_lshlrev_b32", V(T2), 10, V(T1)))
    e(valu("v_lshlrev_b32", V(X), 1, V(G))); e(valu("v_and_b32", V(T1), 7, V(1))); e(valu("v_xor_b32", V(T1), V(T1), V(X)))
    if COLSPLIT:
        e(valu("v_lshrrev_b32", V(X), 2, V(T1))); e(valu("v_lshl_add_u32", V(T2), V(X), 9, V(T2))); e(valu("v_and_b32", V(T1), 3, V(T1)))
    e(valu("v_lshl_add_u32", V(VOFW), V(T1), 4, V(T2)))
    if PK3:
        e(salu("s_lshl_b32", S(T0_), S(39), 3)); e(salu("s_sub_u32", S(T0_), S(T0_), 1024))
        e(valu("v_add_u32", V(VOFW + 1), S(T0_), V(VOFW))); e(valu("v_add_u32", V(VOFW + 2), S(T0_), V(VOFW + 1))); e(valu("v_add_u32", V(VOFW + 3), S(T0_), V(VOFW + 2)))
    else:
        for i in range(1, 4): e(valu("v_add_u32", V(VOFW + i), i*7168, V(VOFW)))
    e(valu("v_lshlrev_b32", V(VOFB), 4, V(1)))
    for qb in range(4):
        e(valu("v_add_u32", V(VB + qb), qb*131072, V(VOFB))); e(valu("v_add_u32", V(VB + 4 + qb), qb*57344, V(VOFB)))
    if ROTW:
        e(salu("s_mul_i32", S(S_SA), S(S_WAVE), ROTW*1024)); e(salu("s_and_b32", S(S_SA), S(S_SA), 32767))
        if PK3:
            e(salu("s_lshr_b32", S(S_SW), S(S_SA), 10)); e(salu("s_mul_i32", S(S_SW), S(S_SW), S(42)))
        else: e(salu("s_lshl_b32", S(S_SW), S(S_SA), 5))
    else:
        e(salu("s_mov_b32", S(S_SA), 0)); e(salu("s_mov_b32", S(S_SW), 0))
    D = FD
    def ldW(t):
        p = part(t); o = []
        o.append(salu("s_add_u32", "m0", S(S_LDSW), (t % NSLOT)*4096))
        d = [buf_dma(V(VOFW + i), S(SRD_W0 if p == 0 else SRD_W1, 4), S(S_SW), offset=i*1024, tag=("FW", t)) for i in range(4)]
        if PK3: return o, d, [salu("s_add_u32", S(S_SW), S(S_SW), S(42)), salu("s_and_b32", S(S_SW), S(S_SW), S(37))]
        return o, d, [salu("s_add_u32", S(S_SW), S(S_SW), 32768)] + ([salu("s_and_b32", S(S_SW), S(S_SW), 32*32768 - 1)] if ROTW else [])
    def ldB(t):
        p = part(t); o = []
        d = [buf_load(BFf(t, qb), V(VB + 4*p + qb), S(SRD_A0 if p == 0 else SRD_A1, 4), S(S_SA), tag=("FB", t), flags="sc1") for qb in range(4)]
        return o, d, [salu("s_add_u32", S(S_SA), S(S_SA), 1024)] + ([salu("s_and_b32", S(S_SA), S(S_SA), 32767)] if ROTW else [])
    def rdA(t, nb, rd):
        return ds_read("ds_read_b64_tr_b16", sub(AF(t, nb), 2*rd, 2), V(ADDRA + nb), offset=(t % NSLOT)*4096 + rd*2048)
    def o_unit2(k):
        qb, dp = k >> 2, k & 3
        t = 32 + 8*(k % 2); pk = 48 + 4*(k % 4)
        o = []
        for u in range(2):
            for r in range(4): o.append(valu("v_accvgpr_read_b32", V(t + 4*u + r), sub(OACC(2*dp + u, qb), r)))
        for i in range(8): o.append(valu("v_mul_f32", V(t + i), V(t + i), V(RI + qb)))
        for i in range(4): o.append(valu("v_cvt_pk_bf16_f32", V(pk + i), V(t + 2*i), V(t + 2*i + 1)))
        o.append(buf_store(V(pk, 4), V(VLANE16), S(SRD_O, 4), S(S_T + qb), offset=dp*1024, tag="O", flags="sc1"))
        return o
    def wnext(t):
        tw = t + 7
        return tw if tw < NT else None
    def steps(s, t0, t1, units):
        e = s.append
        for t in range(t0, t1):
            p = part(t)
            if t < 16: s += sstamp("G", t)
            if t >= 20 and t % 2 == 0: s += sstamp("H", (t - 20)//2)
            F = Fill(16); post = []
            if t + 1 < NT:
                F.add(0, wait_vm(("FW", t + 1)))
                for nb in range(4):
                    F.add(1 + 4*nb, rdA(t + 1, nb, 0)); F.add(3 + 4*nb, rdA(t + 1, nb, 1))
            tw = wnext(t)
            if tw is not None:
                o, d, pp = ldW(tw)
                F.add(0, o)
                for k, x in enumerate(d): F.add(2 + 2*k, x)
                F.add(9, pp)
            if t + D < NT:
                o, d, pp = ldB(t + D)
                if o: F.add(9, o)
                for k, x in enumerate(d): F.add(10 + 2*k if k < 3 else 15, x)
                post = pp
            u = units.get(t, [])
            for nb in range(4):
                for qb in range(4):
                    g = 4*nb + qb
                    e(mfma16(ACC(p, nb, qb), AF(t, nb), BFf(t, qb), 0 if tl(t) == 0 else ACC(p, nb, qb)))
                    s += F.emit(g)
                    n = 2 if len(u) > 1 else len(u)
                    for _ in range(n):
                        if u: s.append(u.pop(0))
            s += u
            s += post
    f = []; e = f.append
    if FASTPOST:
        ounits = [salu("s_mov_b32", S(S_T + qb), qb*131072) for qb in range(4)]
        for k in range(16): ounits += o_unit2(k)
        for t in range(7):
            o, d, p = ldW(t); f += o + [nop(0)] + d + p
        final3.fast = (preO, ounits)
    else:
        pre[:0] = preO
        for qb in range(4): e(salu("s_mov_b32", S(S_T + qb), qb*131072))
        for t in range(2):
            o, d, p = ldW(t); f += o + [nop(0)] + d + p
        for k in range(16): f += o_unit2(k)
        for t in range(2, 7):
            o, d, p = ldW(t); f += o + [nop(0)] + d + p
    sp = []; e = sp.append
    for t in range(D):
        o, d, p = ldB(t); sp += o; sp += d; sp += p
    e(wait_vm(("FW", 0)))
    for nb in range(4):
        for rd in range(2): e(rdA(0, nb, rd))
    steps(sp, 0, NT, {})
    sp += sstamp("H", 6)
    SRD_X, SRD_OUT = 8, 12
    e(sload(44, 0, 2)); e(sload(46, 72, 2))
    e(valu("v_lshlrev_b32", V(20), 4, V(1)))
    e(valu("v_add_u32", V(21), S(S_LDSW), V(20)))
    e(valu("v_and_b32", V(23), 15, V(1)))
    e(salu("s_lshl_b32", S(T0_), S(S_RB), 6)); e(salu("s_lshl_b32", S(T1_), S(S_WAVE), 4)); e(salu("s_add_u32", S(T0_), S(T0_), S(T1_)))
    e(valu("v_add_u32", V(23), S(T0_), V(23))); e(valu("v_lshlrev_b32", V(23), 10, V(23)))
    e(valu("v_lshrrev_b32", V(24), 4, V(1))); e(valu("v_lshl_add_u32", V(23), V(24), 3, V(23)))
    e(salu("s_lshl_b32", S(T1_), S(S_CB), 6 if COLSPLIT else 7)); e(valu("v_add_u32", V(23), S(T1_), V(23)))
    e(raw("s_waitcnt lgkmcnt(0)", "wait")); sp[-1].tag = (None, 0)
    sp += mksrd(SRD_X, 44, None, 2097152); sp += mksrd(SRD_OUT, 46, None, 2097152)
    XR_ = 160 - 128 + 2
    XR_ = 12
    for nb in range(4): e(buf_load(V(XR_ + 2*nb, 2), V(23), S(SRD_X, 4), 0, offset=((nb & 1)*32 + (nb >> 1)*512) if COLSPLIT else nb*32, n=2))
    for i in list(range(16, 32)): e(ds_write("ds_write_b128", V(21), A(128 + 4*(i - 16), 4), offset=i*1024))
    e(nop(3))
    for i in list(range(16)): e(ds_write("ds_write_b128", V(21), V(128 + 4*i, 4), offset=i*1024))
    sp += sstamp("H", 7)
    e(wait_raw(lgkm=0)); e(barrier())
    sp += sstamp("H", 8)
    e(salu("s_lshl_b32", S(T0_), S(S_WAVE), 10))
    e(valu("v_add_u32", V(21), S(T0_), V(20))); e(valu("v_add_u32", V(22), 65536, V(21)))
    for p in (1, 0):
        for nb in range(4):
            for src in range(4):
                off = (src & 1)*32768 + (p*16 + nb*4)*1024
                e(ds_read("ds_read_b128", V(32 + ((p*4 + nb)*4 + src)*4, 4), V(21 if src < 2 else 22), offset=off))
    def red(p, nb):
        b = 32 + (p*4 + nb)*16; o = []
        for r in range(4):
            o.append(valu("v_add_f32", V(b + r), V(b + r), V(b + 4 + r))); o.append(valu("v_add_f32", V(b + 8 + r), V(b + 8 + r), V(b + 12 + r)))
        for r in range(4): o.append(valu("v_add_f32", V(b + r), V(b + r), V(b + 8 + r)))
        return o
    T = 168
    for nb in range(4):
        sp += red(1, nb)
    for nb in range(4):
        fb = 96 + nb*16; t = T + 8*nb
        e(valu("v_cvt_pk_bf16_f32", V(t), V(fb), V(fb + 1))); e(valu("v_cvt_pk_bf16_f32", V(t + 1), V(fb + 2), V(fb + 3)))
        for h in range(2):
            e(valu("v_lshlrev_b32", V(fb + 2*h), 16, V(t + h))); e(valu("v_and_b32", V(fb + 2*h + 1), "0xffff0000", V(t + h)))
        for r in range(4): e(valu("v_mul_f32", V(t + 4 + r), f2h(-1.4426950408889634), V(fb + r)))
    for nb in range(4):
        t = T + 8*nb
        for r in range(4): e(trans("v_exp_f32", V(t + 4 + r), V(t + 4 + r)))
    for nb in range(4): sp += red(0, nb)
    for nb in range(4):
        t = T + 8*nb
        for r in range(4): e(valu("v_add_f32", V(t + 4 + r), 1.0, V(t + 4 + r)))
    for nb in range(4):
        t = T + 8*nb
        for r in range(4): e(trans("v_rcp_f32", V(t + 4 + r), V(t + 4 + r)))
    for nb in range(4):
        sb, fb = 32 + nb*16, 96 + nb*16; t = T + 8*nb
        e(valu("v_cvt_pk_bf16_f32", V(t), V(sb), V(sb + 1))); e(valu("v_cvt_pk_bf16_f32", V(t + 1), V(sb + 2), V(sb + 3)))
        for h in range(2):
            e(valu("v_lshlrev_b32", V(sb + 2*h), 16, V(t + h))); e(valu("v_and_b32", V(sb + 2*h + 1), "0xffff0000", V(t + h)))
        for r in range(4): e(valu("v_mul_f32", V(sb + r), V(sb + r), V(fb + r)))
        for h in range(2):
            e(valu("v_lshlrev_b32", V(fb + 2*h), 16, V(XR_ + 2*nb + h))); e(valu("v_and_b32", V(fb + 2*h + 1), "0xffff0000", V(XR_ + 2*nb + h)))
        for r in range(4): e(valu("v_fma_f32", V(sb + r), V(sb + r), V(t + 4 + r), V(fb + r)))
        e(valu("v_cvt_pk_bf16_f32", V(t + 2), V(sb), V(sb + 1))); e(valu("v_cvt_pk_bf16_f32", V(t + 3), V(sb + 2), V(sb + 3)))
        e(buf_store(V(t + 2, 2), V(23), S(SRD_OUT, 4), 0, offset=((nb & 1)*32 + (nb >> 1)*512) if COLSPLIT else nb*32, n=2, flags=OUTFLAGS))
    sp += sstamp("H", 9)
    return pre, f, sp


S_FBD = 7
def post_main_fast(name, preO, ounits):
    s = []; e = s.append
    e(nop(7))
    e(label(f"{name}_fbret"))
    s += preO
    s += o_rinv()[1:-4]
    e(salu("s_mov_b32", S(T0_), f2h(-1.0 if mega.FORCE_FB else mega.FB_THRESH)))
    for qb in range(4):
        e(raw(f"v_cmp_nle_f32_e64 s[{64 + 2*qb if False else (44 + 0)}:{45}], v{LREG + 4*qb}, s{T0_}", "valu")) if False else None
    pairs = [(44, 45), (46, 47), (62, 63)]
    e(raw(f"v_cmp_nle_f32_e64 s[44:45], v{LREG}, s{T0_}", "valu", rd=regs("v", LREG) + regs("s", T0_), wr=regs("s", 44, 2)))
    e(raw(f"v_cmp_nle_f32_e64 s[46:47], v{LREG + 4}, s{T0_}", "valu", rd=regs("v", LREG + 4) + regs("s", T0_), wr=regs("s", 46, 2)))
    e(raw(f"v_cmp_nle_f32_e64 s[62:63], v{LREG + 8}, s{T0_}", "valu", rd=regs("v", LREG + 8) + regs("s", T0_), wr=regs("s", 62, 2)))
    e(raw(f"v_cmp_nle_f32_e64 vcc, v{LREG + 12}, s{T0_}", "valu", rd=regs("v", LREG + 12) + regs("s", T0_), wr=[("s", "vcc")]))
    e(nop(4))
    e(raw("s_or_b64 s[44:45], s[44:45], s[46:47]", "salu")); e(raw("s_or_b64 s[62:63], s[62:63], vcc", "salu")); e(raw("s_or_b64 s[44:45], s[44:45], s[62:63]", "salu"))
    e(raw("s_or_b32 s44, s44, s45", "salu"))
    e(raw(f"s_cmp_eq_u32 s{S_FBD}, 0", "salu")); e(raw("s_cselect_b32 s44, s44, 0", "salu"))
    e(valu("v_mov_b32", V(TMP + 8), S(44)))
    e(salu("s_lshl_b32", S(T0_), S(S_WAVE), 2)); e(salu("s_add_u32", S(T0_), S(T0_), XR))
    e(valu("v_mov_b32", V(TMP + 9), S(T0_)))
    e(ds_write("ds_write_b32", V(TMP + 9), V(TMP + 8), offset=0))
    s += ounits
    e(wait_raw(lgkm=0)); e(barrier())
    e(valu("v_mov_b32", V(TMP + 9), XR))
    e(ds_read("ds_read_b128", V(TMP + 4, 4), V(TMP + 9), offset=0))
    e(valu("v_or3_b32", V(TMP + 4), V(TMP + 4), V(TMP + 5), V(TMP + 6)))
    e(valu("v_or_b32", V(TMP + 4), V(TMP + 4), V(TMP + 7)))
    e(nop(0))
    e(valu("v_readfirstlane_b32", S(T0_), V(TMP + 4)))
    e(nop(3))
    e(raw(f"s_cmp_lg_u32 s{T0_}, 0", "salu"))
    e(raw(f"s_cbranch_scc1 {name}_fb", "branch"))
    return [x for x in s if x is not None]

def fb_check2(name):
    c = mega.fb_check(name)
    i = [k for k, x in enumerate(c) if x.kind == "barrier"][0]
    L = f"{name}_hp"
    p = []; e = p.append
    e(raw(f"s_cmp_lg_u32 s{S_WAVE}, 0", "salu", rd=regs("s", S_WAVE)))
    e(raw(f"s_cbranch_scc1 {L}_skip", "branch"))
    e(salu("s_lshl_b32", S(T0_), S(S_QB), 7)); e(salu("s_add_u32", S(T0_), S(T0_), 4096*3))
    e(raw("s_mov_b32 exec_lo, -1", "salu")); e(raw("s_mov_b32 exec_hi, 0", "salu"))
    e(raw(f"v_lshlrev_b32 v{TMP+11}, 2, v1", "other"))
    e(salu("s_mov_b32", S(T2_), SPIN_MAX))
    e(label(f"{L}_poll"))
    e(raw(f"buffer_load_dword v{TMP+12}, v{TMP+11}, s[{SRD_SY}:{SRD_SY+3}], s{T0_} offen sc1", "other"))
    e(raw("s_waitcnt vmcnt(0)", "other"))
    e(raw(f"v_cmp_ne_u32 vcc, s{S_EPOCH}, v{TMP+12}", "other")); e(raw("s_nop 4", "other"))
    e(raw(f"s_cbranch_vccz {L}_done", "branch"))
    e(raw(f"s_sub_u32 s{T2_}, s{T2_}, 1", "other")); e(raw(f"s_cbranch_scc1 {L}_done", "branch"))
    e(raw("s_sleep 1", "other")); e(raw(f"s_branch {L}_poll", "branch"))
    e(label(f"{L}_done"))
    e(raw("s_mov_b64 exec, -1", "salu"))
    e(label(f"{L}_skip"))
    return c[:i + 1] + p + c[i + 1:]

def gen_mega2(name):
    k1.SC1 = True
    k1._cs[0] = 0
    mega.FB_LDS = XR
    s = stamp(0); e = s.append
    if k1.STEPSTAMP: s += [raw('s_memtime s[96:97]', 'smem'), raw('s_waitcnt lgkmcnt(0)', 'other'), raw('s_mov_b32 s80, s96', 'salu')]
    e(raw("s_cmp_ge_u32 s2, 256", "salu", rd=regs("s", 2)))
    e(raw(f"s_cbranch_scc1 {name}_end", "branch"))
    e(sload(60, 0, 2))
    e(raw("s_getpc_b64 s[100:101]", "salu", wr=regs("s", 100, 2))); e(label(f"{name}_pc"))
    s += setup_mega2()
    s += cstamp('S')
    s += setup_addr2()
    s += flatW2(0)
    if WTOUCH == 1: s += touches2()
    if WTOUCH in (3, 4): s += touches2(1)
    s += flatW2(1)
    s += cstamp('S')
    s += epoch_fix()
    s += cstamp('S')
    s += ln_compute()
    s += cstamp('S')
    midl = flatW2(2) + flatW2(3) + (code_touch(name, PFD + 3) if CODEPF else []) + setupK() + setup_addr3() + touch_prep()
    if not SIGEARLY: s += midl
    s += cstamp('S')
    e(wait_vm("XN"))
    s += stamp(1)
    s += cstamp('S')
    s += poll_barrier(name, 0, mid=midl if SIGEARLY else None)
    s += stamp(2)
    s += cstamp('S')
    s += loadB(0) + advB2()
    s += fused_phase()
    s += stamp(3)
    s += cstamp('M')
    if PK3 == 2: s += pk_load()
    if KVLATE:
        s += flatKV(dmaV(2)); s += flatKV(dmaK(2)); s += flatKV(dmaK(3))
    if CONV2:
        s += conv_phase()
        s += window_m1()
    else:
        s += qconvert()
        s += h_epilogue2()
        for i in range(16): e(valu("v_mov_b32", V(LREG + i), 0))
        for i in range(4): e(valu("v_mov_b32", V(ONES + i), "0x3f803f80"))
        s += first_max()
        s += window(-1, 0, last_qk=True, do_pv=False, do_kread=True, exp_tail=False)
    s += stamp(4)
    s += cstamp('M')
    e(salu("s_mov_b32", S(S_LOOP), 0))
    if PK3 == 2:
        s += pk_store()
        s += pk_flag_setup(TMP + 6, TMP + 7)
        e(salu("s_mov_b32", S(75), 14336))
    if FTAIL: s += f_setup()
    s += flag_addr_setup(2, TMP + 10, TMP + 11)
    e(salu("s_lshl_b32", S(7), S(2), 2)); e(salu("s_add_u32", S(7), S(7), S(S_WAVE))); e(salu("s_lshl_b32", S(7), S(7), 12))
    if MALLPF == 2:
        e(valu("v_lshlrev_b32", V(PFD + 3), 6, V(1)))
    else:
        e(valu("v_and_b32", V(PFD + 3), 31, V(1))); e(valu("v_lshlrev_b32", V(PFD + 3), 7, V(PFD + 3)))
    s += [salu("s_mov_b32", S(60), S(P_WD)), salu("s_mov_b32", S(61), S(P_WD + 1)), salu("s_mov_b32", S(62), 1792*1024 if WD_IT == 0 else 0), salu("s_mov_b32", S(63), "0x00020000")]
    if CODEPF:
        s += [salu("s_mov_b32", S(76), S(100)), salu("s_mov_b32", S(77), S(101)), raw(f"s_mov_b32 s78, {name}_codeend-{name}_pc", "salu", wr=regs("s", 78)), salu("s_mov_b32", S(79), "0x00020000")]
        e(salu("s_lshr_b32", S(90), S(2), 3)); e(salu("s_and_b32", S(90), S(90), 15)); e(salu("s_lshl_b32", S(90), S(90), 12))
        e(valu("v_lshlrev_b32", V(PFD + 2), 6, V(1)))
    def pf_next():
        b = [[raw(f"s_cmp_eq_u32 s{S_LOOP}, {WO_IT - 1}", "salu", rd=regs("s", S_LOOP)), salu("s_cselect_b32", S(60), S(P_WO), S(P_WD)), salu("s_cselect_b32", S(61), S(P_WO + 1), S(P_WD + 1)),
              salu("s_cselect_b32", S(62), 4096*1024, 0)]]
        if WD_IT > 0:
            b.append([raw(f"s_cmp_eq_u32 s{S_LOOP}, {WD_IT - 1}", "salu", rd=regs("s", S_LOOP)), salu("s_cselect_b32", S(62), 1792*1024, S(62))])
        return b
    if L2W3:
        e(salu("s_mov_b32", S(28), S(P_WO))); e(salu("s_mov_b32", S(29), S(P_WO + 1))); e(salu("s_mov_b32", S(30), 0)); e(salu("s_mov_b32", S(31), "0x00020000"))
        e(salu("s_lshl_b32", S(91), S(S_WAVE), 20)); e(salu("s_lshl_b32", S(T0_ + 14), S(S_QB), 17)); e(salu("s_add_u32", S(91), S(91), S(T0_ + 14))); e(salu("s_add_u32", S(91), S(91), 384))
        e(valu("v_lshlrev_b32", V(168), 10, V(1))); e(valu("v_add_u32", V(169), 65536, V(168)))
        e(salu("s_and_b32", S(74), S(S_HEAD), 0x19)); e(raw("s_cmp_eq_u32 s74, 0x18", "salu", rd=regs("s", 74))); e(salu("s_cselect_b32", S(75), 4096*1024, 0))
    e(LoopBegin(f"{name}_loop"))
    for T in range(4):
        d0, d1 = tile_dma(T)
        x0, x1 = [], []
        if L2W3 and T == 0:
            x0.append((15, [raw(f"s_cmp_eq_u32 s{S_LOOP}, {L2W3_IT}", "salu", rd=regs("s", S_LOOP)), salu("s_cselect_b32", S(30), S(75), 0)]))
        if L2W3 and T == 1:
            x0.append((39, buf_load(V(170), V(168), S(28, 4), S(91), n=1, tag="PF")))
            x0.append((47, buf_load(V(171), V(169), S(28, 4), S(91), n=1, tag="PF")))
        if T == 0 and MALLPF: x1.append((39, buf_load(V(PFD), V(PFD + 3), S(60, 4), S(7), n=1, tag="PF")))
        if T == 1:
            for k, b in enumerate(pf_next()): x1.append((15 + 2*k, b))
        if T == 2:
            if CODEPF: x1.append((39, buf_load(V(PFD + 1), V(PFD + 2), S(76, 4), S(90), n=1, tag="PF")))
            x0.append((39, buf_store(V(TMP + 11), V(TMP + 10), S(SRD_SY, 4), 0, n=1, tag="HF", flags="sc1")))
            x0.append((41, valu("v_or_b32", V(TMP + 10), "0x40000000", V(TMP + 10))))
            if PK3 == 2:
                x0.append((47, buf_store(V(TMP + 7), V(TMP + 6), S(SRD_SY, 4), 0, n=1, tag="HF", flags="sc1")))
                x0.append((55, valu("v_or_b32", V(TMP + 6), "0x40000000", V(TMP + 6))))
        if T == 3 and FTAIL: x0.append((39, h_flag_load()))
        if T == 3 and PK3 == 2: x0.append((47, pk_flag_load()))
        w0 = window(2*T, T, dma=d0, bar=True, extra=x0)
        if T == 2:
            for x in w0:
                if x.kind == "waitvm": x.need = set(x.need) | {"H", "CP"}
        s += w0
        s += window(2*T + 1, T, dma=d1, extra=x1)
    e(salu("s_add_u32", S(S_LOOP), S(S_LOOP), 1))
    e(raw(f"s_cmp_lt_u32 s{S_LOOP}, 7", "salu", rd=regs("s", S_LOOP)))
    e(raw(f"s_cbranch_scc1 {name}_loop", "branch"))
    e(LoopEnd(f"{name}_loop"))
    s += cstamp('M')
    if FTAIL:
        s += tail_F(name)
    else:
        for T in range(28, 32):
            d0, d1 = tile_dma(T, doK=False, doV=(T + 3 <= 31))
            j = 2*T
            s += window(j, T, dma=d0, bar=(T < 31), do_kread=(j + 2 <= 63))
            j = 2*T + 1
            s += window(j, T, dma=d1, last_qk=(j + 1 <= 63), do_kread=(j + 2 <= 63))
    s += stamp(5)
    s += cstamp('M')
    pre, f, sp = (final3 if FTAIL else final2)(name)
    if FASTPOST:
        s += post_main_fast(name, *final3.fast)
    else:
        s += (mega.fb_check(name) if FTAIL else fb_check2(name))
        s += o_rinv()[:-4]
    s += pre
    s += stamp(6)
    s += cstamp('M')
    s += f
    s += cstamp('M')
    e(wait_vm("O"))
    s += stamp(7)
    s += cstamp('M')
    s += poll_barrier(name, 1)
    s += stamp(8)
    s += cstamp('M')
    s += sp
    s += cstamp('M')
    if k1.STAMPS: e(raw("s_waitcnt vmcnt(0)", "other"))
    s += stamp(9)
    s += stamp_dump(16 if k1.STEPSTAMP else 10)
    main, res = finish(s, name)
    return main + [label(f"{name}_codeend")] + fallback(name), res
```

```python
from ir import *
from k0 import sload, XN_OFF, O_OFF, H_OFF, DBG_OFF
import k1
from k1 import *
import mega
from mega import SYNC_OFF, S_EPOCH, SRD_SY, SPIN_MAX, ln_loads, ln_compute, code_touch, poll_barrier, fallback
S_EPC = 91
def epoch_fix():
    o = [valu("v_readfirstlane_b32", S(S_EPOCH), V(TMP + 9)), nop(3), salu("s_add_u32", S(S_EPOCH), S(S_EPOCH), 1)]
    if PK3 == 2: o += [valu("v_readfirstlane_b32", S(S_EPC), V(TMP + 8)), nop(3), salu("s_add_u32", S(S_EPC), S(S_EPC), 1)]
    return o

CODEPF = True
OBURST = True
WTOUCH = 4
WPRE = 1
CONV2 = 1
FTAIL = 1
CBX = 0
EARLYF = 1
OLAY = 0
ROTK = 0
ROTG = 1
FASTPOST = 1
PK3 = 2
PK_OFF = 28 << 20
L2W3 = 0
L2W3_IT = 6
ROTW = 1
COLSPLIT = 0
WO_IT = 1
WD_IT = 0
MALLPF = 1
CBM = 0
KVLATE = 0
SIGEARLY = 1
FVMOUT = 1
KVT = 1
OUTFLAGS = ''
FD = 3
ADDRE, VOFFE = 96, 100
SRD_E = 24
S_SOFFE = 38
RING0 = 32768
def ringslot(t): return RING0 + 16384*(t % 8)
def rbase(t): return RING0 if (t % 8) < 4 else RING0 + 65536
def ACCQ(db, qb): return V(128 + 16*db + 4*qb, 4)
def ACCE(db, qb): return A(16*db + 4*qb, 4)
def AFB(db): return A(192 + 4*db, 4)
WSTEP_E = 32*3584

def flag_addr_setup(idx, vaddr, vval):
    s = []; e = s.append
    e(salu("s_lshl_b32", S(S_T), S(S_QB), 7)); e(salu("s_add_u32", S(S_T), S(S_T), 4096*(1 + idx)))
    e(salu("s_lshl_b32", S(S_T + 1), S(S_HEAD), 2)); e(salu("s_add_u32", S(S_T), S(S_T), S(S_T + 1)))
    e(valu("v_mov_b32", V(vaddr), S(S_T)))
    e(valu("v_lshlrev_b32", V(vval), 14, V(0)))
    e(valu("v_add_u32", V(vaddr), V(vaddr), V(vval)))
    e(valu("v_mov_b32", V(vval), S(S_EPOCH)))
    return s

def setup_mega2():
    s = []; e = s.append
    e(sload(P_WS, 88, 2))
    e(sload(P_WQ, 24, 4)); e(sload(SRD_K, 8, 2)); e(sload(SRD_V, 16, 2)); e(sload(P_WG, 48, 4)); e(sload(P_WD, 64, 2))
    e(valu("v_and_b32", V(1), 63, V(0)))
    e(valu("v_lshrrev_b32", V(30), 6, V(0)))
    e(salu("s_and_b32", S(S_HEAD), S(2), 31))
    e(valu("v_readfirstlane_b32", S(S_WAVE), V(30)))
    e(salu("s_lshr_b32", S(S_QB), S(2), 5))
    e(salu("s_mov_b32", S(62), 2097152)); e(salu("s_mov_b32", S(63), "0x00020000"))
    e(raw("s_waitcnt lgkmcnt(0)", "wait")); s[-1].tag = (None, 0)
    s += ln_loads()
    e(salu("s_add_u32", S(SRD_SY), S(P_WS), SYNC_OFF)); e(salu("s_addc_u32", S(SRD_SY + 1), S(P_WS + 1), 0))
    e(salu("s_mov_b32", S(SRD_SY + 2), 16384)); e(salu("s_mov_b32", S(SRD_SY + 3), "0x00020000"))
    e(salu("s_lshl_b32", S(S_T + 2), S(S_QB), 7))
    e(valu("v_mov_b32", V(TMP + 11), 0))
    e(buf_load(V(TMP + 9), V(TMP + 11), S(SRD_SY, 4), S(S_T + 2), n=1, flags="sc1"))
    if PK3 == 2: e(buf_load(V(TMP + 8), V(TMP + 11), S(SRD_SY, 4), 0, offset=1024, n=1, flags="sc1"))
    e(valu("v_lshrrev_b32", V(G_), 4, V(1)))
    e(valu("v_and_b32", V(N_), 15, V(1)))
    for i in range(2):
        e(valu("v_add_u32", V(U1), 4*i, V(G_)))
        e(valu("v_lshlrev_b32", V(U2), 13, V(U1)))
        e(valu("v_lshlrev_b32", V(U1), 1, V(U1)))
        e(valu("v_xor_b32", V(U1), V(U1), V(N_)))
        e(valu("v_lshl_add_u32", V(VOFFW + i), V(U1), 4, V(U2)))
        if i: e(valu("v_subrev_u32", V(VOFFW + i), 1024, V(VOFFW + i)))
    e(valu("v_lshlrev_b32", V(VLANE16), 4, V(1)))
    e(valu("v_mov_b32", V(VOFFB), V(VLANE16)))
    for qb in range(1, 4): e(valu("v_add_u32", V(VOFFB + qb), qb*16384, V(VLANE16)))
    e(salu("s_lshl_b32", S(S_W4K), S(S_WAVE), 12))
    e(salu("s_lshl_b32", S(S_W2K), S(S_WAVE), 11))
    e(salu("s_mov_b32", S(S_SOFFB), 0))
    e(salu("s_lshl_b32", S(S_SOFFW), S(S_WAVE), 16))
    e(salu("s_lshl_b32", S(S_T), S(S_HEAD), 8))
    e(salu("s_sub_u32", S(S_T + 1), 4194304, S(S_T)))
    s += mksrd(SRD_W, P_WQ, S_T, S(S_T + 1))
    e(salu("s_lshl_b32", S(S_T), S(S_QB), 4)); e(salu("s_lshl_b32", S(S_T + 1), S(S_WAVE), 2)); e(salu("s_add_u32", S(S_T), S(S_T), S(S_T + 1)))
    e(salu("s_lshl_b32", S(S_T), S(S_T), 14))
    if XN_OFF: e(salu("s_add_u32", S(S_T), S(S_T), XN_OFF))
    s += mksrd(SRD_XN, P_WS, S_T, 65536)
    e(salu("s_lshl_b32", S(S_T), S(S_HEAD), 19))
    for b in (SRD_K, SRD_V):
        e(salu("s_add_u32", S(b), S(b), S(S_T))); e(salu("s_addc_u32", S(b + 1), S(b + 1), 0))
        e(salu("s_mov_b32", S(b + 2), 524288)); e(salu("s_mov_b32", S(b + 3), "0x00020000"))
    e(raw(f"s_cmp_ge_u32 s{S_WAVE}, 2", "salu", rd=regs("s", S_WAVE)))
    e(salu("s_cselect_b32", S(S_T), S(P_WG + 2), S(P_WG)))
    e(salu("s_cselect_b32", S(S_T + 1), S(P_WG + 3), S(P_WG + 1)))
    e(salu("s_lshl_b32", S(S_T + 2), S(S_HEAD), 7))
    e(salu("s_add_u32", S(SRD_E), S(S_T), S(S_T + 2)))
    e(salu("s_addc_u32", S(SRD_E + 1), S(S_T + 1), 0))
    e(salu("s_sub_u32", S(SRD_E + 2), 512*3584, S(S_T + 2)))
    e(raw(f"s_cmp_lt_u32 s{S_HEAD}, 28", "salu", rd=regs("s", S_HEAD)))
    e(salu("s_cselect_b32", S(SRD_E + 2), S(SRD_E + 2), 0))
    e(salu("s_mov_b32", S(SRD_E + 3), "0x00020000"))
    e(salu("s_and_b32", S(S_T), S(S_WAVE), 1))
    e(salu("s_mul_i32", S(S_SOFFE), S(S_T), 16*3584))
    return s

def setup_addr2():
    s = []; e = s.append
    e(valu("v_bfe_u32", V(RR_), V(1), 2, 2))
    e(valu("v_and_b32", V(C_), 3, V(1)))
    e(valu("v_and_b32", V(ROW8), 1, V(G_)))
    e(valu("v_lshl_add_u32", V(ROW8), V(ROW8), 2, V(RR_)))
    e(valu("v_lshl_add_u32", V(ROWB), V(G_), 2, V(RR_)))
    e(valu("v_lshrrev_b32", V(U1), 3, V(1)))
    e(salu("s_mov_b32", S(S_T + 2), 3584))
    e(valu("v_mul_lo_u32", V(U2), V(U1), S(S_T + 2)))
    e(valu("v_lshlrev_b32", V(CH), 1, V(G_)))
    e(valu("v_and_b32", V(U1), 7, V(1)))
    e(valu("v_xor_b32", V(U1), V(U1), V(CH)))
    e(valu("v_lshl_add_u32", V(VOFFE), V(U1), 4, V(U2)))
    e(valu("v_add_u32", V(VOFFE + 1), 8*3584 - 1024, V(VOFFE)))
    return s

def setup_addr3():
    s = []; e = s.append
    e(valu("v_lshlrev_b32", V(U2), 8, V(ROWB)))
    e(valu("v_and_b32", V(U1), 1, V(C_)))
    e(valu("v_lshl_add_u32", V(U2), V(U1), 4, V(U2)))
    e(valu("v_add_u32", V(U2), RING0, V(U2)))
    e(valu("v_lshrrev_b32", V(CH), 1, V(C_)))
    for ds in range(4):
        e(valu("v_add_u32", V(U1), 2*ds, V(CH)))
        e(valu("v_xor_b32", V(U1), V(U1), V(ROW8)))
        e(valu("v_lshl_add_u32", V(ADDRW + ds), V(U1), 5, V(U2)))
    e(valu("v_lshlrev_b32", V(U2), 7, V(ROWB)))
    e(valu("v_lshl_add_u32", V(U2), V(C_), 3, V(U2)))
    e(valu("v_add_u32", V(U2), RING0 + 8192, V(U2)))
    e(valu("v_and_b32", V(CH), 1, V(G_)))
    e(valu("v_lshlrev_b32", V(CH), 1, V(CH)))
    e(valu("v_lshrrev_b32", V(U1), 1, V(RR_)))
    e(valu("v_add_u32", V(CH), V(CH), V(U1)))
    for b in range(4):
        e(valu("v_xor_b32", V(U1), b, V(CH)))
        e(valu("v_lshl_add_u32", V(ADDRE + b), V(U1), 5, V(U2)))
    for ds in range(4):
        e(valu("v_add_u32", V(U1), 4*ds, V(G_)))
        e(valu("v_xor_b32", V(U1), V(U1), V(N_)))
        e(valu("v_lshlrev_b32", V(U1), 4, V(U1)))
        e(valu("v_lshl_add_u32", V(ADDRK + ds), V(N_), 8, V(U1)))
    e(valu("v_lshlrev_b32", V(U2), 8, V(ROWB)))
    e(valu("v_lshl_add_u32", V(U2), V(C_), 3, V(U2)))
    e(valu("v_add_u32", V(U2), VR, V(U2)))
    for db in range(8):
        e(valu("v_xor_b32", V(U1), db, V(ROW8)))
        e(valu("v_lshl_add_u32", V(ADDRV + db), V(U1), 5, V(U2)))
    for i in range(2):
        e(valu("v_add_u32", V(U1), 4*i, V(G_)))
        e(valu("v_lshlrev_b32", V(U1), 1, V(U1)))
        e(valu("v_xor_b32", V(U1), V(U1), V(N_)))
        e(valu("v_lshlrev_b32", V(U1), 4, V(U1)))
        e(valu("v_lshl_add_u32", V(VOFFV + i), V(G_), 8, V(U1)))
    e(salu("s_lshl_b32", S(T3_), S(S_QB), 4)); e(salu("s_lshl_b32", S(T2_), S(S_WAVE), 2)); e(salu("s_add_u32", S(T3_), S(T3_), S(T2_)))
    e(salu("s_mul_i32", S(T0_), S(T3_), 56))
    e(salu("s_lshl_b32", S(T1_), S(S_HEAD), 1))
    e(salu("s_add_u32", S(T0_), S(T0_), S(T1_)))
    e(salu("s_lshl_b32", S(T0_), S(T0_), 10))
    e(salu("s_add_u32", S(T0_), S(T0_), H_OFF))
    s += mksrd(SRD_H, P_WS, T0_, 3*57344 + 2048)
    e(raw(f"s_cmp_lt_u32 s{S_HEAD}, 28", "salu", rd=regs("s", S_HEAD)))
    e(salu("s_cselect_b32", S(SRD_H + 2), S(SRD_H + 2), 0))
    return s

def touches2(part=0):
    s = []; e = s.append
    e(valu("v_lshrrev_b32", V(U1), 3, V(1)))
    e(valu("v_lshlrev_b32", V(U1), 18, V(U1)))
    e(valu("v_bfe_u32", V(U2), V(1), 1, 2))
    e(valu("v_lshl_add_u32", V(U1), V(U2), 13, V(U1)))
    e(valu("v_and_b32", V(U2), 1, V(1)))
    e(valu("v_lshl_add_u32", V(U1), V(U2), 7, V(U1)))
    e(salu("s_lshl_b32", S(S_T + 1), S(S_QB), 15))
    if part == 0:
        e(raw(f"s_cmp_eq_u32 s{S_WAVE}, 2", "salu", rd=regs("s", S_WAVE)))
        e(salu("s_cselect_b32", S(S_T), 8*262144, 0))
    else:
        e(salu("s_mov_b32", S(S_T), 0 if part == 1 else 8*262144))
    e(salu("s_add_u32", S(S_T), S(S_T), S(S_T + 1)))
    for i in range(3): e(salu("s_mov_b32", S(60 + i), S(SRD_W + i)))
    e(salu("s_mov_b32", S(63), "0x00020000"))
    if part == 0:
        e(salu("s_sub_u32", S(S_T + 2), S(S_WAVE), 1))
        e(raw(f"s_cmp_lt_u32 s{S_T+2}, 2", "salu", rd=regs("s", S_T + 2)))
    else:
        e(raw(f"s_cmp_eq_u32 s{S_WAVE}, 2", "salu", rd=regs("s", S_WAVE)))
    e(salu("s_cselect_b32", S(62), S(62), 0))
    e(buf_load(V(PFD), V(U1), S(60, 4), S(S_T), n=1, tag="PF"))
    if part == 0:
        e(valu("v_mov_b32", V(U2), 3584)); e(valu("v_mul_lo_u32", V(U2), V(U2), V(1)))
        e(salu("s_mul_i32", S(S_T), S(S_QB), 64*3584))
    else:
        e(valu("v_and_b32", V(U1), 31, V(1)))
        e(valu("v_mov_b32", V(U2), 3584)); e(valu("v_mul_lo_u32", V(U2), V(U2), V(U1)))
        e(salu("s_mul_i32", S(S_T), S(S_QB), 32*3584))
        if part == 2: e(salu("s_add_u32", S(S_T), S(S_T), 256*3584))
    for i in range(3): e(salu("s_mov_b32", S(60 + i), S(SRD_E + i)))
    e(salu("s_and_b32", S(S_T + 2), S(S_WAVE), 1))
    e(raw(f"s_cmp_eq_u32 s{S_T+2}, 1", "salu", rd=regs("s", S_T + 2)))
    e(salu("s_cselect_b32", S(62), S(62), 0))
    e(buf_load(V(PFD + 1), V(U2), S(60, 4), S(S_T), n=1, tag="PF"))
    return s

def kv_touch():
    s = []; e = s.append
    e(valu("v_and_b32", V(U2), 31, V(1)))
    e(valu("v_lshlrev_b32", V(U2), 7, V(U2)))
    e(salu("s_lshl_b32", S(S_T), S(S_QB), 12))
    e(raw(f"s_cmp_eq_u32 s{S_WAVE}, 3", "salu", rd=regs("s", S_WAVE)))
    for i in range(3): e(salu("s_cselect_b32", S(60 + i), S(SRD_K + i), S(SRD_V + i)))
    e(salu("s_mov_b32", S(63), "0x00020000"))
    e(raw(f"s_cmp_ge_u32 s{S_WAVE}, 2", "salu", rd=regs("s", S_WAVE)))
    e(salu("s_cselect_b32", S(62), S(62), 0))
    e(buf_load(V(PFD + 2), V(U2), S(60, 4), S(S_T), n=1, tag="PF"))
    return s

def touch_prep():
    s = []; e = s.append
    e(valu("v_lshrrev_b32", V(112), 3, V(1)))
    e(valu("v_lshlrev_b32", V(112), 18, V(112)))
    e(valu("v_bfe_u32", V(113), V(1), 1, 2))
    e(valu("v_lshl_add_u32", V(112), V(113), 13, V(112)))
    e(valu("v_and_b32", V(113), 1, V(1)))
    e(valu("v_lshl_add_u32", V(112), V(113), 7, V(112)))
    e(salu("s_lshl_b32", S(36), S(S_QB), 15)); e(salu("s_add_u32", S(36), S(36), 8*262144))
    for i in range(3): e(salu("s_mov_b32", S(84 + i), S(SRD_W + i)))
    e(salu("s_mov_b32", S(87), "0x00020000"))
    e(raw(f"s_cmp_eq_u32 s{S_WAVE}, 2", "salu", rd=regs("s", S_WAVE)))
    e(salu("s_cselect_b32", S(86), S(86), 0))
    e(valu("v_and_b32", V(114), 31, V(1)))
    e(valu("v_mov_b32", V(113), 3584)); e(valu("v_mul_lo_u32", V(113), V(113), V(114)))
    e(salu("s_mul_i32", S(39), S(S_QB), 32*3584)); e(salu("s_add_u32", S(39), S(39), 256*3584))
    if WTOUCH == 3:
        for i in range(3): e(salu("s_mov_b32", S(72 + i), S(SRD_E + i)))
        e(salu("s_mov_b32", S(75), "0x00020000"))
        e(salu("s_and_b32", S(S_T + 2), S(S_WAVE), 1))
        e(raw(f"s_cmp_eq_u32 s{S_T+2}, 1", "salu", rd=regs("s", S_T + 2)))
        e(salu("s_cselect_b32", S(74), S(74), 0))
    e(valu("v_lshlrev_b32", V(114), 7, V(114)))
    e(salu("s_lshl_b32", S(42), S(S_QB), 12))
    e(raw(f"s_cmp_eq_u32 s{S_WAVE}, 3", "salu", rd=regs("s", S_WAVE)))
    for i in range(3): e(salu("s_cselect_b32", S(76 + i), S(SRD_K + i), S(SRD_V + i)))
    e(salu("s_mov_b32", S(79), "0x00020000"))
    e(raw(f"s_cmp_ge_u32 s{S_WAVE}, 2", "salu", rd=regs("s", S_WAVE)))
    e(salu("s_cselect_b32", S(78), S(78), 0))
    return s

def dmaW2(t):
    p1 = salu("s_add_u32", "m0", S(S_W2K), ringslot(t))
    d1 = [buf_dma(V(VOFFW + i), S(SRD_W, 4), S(S_SOFFW), offset=i*1024, tag=("W", t)) for i in range(2)]
    a1 = [salu("s_add_u32", S(S_SOFFW), S(S_SOFFW), 262144)]
    p2 = salu("s_add_u32", "m0", S(S_W2K), ringslot(t) + 8192)
    d2 = [buf_dma(V(VOFFE + i), S(SRD_E, 4), S(S_SOFFE), offset=i*1024, tag=("W", t)) for i in range(2)]
    a2 = [salu("s_add_u32", S(S_SOFFE), S(S_SOFFE), WSTEP_E)]
    return p1, d1, a1, p2, d2, a2
def flatW2(t):
    p1, d1, a1, p2, d2, a2 = dmaW2(t)
    return [p1, nop(0)] + d1 + a1 + [p2, nop(0)] + d2 + a2
def advB2(): return [salu("s_add_u32", S(S_SOFFB), S(S_SOFFB), 1024)]

def rdA2(t, db, rd):
    off = ringslot(t) - rbase(t)
    if db < 8:
        ds, u = db >> 1, db & 1
        return ds_read("ds_read_b64_tr_b16", sub(AFB(db), 2*rd, 2), V(ADDRW + ds), offset=off + rd*4096 + 8*u)
    mat, b = (db - 8) >> 2, (db - 8) & 3
    return ds_read("ds_read_b64_tr_b16", sub(AFB(db), 2*rd, 2), V(ADDRE + b), offset=off + mat*4096 + rd*2048)

def qconv(ds):
    o = []
    for qb in range(4):
        a0, a1 = ACCR(2*ds, qb), ACCR(2*ds + 1, qb)
        for r in range(4):
            o.append(valu("v_mul_f32", sub(a0, r), S(S_T), sub(a0, r))); o.append(valu("v_mul_f32", sub(a1, r), S(S_T), sub(a1, r)))
        o.append(valu("v_cvt_pk_bf16_f32", sub(a1, 3), sub(a1, 2), sub(a1, 3)))
        o.append(valu("v_cvt_pk_bf16_f32", sub(a1, 2), sub(a1, 0), sub(a1, 1)))
        o.append(valu("v_cvt_pk_bf16_f32", sub(a1, 1), sub(a0, 2), sub(a0, 3)))
        o.append(valu("v_cvt_pk_bf16_f32", sub(a1, 0), sub(a0, 0), sub(a0, 1)))
    return o

def fused_phase():
    s = []; e = s.append
    e(wait_vm(("W", 0), ("W", 1), ("W", 2))); e(barrier())
    for db in range(16):
        for rd in range(2): e(rdA2(0, db, rd))
    for t in range(16):
        s += sstamp("A", t)
        F = Fill(64)
        def addW(k, gi, sp):
            p1, d1, a1, p2, d2, a2 = dmaW2(k)
            F.add(gi - 1, p1); F.add(gi, d1[0]); F.add(gi + sp, d1[1]); F.add(gi + sp + 1, a1)
            F.add(gi + 2*sp - 1, p2); F.add(gi + 2*sp, d2[0]); F.add(gi + 3*sp, d2[1]); F.add(gi + 3*sp + 1, a2)
        if t >= 2 and t % 2 == 0:
            if t in (6, 8): s += cstamp("B")
            e(wait_vm(("W", t + 1), ("W", t + 2) if t + 2 < 16 else ("W", t + 1)))
            e(barrier())
        if t == 0:
            g = 0
            for k in (1, 2, 3):
                for x in loadB(k): F.add(g, x); g += 2
                F.add(g - 1, advB2())
            addW(4, 26, 4); addW(5, 44, 4)
        elif t == 1:
            addW(6, 6, 4); addW(7, 24, 4)
            if KVT == 1: F.add(42, buf_load(V(PFD + 2), V(114), S(76, 4), S(42), n=1, tag="PF"))
            if WTOUCH == 3:
                F.add(46, buf_load(V(PFD), V(112), S(84, 4), S(36), n=1, tag="PF"))
                F.add(50, buf_load(V(PFD + 1), V(113), S(72, 4), S(39), n=1, tag="PF"))

        elif t + 6 < 16: addW(t + 6, 6, 6)
        kv = ({4: dmaK(0), 5: dmaK(1), 12: dmaV(0), 13: dmaV(1)} if KVLATE else {4: dmaK(0), 5: dmaK(1), 10: dmaK(2), 11: dmaK(3), 12: dmaV(0), 13: dmaV(1), 14: dmaV(2)}).get(t)
        if kv:
            pre, d, adv = kv
            F.add(29, pre)
            for k, x in enumerate(d): F.add(30 + 6*k, x)
            F.add(49, adv)
        if t + 1 < 16 and rbase(t + 1) != rbase(t):
            d = rbase(t + 1) - rbase(t)
            for i in range(4):
                F.add(4, valu("v_add_u32", V(ADDRW + i), d & 0xffffffff, V(ADDRW + i)))
                F.add(4, valu("v_add_u32", V(ADDRE + i), d & 0xffffffff, V(ADDRE + i)))
        if t >= 1:
            F.add(1, rdA2(t, 15, 0)); F.add(3, rdA2(t, 15, 1))
        if t + 1 < 16:
            for db in range(15):
                F.add(4*db + 5, rdA2(t + 1, db, 0)); F.add(4*db + 7, rdA2(t + 1, db, 1))
        if t == 14 and CONV2: F.add(40, salu("s_mov_b32", S(S_T), f2h(QSCALE)))
        if t == 15 and CONV2:
            q = qconv(0) + qconv(1)
            g = 10
            kgaps = {33 + 4*f if 33 + 4*f < 64 else 63 for f in range(8)}
            while q:
                for _ in range(1 if g in kgaps else 2):
                    if q: F.add(g, q.pop(0))
                g += 1
            assert g <= 64, g
            for f in range(8):
                kb, ds = f >> 2, f & 3
                F.add(33 + 4*f if 33 + 4*f < 64 else 63, ds_read("ds_read_b128", KF(f), V(ADDRK + ds), offset=kb*4096))
        if t >= 1 and t + 3 < 16:
            for qb, x in enumerate(loadB(t + 3)): F.add(52 + 4*qb - (2 if qb == 3 else 0), x)
            F.add(63, advB2())
        for db in range(16):
            if t == 6 and db in (4, 8, 12): s += cstamp("B")
            if t == 7 and db == 0: s += cstamp("B")
            for qb in range(4):
                g = 4*db + qb
                acc = ACCQ(db, qb) if db < 8 else ACCE(db - 8, qb)
                e(mfma16(acc, AFB(db), BF(t, qb), 0 if t == 0 else acc))
                s += F.emit(g)
    return s

def h_epilogue2():
    s = []; e = s.append
    for qb in range(4): e(salu("s_mov_b32", S(S_T + qb), qb*57344))
    k = 0
    for qb in range(4):
        for tp in range(2):
            t = SREG + 16*(k % 2); pk = PREG + 4*(k % 8)
            for u in range(2):
                b = 2*tp + u
                for r in range(4):
                    e(valu("v_accvgpr_read_b32", V(t + 8*u + r), sub(ACCE(b, qb), r)))
                    e(valu("v_accvgpr_read_b32", V(t + 8*u + 4 + r), sub(ACCE(4 + b, qb), r)))
            for u in range(2):
                for r in range(4): e(valu("v_max_f32", V(t + 8*u + r), 0, V(t + 8*u + r)))
            for u in range(2):
                for r in range(4): e(valu("v_mul_f32", V(t + 8*u + r), V(t + 8*u + r), V(t + 8*u + 4 + r)))
            for u in range(2):
                for hh in range(2): e(valu("v_cvt_pk_bf16_f32", V(pk + 2*u + hh), V(t + 8*u + 2*hh), V(t + 8*u + 2*hh + 1)))
            e(buf_store(V(pk, 4), V(VLANE16), S(SRD_H, 4), S(S_T + qb), offset=tp*1024, tag="H", flags="sc1"))
            for u in range(2):
                b = 2*tp + u
                for r in range(4):
                    e(valu("v_accvgpr_write_b32", sub(ACCE(b, qb), r), 0)); e(valu("v_accvgpr_write_b32", sub(ACCE(4 + b, qb), r), 0))
            k += 1
    return s


def h_unit(k):
    qb, tp = k >> 1, k & 1
    t = PREG + 16*(k % 2); pk = NEGM_T + 4*(k % 2)
    o = []
    for u in range(2):
        b = 2*tp + u
        for r in range(4):
            o.append(valu("v_accvgpr_read_b32", V(t + 8*u + r), sub(ACCE(b, qb), r)))
            o.append(valu("v_accvgpr_read_b32", V(t + 8*u + 4 + r), sub(ACCE(4 + b, qb), r)))
    for u in range(2):
        for r in range(4): o.append(valu("v_max_f32", V(t + 8*u + r), 0, V(t + 8*u + r)))
    for u in range(2):
        for r in range(4): o.append(valu("v_mul_f32", V(t + 8*u + r), V(t + 8*u + r), V(t + 8*u + 4 + r)))
    for u in range(2):
        for hh in range(2): o.append(valu("v_cvt_pk_bf16_f32", V(pk + 2*u + hh), V(t + 8*u + 2*hh), V(t + 8*u + 2*hh + 1)))
    o.append(buf_store(V(pk, 4), V(VLANE16), S(SRD_H, 4), S(S_T + qb), offset=tp*1024, tag="H", flags="sc1"))
    return o
NEGM_T = 104

def conv_phase():
    s = []; e = s.append
    for i in range(16): e(valu("v_mov_b32", V(LREG + i), 0))
    for i in range(4): e(valu("v_mov_b32", V(ONES + i), "0x3f803f80"))
    if k1.SUMMODE:
        for i in range(4): e(valu("v_mov_b32", V(168 + i), 0))
    q2, q3 = qconv(2), qconv(3)
    for ds in range(4):
        for kb in range(2):
            for qb in range(4):
                e(mfma16(SR(kb, qb), KF(4*kb + ds), QF(qb, ds), 0 if ds == 0 else SR(kb, qb)))
                src = q2 if ds < 2 and q2 else (q3 if ds < 3 else [])
                n = 3 if ds < 2 else 6
                for _ in range(n):
                    if src: s.append(src.pop(0))
        if ds == 1: assert not q2
        if ds == 2:
            assert not q3
            e(nop(1))
    for qb in range(4): e(salu("s_mov_b32", S(S_T + qb), qb*57344))
    hu = [h_unit(k) for k in range(8)]
    s += hu[0] + hu[1]
    M = TMP
    mx = []
    for qb in range(4):
        mx.append(valu("v_max3_f32", V(M + qb), SR(0, qb, 0), SR(0, qb, 1), SR(0, qb, 2)))
        mx.append(valu("v_max3_f32", V(M + qb), V(M + qb), SR(0, qb, 3), SR(1, qb, 0)))
        mx.append(valu("v_max3_f32", V(M + qb), V(M + qb), SR(1, qb, 1), SR(1, qb, 2)))
        mx.append(valu("v_max_f32", V(M + qb), V(M + qb), SR(1, qb, 3)))
    s += mx
    rest = sum(hu[2:], [])
    for swp in ("v_permlane16_swap_b32", "v_permlane32_swap_b32"):
        for qb in range(4): e(valu("v_mov_b32", V(M + 4 + qb), V(M + qb)))
        s += [rest.pop(0), rest.pop(0)]
        for qb in range(4): e(valu(swp, V(M + 4 + qb), V(M + qb), dst_is_src=True, wr_extra=regs("v", M + qb)))
        s += [rest.pop(0), rest.pop(0)]
        for qb in range(4): e(valu("v_max_f32", V(M + qb), V(M + qb), V(M + 4 + qb)))
    for qb in range(4): e(valu("v_sub_f32", V(M + qb), f2h(-DOFF), V(M + qb)))
    s += rest
    for qb in range(4):
        for r in range(4): e(valu("v_mov_b32", V(NEGM + 4*qb + r), V(M + qb)))
    return s

def window_m1():
    w = window(-1, 0, last_qk=True, do_pv=False, do_kread=True, exp_tail=False)
    out = []; k = 0; nm = 0
    for x in w:
        if x.kind == "mfma": nm += 1
        if x.kind == "nop" and x.text == "s_nop 0" and nm >= 32 and k < 32:
            z = V(LREG + 4 + 0, 4) if False else (V(168, 4) if k1.SUMMODE else V(LREG, 4))
            out.append(mfma16(A(4*k, 4), z, z, 0)); k += 1
        else: out.append(x)
    assert k == 32
    return out


CPV = 172
def pk_load():
    s = []; e = s.append
    e(salu("s_lshl_b32", S(T0_), S(2), 2)); e(salu("s_add_u32", S(T0_), S(T0_), S(S_WAVE)))
    e(raw(f"s_cmp_lt_u32 s{T0_}, 512", "salu", rd=regs("s", T0_)))
    e(salu("s_cselect_b32", S(72), S(P_WO), S(P_WD))); e(salu("s_cselect_b32", S(73), S(P_WO + 1), S(P_WD + 1)))
    e(salu("s_mov_b32", S(74), 1792*1024)); e(salu("s_cselect_b32", S(74), 4096*1024, S(74)))
    e(salu("s_mov_b32", S(75), "0x00020000"))
    e(salu("s_and_b32", S(T1_), S(T0_), 511))
    e(salu("s_lshl_b32", S(T1_), S(T1_), 13)); e(salu("s_add_u32", S(T1_), S(T1_), 384))
    e(valu("v_lshrrev_b32", V(CPV), 3, V(1))); e(valu("v_lshlrev_b32", V(CPV), 10, V(CPV)))
    e(valu("v_and_b32", V(CPV + 1), 7, V(1))); e(valu("v_lshl_add_u32", V(CPV), V(CPV + 1), 4, V(CPV)))
    e(valu("v_mov_b32", V(171), V(CPV)))
    e(buf_load(V(CPV, 4), V(171), S(72, 4), S(T1_), tag="CPL"))
    return s
def pk_store():
    s = []; e = s.append
    e(salu("s_lshl_b32", S(T0_), S(2), 2)); e(salu("s_add_u32", S(T0_), S(T0_), S(S_WAVE)))
    e(salu("s_add_u32", S(72), S(P_WS), PK_OFF)); e(salu("s_addc_u32", S(73), S(P_WS + 1), 0))
    e(salu("s_mov_b32", S(74), 736*1024))
    e(salu("s_mov_b32", S(75), "0x00020000"))
    e(salu("s_lshl_b32", S(T1_), S(T0_), 10))
    e(buf_store(V(CPV, 4), V(VLANE16), S(72, 4), S(T1_), tag="CP", flags="sc1"))
    return s
def pk_flag_setup(vaddr, vval):
    s = []; e = s.append
    e(salu("s_lshl_b32", S(T0_), S(2), 2)); e(salu("s_add_u32", S(T0_), S(T0_), 14336))
    e(valu("v_lshlrev_b32", V(vval), 14, V(0))); e(valu("v_add_u32", V(vaddr), S(T0_), V(vval)))
    e(valu("v_mov_b32", V(vval), S(S_EPC)))
    return s
def pk_flag_load():
    return buf_load(V(168, 4), V(VLANE16), S(SRD_SY, 4), S(75), tag="PKL", flags="sc1")
def pk_check(name):
    s = []; e = s.append
    L = f"{name}_pk"
    def cmp(kind):
        o = []
        for i in range(4): o.append(raw(f"v_xor_b32 v{168+i}, s{S_EPC}, v{168+i}", kind, rd=regs("v", 168 + i) if kind == "valu" else (), wr=regs("v", 168 + i) if kind == "valu" else ()))
        o.append(raw("v_or3_b32 v168, v168, v169, v170", "other")); o.append(raw("v_or_b32 v168, v168, v171", "other"))
        o.append(raw("v_cmp_ne_u32 vcc, 0, v168", "other")); o.append(raw("s_nop 4", "other"))
        return o
    e(salu("s_and_b32", S(T0_), S(S_HEAD), 0x19)); e(raw(f"s_cmp_eq_u32 s{T0_}, 0x18", "salu", rd=regs("s", T0_)))
    e(raw(f"s_cbranch_scc0 {L}_ok", "branch"))
    s += cmp("valu")
    e(raw(f"s_cbranch_vccz {L}_done", "branch"))
    e(salu("s_mov_b32", S(T2_), SPIN_MAX))
    e(label(f"{L}_poll"))
    e(raw(f"buffer_load_dwordx4 v[168:171], v{VLANE16}, s[{SRD_SY}:{SRD_SY+3}], s75 offen sc1", "other"))
    e(raw("s_waitcnt vmcnt(0)", "other"))
    s += cmp("other")
    e(raw(f"s_cbranch_vccz {L}_done", "branch"))
    e(raw(f"s_sub_u32 s{T2_}, s{T2_}, 1", "other")); e(raw(f"s_cbranch_scc1 {L}_done", "branch"))
    e(raw("s_sleep 1", "other")); e(raw(f"s_branch {L}_poll", "branch"))
    e(label(f"{L}_done"))
    e(raw("s_cmp_lg_u32 s2, 24", "other")); e(raw(f"s_cbranch_scc1 {L}_ok", "branch"))
    e(raw(f"s_cmp_lg_u32 s{S_WAVE}, 0", "other")); e(raw(f"s_cbranch_scc1 {L}_ok", "branch"))
    e(raw(f"v_mov_b32 v168, s{S_EPC}", "other")); e(raw("v_lshlrev_b32 v169, 20, v1", "other"))
    e(raw(f"buffer_store_dword v168, v169, s[{SRD_SY}:{SRD_SY+3}], 0 offen offset:1024 sc1", "other"))
    e(label(f"{L}_ok"))
    return s

NT_O, NT_H, NSLOT = 32, 14, 8

FA, FA2, FVW = 20, 164, 24
FAF = 112
F_SRDW, F_SRDH = 16, 20
F_SW, F_SB = 41, (36, 37, 39, 42)
F_LW = 38
F_RS, F_STEP = 28, 29
HFV, HFA = 28, 29
def FACC(nb, qb): return A(128 + 16*nb + 4*qb, 4)
def FBF(i, qb): return V((192 if i % 2 == 0 else 224) + 4*qb, 4)
def FAFR(nb): return V(FAF + 4*nb, 4)
def fslot(i): return (XR, XR + 16384, 0)[i % 3]
def f_rd(i, nb, rd):
    b = fslot(i)
    if b >= XR: return ds_read("ds_read_b64_tr_b16", sub(FAFR(nb), 2*rd, 2), V(FA + nb), offset=b - XR + rd*2048)
    return ds_read("ds_read_b64_tr_b16", sub(FAFR(nb), 2*rd, 2), V(FA2 + nb), offset=b + rd*2048)
def f_ldW(i):
    pre = salu("s_add_u32", "m0", S(F_LW), fslot(i))
    d = [buf_dma(V(FVW + k), S(F_SRDW, 4), S(F_SW), offset=k*1024, tag=("FW", i)) for k in range(4)]
    return pre, d, salu("s_add_u32", S(F_SW), S(F_SW), S(F_STEP) if PK3 == 2 else 32768)
def f_ldB(i):
    return [(buf_load(FBF(i, qb), V(VLANE16), S(F_SRDH, 4), S(F_SB[qb]), tag=("FB", i), flags="sc1"), salu("s_add_u32", S(F_SB[qb]), S(F_SB[qb]), 1024)) for qb in range(4)]

def f_setup():
    s = []; e = s.append
    RB, CB = T2_, T3_
    e(salu("s_and_b32", S(T0_), S(S_HEAD), 7)); e(salu("s_lshr_b32", S(T1_), S(S_HEAD), 3))
    e(salu("s_lshr_b32", S(RB), S(T0_), 1)); e(salu("s_lshl_b32", S(S_T), S(S_QB), 2)); e(salu("s_add_u32", S(RB), S(RB), S(S_T)))
    if CBX: e(salu("s_xor_b32", S(T1_), S(T1_), CBX))
    e(salu("s_and_b32", S(T0_), S(T0_), 1))
    if CBM == 0: e(salu("s_lshl_b32", S(T0_), S(T0_), 2))
    else: e(salu("s_lshl_b32", S(T1_), S(T1_), 1))
    e(salu("s_add_u32", S(CB), S(T0_), S(T1_)))
    e(salu("s_mul_i32", S(T0_), S(RB), 224)); e(salu("s_mul_i32", S(T1_), S(S_WAVE), 14)); e(salu("s_add_u32", S(T0_), S(T0_), S(T1_)))
    e(salu("s_lshl_b32", S(T0_), S(T0_), 10)); e(salu("s_add_u32", S(T0_), S(T0_), H_OFF))
    s += mksrd(F_SRDH, P_WS, T0_, 3*57344 + 14*1024)
    e(salu("s_lshl_b32", S(T1_), S(CB), 6 if COLSPLIT else 7)); e(salu("s_mul_i32", S(T0_), S(S_WAVE), 448*1024)); e(salu("s_add_u32", S(T0_), S(T0_), S(T1_)))
    e(salu("s_sub_u32", S(T1_), 1792*1024, S(T0_)))
    s += mksrd(F_SRDW, P_WD, T0_, S(T1_))
    if PK3 == 2:
        e(salu("s_mul_i32", S(T0_), S(S_WAVE), 448*128)); e(salu("s_add_u32", S(T0_), S(T0_), PK_OFF + 524288))
        e(salu("s_add_u32", S(T0_), S(T0_), S(P_WS))); e(salu("s_addc_u32", S(T1_), S(P_WS + 1), 0))
        e(raw(f"s_cmp_eq_u32 s{CB}, 3", "salu", rd=regs("s", CB)))
        e(salu("s_cselect_b32", S(F_SRDW), S(T0_), S(F_SRDW))); e(salu("s_cselect_b32", S(F_SRDW + 1), S(T1_), S(F_SRDW + 1)))
        e(salu("s_cselect_b32", S(F_SRDW + 2), 448*128, S(F_SRDW + 2)))
        e(salu("s_mov_b32", S(F_RS), 1024)); e(salu("s_cselect_b32", S(F_RS), 128, S(F_RS)))
        e(salu("s_lshl_b32", S(F_STEP), S(F_RS), 5))
    e(salu("s_mov_b32", S(F_SW), 0))
    for qb in range(4): e(salu("s_mov_b32", S(F_SB[qb]), qb*57344))
    e(salu("s_lshl_b32", S(F_LW), S(S_WAVE), 12))
    G, RR, C, T1, T2, X = 168, 169, 170, 171, 172, 173
    e(valu("v_lshrrev_b32", V(G), 4, V(1))); e(valu("v_bfe_u32", V(RR), V(1), 2, 2)); e(valu("v_and_b32", V(C), 3, V(1)))
    e(valu("v_lshl_add_u32", V(T2), V(G), 2, V(RR))); e(valu("v_lshlrev_b32", V(T2), 7, V(T2)))
    e(valu("v_lshl_add_u32", V(T2), V(C), 3, V(T2))); e(valu("v_add_u32", V(T2), S(F_LW), V(T2)))
    e(valu("v_and_b32", V(X), 1, V(G))); e(valu("v_lshlrev_b32", V(X), 1, V(X))); e(valu("v_lshrrev_b32", V(T1), 1, V(RR))); e(valu("v_add_u32", V(X), V(X), V(T1)))
    for b in range(4):
        e(valu("v_xor_b32", V(T1), b, V(X))); e(valu("v_lshl_add_u32", V(FA2 + b), V(T1), 5, V(T2)))
        e(valu("v_add_u32", V(FA + b), XR, V(FA2 + b)))
    e(valu("v_lshrrev_b32", V(T1), 3, V(1)))
    if PK3 == 2: e(valu("v_mul_lo_u32", V(T2), V(T1), S(F_RS)))
    else: e(valu("v_lshlrev_b32", V(T2), 10, V(T1)))
    e(valu("v_lshlrev_b32", V(X), 1, V(G))); e(valu("v_and_b32", V(T1), 7, V(1))); e(valu("v_xor_b32", V(T1), V(T1), V(X)))
    if COLSPLIT:
        e(valu("v_lshrrev_b32", V(X), 2, V(T1))); e(valu("v_lshl_add_u32", V(T2), V(X), 9, V(T2))); e(valu("v_and_b32", V(T1), 3, V(T1)))
    e(valu("v_lshl_add_u32", V(FVW), V(T1), 4, V(T2)))
    if PK3 == 2:
        e(salu("s_lshl_b32", S(T0_), S(F_RS), 3)); e(salu("s_sub_u32", S(T0_), S(T0_), 1024))
        e(valu("v_add_u32", V(FVW + 1), S(T0_), V(FVW))); e(valu("v_add_u32", V(FVW + 2), S(T0_), V(FVW + 1))); e(valu("v_add_u32", V(FVW + 3), S(T0_), V(FVW + 2)))
    else:
        for i in range(1, 4): e(valu("v_add_u32", V(FVW + i), i*7168, V(FVW)))
    e(valu("v_and_b32", V(HFA), 31, V(1))); e(valu("v_lshlrev_b32", V(HFA), 2, V(HFA)))
    e(salu("s_lshl_b32", S(T0_), S(S_QB), 7)); e(salu("s_add_u32", S(T0_), S(T0_), 4096*3))
    e(valu("v_add_u32", V(HFA), S(T0_), V(HFA)))
    return s

def h_flag_load():
    return buf_load(V(HFV), V(HFA), S(SRD_SY, 4), 0, n=1, tag="HFL", flags="sc1")

def h_flag_check(name):
    s = []; e = s.append
    L = f"{name}_hc"
    e(raw(f"v_cmp_ne_u32_e64 vcc, s{S_EPOCH}, v{HFV}", "valu", rd=regs("v", HFV) + regs("s", S_EPOCH), wr=[("s", "vcc")]))
    e(raw("s_nop 4", "other"))
    e(raw(f"s_cbranch_vccz {L}_ok", "branch"))
    e(salu("s_mov_b32", S(T2_), SPIN_MAX))
    e(label(f"{L}_poll"))
    e(raw(f"buffer_load_dword v{HFV}, v{HFA}, s[{SRD_SY}:{SRD_SY+3}], 0 offen sc1", "other"))
    e(raw("s_waitcnt vmcnt(0)", "other"))
    e(raw(f"v_cmp_ne_u32_e64 vcc, s{S_EPOCH}, v{HFV}", "other")); e(raw("s_nop 4", "other"))
    e(raw(f"s_cbranch_vccz {L}_ok", "branch"))
    e(raw(f"s_sub_u32 s{T2_}, s{T2_}, 1", "other")); e(raw(f"s_cbranch_scc1 {L}_ok", "branch"))
    e(raw("s_sleep 1", "other")); e(raw(f"s_branch {L}_poll", "branch"))
    e(label(f"{L}_ok"))
    return s

def f_block(i):
    s = []; e = s.append
    s += sstamp('T', i)
    F = Fill(16)
    N = NT_H
    F.add(0, f_rd(i, 3, 0)); F.add(1, f_rd(i, 3, 1))
    if i + 1 < N:
        F.add(3, wait_vm(("FW", i + 1)))
        for nb in range(3):
            F.add(4*nb + 4, f_rd(i + 1, nb, 0)); F.add(4*nb + 5, f_rd(i + 1, nb, 1))
    if not FVMOUT:
        if i + 3 < N:
            pre, d, adv = f_ldW(i + 3)
            F.add(1, pre); F.add(2, d[0]); F.add(3, d[1]); F.add(6, d[2]); F.add(7, d[3]); F.add(8, adv)
        if i + 2 < N:
            for qb, (ld, adv) in enumerate(f_ldB(i + 2)):
                F.add(12 + qb, ld)
    for nb in range(4):
        for qb in range(4):
            g = 4*nb + qb
            e(mfma16(FACC(nb, qb), FAFR(nb), FBF(i, qb), 0 if i == 0 else FACC(nb, qb)))
            s += F.emit(g)
    if i + 2 < N and not FVMOUT:
        for qb, (ld, adv) in enumerate(f_ldB(i + 2)): e(adv)
    if i in (4, 5): s += sstamp('T', 14 + (i - 4))
    return s

def tail_F(name):
    s = []; e = s.append
    e(salu("s_mov_b32", S(S_FBD), 0))
    s += h_flag_check(name)
    if PK3 == 2: s += pk_check(name)
    for i in range(2):
        pre, d, adv = f_ldW(i); s += [pre, nop(0)] + d + [adv]
        for ld, adv in f_ldB(i): s += [ld, adv]
    def fvm(i, half):
        if not FVMOUT: return []
        gaps = [35, 39, 43, 47, 51, 55, 59, 63] if half == "pv" else [3, 7, 11, 15, 17, 19, 23, 27]
        if FVMOUT == 2: gaps = [33, 35, 37, 39, 43, 47, 51, 55] if half == "pv" else [1, 3, 5, 7, 11, 15, 17, 19]
        x = []
        if i + 2 < NT_H:
            for qb, (ld, adv) in enumerate(f_ldB(i + 2)):
                x.append((gaps[qb], ld)); x.append((gaps[qb] + 1, adv))
        if i + 3 < NT_H:
            pre, d, adv = f_ldW(i + 3)
            x.append((gaps[4] - 1, pre))
            for k in range(4): x.append((gaps[4 + k], d[k]))
            x.append((gaps[7] + 1, adv))
        return x
    blk = 0
    pend = []
    for T in range(28, 32):
        d0, d1 = tile_dma(T, doK=False, doV=False)
        x0 = list(pend); pend = []
        if T == 28:
            pre, d, adv = dmaV(3)
            x0 += [(34, pre)] + [(35 + 4*k, x) for k, x in enumerate(d)] + [(48, adv)]
            pre, d, adv = f_ldW(2)
            x0 += [(50, pre)] + [(51 + 4*k, x) for k, x in enumerate(d)] + [(66, adv)]
            x0.append((40, wait_vm(("FW", 0))))
            for nb in range(3):
                x0 += [(41 + 8*nb, f_rd(0, nb, 0)), (41 + 8*nb, f_rd(0, nb, 1))]
        j = 2*T
        mid = None
        if T > 28:
            mid = f_block(blk); x0 += fvm(blk, "pv"); blk += 1
        s += window(j, T, dma=d0, bar=(T < 31), do_kread=(j + 2 <= 63), extra=x0, mid=mid)
        s += f_block(blk); x1 = fvm(blk, "qk"); blk += 1
        j = 2*T + 1
        mid = f_block(blk); x1 += fvm(blk, "pv"); blk += 1
        s += window(j, T, dma=d1, last_qk=(j + 1 <= 63), do_kread=(j + 2 <= 63), mid=mid, extra=x1)
        if blk < NT_H:
            s += f_block(blk); pend = fvm(blk, "qk"); blk += 1
    assert blk == NT_H, blk
    return s

def final2(name):
    ADDRA, VOFW, VOFB, VB = 2, 6, 10, 12
    ACCS, ACCF = 128, 192
    NT = NT_O + NT_H
    def part(t): return 1 if t < NT_H else 0
    def tl(t): return t if t < NT_H else t - NT_H
    def ACC(p, nb, qb): return V((ACCS if p == 0 else ACCF) + 16*nb + 4*qb, 4)
    def AF(t, nb): return V(64 + 16*(t & 1) + 4*nb, 4)
    def BFf(t, qb): return A(128 + 16*(t % NSLOT) + 4*qb, 4)
    SRD_A0, SRD_A1, SRD_W0, SRD_W1 = 8, 12, 16, 20
    SRD_O2 = 24
    S_RB, S_CB, S_LDSW, S_SA, S_SW = 32, 33, 34, 35, 36
    pre = []; e = pre.append
    e(salu("s_lshl_b32", S(T3_), S(S_QB), 4)); e(salu("s_lshl_b32", S(T2_), S(S_WAVE), 2)); e(salu("s_add_u32", S(T3_), S(T3_), S(T2_)))
    e(salu("s_lshl_b32", S(T0_), S(T3_), 7)); e(salu("s_lshl_b32", S(T1_), S(S_HEAD), 2)); e(salu("s_add_u32", S(T0_), S(T0_), S(T1_)))
    e(salu("s_lshl_b32", S(T0_), S(T0_), 10)); e(salu("s_add_u32", S(T0_), S(T0_), O_OFF))
    pre += mksrd(SRD_O, P_WS, T0_, 3*131072 + 4096)
    e(salu("s_and_b32", S(T0_), S(S_HEAD), 7)); e(salu("s_lshr_b32", S(T1_), S(S_HEAD), 3))
    e(salu("s_lshr_b32", S(T2_), S(T0_), 1)); e(salu("s_lshl_b32", S(S_RB), S(S_QB), 2)); e(salu("s_add_u32", S(S_RB), S(S_RB), S(T2_)))
    if CBX: e(salu("s_xor_b32", S(T1_), S(T1_), CBX))
    e(salu("s_and_b32", S(T0_), S(T0_), 1))
    if CBM == 0: e(salu("s_lshl_b32", S(T0_), S(T0_), 2))
    else: e(salu("s_lshl_b32", S(T1_), S(T1_), 1))
    e(salu("s_add_u32", S(S_CB), S(T0_), S(T1_)))
    e(salu("s_lshl_b32", S(T0_), S(S_RB), 9)); e(salu("s_lshl_b32", S(T1_), S(S_WAVE), 5)); e(salu("s_add_u32", S(T0_), S(T0_), S(T1_)))
    e(salu("s_lshl_b32", S(T0_), S(T0_), 10)); e(salu("s_add_u32", S(T0_), S(T0_), O_OFF))
    pre += mksrd(SRD_A0, P_WS, T0_, 3*131072 + 32*1024)
    e(salu("s_mul_i32", S(T0_), S(S_RB), 224)); e(salu("s_mul_i32", S(T1_), S(S_WAVE), 14)); e(salu("s_add_u32", S(T0_), S(T0_), S(T1_)))
    e(salu("s_lshl_b32", S(T0_), S(T0_), 10)); e(salu("s_add_u32", S(T0_), S(T0_), H_OFF))
    pre += mksrd(SRD_A1, P_WS, T0_, 3*57344 + 14*1024)
    e(salu("s_lshl_b32", S(T0_), S(S_WAVE), 20)); e(salu("s_lshl_b32", S(T1_), S(S_CB), 7)); e(salu("s_add_u32", S(T0_), S(T0_), S(T1_)))
    e(salu("s_sub_u32", S(T2_), 4096*1024, S(T0_)))
    pre += mksrd(SRD_W0, P_WO, T0_, S(T2_))
    e(salu("s_mul_i32", S(T0_), S(S_WAVE), 448*1024)); e(salu("s_add_u32", S(T0_), S(T0_), S(T1_)))
    e(salu("s_sub_u32", S(T2_), 1792*1024, S(T0_)))
    pre += mksrd(SRD_W1, P_WD, T0_, S(T2_))
    e(salu("s_lshl_b32", S(S_LDSW), S(S_WAVE), 15))
    G, RR, C, T1, T2, X = 20, 21, 22, 23, 24, 25
    e(valu("v_lshrrev_b32", V(G), 4, V(1))); e(valu("v_bfe_u32", V(RR), V(1), 2, 2)); e(valu("v_and_b32", V(C), 3, V(1)))
    e(valu("v_lshl_add_u32", V(T2), V(G), 2, V(RR))); e(valu("v_lshlrev_b32", V(T2), 7, V(T2)))
    e(valu("v_lshl_add_u32", V(T2), V(C), 3, V(T2))); e(valu("v_add_u32", V(T2), S(S_LDSW), V(T2)))
    e(valu("v_and_b32", V(X), 1, V(G))); e(valu("v_lshlrev_b32", V(X), 1, V(X))); e(valu("v_lshrrev_b32", V(T1), 1, V(RR))); e(valu("v_add_u32", V(X), V(X), V(T1)))
    for b in range(4):
        e(valu("v_xor_b32", V(T1), b, V(X))); e(valu("v_lshl_add_u32", V(ADDRA + b), V(T1), 5, V(T2)))
    e(valu("v_lshrrev_b32", V(T1), 3, V(1))); e(valu("v_lshlrev_b32", V(T2), 10, V(T1)))
    e(valu("v_lshlrev_b32", V(X), 1, V(G))); e(valu("v_and_b32", V(T1), 7, V(1))); e(valu("v_xor_b32", V(T1), V(T1), V(X)))
    e(valu("v_lshl_add_u32", V(VOFW), V(T1), 4, V(T2)))
    for i in range(1, 4): e(valu("v_add_u32", V(VOFW + i), i*7168, V(VOFW)))
    e(valu("v_lshlrev_b32", V(VOFB), 4, V(1)))
    for qb in range(4):
        e(valu("v_add_u32", V(VB + qb), qb*131072, V(VOFB))); e(valu("v_add_u32", V(VB + 4 + qb), qb*57344, V(VOFB)))
    e(salu("s_mov_b32", S(S_SA), 0)); e(salu("s_mov_b32", S(S_SW), 0))
    D = FD
    def ldW(t):
        p = part(t); o = []
        if t == NT_H: o.append(salu("s_mov_b32", S(S_SW), 0))
        o.append(salu("s_add_u32", "m0", S(S_LDSW), (t % NSLOT)*4096))
        d = [buf_dma(V(VOFW + i), S(SRD_W0 if p == 0 else SRD_W1, 4), S(S_SW), offset=i*1024, tag=("FW", t)) for i in range(4)]
        return o, d, [salu("s_add_u32", S(S_SW), S(S_SW), 32768)]
    def ldB(t):
        p = part(t); o = []
        if t == NT_H: o.append(salu("s_mov_b32", S(S_SA), 0))
        d = [buf_load(BFf(t, qb), V(VB + 4*p + qb), S(SRD_A0 if p == 0 else SRD_A1, 4), S(S_SA), tag=("FB", t), flags="sc1") for qb in range(4)]
        return o, d, [salu("s_add_u32", S(S_SA), S(S_SA), 1024)]
    def rdA(t, nb, rd):
        return ds_read("ds_read_b64_tr_b16", sub(AF(t, nb), 2*rd, 2), V(ADDRA + nb), offset=(t % NSLOT)*4096 + rd*2048)
    def o_unit2(k):
        qb, dp = k >> 2, k & 3
        t = 32 + 8*(k % 2); pk = 48 + 4*(k % 4)
        o = []
        for u in range(2):
            for r in range(4): o.append(valu("v_accvgpr_read_b32", V(t + 4*u + r), sub(OACC(2*dp + u, qb), r)))
        for i in range(8): o.append(valu("v_mul_f32", V(t + i), V(t + i), V(RI + qb)))
        for i in range(4): o.append(valu("v_cvt_pk_bf16_f32", V(pk + i), V(t + 2*i), V(t + 2*i + 1)))
        o.append(buf_store(V(pk, 4), V(VLANE16), S(SRD_O, 4), S(S_T + qb), offset=dp*1024, tag="O", flags="sc1"))
        return o
    def wnext(t):
        if t < NT_H:
            return t + D if t + D < NT_H + D else None
        tw = t + 7 if WPRE else t + D
        return tw if tw < NT else None
    def steps(s, t0, t1, units):
        e = s.append
        for t in range(t0, t1):
            p = part(t)
            if t < 15: s += sstamp("F", t + 1)
            if NT_H <= t < NT_H + 16: s += sstamp("G", t - NT_H)
            F = Fill(16); post = []
            if t + 1 < NT:
                F.add(0, wait_vm(("FW", t + 1)))
                for nb in range(4):
                    F.add(1 + 4*nb, rdA(t + 1, nb, 0)); F.add(3 + 4*nb, rdA(t + 1, nb, 1))
            tw = wnext(t)
            if tw is not None:
                o, d, pp = ldW(tw)
                F.add(0, o)
                for k, x in enumerate(d): F.add(2 + 2*k, x)
                F.add(9, pp)
            if t + D < NT and not (t < NT_H and t + D >= NT_H):
                o, d, pp = ldB(t + D)
                if o: F.add(9, o)
                for k, x in enumerate(d): F.add(10 + 2*k if k < 3 else 15, x)
                post = pp
            u = units.get(t, [])
            for nb in range(4):
                for qb in range(4):
                    g = 4*nb + qb
                    e(mfma16(ACC(p, nb, qb), AF(t, nb), BFf(t, qb), 0 if tl(t) == 0 else ACC(p, nb, qb)))
                    s += F.emit(g)
                    n = 2 if len(u) > 1 else len(u)
                    for _ in range(n):
                        if u: s.append(u.pop(0))
            s += u
            s += post
    f = []; e = f.append
    f += sstamp("F", 0)
    for qb in range(4): e(salu("s_mov_b32", S(S_T + qb), qb*131072))
    def both(t):
        o, d, p = ldW(t); r = o + [nop(0)] + d + p
        o, d, p = ldB(t); return r + o + d + p
    for t in range(2): f += both(t)
    for k in range(16): f += o_unit2(k)
    for t in range(2, D): f += both(t)
    e(wait_vm(("FW", 0)))
    for nb in range(4):
        for rd in range(2): e(rdA(0, nb, rd))
    steps(f, 0, NT_H, {})
    if WPRE:
        for t in range(NT_H + D, NT_H + 7):
            o, d, p = ldW(t); f += o + [nop(0)] + d + p
    sp = []; e = sp.append
    for t in range(NT_H, NT_H + D):
        o, d, p = ldB(t); sp += o; sp += d; sp += p
    steps(sp, NT_H, NT, {})
    sp += sstamp("H", 6)
    SRD_X, SRD_OUT = 8, 12
    e(sload(44, 0, 2)); e(sload(46, 72, 2))
    e(valu("v_lshlrev_b32", V(20), 4, V(1)))
    e(valu("v_add_u32", V(21), S(S_LDSW), V(20)))
    e(valu("v_and_b32", V(23), 15, V(1)))
    e(salu("s_lshl_b32", S(T0_), S(S_RB), 6)); e(salu("s_lshl_b32", S(T1_), S(S_WAVE), 4)); e(salu("s_add_u32", S(T0_), S(T0_), S(T1_)))
    e(valu("v_add_u32", V(23), S(T0_), V(23))); e(valu("v_lshlrev_b32", V(23), 10, V(23)))
    e(valu("v_lshrrev_b32", V(24), 4, V(1))); e(valu("v_lshl_add_u32", V(23), V(24), 3, V(23)))
    e(salu("s_lshl_b32", S(T1_), S(S_CB), 7)); e(valu("v_add_u32", V(23), S(T1_), V(23)))
    e(raw("s_waitcnt lgkmcnt(0)", "wait")); sp[-1].tag = (None, 0)
    sp += mksrd(SRD_X, 44, None, 2097152); sp += mksrd(SRD_OUT, 46, None, 2097152)
    XR_ = 160 - 128 + 2
    XR_ = 12
    for nb in range(4): e(buf_load(V(XR_ + 2*nb, 2), V(23), S(SRD_X, 4), 0, offset=nb*32, n=2))
    for i in list(range(16, 32)): e(ds_write("ds_write_b128", V(21), V(128 + 4*i, 4), offset=i*1024))
    e(nop(3))
    for i in list(range(16)): e(ds_write("ds_write_b128", V(21), V(128 + 4*i, 4), offset=i*1024))
    sp += sstamp("H", 7)
    e(wait_raw(lgkm=0)); e(barrier())
    sp += sstamp("H", 8)
    e(salu("s_lshl_b32", S(T0_), S(S_WAVE), 10))
    e(valu("v_add_u32", V(21), S(T0_), V(20))); e(valu("v_add_u32", V(22), 65536, V(21)))
    for p in (1, 0):
        for nb in range(4):
            for src in range(4):
                off = (src & 1)*32768 + (p*16 + nb*4)*1024
                e(ds_read("ds_read_b128", V(32 + ((p*4 + nb)*4 + src)*4, 4), V(21 if src < 2 else 22), offset=off))
    def red(p, nb):
        b = 32 + (p*4 + nb)*16; o = []
        for r in range(4):
            o.append(valu("v_add_f32", V(b + r), V(b + r), V(b + 4 + r))); o.append(valu("v_add_f32", V(b + 8 + r), V(b + 8 + r), V(b + 12 + r)))
        for r in range(4): o.append(valu("v_add_f32", V(b + r), V(b + r), V(b + 8 + r)))
        return o
    T = 168
    for nb in range(4):
        sp += red(1, nb)
    for nb in range(4):
        fb = 96 + nb*16; t = T + 8*nb
        e(valu("v_cvt_pk_bf16_f32", V(t), V(fb), V(fb + 1))); e(valu("v_cvt_pk_bf16_f32", V(t + 1), V(fb + 2), V(fb + 3)))
        for h in range(2):
            e(valu("v_lshlrev_b32", V(fb + 2*h), 16, V(t + h))); e(valu("v_and_b32", V(fb + 2*h + 1), "0xffff0000", V(t + h)))
        for r in range(4): e(valu("v_mul_f32", V(t + 4 + r), f2h(-1.4426950408889634), V(fb + r)))
    for nb in range(4):
        t = T + 8*nb
        for r in range(4): e(trans("v_exp_f32", V(t + 4 + r), V(t + 4 + r)))
    for nb in range(4): sp += red(0, nb)
    for nb in range(4):
        t = T + 8*nb
        for r in range(4): e(valu("v_add_f32", V(t + 4 + r), 1.0, V(t + 4 + r)))
    for nb in range(4):
        t = T + 8*nb
        for r in range(4): e(trans("v_rcp_f32", V(t + 4 + r), V(t + 4 + r)))
    for nb in range(4):
        sb, fb = 32 + nb*16, 96 + nb*16; t = T + 8*nb
        e(valu("v_cvt_pk_bf16_f32", V(t), V(sb), V(sb + 1))); e(valu("v_cvt_pk_bf16_f32", V(t + 1), V(sb + 2), V(sb + 3)))
        for h in range(2):
            e(valu("v_lshlrev_b32", V(sb + 2*h), 16, V(t + h))); e(valu("v_and_b32", V(sb + 2*h + 1), "0xffff0000", V(t + h)))
        for r in range(4): e(valu("v_mul_f32", V(sb + r), V(sb + r), V(fb + r)))
        for h in range(2):
            e(valu("v_lshlrev_b32", V(fb + 2*h), 16, V(XR_ + 2*nb + h))); e(valu("v_and_b32", V(fb + 2*h + 1), "0xffff0000", V(XR_ + 2*nb + h)))
        for r in range(4): e(valu("v_fma_f32", V(sb + r), V(sb + r), V(t + 4 + r), V(fb + r)))
        e(valu("v_cvt_pk_bf16_f32", V(t + 2), V(sb), V(sb + 1))); e(valu("v_cvt_pk_bf16_f32", V(t + 3), V(sb + 2), V(sb + 3)))
        e(buf_store(V(t + 2, 2), V(23), S(SRD_OUT, 4), 0, offset=nb*32, n=2, flags=OUTFLAGS))
    sp += sstamp("H", 9)
    return pre, f, sp

def final3(name):
    ADDRA, VOFW, VOFB, VB = 2, 6, 10, 12
    ACCS, ACCF = 128, 192
    NT = NT_O
    NT_H = 0
    def part(t): return 0
    def tl(t): return t
    def ACC(p, nb, qb): return V((ACCS if p == 0 else ACCF) + 16*nb + 4*qb, 4)
    def AF(t, nb): return V(64 + 16*(t & 1) + 4*nb, 4)
    def BFf(t, qb): return A(16*(t % NSLOT) + 4*qb, 4)
    SRD_A0, SRD_A1, SRD_W0, SRD_W1 = 8, 12, 16, 20
    SRD_O2 = 24
    S_RB, S_CB, S_LDSW, S_SA, S_SW = 32, 33, 34, 35, 36
    pre = []; e = pre.append
    e(salu("s_lshl_b32", S(T3_), S(S_QB), 4)); e(salu("s_lshl_b32", S(T2_), S(S_WAVE), 2)); e(salu("s_add_u32", S(T3_), S(T3_), S(T2_)))
    if OLAY:
        e(salu("s_lshl_b32", S(T0_), S(S_HEAD), 9)); e(salu("s_add_u32", S(T0_), S(T0_), S(T3_)))
        e(salu("s_lshl_b32", S(T0_), S(T0_), 10)); e(salu("s_add_u32", S(T0_), S(T0_), O_OFF))
        pre += mksrd(SRD_O, P_WS, T0_, 3*131072 + 4096)
    else:
        e(salu("s_lshl_b32", S(T0_), S(T3_), 7)); e(salu("s_lshl_b32", S(T1_), S(S_HEAD), 2)); e(salu("s_add_u32", S(T0_), S(T0_), S(T1_)))
        e(salu("s_lshl_b32", S(T0_), S(T0_), 10)); e(salu("s_add_u32", S(T0_), S(T0_), O_OFF))
        pre += mksrd(SRD_O, P_WS, T0_, 3*131072 + 4096)
    preO = list(pre); del pre[:]
    e(salu("s_and_b32", S(T0_), S(S_HEAD), 7)); e(salu("s_lshr_b32", S(T1_), S(S_HEAD), 3))
    e(salu("s_lshr_b32", S(T2_), S(T0_), 1)); e(salu("s_lshl_b32", S(S_RB), S(S_QB), 2)); e(salu("s_add_u32", S(S_RB), S(S_RB), S(T2_)))
    if CBX: e(salu("s_xor_b32", S(T1_), S(T1_), CBX))
    e(salu("s_and_b32", S(T0_), S(T0_), 1))
    if CBM == 0: e(salu("s_lshl_b32", S(T0_), S(T0_), 2))
    else: e(salu("s_lshl_b32", S(T1_), S(T1_), 1))
    e(salu("s_add_u32", S(S_CB), S(T0_), S(T1_)))
    if OLAY:
        e(salu("s_lshl_b32", S(T0_), S(S_WAVE), 12)); e(salu("s_lshl_b32", S(T1_), S(S_RB), 2)); e(salu("s_add_u32", S(T0_), S(T0_), S(T1_)))
        e(salu("s_lshl_b32", S(T0_), S(T0_), 10)); e(salu("s_add_u32", S(T0_), S(T0_), O_OFF))
        pre += mksrd(SRD_A0, P_WS, T0_, 31*131072 + 4096)
    else:
        e(salu("s_lshl_b32", S(T0_), S(S_RB), 9)); e(salu("s_lshl_b32", S(T1_), S(S_WAVE), 5)); e(salu("s_add_u32", S(T0_), S(T0_), S(T1_)))
        e(salu("s_lshl_b32", S(T0_), S(T0_), 10)); e(salu("s_add_u32", S(T0_), S(T0_), O_OFF))
        pre += mksrd(SRD_A0, P_WS, T0_, 3*131072 + 32*1024)
    e(salu("s_lshl_b32", S(T0_), S(S_WAVE), 20)); e(salu("s_lshl_b32", S(T1_), S(S_CB), 6 if COLSPLIT else 7)); e(salu("s_add_u32", S(T0_), S(T0_), S(T1_)))
    e(salu("s_sub_u32", S(T2_), 4096*1024, S(T0_)))
    pre += mksrd(SRD_W0, P_WO, T0_, S(T2_))
    if PK3:
        e(raw(f"s_cmp_eq_u32 s{S_CB}, 3", "salu", rd=regs("s", S_CB)))
        e(salu("s_mov_b32", S(39), 1024)); e(salu("s_mov_b32", S(42), 32768)); e(salu("s_mov_b32", S(37), 32*32768 - 1))
        e(salu("s_cselect_b32", S(39), 128, S(39))); e(salu("s_cselect_b32", S(42), 4096, S(42))); e(salu("s_cselect_b32", S(37), 32*4096 - 1, S(37)))
        if PK3 == 1:
            e(salu("s_lshl_b32", S(T0_), S(S_WAVE), 17)); e(salu("s_add_u32", S(T0_), S(T0_), S(P_WO))); e(salu("s_addc_u32", S(T1_), S(P_WO + 1), 0))
        else:
            e(salu("s_lshl_b32", S(T0_), S(S_WAVE), 17)); e(salu("s_add_u32", S(T0_), S(T0_), PK_OFF)); e(salu("s_add_u32", S(T0_), S(T0_), S(P_WS))); e(salu("s_addc_u32", S(T1_), S(P_WS + 1), 0))
        e(raw(f"s_cmp_eq_u32 s{S_CB}, 3", "salu", rd=regs("s", S_CB)))
        e(salu("s_cselect_b32", S(SRD_W0), S(T0_), S(SRD_W0))); e(salu("s_cselect_b32", S(SRD_W0 + 1), S(T1_), S(SRD_W0 + 1))); e(salu("s_cselect_b32", S(SRD_W0 + 2), 131072, S(SRD_W0 + 2)))
    e(salu("s_mul_i32", S(T0_), S(S_WAVE), 448*1024)); e(salu("s_add_u32", S(T0_), S(T0_), S(T1_)))
    e(salu("s_sub_u32", S(T2_), 1792*1024, S(T0_)))
    e(salu("s_lshl_b32", S(S_LDSW), S(S_WAVE), 15))
    G, RR, C, T1, T2, X = 20, 21, 22, 23, 24, 25
    e(valu("v_lshrrev_b32", V(G), 4, V(1))); e(valu("v_bfe_u32", V(RR), V(1), 2, 2)); e(valu("v_and_b32", V(C), 3, V(1)))
    e(valu("v_lshl_add_u32", V(T2), V(G), 2, V(RR))); e(valu("v_lshlrev_b32", V(T2), 7, V(T2)))
    e(valu("v_lshl_add_u32", V(T2), V(C), 3, V(T2))); e(valu("v_add_u32", V(T2), S(S_LDSW), V(T2)))
    e(valu("v_and_b32", V(X), 1, V(G))); e(valu("v_lshlrev_b32", V(X), 1, V(X))); e(valu("v_lshrrev_b32", V(T1), 1, V(RR))); e(valu("v_add_u32", V(X), V(X), V(T1)))
    for b in range(4):
        e(valu("v_xor_b32", V(T1), b, V(X))); e(valu("v_lshl_add_u32", V(ADDRA + b), V(T1), 5, V(T2)))
    e(valu("v_lshrrev_b32", V(T1), 3, V(1)))
    if PK3: e(valu("v_mul_lo_u32", V(T2), V(T1), S(39)))
    else: e(valu("v_lshlrev_b32", V(T2), 10, V(T1)))
    e(valu("v_lshlrev_b32", V(X), 1, V(G))); e(valu("v_and_b32", V(T1), 7, V(1))); e(valu("v_xor_b32", V(T1), V(T1), V(X)))
    if COLSPLIT:
        e(valu("v_lshrrev_b32", V(X), 2, V(T1))); e(valu("v_lshl_add_u32", V(T2), V(X), 9, V(T2))); e(valu("v_and_b32", V(T1), 3, V(T1)))
    e(valu("v_lshl_add_u32", V(VOFW), V(T1), 4, V(T2)))
    if PK3:
        e(salu("s_lshl_b32", S(T0_), S(39), 3)); e(salu("s_sub_u32", S(T0_), S(T0_), 1024))
        e(valu("v_add_u32", V(VOFW + 1), S(T0_), V(VOFW))); e(valu("v_add_u32", V(VOFW + 2), S(T0_), V(VOFW + 1))); e(valu("v_add_u32", V(VOFW + 3), S(T0_), V(VOFW + 2)))
    else:
        for i in range(1, 4): e(valu("v_add_u32", V(VOFW + i), i*7168, V(VOFW)))
    e(valu("v_lshlrev_b32", V(VOFB), 4, V(1)))
    for qb in range(4):
        e(valu("v_add_u32", V(VB + qb), qb*131072, V(VOFB))); e(valu("v_add_u32", V(VB + 4 + qb), qb*57344, V(VOFB)))
    if ROTW:
        e(salu("s_mul_i32", S(S_SA), S(S_WAVE), ROTW*1024))
        if ROTK:
            e(salu("s_lshr_b32", S(T0_), S(S_HEAD), 3)); e(salu("s_mul_i32", S(T0_), S(T0_), ROTK*1024)); e(salu("s_add_u32", S(S_SA), S(S_SA), S(T0_)))
        if ROTG:
            e(salu("s_mul_i32", S(T0_), S(S_QB), ROTG*1024)); e(salu("s_add_u32", S(S_SA), S(S_SA), S(T0_)))
        e(salu("s_and_b32", S(S_SA), S(S_SA), 32767))
        if PK3:
            e(salu("s_lshr_b32", S(S_SW), S(S_SA), 10)); e(salu("s_mul_i32", S(S_SW), S(S_SW), S(42)))
        else: e(salu("s_lshl_b32", S(S_SW), S(S_SA), 5))
    else:
        e(salu("s_mov_b32", S(S_SA), 0)); e(salu("s_mov_b32", S(S_SW), 0))
    if OLAY: e(salu("s_lshl_b32", S(38), S(S_SA), 7))
    D = FD
    def ldW(t):
        p = part(t); o = []
        o.append(salu("s_add_u32", "m0", S(S_LDSW), (t % NSLOT)*4096))
        d = [buf_dma(V(VOFW + i), S(SRD_W0 if p == 0 else SRD_W1, 4), S(S_SW), offset=i*1024, tag=("FW", t)) for i in range(4)]
        if PK3: return o, d, [salu("s_add_u32", S(S_SW), S(S_SW), S(42)), salu("s_and_b32", S(S_SW), S(S_SW), S(37))]
        return o, d, [salu("s_add_u32", S(S_SW), S(S_SW), 32768)] + ([salu("s_and_b32", S(S_SW), S(S_SW), 32*32768 - 1)] if ROTW else [])
    def ldB(t):
        p = part(t); o = []
        if OLAY:
            d = [buf_load(BFf(t, qb), V(VOFB), S(SRD_A0, 4), S(38), offset=qb*1024, tag=("FB", t), flags="sc1") for qb in range(4)]
            return o, d, [salu("s_add_u32", S(S_SA), S(S_SA), 1024), salu("s_and_b32", S(S_SA), S(S_SA), 32767), salu("s_lshl_b32", S(38), S(S_SA), 7)]
        d = [buf_load(BFf(t, qb), V(VB + 4*p + qb), S(SRD_A0 if p == 0 else SRD_A1, 4), S(S_SA), tag=("FB", t), flags="sc1") for qb in range(4)]
        return o, d, [salu("s_add_u32", S(S_SA), S(S_SA), 1024)] + ([salu("s_and_b32", S(S_SA), S(S_SA), 32767)] if ROTW else [])
    def rdA(t, nb, rd):
        return ds_read("ds_read_b64_tr_b16", sub(AF(t, nb), 2*rd, 2), V(ADDRA + nb), offset=(t % NSLOT)*4096 + rd*2048)
    def o_unit2(k):
        qb, dp = k >> 2, k & 3
        t = 32 + 8*(k % 2); pk = 48 + 4*(k % 4)
        o = []
        for u in range(2):
            for r in range(4): o.append(valu("v_accvgpr_read_b32", V(t + 4*u + r), sub(OACC(2*dp + u, qb), r)))
        for i in range(8): o.append(valu("v_mul_f32", V(t + i), V(t + i), V(RI + qb)))
        for i in range(4): o.append(valu("v_cvt_pk_bf16_f32", V(pk + i), V(t + 2*i), V(t + 2*i + 1)))
        if OLAY: o.append(buf_store(V(pk, 4), V(VLANE16), S(SRD_O, 4), S(S_T + dp), offset=qb*1024, tag="O", flags="sc1"))
        else: o.append(buf_store(V(pk, 4), V(VLANE16), S(SRD_O, 4), S(S_T + qb), offset=dp*1024, tag="O", flags="sc1"))
        return o
    def wnext(t):
        tw = t + 7
        return tw if tw < NT else None
    def steps(s, t0, t1, units):
        e = s.append
        for t in range(t0, t1):
            p = part(t)
            if t < 16: s += sstamp("G", t)
            if t >= 20 and t % 2 == 0: s += sstamp("H", (t - 20)//2)
            F = Fill(16); post = []
            if t + 1 < NT:
                F.add(0, wait_vm(("FW", t + 1)))
                for nb in range(4):
                    F.add(1 + 4*nb, rdA(t + 1, nb, 0)); F.add(3 + 4*nb, rdA(t + 1, nb, 1))
            tw = wnext(t)
            if tw is not None:
                o, d, pp = ldW(tw)
                F.add(0, o)
                for k, x in enumerate(d): F.add(2 + 2*k, x)
                F.add(9, pp)
            if t + D < NT:
                o, d, pp = ldB(t + D)
                if o: F.add(9, o)
                for k, x in enumerate(d): F.add(10 + 2*k if k < 3 else 15, x)
                post = pp
            u = units.get(t, [])
            for nb in range(4):
                for qb in range(4):
                    g = 4*nb + qb
                    e(mfma16(ACC(p, nb, qb), AF(t, nb), BFf(t, qb), 0 if tl(t) == 0 else ACC(p, nb, qb)))
                    s += F.emit(g)
                    n = 2 if len(u) > 1 else len(u)
                    for _ in range(n):
                        if u: s.append(u.pop(0))
            s += u
            s += post
    f = []; e = f.append
    if FASTPOST:
        ounits = [salu("s_mov_b32", S(S_T + qb), qb*131072) for qb in range(4)]
        for k in range(16): ounits += o_unit2(k)
        for t in range(7):
            o, d, p = ldW(t); f += o + [nop(0)] + d + p
        final3.fast = (preO, ounits)
    else:
        pre[:0] = preO
        for qb in range(4): e(salu("s_mov_b32", S(S_T + qb), qb*131072))
        for t in range(2):
            o, d, p = ldW(t); f += o + [nop(0)] + d + p
        for k in range(16): f += o_unit2(k)
        for t in range(2, 7):
            o, d, p = ldW(t); f += o + [nop(0)] + d + p
    sp = []; e = sp.append
    for t in range(D):
        o, d, p = ldB(t); sp += o; sp += d; sp += p
    if not EARLYF:
        e(wait_vm(("FW", 0)))
        for nb in range(4):
            for rd in range(2): e(rdA(0, nb, rd))
    steps(sp, 0, NT, {})
    if EARLYF:
        SRD_X, SRD_OUT = 20, 28
        GV, TV, XV = 192, 208, 240
        md = []; e = md.append
        e(sload(44, 0, 2)); e(sload(46, 72, 2))
        e(valu("v_lshlrev_b32", V(20), 4, V(1)))
        e(salu("s_lshl_b32", S(T0_), S(S_WAVE), 13)); e(salu("s_add_u32", S(T0_), S(T0_), XR))
        e(valu("v_add_u32", V(21), S(T0_), V(20)))
        e(salu("s_lshl_b32", S(T0_), S(S_WAVE), 10)); e(salu("s_add_u32", S(T0_), S(T0_), XR))
        e(valu("v_add_u32", V(22), S(T0_), V(20)))
        e(valu("v_and_b32", V(23), 15, V(1)))
        e(salu("s_lshl_b32", S(T0_), S(S_RB), 6)); e(salu("s_lshl_b32", S(T1_), S(S_WAVE), 4)); e(salu("s_add_u32", S(T0_), S(T0_), S(T1_)))
        e(valu("v_add_u32", V(23), S(T0_), V(23))); e(valu("v_lshlrev_b32", V(23), 10, V(23)))
        e(valu("v_lshrrev_b32", V(24), 4, V(1))); e(valu("v_lshl_add_u32", V(23), V(24), 3, V(23)))
        e(salu("s_lshl_b32", S(T1_), S(S_CB), 7)); e(valu("v_add_u32", V(23), S(T1_), V(23)))
        e(raw("s_waitcnt lgkmcnt(0)", "wait")); md[-1].tag = (None, 0)
        md += mksrd(SRD_X, 44, None, 2097152); md += mksrd(SRD_OUT, 46, None, 2097152)
        for nb in range(4): e(buf_load(V(XV + 2*nb, 2), V(23), S(SRD_X, 4), 0, offset=nb*32, n=2))
        for rnd in range(2):
            if rnd: e(barrier())
            for j in range(8):
                nb, qb = 2*rnd + (j >> 2), j & 3
                e(ds_write("ds_write_b128", V(21), FACC(nb, qb), offset=j*1024))
            e(wait_raw(lgkm=0)); e(barrier())
            for h in range(2):
                for src in range(4): e(ds_read("ds_read_b128", V(TV + (h*4 + src)*4, 4), V(22), offset=src*8192 + h*4096))
            for h in range(2):
                nb = 2*rnd + h; b = TV + h*16
                for r in range(4):
                    e(valu("v_add_f32", V(b + r), V(b + r), V(b + 4 + r))); e(valu("v_add_f32", V(b + 8 + r), V(b + 8 + r), V(b + 12 + r)))
                for r in range(4): e(valu("v_add_f32", V(GV + 4*nb + r), V(b + r), V(b + 8 + r)))
            e(wait_raw(lgkm=0))
        for nb in range(4):
            g = GV + 4*nb; t = TV + 8*nb
            e(valu("v_cvt_pk_bf16_f32", V(t), V(g), V(g + 1))); e(valu("v_cvt_pk_bf16_f32", V(t + 1), V(g + 2), V(g + 3)))
            for h in range(2):
                e(valu("v_lshlrev_b32", V(g + 2*h), 16, V(t + h))); e(valu("v_and_b32", V(g + 2*h + 1), "0xffff0000", V(t + h)))
            for r in range(4): e(valu("v_mul_f32", V(t + 4 + r), f2h(-1.4426950408889634), V(g + r)))
        for nb in range(4):
            t = TV + 8*nb
            for r in range(4): e(trans("v_exp_f32", V(t + 4 + r), V(t + 4 + r)))
        for nb in range(4):
            t = TV + 8*nb
            for r in range(4): e(valu("v_add_f32", V(t + 4 + r), 1.0, V(t + 4 + r)))
        for nb in range(4):
            t = TV + 8*nb
            for r in range(4): e(trans("v_rcp_f32", V(t + 4 + r), V(t + 4 + r)))
        for nb in range(4):
            g = GV + 4*nb; t = TV + 8*nb
            for r in range(4): e(valu("v_mul_f32", V(g + r), V(g + r), V(t + 4 + r)))
        for nb in range(4):
            for h in range(2):
                e(valu("v_lshlrev_b32", V(TV + 4*nb + 2*h), 16, V(XV + 2*nb + h))); e(valu("v_and_b32", V(TV + 4*nb + 2*h + 1), "0xffff0000", V(XV + 2*nb + h)))
        md.append(wait_vm(("FW", 0)))
        for nb in range(4):
            for rd in range(2): md.append(rdA(0, nb, rd))
        final3.mid = md
        e = sp.append
        sp += sstamp("H", 6)
        e(valu("v_add_u32", V(21), S(S_LDSW), V(20)))
        e(nop(5))
        for i in range(16): e(ds_write("ds_write_b128", V(21), V(128 + 4*i, 4), offset=i*1024))
        e(salu("s_lshl_b32", S(T0_), S(S_WAVE), 10))
        e(valu("v_add_u32", V(22), S(T0_), V(20))); e(valu("v_add_u32", V(24), 65536, V(22)))
        sp += sstamp("H", 7)
        e(wait_raw(lgkm=0)); e(barrier())
        sp += sstamp("H", 8)
        for nb in range(4):
            for src in range(4):
                e(ds_read("ds_read_b128", V(32 + (nb*4 + src)*4, 4), V(22 if src < 2 else 24), offset=(src & 1)*32768 + nb*4*1024))
        T = 96
        for nb in range(4):
            b = 32 + nb*16; t = T + 2*nb
            for r in range(4):
                e(valu("v_add_f32", V(b + r), V(b + r), V(b + 4 + r))); e(valu("v_add_f32", V(b + 8 + r), V(b + 8 + r), V(b + 12 + r)))
            for r in range(4): e(valu("v_add_f32", V(b + r), V(b + r), V(b + 8 + r)))
            e(valu("v_cvt_pk_bf16_f32", V(b + 4), V(b), V(b + 1))); e(valu("v_cvt_pk_bf16_f32", V(b + 5), V(b + 2), V(b + 3)))
            for h in range(2):
                e(valu("v_lshlrev_b32", V(b + 2*h), 16, V(b + 4 + h))); e(valu("v_and_b32", V(b + 2*h + 1), "0xffff0000", V(b + 4 + h)))
            for r in range(4): e(valu("v_fma_f32", V(b + r), V(b + r), V(GV + 4*nb + r), V(TV + 4*nb + r)))
            e(valu("v_cvt_pk_bf16_f32", V(t), V(b), V(b + 1))); e(valu("v_cvt_pk_bf16_f32", V(t + 1), V(b + 2), V(b + 3)))
            e(buf_store(V(t, 2), V(23), S(SRD_OUT, 4), 0, offset=nb*32, n=2, flags=OUTFLAGS))
        sp += sstamp("H", 9)
        return pre, f, sp
    sp += sstamp("H", 6)
    SRD_X, SRD_OUT = 8, 12
    e(sload(44, 0, 2)); e(sload(46, 72, 2))
    e(valu("v_lshlrev_b32", V(20), 4, V(1)))
    e(valu("v_add_u32", V(21), S(S_LDSW), V(20)))
    e(valu("v_and_b32", V(23), 15, V(1)))
    e(salu("s_lshl_b32", S(T0_), S(S_RB), 6)); e(salu("s_lshl_b32", S(T1_), S(S_WAVE), 4)); e(salu("s_add_u32", S(T0_), S(T0_), S(T1_)))
    e(valu("v_add_u32", V(23), S(T0_), V(23))); e(valu("v_lshlrev_b32", V(23), 10, V(23)))
    e(valu("v_lshrrev_b32", V(24), 4, V(1))); e(valu("v_lshl_add_u32", V(23), V(24), 3, V(23)))
    e(salu("s_lshl_b32", S(T1_), S(S_CB), 6 if COLSPLIT else 7)); e(valu("v_add_u32", V(23), S(T1_), V(23)))
    e(raw("s_waitcnt lgkmcnt(0)", "wait")); sp[-1].tag = (None, 0)
    sp += mksrd(SRD_X, 44, None, 2097152); sp += mksrd(SRD_OUT, 46, None, 2097152)
    XR_ = 160 - 128 + 2
    XR_ = 12
    for nb in range(4): e(buf_load(V(XR_ + 2*nb, 2), V(23), S(SRD_X, 4), 0, offset=((nb & 1)*32 + (nb >> 1)*512) if COLSPLIT else nb*32, n=2))
    for i in list(range(16, 32)): e(ds_write("ds_write_b128", V(21), A(128 + 4*(i - 16), 4), offset=i*1024))
    e(nop(3))
    for i in list(range(16)): e(ds_write("ds_write_b128", V(21), V(128 + 4*i, 4), offset=i*1024))
    sp += sstamp("H", 7)
    e(wait_raw(lgkm=0)); e(barrier())
    sp += sstamp("H", 8)
    e(salu("s_lshl_b32", S(T0_), S(S_WAVE), 10))
    e(valu("v_add_u32", V(21), S(T0_), V(20))); e(valu("v_add_u32", V(22), 65536, V(21)))
    for p in (1, 0):
        for nb in range(4):
            for src in range(4):
                off = (src & 1)*32768 + (p*16 + nb*4)*1024
                e(ds_read("ds_read_b128", V(32 + ((p*4 + nb)*4 + src)*4, 4), V(21 if src < 2 else 22), offset=off))
    def red(p, nb):
        b = 32 + (p*4 + nb)*16; o = []
        for r in range(4):
            o.append(valu("v_add_f32", V(b + r), V(b + r), V(b + 4 + r))); o.append(valu("v_add_f32", V(b + 8 + r), V(b + 8 + r), V(b + 12 + r)))
        for r in range(4): o.append(valu("v_add_f32", V(b + r), V(b + r), V(b + 8 + r)))
        return o
    T = 168
    for nb in range(4):
        sp += red(1, nb)
    for nb in range(4):
        fb = 96 + nb*16; t = T + 8*nb
        e(valu("v_cvt_pk_bf16_f32", V(t), V(fb), V(fb + 1))); e(valu("v_cvt_pk_bf16_f32", V(t + 1), V(fb + 2), V(fb + 3)))
        for h in range(2):
            e(valu("v_lshlrev_b32", V(fb + 2*h), 16, V(t + h))); e(valu("v_and_b32", V(fb + 2*h + 1), "0xffff0000", V(t + h)))
        for r in range(4): e(valu("v_mul_f32", V(t + 4 + r), f2h(-1.4426950408889634), V(fb + r)))
    for nb in range(4):
        t = T + 8*nb
        for r in range(4): e(trans("v_exp_f32", V(t + 4 + r), V(t + 4 + r)))
    for nb in range(4): sp += red(0, nb)
    for nb in range(4):
        t = T + 8*nb
        for r in range(4): e(valu("v_add_f32", V(t + 4 + r), 1.0, V(t + 4 + r)))
    for nb in range(4):
        t = T + 8*nb
        for r in range(4): e(trans("v_rcp_f32", V(t + 4 + r), V(t + 4 + r)))
    for nb in range(4):
        sb, fb = 32 + nb*16, 96 + nb*16; t = T + 8*nb
        e(valu("v_cvt_pk_bf16_f32", V(t), V(sb), V(sb + 1))); e(valu("v_cvt_pk_bf16_f32", V(t + 1), V(sb + 2), V(sb + 3)))
        for h in range(2):
            e(valu("v_lshlrev_b32", V(sb + 2*h), 16, V(t + h))); e(valu("v_and_b32", V(sb + 2*h + 1), "0xffff0000", V(t + h)))
        for r in range(4): e(valu("v_mul_f32", V(sb + r), V(sb + r), V(fb + r)))
        for h in range(2):
            e(valu("v_lshlrev_b32", V(fb + 2*h), 16, V(XR_ + 2*nb + h))); e(valu("v_and_b32", V(fb + 2*h + 1), "0xffff0000", V(XR_ + 2*nb + h)))
        for r in range(4): e(valu("v_fma_f32", V(sb + r), V(sb + r), V(t + 4 + r), V(fb + r)))
        e(valu("v_cvt_pk_bf16_f32", V(t + 2), V(sb), V(sb + 1))); e(valu("v_cvt_pk_bf16_f32", V(t + 3), V(sb + 2), V(sb + 3)))
        e(buf_store(V(t + 2, 2), V(23), S(SRD_OUT, 4), 0, offset=((nb & 1)*32 + (nb >> 1)*512) if COLSPLIT else nb*32, n=2, flags=OUTFLAGS))
    sp += sstamp("H", 9)
    return pre, f, sp


S_FBD = 7
FBL = 28672
def post_main_fast(name, preO, ounits):
    s = []; e = s.append
    e(nop(7))
    e(label(f"{name}_fbret"))
    s += preO
    s += o_rinv()[1:-4]
    e(salu("s_mov_b32", S(T0_), f2h(-1.0 if mega.FORCE_FB else mega.FB_THRESH)))
    for qb in range(4):
        e(raw(f"v_cmp_nle_f32_e64 s[{64 + 2*qb if False else (44 + 0)}:{45}], v{LREG + 4*qb}, s{T0_}", "valu")) if False else None
    pairs = [(44, 45), (46, 47), (62, 63)]
    e(raw(f"v_cmp_nle_f32_e64 s[44:45], v{LREG}, s{T0_}", "valu", rd=regs("v", LREG) + regs("s", T0_), wr=regs("s", 44, 2)))
    e(raw(f"v_cmp_nle_f32_e64 s[46:47], v{LREG + 4}, s{T0_}", "valu", rd=regs("v", LREG + 4) + regs("s", T0_), wr=regs("s", 46, 2)))
    e(raw(f"v_cmp_nle_f32_e64 s[62:63], v{LREG + 8}, s{T0_}", "valu", rd=regs("v", LREG + 8) + regs("s", T0_), wr=regs("s", 62, 2)))
    e(raw(f"v_cmp_nle_f32_e64 vcc, v{LREG + 12}, s{T0_}", "valu", rd=regs("v", LREG + 12) + regs("s", T0_), wr=[("s", "vcc")]))
    e(nop(4))
    e(raw("s_or_b64 s[44:45], s[44:45], s[46:47]", "salu")); e(raw("s_or_b64 s[62:63], s[62:63], vcc", "salu")); e(raw("s_or_b64 s[44:45], s[44:45], s[62:63]", "salu"))
    e(raw("s_or_b32 s44, s44, s45", "salu"))
    e(raw(f"s_cmp_eq_u32 s{S_FBD}, 0", "salu")); e(raw("s_cselect_b32 s44, s44, 0", "salu"))
    e(valu("v_mov_b32", V(TMP + 8), S(44)))
    e(salu("s_lshl_b32", S(T0_), S(S_WAVE), 2)); e(salu("s_add_u32", S(T0_), S(T0_), FBL))
    e(valu("v_mov_b32", V(TMP + 9), S(T0_)))
    e(ds_write("ds_write_b32", V(TMP + 9), V(TMP + 8), offset=0))
    s += ounits
    e(wait_raw(lgkm=0)); e(barrier())
    e(valu("v_mov_b32", V(TMP + 9), FBL))
    e(ds_read("ds_read_b128", V(TMP + 4, 4), V(TMP + 9), offset=0))
    e(valu("v_or3_b32", V(TMP + 4), V(TMP + 4), V(TMP + 5), V(TMP + 6)))
    e(valu("v_or_b32", V(TMP + 4), V(TMP + 4), V(TMP + 7)))
    e(nop(0))
    e(valu("v_readfirstlane_b32", S(T0_), V(TMP + 4)))
    e(nop(3))
    e(raw(f"s_cmp_lg_u32 s{T0_}, 0", "salu"))
    e(raw(f"s_cbranch_scc1 {name}_fb", "branch"))
    return [x for x in s if x is not None]

def fb_check2(name):
    c = mega.fb_check(name)
    i = [k for k, x in enumerate(c) if x.kind == "barrier"][0]
    L = f"{name}_hp"
    p = []; e = p.append
    e(raw(f"s_cmp_lg_u32 s{S_WAVE}, 0", "salu", rd=regs("s", S_WAVE)))
    e(raw(f"s_cbranch_scc1 {L}_skip", "branch"))
    e(salu("s_lshl_b32", S(T0_), S(S_QB), 7)); e(salu("s_add_u32", S(T0_), S(T0_), 4096*3))
    e(raw("s_mov_b32 exec_lo, -1", "salu")); e(raw("s_mov_b32 exec_hi, 0", "salu"))
    e(raw(f"v_lshlrev_b32 v{TMP+11}, 2, v1", "other"))
    e(salu("s_mov_b32", S(T2_), SPIN_MAX))
    e(label(f"{L}_poll"))
    e(raw(f"buffer_load_dword v{TMP+12}, v{TMP+11}, s[{SRD_SY}:{SRD_SY+3}], s{T0_} offen sc1", "other"))
    e(raw("s_waitcnt vmcnt(0)", "other"))
    e(raw(f"v_cmp_ne_u32 vcc, s{S_EPOCH}, v{TMP+12}", "other")); e(raw("s_nop 4", "other"))
    e(raw(f"s_cbranch_vccz {L}_done", "branch"))
    e(raw(f"s_sub_u32 s{T2_}, s{T2_}, 1", "other")); e(raw(f"s_cbranch_scc1 {L}_done", "branch"))
    e(raw("s_sleep 1", "other")); e(raw(f"s_branch {L}_poll", "branch"))
    e(label(f"{L}_done"))
    e(raw("s_mov_b64 exec, -1", "salu"))
    e(label(f"{L}_skip"))
    return c[:i + 1] + p + c[i + 1:]

def gen_mega2(name):
    k1.SC1 = True
    k1._cs[0] = 0
    mega.FB_LDS = XR
    s = stamp(0); e = s.append
    if k1.STEPSTAMP: s += [raw('s_memtime s[96:97]', 'smem'), raw('s_waitcnt lgkmcnt(0)', 'other'), raw('s_mov_b32 s80, s96', 'salu')]
    e(raw("s_cmp_ge_u32 s2, 256", "salu", rd=regs("s", 2)))
    e(raw(f"s_cbranch_scc1 {name}_end", "branch"))
    e(sload(60, 0, 2))
    e(raw("s_getpc_b64 s[100:101]", "salu", wr=regs("s", 100, 2))); e(label(f"{name}_pc"))
    s += setup_mega2()
    s += cstamp('S')
    s += setup_addr2()
    s += flatW2(0)
    if WTOUCH == 1: s += touches2()
    if WTOUCH in (3, 4): s += touches2(1)
    s += flatW2(1)
    s += cstamp('S')
    s += epoch_fix()
    s += cstamp('S')
    s += ln_compute()
    s += cstamp('S')
    midl = flatW2(2) + flatW2(3) + (code_touch(name, PFD + 3) if CODEPF else []) + setupK() + setup_addr3() + touch_prep()
    if not SIGEARLY: s += midl
    s += cstamp('S')
    e(wait_vm("XN"))
    s += stamp(1)
    s += cstamp('S')
    s += poll_barrier(name, 0, mid=midl if SIGEARLY else None)
    s += stamp(2)
    s += cstamp('S')
    s += loadB(0) + advB2()
    s += fused_phase()
    s += stamp(3)
    s += cstamp('M')
    if PK3 == 2: s += pk_load()
    if KVLATE:
        s += flatKV(dmaV(2)); s += flatKV(dmaK(2)); s += flatKV(dmaK(3))
    if CONV2:
        s += conv_phase()
        s += window_m1()
    else:
        s += qconvert()
        s += h_epilogue2()
        for i in range(16): e(valu("v_mov_b32", V(LREG + i), 0))
        for i in range(4): e(valu("v_mov_b32", V(ONES + i), "0x3f803f80"))
        s += first_max()
        s += window(-1, 0, last_qk=True, do_pv=False, do_kread=True, exp_tail=False)
    s += stamp(4)
    s += cstamp('M')
    e(salu("s_mov_b32", S(S_LOOP), 0))
    if PK3 == 2:
        s += pk_store()
        s += pk_flag_setup(TMP + 6, TMP + 7)
        e(salu("s_mov_b32", S(75), 14336))
    if FTAIL: s += f_setup()
    s += flag_addr_setup(2, TMP + 10, TMP + 11)
    e(salu("s_lshl_b32", S(7), S(2), 2)); e(salu("s_add_u32", S(7), S(7), S(S_WAVE))); e(salu("s_lshl_b32", S(7), S(7), 12))
    if MALLPF == 2:
        e(valu("v_lshlrev_b32", V(PFD + 3), 6, V(1)))
    else:
        e(valu("v_and_b32", V(PFD + 3), 31, V(1))); e(valu("v_lshlrev_b32", V(PFD + 3), 7, V(PFD + 3)))
    s += [salu("s_mov_b32", S(60), S(P_WD)), salu("s_mov_b32", S(61), S(P_WD + 1)), salu("s_mov_b32", S(62), 1792*1024 if WD_IT == 0 else 0), salu("s_mov_b32", S(63), "0x00020000")]
    if CODEPF:
        s += [salu("s_mov_b32", S(76), S(100)), salu("s_mov_b32", S(77), S(101)), raw(f"s_mov_b32 s78, {name}_codeend-{name}_pc", "salu", wr=regs("s", 78)), salu("s_mov_b32", S(79), "0x00020000")]
        e(salu("s_lshr_b32", S(90), S(2), 3)); e(salu("s_and_b32", S(90), S(90), 15)); e(salu("s_lshl_b32", S(90), S(90), 12))
        e(valu("v_lshlrev_b32", V(PFD + 2), 6, V(1)))
    def pf_next():
        b = [[raw(f"s_cmp_eq_u32 s{S_LOOP}, {WO_IT - 1}", "salu", rd=regs("s", S_LOOP)), salu("s_cselect_b32", S(60), S(P_WO), S(P_WD)), salu("s_cselect_b32", S(61), S(P_WO + 1), S(P_WD + 1)),
              salu("s_cselect_b32", S(62), 4096*1024, 0)]]
        if WD_IT > 0:
            b.append([raw(f"s_cmp_eq_u32 s{S_LOOP}, {WD_IT - 1}", "salu", rd=regs("s", S_LOOP)), salu("s_cselect_b32", S(62), 1792*1024, S(62))])
        return b
    if L2W3:
        e(salu("s_mov_b32", S(28), S(P_WO))); e(salu("s_mov_b32", S(29), S(P_WO + 1))); e(salu("s_mov_b32", S(30), 0)); e(salu("s_mov_b32", S(31), "0x00020000"))
        e(salu("s_lshl_b32", S(91), S(S_WAVE), 20)); e(salu("s_lshl_b32", S(T0_ + 14), S(S_QB), 17)); e(salu("s_add_u32", S(91), S(91), S(T0_ + 14))); e(salu("s_add_u32", S(91), S(91), 384))
        e(valu("v_lshlrev_b32", V(168), 10, V(1))); e(valu("v_add_u32", V(169), 65536, V(168)))
        e(salu("s_and_b32", S(74), S(S_HEAD), 0x19)); e(raw("s_cmp_eq_u32 s74, 0x18", "salu", rd=regs("s", 74))); e(salu("s_cselect_b32", S(75), 4096*1024, 0))
    e(LoopBegin(f"{name}_loop"))
    for T in range(4):
        d0, d1 = tile_dma(T)
        x0, x1 = [], []
        if L2W3 and T == 0:
            x0.append((15, [raw(f"s_cmp_eq_u32 s{S_LOOP}, {L2W3_IT}", "salu", rd=regs("s", S_LOOP)), salu("s_cselect_b32", S(30), S(75), 0)]))
        if L2W3 and T == 1:
            x0.append((39, buf_load(V(170), V(168), S(28, 4), S(91), n=1, tag="PF")))
            x0.append((47, buf_load(V(171), V(169), S(28, 4), S(91), n=1, tag="PF")))
        if T == 0 and MALLPF: x1.append((39, buf_load(V(PFD), V(PFD + 3), S(60, 4), S(7), n=1, tag="PF")))
        if T == 1:
            for k, b in enumerate(pf_next()): x1.append((15 + 2*k, b))
        if T == 2:
            if CODEPF: x1.append((39, buf_load(V(PFD + 1), V(PFD + 2), S(76, 4), S(90), n=1, tag="PF")))
            x0.append((39, buf_store(V(TMP + 11), V(TMP + 10), S(SRD_SY, 4), 0, n=1, tag="HF", flags="sc1")))
            x0.append((41, valu("v_or_b32", V(TMP + 10), "0x40000000", V(TMP + 10))))
            if PK3 == 2:
                x0.append((47, buf_store(V(TMP + 7), V(TMP + 6), S(SRD_SY, 4), 0, n=1, tag="HF", flags="sc1")))
                x0.append((55, valu("v_or_b32", V(TMP + 6), "0x40000000", V(TMP + 6))))
        if T == 3 and FTAIL: x0.append((39, h_flag_load()))
        if T == 3 and PK3 == 2: x0.append((47, pk_flag_load()))
        w0 = window(2*T, T, dma=d0, bar=True, extra=x0)
        if T == 2:
            for x in w0:
                if x.kind == "waitvm": x.need = set(x.need) | {"H", "CP"}
        s += w0
        s += window(2*T + 1, T, dma=d1, extra=x1)
    e(salu("s_add_u32", S(S_LOOP), S(S_LOOP), 1))
    e(raw(f"s_cmp_lt_u32 s{S_LOOP}, 7", "salu", rd=regs("s", S_LOOP)))
    e(raw(f"s_cbranch_scc1 {name}_loop", "branch"))
    e(LoopEnd(f"{name}_loop"))
    s += cstamp('M')
    if FTAIL:
        s += tail_F(name)
    else:
        for T in range(28, 32):
            d0, d1 = tile_dma(T, doK=False, doV=(T + 3 <= 31))
            j = 2*T
            s += window(j, T, dma=d0, bar=(T < 31), do_kread=(j + 2 <= 63))
            j = 2*T + 1
            s += window(j, T, dma=d1, last_qk=(j + 1 <= 63), do_kread=(j + 2 <= 63))
    s += stamp(5)
    s += cstamp('M')
    pre, f, sp = (final3 if FTAIL else final2)(name)
    if FASTPOST:
        s += post_main_fast(name, *final3.fast)
    else:
        s += (mega.fb_check(name) if FTAIL else fb_check2(name))
        s += o_rinv()[:-4]
    s += pre
    s += stamp(6)
    s += cstamp('M')
    s += f
    s += cstamp('M')
    e(wait_vm("O"))
    s += stamp(7)
    s += cstamp('M')
    s += poll_barrier(name, 1, mid=final3.mid if (FTAIL and EARLYF) else None)
    s += stamp(8)
    s += cstamp('M')
    s += sp
    s += cstamp('M')
    if k1.STAMPS: e(raw("s_waitcnt vmcnt(0)", "other"))
    s += stamp(9)
    s += stamp_dump(16 if k1.STEPSTAMP else 10)
    main, res = finish(s, name)
    return main + [label(f"{name}_codeend")] + fallback(name), res
```

```python
from ir import *
from k0 import sload, XN_OFF, O_OFF, H_OFF, DBG_OFF
import k1
from k1 import *
import mega
from mega import SYNC_OFF, S_EPOCH, SRD_SY, SPIN_MAX, ln_loads, ln_compute, code_touch, poll_barrier, fallback
S_EPC = 91
def epoch_fix():
    o = [valu("v_readfirstlane_b32", S(S_EPOCH), V(TMP + 9)), nop(3), salu("s_add_u32", S(S_EPOCH), S(S_EPOCH), 1)]
    if PK3 == 2: o += [valu("v_readfirstlane_b32", S(S_EPC), V(TMP + 8)), nop(3), salu("s_add_u32", S(S_EPC), S(S_EPC), 1)]
    return o

CODEPF = True
OBURST = True
WTOUCH = 4
WPRE = 1
CONV2 = 1
FTAIL = 1
CBX = 0
FEXP = 0
EARLYF = 1
OLAY = 0
ROTK = 0
ROTG = 1
FASTPOST = 1
PK3 = 2
PK_OFF = 28 << 20
L2W3 = 0
L2W3_IT = 6
ROTW = 1
COLSPLIT = 0
WO_IT = 1
WD_IT = 0
MALLPF = 1
CBM = 0
KVLATE = 0
SIGEARLY = 1
FVMOUT = 1
KVT = 1
OUTFLAGS = ''
FD = 3
ADDRE, VOFFE = 96, 100
SRD_E = 24
S_SOFFE = 38
RING0 = 32768
def ringslot(t): return RING0 + 16384*(t % 8)
def rbase(t): return RING0 if (t % 8) < 4 else RING0 + 65536
def ACCQ(db, qb): return V(128 + 16*db + 4*qb, 4)
def ACCE(db, qb): return A(16*db + 4*qb, 4)
def AFB(db): return A(192 + 4*db, 4)
WSTEP_E = 32*3584

def flag_addr_setup(idx, vaddr, vval):
    s = []; e = s.append
    e(salu("s_lshl_b32", S(S_T), S(S_QB), 7)); e(salu("s_add_u32", S(S_T), S(S_T), 4096*(1 + idx)))
    e(salu("s_lshl_b32", S(S_T + 1), S(S_HEAD), 2)); e(salu("s_add_u32", S(S_T), S(S_T), S(S_T + 1)))
    e(valu("v_mov_b32", V(vaddr), S(S_T)))
    e(valu("v_lshlrev_b32", V(vval), 14, V(0)))
    e(valu("v_add_u32", V(vaddr), V(vaddr), V(vval)))
    e(valu("v_mov_b32", V(vval), S(S_EPOCH)))
    return s

def setup_mega2():
    s = []; e = s.append
    e(sload(P_WS, 88, 2))
    e(sload(P_WQ, 24, 4)); e(sload(SRD_K, 8, 2)); e(sload(SRD_V, 16, 2)); e(sload(P_WG, 48, 4)); e(sload(P_WD, 64, 2))
    e(valu("v_and_b32", V(1), 63, V(0)))
    e(valu("v_lshrrev_b32", V(30), 6, V(0)))
    e(salu("s_and_b32", S(S_HEAD), S(2), 31))
    e(valu("v_readfirstlane_b32", S(S_WAVE), V(30)))
    e(salu("s_lshr_b32", S(S_QB), S(2), 5))
    e(salu("s_mov_b32", S(62), 2097152)); e(salu("s_mov_b32", S(63), "0x00020000"))
    e(raw("s_waitcnt lgkmcnt(0)", "wait")); s[-1].tag = (None, 0)
    s += ln_loads()
    e(salu("s_add_u32", S(SRD_SY), S(P_WS), SYNC_OFF)); e(salu("s_addc_u32", S(SRD_SY + 1), S(P_WS + 1), 0))
    e(salu("s_mov_b32", S(SRD_SY + 2), 16384)); e(salu("s_mov_b32", S(SRD_SY + 3), "0x00020000"))
    e(salu("s_lshl_b32", S(S_T + 2), S(S_QB), 7))
    e(valu("v_mov_b32", V(TMP + 11), 0))
    e(buf_load(V(TMP + 9), V(TMP + 11), S(SRD_SY, 4), S(S_T + 2), n=1, flags="sc1"))
    if PK3 == 2: e(buf_load(V(TMP + 8), V(TMP + 11), S(SRD_SY, 4), 0, offset=1024, n=1, flags="sc1"))
    e(valu("v_lshrrev_b32", V(G_), 4, V(1)))
    e(valu("v_and_b32", V(N_), 15, V(1)))
    for i in range(2):
        e(valu("v_add_u32", V(U1), 4*i, V(G_)))
        e(valu("v_lshlrev_b32", V(U2), 13, V(U1)))
        e(valu("v_lshlrev_b32", V(U1), 1, V(U1)))
        e(valu("v_xor_b32", V(U1), V(U1), V(N_)))
        e(valu("v_lshl_add_u32", V(VOFFW + i), V(U1), 4, V(U2)))
        if i: e(valu("v_subrev_u32", V(VOFFW + i), 1024, V(VOFFW + i)))
    e(valu("v_lshlrev_b32", V(VLANE16), 4, V(1)))
    e(valu("v_mov_b32", V(VOFFB), V(VLANE16)))
    for qb in range(1, 4): e(valu("v_add_u32", V(VOFFB + qb), qb*16384, V(VLANE16)))
    e(salu("s_lshl_b32", S(S_W4K), S(S_WAVE), 12))
    e(salu("s_lshl_b32", S(S_W2K), S(S_WAVE), 11))
    e(salu("s_mov_b32", S(S_SOFFB), 0))
    e(salu("s_lshl_b32", S(S_SOFFW), S(S_WAVE), 16))
    e(salu("s_lshl_b32", S(S_T), S(S_HEAD), 8))
    e(salu("s_sub_u32", S(S_T + 1), 4194304, S(S_T)))
    s += mksrd(SRD_W, P_WQ, S_T, S(S_T + 1))
    e(salu("s_lshl_b32", S(S_T), S(S_QB), 4)); e(salu("s_lshl_b32", S(S_T + 1), S(S_WAVE), 2)); e(salu("s_add_u32", S(S_T), S(S_T), S(S_T + 1)))
    e(salu("s_lshl_b32", S(S_T), S(S_T), 14))
    if XN_OFF: e(salu("s_add_u32", S(S_T), S(S_T), XN_OFF))
    s += mksrd(SRD_XN, P_WS, S_T, 65536)
    e(salu("s_lshl_b32", S(S_T), S(S_HEAD), 19))
    for b in (SRD_K, SRD_V):
        e(salu("s_add_u32", S(b), S(b), S(S_T))); e(salu("s_addc_u32", S(b + 1), S(b + 1), 0))
        e(salu("s_mov_b32", S(b + 2), 524288)); e(salu("s_mov_b32", S(b + 3), "0x00020000"))
    e(raw(f"s_cmp_ge_u32 s{S_WAVE}, 2", "salu", rd=regs("s", S_WAVE)))
    e(salu("s_cselect_b32", S(S_T), S(P_WG + 2), S(P_WG)))
    e(salu("s_cselect_b32", S(S_T + 1), S(P_WG + 3), S(P_WG + 1)))
    e(salu("s_lshl_b32", S(S_T + 2), S(S_HEAD), 7))
    e(salu("s_add_u32", S(SRD_E), S(S_T), S(S_T + 2)))
    e(salu("s_addc_u32", S(SRD_E + 1), S(S_T + 1), 0))
    e(salu("s_sub_u32", S(SRD_E + 2), 512*3584, S(S_T + 2)))
    e(raw(f"s_cmp_lt_u32 s{S_HEAD}, 28", "salu", rd=regs("s", S_HEAD)))
    e(salu("s_cselect_b32", S(SRD_E + 2), S(SRD_E + 2), 0))
    e(salu("s_mov_b32", S(SRD_E + 3), "0x00020000"))
    e(salu("s_and_b32", S(S_T), S(S_WAVE), 1))
    e(salu("s_mul_i32", S(S_SOFFE), S(S_T), 16*3584))
    return s

def setup_addr2():
    s = []; e = s.append
    e(valu("v_bfe_u32", V(RR_), V(1), 2, 2))
    e(valu("v_and_b32", V(C_), 3, V(1)))
    e(valu("v_and_b32", V(ROW8), 1, V(G_)))
    e(valu("v_lshl_add_u32", V(ROW8), V(ROW8), 2, V(RR_)))
    e(valu("v_lshl_add_u32", V(ROWB), V(G_), 2, V(RR_)))
    e(valu("v_lshrrev_b32", V(U1), 3, V(1)))
    e(salu("s_mov_b32", S(S_T + 2), 3584))
    e(valu("v_mul_lo_u32", V(U2), V(U1), S(S_T + 2)))
    e(valu("v_lshlrev_b32", V(CH), 1, V(G_)))
    e(valu("v_and_b32", V(U1), 7, V(1)))
    e(valu("v_xor_b32", V(U1), V(U1), V(CH)))
    e(valu("v_lshl_add_u32", V(VOFFE), V(U1), 4, V(U2)))
    e(valu("v_add_u32", V(VOFFE + 1), 8*3584 - 1024, V(VOFFE)))
    return s

def setup_addr3():
    s = []; e = s.append
    e(valu("v_lshlrev_b32", V(U2), 8, V(ROWB)))
    e(valu("v_and_b32", V(U1), 1, V(C_)))
    e(valu("v_lshl_add_u32", V(U2), V(U1), 4, V(U2)))
    e(valu("v_add_u32", V(U2), RING0, V(U2)))
    e(valu("v_lshrrev_b32", V(CH), 1, V(C_)))
    for ds in range(4):
        e(valu("v_add_u32", V(U1), 2*ds, V(CH)))
        e(valu("v_xor_b32", V(U1), V(U1), V(ROW8)))
        e(valu("v_lshl_add_u32", V(ADDRW + ds), V(U1), 5, V(U2)))
    e(valu("v_lshlrev_b32", V(U2), 7, V(ROWB)))
    e(valu("v_lshl_add_u32", V(U2), V(C_), 3, V(U2)))
    e(valu("v_add_u32", V(U2), RING0 + 8192, V(U2)))
    e(valu("v_and_b32", V(CH), 1, V(G_)))
    e(valu("v_lshlrev_b32", V(CH), 1, V(CH)))
    e(valu("v_lshrrev_b32", V(U1), 1, V(RR_)))
    e(valu("v_add_u32", V(CH), V(CH), V(U1)))
    for b in range(4):
        e(valu("v_xor_b32", V(U1), b, V(CH)))
        e(valu("v_lshl_add_u32", V(ADDRE + b), V(U1), 5, V(U2)))
    for ds in range(4):
        e(valu("v_add_u32", V(U1), 4*ds, V(G_)))
        e(valu("v_xor_b32", V(U1), V(U1), V(N_)))
        e(valu("v_lshlrev_b32", V(U1), 4, V(U1)))
        e(valu("v_lshl_add_u32", V(ADDRK + ds), V(N_), 8, V(U1)))
    e(valu("v_lshlrev_b32", V(U2), 8, V(ROWB)))
    e(valu("v_lshl_add_u32", V(U2), V(C_), 3, V(U2)))
    e(valu("v_add_u32", V(U2), VR, V(U2)))
    for db in range(8):
        e(valu("v_xor_b32", V(U1), db, V(ROW8)))
        e(valu("v_lshl_add_u32", V(ADDRV + db), V(U1), 5, V(U2)))
    for i in range(2):
        e(valu("v_add_u32", V(U1), 4*i, V(G_)))
        e(valu("v_lshlrev_b32", V(U1), 1, V(U1)))
        e(valu("v_xor_b32", V(U1), V(U1), V(N_)))
        e(valu("v_lshlrev_b32", V(U1), 4, V(U1)))
        e(valu("v_lshl_add_u32", V(VOFFV + i), V(G_), 8, V(U1)))
    e(salu("s_lshl_b32", S(T3_), S(S_QB), 4)); e(salu("s_lshl_b32", S(T2_), S(S_WAVE), 2)); e(salu("s_add_u32", S(T3_), S(T3_), S(T2_)))
    e(salu("s_mul_i32", S(T0_), S(T3_), 56))
    e(salu("s_lshl_b32", S(T1_), S(S_HEAD), 1))
    e(salu("s_add_u32", S(T0_), S(T0_), S(T1_)))
    e(salu("s_lshl_b32", S(T0_), S(T0_), 10))
    e(salu("s_add_u32", S(T0_), S(T0_), H_OFF))
    s += mksrd(SRD_H, P_WS, T0_, 3*57344 + 2048)
    e(raw(f"s_cmp_lt_u32 s{S_HEAD}, 28", "salu", rd=regs("s", S_HEAD)))
    e(salu("s_cselect_b32", S(SRD_H + 2), S(SRD_H + 2), 0))
    return s

def touches2(part=0):
    s = []; e = s.append
    e(valu("v_lshrrev_b32", V(U1), 3, V(1)))
    e(valu("v_lshlrev_b32", V(U1), 18, V(U1)))
    e(valu("v_bfe_u32", V(U2), V(1), 1, 2))
    e(valu("v_lshl_add_u32", V(U1), V(U2), 13, V(U1)))
    e(valu("v_and_b32", V(U2), 1, V(1)))
    e(valu("v_lshl_add_u32", V(U1), V(U2), 7, V(U1)))
    e(salu("s_lshl_b32", S(S_T + 1), S(S_QB), 15))
    if part == 0:
        e(raw(f"s_cmp_eq_u32 s{S_WAVE}, 2", "salu", rd=regs("s", S_WAVE)))
        e(salu("s_cselect_b32", S(S_T), 8*262144, 0))
    else:
        e(salu("s_mov_b32", S(S_T), 0 if part == 1 else 8*262144))
    e(salu("s_add_u32", S(S_T), S(S_T), S(S_T + 1)))
    for i in range(3): e(salu("s_mov_b32", S(60 + i), S(SRD_W + i)))
    e(salu("s_mov_b32", S(63), "0x00020000"))
    if part == 0:
        e(salu("s_sub_u32", S(S_T + 2), S(S_WAVE), 1))
        e(raw(f"s_cmp_lt_u32 s{S_T+2}, 2", "salu", rd=regs("s", S_T + 2)))
    else:
        e(raw(f"s_cmp_eq_u32 s{S_WAVE}, 2", "salu", rd=regs("s", S_WAVE)))
    e(salu("s_cselect_b32", S(62), S(62), 0))
    e(buf_load(V(PFD), V(U1), S(60, 4), S(S_T), n=1, tag="PF"))
    if part == 0:
        e(valu("v_mov_b32", V(U2), 3584)); e(valu("v_mul_lo_u32", V(U2), V(U2), V(1)))
        e(salu("s_mul_i32", S(S_T), S(S_QB), 64*3584))
    else:
        e(valu("v_and_b32", V(U1), 31, V(1)))
        e(valu("v_mov_b32", V(U2), 3584)); e(valu("v_mul_lo_u32", V(U2), V(U2), V(U1)))
        e(salu("s_mul_i32", S(S_T), S(S_QB), 32*3584))
        if part == 2: e(salu("s_add_u32", S(S_T), S(S_T), 256*3584))
    for i in range(3): e(salu("s_mov_b32", S(60 + i), S(SRD_E + i)))
    e(salu("s_and_b32", S(S_T + 2), S(S_WAVE), 1))
    e(raw(f"s_cmp_eq_u32 s{S_T+2}, 1", "salu", rd=regs("s", S_T + 2)))
    e(salu("s_cselect_b32", S(62), S(62), 0))
    e(buf_load(V(PFD + 1), V(U2), S(60, 4), S(S_T), n=1, tag="PF"))
    return s

def kv_touch():
    s = []; e = s.append
    e(valu("v_and_b32", V(U2), 31, V(1)))
    e(valu("v_lshlrev_b32", V(U2), 7, V(U2)))
    e(salu("s_lshl_b32", S(S_T), S(S_QB), 12))
    e(raw(f"s_cmp_eq_u32 s{S_WAVE}, 3", "salu", rd=regs("s", S_WAVE)))
    for i in range(3): e(salu("s_cselect_b32", S(60 + i), S(SRD_K + i), S(SRD_V + i)))
    e(salu("s_mov_b32", S(63), "0x00020000"))
    e(raw(f"s_cmp_ge_u32 s{S_WAVE}, 2", "salu", rd=regs("s", S_WAVE)))
    e(salu("s_cselect_b32", S(62), S(62), 0))
    e(buf_load(V(PFD + 2), V(U2), S(60, 4), S(S_T), n=1, tag="PF"))
    return s

def touch_prep():
    s = []; e = s.append
    e(valu("v_lshrrev_b32", V(112), 3, V(1)))
    e(valu("v_lshlrev_b32", V(112), 18, V(112)))
    e(valu("v_bfe_u32", V(113), V(1), 1, 2))
    e(valu("v_lshl_add_u32", V(112), V(113), 13, V(112)))
    e(valu("v_and_b32", V(113), 1, V(1)))
    e(valu("v_lshl_add_u32", V(112), V(113), 7, V(112)))
    e(salu("s_lshl_b32", S(36), S(S_QB), 15)); e(salu("s_add_u32", S(36), S(36), 8*262144))
    for i in range(3): e(salu("s_mov_b32", S(84 + i), S(SRD_W + i)))
    e(salu("s_mov_b32", S(87), "0x00020000"))
    e(raw(f"s_cmp_eq_u32 s{S_WAVE}, 2", "salu", rd=regs("s", S_WAVE)))
    e(salu("s_cselect_b32", S(86), S(86), 0))
    e(valu("v_and_b32", V(114), 31, V(1)))
    e(valu("v_mov_b32", V(113), 3584)); e(valu("v_mul_lo_u32", V(113), V(113), V(114)))
    e(salu("s_mul_i32", S(39), S(S_QB), 32*3584)); e(salu("s_add_u32", S(39), S(39), 256*3584))
    if WTOUCH == 3:
        for i in range(3): e(salu("s_mov_b32", S(72 + i), S(SRD_E + i)))
        e(salu("s_mov_b32", S(75), "0x00020000"))
        e(salu("s_and_b32", S(S_T + 2), S(S_WAVE), 1))
        e(raw(f"s_cmp_eq_u32 s{S_T+2}, 1", "salu", rd=regs("s", S_T + 2)))
        e(salu("s_cselect_b32", S(74), S(74), 0))
    e(valu("v_lshlrev_b32", V(114), 7, V(114)))
    e(salu("s_lshl_b32", S(42), S(S_QB), 12))
    e(raw(f"s_cmp_eq_u32 s{S_WAVE}, 3", "salu", rd=regs("s", S_WAVE)))
    for i in range(3): e(salu("s_cselect_b32", S(76 + i), S(SRD_K + i), S(SRD_V + i)))
    e(salu("s_mov_b32", S(79), "0x00020000"))
    e(raw(f"s_cmp_ge_u32 s{S_WAVE}, 2", "salu", rd=regs("s", S_WAVE)))
    e(salu("s_cselect_b32", S(78), S(78), 0))
    return s

def dmaW2(t):
    p1 = salu("s_add_u32", "m0", S(S_W2K), ringslot(t))
    d1 = [buf_dma(V(VOFFW + i), S(SRD_W, 4), S(S_SOFFW), offset=i*1024, tag=("W", t)) for i in range(2)]
    a1 = [salu("s_add_u32", S(S_SOFFW), S(S_SOFFW), 262144)]
    p2 = salu("s_add_u32", "m0", S(S_W2K), ringslot(t) + 8192)
    d2 = [buf_dma(V(VOFFE + i), S(SRD_E, 4), S(S_SOFFE), offset=i*1024, tag=("W", t)) for i in range(2)]
    a2 = [salu("s_add_u32", S(S_SOFFE), S(S_SOFFE), WSTEP_E)]
    return p1, d1, a1, p2, d2, a2
def flatW2(t):
    p1, d1, a1, p2, d2, a2 = dmaW2(t)
    return [p1, nop(0)] + d1 + a1 + [p2, nop(0)] + d2 + a2
def advB2(): return [salu("s_add_u32", S(S_SOFFB), S(S_SOFFB), 1024)]

def rdA2(t, db, rd):
    off = ringslot(t) - rbase(t)
    if db < 8:
        ds, u = db >> 1, db & 1
        return ds_read("ds_read_b64_tr_b16", sub(AFB(db), 2*rd, 2), V(ADDRW + ds), offset=off + rd*4096 + 8*u)
    mat, b = (db - 8) >> 2, (db - 8) & 3
    return ds_read("ds_read_b64_tr_b16", sub(AFB(db), 2*rd, 2), V(ADDRE + b), offset=off + mat*4096 + rd*2048)

def qconv(ds):
    o = []
    for qb in range(4):
        a0, a1 = ACCR(2*ds, qb), ACCR(2*ds + 1, qb)
        for r in range(4):
            o.append(valu("v_mul_f32", sub(a0, r), S(S_T), sub(a0, r))); o.append(valu("v_mul_f32", sub(a1, r), S(S_T), sub(a1, r)))
        o.append(valu("v_cvt_pk_bf16_f32", sub(a1, 3), sub(a1, 2), sub(a1, 3)))
        o.append(valu("v_cvt_pk_bf16_f32", sub(a1, 2), sub(a1, 0), sub(a1, 1)))
        o.append(valu("v_cvt_pk_bf16_f32", sub(a1, 1), sub(a0, 2), sub(a0, 3)))
        o.append(valu("v_cvt_pk_bf16_f32", sub(a1, 0), sub(a0, 0), sub(a0, 1)))
    return o

def fused_phase():
    s = []; e = s.append
    e(wait_vm(("W", 0), ("W", 1), ("W", 2))); e(barrier())
    for db in range(16):
        for rd in range(2): e(rdA2(0, db, rd))
    for t in range(16):
        s += sstamp("A", t)
        F = Fill(64)
        def addW(k, gi, sp):
            p1, d1, a1, p2, d2, a2 = dmaW2(k)
            F.add(gi - 1, p1); F.add(gi, d1[0]); F.add(gi + sp, d1[1]); F.add(gi + sp + 1, a1)
            F.add(gi + 2*sp - 1, p2); F.add(gi + 2*sp, d2[0]); F.add(gi + 3*sp, d2[1]); F.add(gi + 3*sp + 1, a2)
        if t >= 2 and t % 2 == 0:
            if t in (6, 8): s += cstamp("B")
            e(wait_vm(("W", t + 1), ("W", t + 2) if t + 2 < 16 else ("W", t + 1)))
            e(barrier())
        if t == 0:
            g = 0
            for k in (1, 2, 3):
                for x in loadB(k): F.add(g, x); g += 2
                F.add(g - 1, advB2())
            addW(4, 26, 4); addW(5, 44, 4)
        elif t == 1:
            addW(6, 6, 4); addW(7, 24, 4)
            if KVT == 1: F.add(42, buf_load(V(PFD + 2), V(114), S(76, 4), S(42), n=1, tag="PF"))
            if WTOUCH == 3:
                F.add(46, buf_load(V(PFD), V(112), S(84, 4), S(36), n=1, tag="PF"))
                F.add(50, buf_load(V(PFD + 1), V(113), S(72, 4), S(39), n=1, tag="PF"))

        elif t + 6 < 16: addW(t + 6, 6, 6)
        kv = ({4: dmaK(0), 5: dmaK(1), 12: dmaV(0), 13: dmaV(1)} if KVLATE else {4: dmaK(0), 5: dmaK(1), 10: dmaK(2), 11: dmaK(3), 12: dmaV(0), 13: dmaV(1), 14: dmaV(2)}).get(t)
        if kv:
            pre, d, adv = kv
            F.add(29, pre)
            for k, x in enumerate(d): F.add(30 + 6*k, x)
            F.add(49, adv)
        if t + 1 < 16 and rbase(t + 1) != rbase(t):
            d = rbase(t + 1) - rbase(t)
            for i in range(4):
                F.add(4, valu("v_add_u32", V(ADDRW + i), d & 0xffffffff, V(ADDRW + i)))
                F.add(4, valu("v_add_u32", V(ADDRE + i), d & 0xffffffff, V(ADDRE + i)))
        if t >= 1:
            F.add(1, rdA2(t, 15, 0)); F.add(3, rdA2(t, 15, 1))
        if t + 1 < 16:
            for db in range(15):
                F.add(4*db + 5, rdA2(t + 1, db, 0)); F.add(4*db + 7, rdA2(t + 1, db, 1))
        if t == 14 and CONV2: F.add(40, salu("s_mov_b32", S(S_T), f2h(QSCALE)))
        if t == 15 and CONV2:
            q = qconv(0) + qconv(1)
            g = 10
            kgaps = {33 + 4*f if 33 + 4*f < 64 else 63 for f in range(8)}
            while q:
                for _ in range(1 if g in kgaps else 2):
                    if q: F.add(g, q.pop(0))
                g += 1
            assert g <= 64, g
            for f in range(8):
                kb, ds = f >> 2, f & 3
                F.add(33 + 4*f if 33 + 4*f < 64 else 63, ds_read("ds_read_b128", KF(f), V(ADDRK + ds), offset=kb*4096))
        if t >= 1 and t + 3 < 16:
            for qb, x in enumerate(loadB(t + 3)): F.add(52 + 4*qb - (2 if qb == 3 else 0), x)
            F.add(63, advB2())
        for db in range(16):
            if t == 6 and db in (4, 8, 12): s += cstamp("B")
            if t == 7 and db == 0: s += cstamp("B")
            for qb in range(4):
                g = 4*db + qb
                acc = ACCQ(db, qb) if db < 8 else ACCE(db - 8, qb)
                e(mfma16(acc, AFB(db), BF(t, qb), 0 if t == 0 else acc))
                s += F.emit(g)
    return s

def h_epilogue2():
    s = []; e = s.append
    for qb in range(4): e(salu("s_mov_b32", S(S_T + qb), qb*57344))
    k = 0
    for qb in range(4):
        for tp in range(2):
            t = SREG + 16*(k % 2); pk = PREG + 4*(k % 8)
            for u in range(2):
                b = 2*tp + u
                for r in range(4):
                    e(valu("v_accvgpr_read_b32", V(t + 8*u + r), sub(ACCE(b, qb), r)))
                    e(valu("v_accvgpr_read_b32", V(t + 8*u + 4 + r), sub(ACCE(4 + b, qb), r)))
            for u in range(2):
                for r in range(4): e(valu("v_max_f32", V(t + 8*u + r), 0, V(t + 8*u + r)))
            for u in range(2):
                for r in range(4): e(valu("v_mul_f32", V(t + 8*u + r), V(t + 8*u + r), V(t + 8*u + 4 + r)))
            for u in range(2):
                for hh in range(2): e(valu("v_cvt_pk_bf16_f32", V(pk + 2*u + hh), V(t + 8*u + 2*hh), V(t + 8*u + 2*hh + 1)))
            e(buf_store(V(pk, 4), V(VLANE16), S(SRD_H, 4), S(S_T + qb), offset=tp*1024, tag="H", flags="sc1"))
            for u in range(2):
                b = 2*tp + u
                for r in range(4):
                    e(valu("v_accvgpr_write_b32", sub(ACCE(b, qb), r), 0)); e(valu("v_accvgpr_write_b32", sub(ACCE(4 + b, qb), r), 0))
            k += 1
    return s


def h_unit(k):
    qb, tp = k >> 1, k & 1
    t = PREG + 16*(k % 2); pk = NEGM_T + 4*(k % 2)
    o = []
    for u in range(2):
        b = 2*tp + u
        for r in range(4):
            o.append(valu("v_accvgpr_read_b32", V(t + 8*u + r), sub(ACCE(b, qb), r)))
            o.append(valu("v_accvgpr_read_b32", V(t + 8*u + 4 + r), sub(ACCE(4 + b, qb), r)))
    for u in range(2):
        for r in range(4): o.append(valu("v_max_f32", V(t + 8*u + r), 0, V(t + 8*u + r)))
    for u in range(2):
        for r in range(4): o.append(valu("v_mul_f32", V(t + 8*u + r), V(t + 8*u + r), V(t + 8*u + 4 + r)))
    for u in range(2):
        for hh in range(2): o.append(valu("v_cvt_pk_bf16_f32", V(pk + 2*u + hh), V(t + 8*u + 2*hh), V(t + 8*u + 2*hh + 1)))
    o.append(buf_store(V(pk, 4), V(VLANE16), S(SRD_H, 4), S(S_T + qb), offset=tp*1024, tag="H", flags="sc1"))
    return o
NEGM_T = 104

def conv_phase():
    s = []; e = s.append
    for i in range(16): e(valu("v_mov_b32", V(LREG + i), 0))
    for i in range(4): e(valu("v_mov_b32", V(ONES + i), "0x3f803f80"))
    if k1.SUMMODE:
        for i in range(4): e(valu("v_mov_b32", V(168 + i), 0))
    q2, q3 = qconv(2), qconv(3)
    for ds in range(4):
        for kb in range(2):
            for qb in range(4):
                e(mfma16(SR(kb, qb), KF(4*kb + ds), QF(qb, ds), 0 if ds == 0 else SR(kb, qb)))
                src = q2 if ds < 2 and q2 else (q3 if ds < 3 else [])
                n = 3 if ds < 2 else 6
                for _ in range(n):
                    if src: s.append(src.pop(0))
        if ds == 1: assert not q2
        if ds == 2:
            assert not q3
            e(nop(1))
    for qb in range(4): e(salu("s_mov_b32", S(S_T + qb), qb*57344))
    hu = [h_unit(k) for k in range(8)]
    s += hu[0] + hu[1]
    M = TMP
    mx = []
    for qb in range(4):
        mx.append(valu("v_max3_f32", V(M + qb), SR(0, qb, 0), SR(0, qb, 1), SR(0, qb, 2)))
        mx.append(valu("v_max3_f32", V(M + qb), V(M + qb), SR(0, qb, 3), SR(1, qb, 0)))
        mx.append(valu("v_max3_f32", V(M + qb), V(M + qb), SR(1, qb, 1), SR(1, qb, 2)))
        mx.append(valu("v_max_f32", V(M + qb), V(M + qb), SR(1, qb, 3)))
    s += mx
    rest = sum(hu[2:], [])
    for swp in ("v_permlane16_swap_b32", "v_permlane32_swap_b32"):
        for qb in range(4): e(valu("v_mov_b32", V(M + 4 + qb), V(M + qb)))
        s += [rest.pop(0), rest.pop(0)]
        for qb in range(4): e(valu(swp, V(M + 4 + qb), V(M + qb), dst_is_src=True, wr_extra=regs("v", M + qb)))
        s += [rest.pop(0), rest.pop(0)]
        for qb in range(4): e(valu("v_max_f32", V(M + qb), V(M + qb), V(M + 4 + qb)))
    for qb in range(4): e(valu("v_sub_f32", V(M + qb), f2h(-DOFF), V(M + qb)))
    s += rest
    for qb in range(4):
        for r in range(4): e(valu("v_mov_b32", V(NEGM + 4*qb + r), V(M + qb)))
    return s

def window_m1():
    w = window(-1, 0, last_qk=True, do_pv=False, do_kread=True, exp_tail=False)
    out = []; k = 0; nm = 0
    for x in w:
        if x.kind == "mfma": nm += 1
        if x.kind == "nop" and x.text == "s_nop 0" and nm >= 32 and k < 32:
            z = V(LREG + 4 + 0, 4) if False else (V(168, 4) if k1.SUMMODE else V(LREG, 4))
            out.append(mfma16(A(4*k, 4), z, z, 0)); k += 1
        else: out.append(x)
    assert k == 32
    return out


CPV = 172
def pk_load():
    s = []; e = s.append
    e(salu("s_lshl_b32", S(T0_), S(2), 2)); e(salu("s_add_u32", S(T0_), S(T0_), S(S_WAVE)))
    e(raw(f"s_cmp_lt_u32 s{T0_}, 512", "salu", rd=regs("s", T0_)))
    e(salu("s_cselect_b32", S(72), S(P_WO), S(P_WD))); e(salu("s_cselect_b32", S(73), S(P_WO + 1), S(P_WD + 1)))
    e(salu("s_mov_b32", S(74), 1792*1024)); e(salu("s_cselect_b32", S(74), 4096*1024, S(74)))
    e(salu("s_mov_b32", S(75), "0x00020000"))
    e(salu("s_and_b32", S(T1_), S(T0_), 511))
    e(salu("s_lshl_b32", S(T1_), S(T1_), 13)); e(salu("s_add_u32", S(T1_), S(T1_), 384))
    e(valu("v_lshrrev_b32", V(CPV), 3, V(1))); e(valu("v_lshlrev_b32", V(CPV), 10, V(CPV)))
    e(valu("v_and_b32", V(CPV + 1), 7, V(1))); e(valu("v_lshl_add_u32", V(CPV), V(CPV + 1), 4, V(CPV)))
    e(valu("v_mov_b32", V(171), V(CPV)))
    e(buf_load(V(CPV, 4), V(171), S(72, 4), S(T1_), tag="CPL"))
    return s
def pk_store():
    s = []; e = s.append
    e(salu("s_lshl_b32", S(T0_), S(2), 2)); e(salu("s_add_u32", S(T0_), S(T0_), S(S_WAVE)))
    e(salu("s_add_u32", S(72), S(P_WS), PK_OFF)); e(salu("s_addc_u32", S(73), S(P_WS + 1), 0))
    e(salu("s_mov_b32", S(74), 736*1024))
    e(salu("s_mov_b32", S(75), "0x00020000"))
    e(salu("s_lshl_b32", S(T1_), S(T0_), 10))
    e(buf_store(V(CPV, 4), V(VLANE16), S(72, 4), S(T1_), tag="CP", flags="sc1"))
    return s
def pk_flag_setup(vaddr, vval):
    s = []; e = s.append
    e(salu("s_lshl_b32", S(T0_), S(2), 2)); e(salu("s_add_u32", S(T0_), S(T0_), 14336))
    e(valu("v_lshlrev_b32", V(vval), 14, V(0))); e(valu("v_add_u32", V(vaddr), S(T0_), V(vval)))
    e(valu("v_mov_b32", V(vval), S(S_EPC)))
    return s
def pk_flag_load():
    return buf_load(V(168, 4), V(VLANE16), S(SRD_SY, 4), S(75), tag="PKL", flags="sc1")
def pk_check(name):
    s = []; e = s.append
    L = f"{name}_pk"
    def cmp(kind):
        o = []
        for i in range(4): o.append(raw(f"v_xor_b32 v{168+i}, s{S_EPC}, v{168+i}", kind, rd=regs("v", 168 + i) if kind == "valu" else (), wr=regs("v", 168 + i) if kind == "valu" else ()))
        o.append(raw("v_or3_b32 v168, v168, v169, v170", "other")); o.append(raw("v_or_b32 v168, v168, v171", "other"))
        o.append(raw("v_cmp_ne_u32 vcc, 0, v168", "other")); o.append(raw("s_nop 4", "other"))
        return o
    e(salu("s_and_b32", S(T0_), S(S_HEAD), 0x19)); e(raw(f"s_cmp_eq_u32 s{T0_}, 0x18", "salu", rd=regs("s", T0_)))
    e(raw(f"s_cbranch_scc0 {L}_ok", "branch"))
    s += cmp("valu")
    e(raw(f"s_cbranch_vccz {L}_done", "branch"))
    e(salu("s_mov_b32", S(T2_), SPIN_MAX))
    e(label(f"{L}_poll"))
    e(raw(f"buffer_load_dwordx4 v[168:171], v{VLANE16}, s[{SRD_SY}:{SRD_SY+3}], s75 offen sc1", "other"))
    e(raw("s_waitcnt vmcnt(0)", "other"))
    s += cmp("other")
    e(raw(f"s_cbranch_vccz {L}_done", "branch"))
    e(raw(f"s_sub_u32 s{T2_}, s{T2_}, 1", "other")); e(raw(f"s_cbranch_scc1 {L}_done", "branch"))
    e(raw("s_sleep 1", "other")); e(raw(f"s_branch {L}_poll", "branch"))
    e(label(f"{L}_done"))
    e(raw("s_cmp_lg_u32 s2, 24", "other")); e(raw(f"s_cbranch_scc1 {L}_ok", "branch"))
    e(raw(f"s_cmp_lg_u32 s{S_WAVE}, 0", "other")); e(raw(f"s_cbranch_scc1 {L}_ok", "branch"))
    e(raw(f"v_mov_b32 v168, s{S_EPC}", "other")); e(raw("v_lshlrev_b32 v169, 20, v1", "other"))
    e(raw(f"buffer_store_dword v168, v169, s[{SRD_SY}:{SRD_SY+3}], 0 offen offset:1024 sc1", "other"))
    e(label(f"{L}_ok"))
    return s

NT_O, NT_H, NSLOT = 32, 14, 8

FA, FA2, FVW = 20, 164, 24
FAF = 112
F_SRDW, F_SRDH = 16, 20
F_SW, F_SB = 41, (36, 37, 39, 42)
F_LW = 38
F_RS, F_STEP = 28, 29
HFV, HFA = 28, 29
def FACC(nb, qb): return A(128 + 16*nb + 4*qb, 4)
def FBF(i, qb): return V((192 if i % 2 == 0 else 224) + 4*qb, 4)
def FAFR(nb): return V(FAF + 4*nb, 4)
def fslot(i): return (XR, XR + 16384, 0)[i % 3]
def f_rd(i, nb, rd):
    b = fslot(i)
    if b >= XR: return ds_read("ds_read_b64_tr_b16", sub(FAFR(nb), 2*rd, 2), V(FA + nb), offset=b - XR + rd*2048)
    return ds_read("ds_read_b64_tr_b16", sub(FAFR(nb), 2*rd, 2), V(FA2 + nb), offset=b + rd*2048)
def f_ldW(i):
    pre = salu("s_add_u32", "m0", S(F_LW), fslot(i))
    d = [buf_dma(V(FVW + k), S(F_SRDW, 4), S(F_SW), offset=k*1024, tag=("FW", i)) for k in range(4)]
    return pre, d, salu("s_add_u32", S(F_SW), S(F_SW), S(F_STEP) if PK3 == 2 else 32768)
def f_ldB(i):
    return [(buf_load(FBF(i, qb), V(VLANE16), S(F_SRDH, 4), S(F_SB[qb]), tag=("FB", i), flags="sc1"), salu("s_add_u32", S(F_SB[qb]), S(F_SB[qb]), 1024)) for qb in range(4)]

def f_setup():
    s = []; e = s.append
    RB, CB = T2_, T3_
    e(salu("s_and_b32", S(T0_), S(S_HEAD), 7)); e(salu("s_lshr_b32", S(T1_), S(S_HEAD), 3))
    e(salu("s_lshr_b32", S(RB), S(T0_), 1)); e(salu("s_lshl_b32", S(S_T), S(S_QB), 2)); e(salu("s_add_u32", S(RB), S(RB), S(S_T)))
    if CBX: e(salu("s_xor_b32", S(T1_), S(T1_), CBX))
    e(salu("s_and_b32", S(T0_), S(T0_), 1))
    if CBM == 0: e(salu("s_lshl_b32", S(T0_), S(T0_), 2))
    else: e(salu("s_lshl_b32", S(T1_), S(T1_), 1))
    e(salu("s_add_u32", S(CB), S(T0_), S(T1_)))
    e(salu("s_mul_i32", S(T0_), S(RB), 224)); e(salu("s_mul_i32", S(T1_), S(S_WAVE), 14)); e(salu("s_add_u32", S(T0_), S(T0_), S(T1_)))
    e(salu("s_lshl_b32", S(T0_), S(T0_), 10)); e(salu("s_add_u32", S(T0_), S(T0_), H_OFF))
    s += mksrd(F_SRDH, P_WS, T0_, 3*57344 + 14*1024)
    e(salu("s_lshl_b32", S(T1_), S(CB), 6 if COLSPLIT else 7)); e(salu("s_mul_i32", S(T0_), S(S_WAVE), 448*1024)); e(salu("s_add_u32", S(T0_), S(T0_), S(T1_)))
    e(salu("s_sub_u32", S(T1_), 1792*1024, S(T0_)))
    s += mksrd(F_SRDW, P_WD, T0_, S(T1_))
    if PK3 == 2:
        e(salu("s_mul_i32", S(T0_), S(S_WAVE), 448*128)); e(salu("s_add_u32", S(T0_), S(T0_), PK_OFF + 524288))
        e(salu("s_add_u32", S(T0_), S(T0_), S(P_WS))); e(salu("s_addc_u32", S(T1_), S(P_WS + 1), 0))
        e(raw(f"s_cmp_eq_u32 s{CB}, 3", "salu", rd=regs("s", CB)))
        e(salu("s_cselect_b32", S(F_SRDW), S(T0_), S(F_SRDW))); e(salu("s_cselect_b32", S(F_SRDW + 1), S(T1_), S(F_SRDW + 1)))
        e(salu("s_cselect_b32", S(F_SRDW + 2), 448*128, S(F_SRDW + 2)))
        e(salu("s_mov_b32", S(F_RS), 1024)); e(salu("s_cselect_b32", S(F_RS), 128, S(F_RS)))
        e(salu("s_lshl_b32", S(F_STEP), S(F_RS), 5))
    e(salu("s_mov_b32", S(F_SW), 0))
    for qb in range(4): e(salu("s_mov_b32", S(F_SB[qb]), qb*57344))
    e(salu("s_lshl_b32", S(F_LW), S(S_WAVE), 12))
    G, RR, C, T1, T2, X = 168, 169, 170, 171, 172, 173
    e(valu("v_lshrrev_b32", V(G), 4, V(1))); e(valu("v_bfe_u32", V(RR), V(1), 2, 2)); e(valu("v_and_b32", V(C), 3, V(1)))
    e(valu("v_lshl_add_u32", V(T2), V(G), 2, V(RR))); e(valu("v_lshlrev_b32", V(T2), 7, V(T2)))
    e(valu("v_lshl_add_u32", V(T2), V(C), 3, V(T2))); e(valu("v_add_u32", V(T2), S(F_LW), V(T2)))
    e(valu("v_and_b32", V(X), 1, V(G))); e(valu("v_lshlrev_b32", V(X), 1, V(X))); e(valu("v_lshrrev_b32", V(T1), 1, V(RR))); e(valu("v_add_u32", V(X), V(X), V(T1)))
    for b in range(4):
        e(valu("v_xor_b32", V(T1), b, V(X))); e(valu("v_lshl_add_u32", V(FA2 + b), V(T1), 5, V(T2)))
        e(valu("v_add_u32", V(FA + b), XR, V(FA2 + b)))
    e(valu("v_lshrrev_b32", V(T1), 3, V(1)))
    if PK3 == 2: e(valu("v_mul_lo_u32", V(T2), V(T1), S(F_RS)))
    else: e(valu("v_lshlrev_b32", V(T2), 10, V(T1)))
    e(valu("v_lshlrev_b32", V(X), 1, V(G))); e(valu("v_and_b32", V(T1), 7, V(1))); e(valu("v_xor_b32", V(T1), V(T1), V(X)))
    if COLSPLIT:
        e(valu("v_lshrrev_b32", V(X), 2, V(T1))); e(valu("v_lshl_add_u32", V(T2), V(X), 9, V(T2))); e(valu("v_and_b32", V(T1), 3, V(T1)))
    e(valu("v_lshl_add_u32", V(FVW), V(T1), 4, V(T2)))
    if PK3 == 2:
        e(salu("s_lshl_b32", S(T0_), S(F_RS), 3)); e(salu("s_sub_u32", S(T0_), S(T0_), 1024))
        e(valu("v_add_u32", V(FVW + 1), S(T0_), V(FVW))); e(valu("v_add_u32", V(FVW + 2), S(T0_), V(FVW + 1))); e(valu("v_add_u32", V(FVW + 3), S(T0_), V(FVW + 2)))
    else:
        for i in range(1, 4): e(valu("v_add_u32", V(FVW + i), i*7168, V(FVW)))
    e(valu("v_and_b32", V(HFA), 31, V(1))); e(valu("v_lshlrev_b32", V(HFA), 2, V(HFA)))
    e(salu("s_lshl_b32", S(T0_), S(S_QB), 7)); e(salu("s_add_u32", S(T0_), S(T0_), 4096*3))
    e(valu("v_add_u32", V(HFA), S(T0_), V(HFA)))
    return s

def h_flag_load():
    return buf_load(V(HFV), V(HFA), S(SRD_SY, 4), 0, n=1, tag="HFL", flags="sc1")

def h_flag_check(name):
    s = []; e = s.append
    L = f"{name}_hc"
    e(raw(f"v_cmp_ne_u32_e64 vcc, s{S_EPOCH}, v{HFV}", "valu", rd=regs("v", HFV) + regs("s", S_EPOCH), wr=[("s", "vcc")]))
    e(raw("s_nop 4", "other"))
    e(raw(f"s_cbranch_vccz {L}_ok", "branch"))
    e(salu("s_mov_b32", S(T2_), SPIN_MAX))
    e(label(f"{L}_poll"))
    e(raw(f"buffer_load_dword v{HFV}, v{HFA}, s[{SRD_SY}:{SRD_SY+3}], 0 offen sc1", "other"))
    e(raw("s_waitcnt vmcnt(0)", "other"))
    e(raw(f"v_cmp_ne_u32_e64 vcc, s{S_EPOCH}, v{HFV}", "other")); e(raw("s_nop 4", "other"))
    e(raw(f"s_cbranch_vccz {L}_ok", "branch"))
    e(raw(f"s_sub_u32 s{T2_}, s{T2_}, 1", "other")); e(raw(f"s_cbranch_scc1 {L}_ok", "branch"))
    e(raw("s_sleep 1", "other")); e(raw(f"s_branch {L}_poll", "branch"))
    e(label(f"{L}_ok"))
    return s

def f_block(i):
    s = []; e = s.append
    s += sstamp('T', i)
    F = Fill(16)
    N = NT_H
    F.add(0, f_rd(i, 3, 0)); F.add(1, f_rd(i, 3, 1))
    if FEXP & 4: return s
    if i + 1 < N:
        if not (FEXP & 2) or i + 1 < 3: F.add(3, wait_vm(("FW", i + 1)))
        for nb in range(3):
            F.add(4*nb + 4, f_rd(i + 1, nb, 0)); F.add(4*nb + 5, f_rd(i + 1, nb, 1))
    if not FVMOUT:
        if i + 3 < N:
            pre, d, adv = f_ldW(i + 3)
            F.add(1, pre); F.add(2, d[0]); F.add(3, d[1]); F.add(6, d[2]); F.add(7, d[3]); F.add(8, adv)
        if i + 2 < N:
            for qb, (ld, adv) in enumerate(f_ldB(i + 2)):
                F.add(12 + qb, ld)
    for nb in range(4):
        for qb in range(4):
            g = 4*nb + qb
            e(mfma16(FACC(nb, qb), FAFR(nb), FBF(i, qb), 0 if i == 0 else FACC(nb, qb)))
            s += F.emit(g)
    if i + 2 < N and not FVMOUT:
        for qb, (ld, adv) in enumerate(f_ldB(i + 2)): e(adv)
    if i in (4, 5): s += sstamp('T', 14 + (i - 4))
    return s

def tail_F(name):
    s = []; e = s.append
    e(salu("s_mov_b32", S(S_FBD), 0))
    s += h_flag_check(name)
    if PK3 == 2: s += pk_check(name)
    for i in range(2):
        pre, d, adv = f_ldW(i); s += [pre, nop(0)] + d + [adv]
        for ld, adv in f_ldB(i): s += [ld, adv]
    def fvm(i, half):
        if not FVMOUT: return []
        gaps = [35, 39, 43, 47, 51, 55, 59, 63] if half == "pv" else [3, 7, 11, 15, 17, 19, 23, 27]
        if FVMOUT == 2: gaps = [33, 35, 37, 39, 43, 47, 51, 55] if half == "pv" else [1, 3, 5, 7, 11, 15, 17, 19]
        x = []
        if i + 2 < NT_H and not (FEXP & 1):
            for qb, (ld, adv) in enumerate(f_ldB(i + 2)):
                x.append((gaps[qb], ld)); x.append((gaps[qb] + 1, adv))
        if i + 3 < NT_H and not (FEXP & 2):
            pre, d, adv = f_ldW(i + 3)
            x.append((gaps[4] - 1, pre))
            for k in range(4): x.append((gaps[4 + k], d[k]))
            x.append((gaps[7] + 1, adv))
        return x
    blk = 0
    pend = []
    for T in range(28, 32):
        d0, d1 = tile_dma(T, doK=False, doV=False)
        x0 = list(pend); pend = []
        if T == 28:
            pre, d, adv = dmaV(3)
            x0 += [(34, pre)] + [(35 + 4*k, x) for k, x in enumerate(d)] + [(48, adv)]
            pre, d, adv = f_ldW(2)
            x0 += [(50, pre)] + [(51 + 4*k, x) for k, x in enumerate(d)] + [(66, adv)]
            x0.append((40, wait_vm(("FW", 0))))
            for nb in range(3):
                x0 += [(41 + 8*nb, f_rd(0, nb, 0)), (41 + 8*nb, f_rd(0, nb, 1))]
        j = 2*T
        mid = None
        if T > 28:
            mid = f_block(blk); x0 += fvm(blk, "pv"); blk += 1
        s += window(j, T, dma=d0, bar=(T < 31), do_kread=(j + 2 <= 63), extra=x0, mid=mid)
        s += f_block(blk); x1 = fvm(blk, "qk"); blk += 1
        j = 2*T + 1
        mid = f_block(blk); x1 += fvm(blk, "pv"); blk += 1
        s += window(j, T, dma=d1, last_qk=(j + 1 <= 63), do_kread=(j + 2 <= 63), mid=mid, extra=x1)
        if blk < NT_H:
            s += f_block(blk); pend = fvm(blk, "qk"); blk += 1
    assert blk == NT_H, blk
    return s

def final2(name):
    ADDRA, VOFW, VOFB, VB = 2, 6, 10, 12
    ACCS, ACCF = 128, 192
    NT = NT_O + NT_H
    def part(t): return 1 if t < NT_H else 0
    def tl(t): return t if t < NT_H else t - NT_H
    def ACC(p, nb, qb): return V((ACCS if p == 0 else ACCF) + 16*nb + 4*qb, 4)
    def AF(t, nb): return V(64 + 16*(t & 1) + 4*nb, 4)
    def BFf(t, qb): return A(128 + 16*(t % NSLOT) + 4*qb, 4)
    SRD_A0, SRD_A1, SRD_W0, SRD_W1 = 8, 12, 16, 20
    SRD_O2 = 24
    S_RB, S_CB, S_LDSW, S_SA, S_SW = 32, 33, 34, 35, 36
    pre = []; e = pre.append
    e(salu("s_lshl_b32", S(T3_), S(S_QB), 4)); e(salu("s_lshl_b32", S(T2_), S(S_WAVE), 2)); e(salu("s_add_u32", S(T3_), S(T3_), S(T2_)))
    e(salu("s_lshl_b32", S(T0_), S(T3_), 7)); e(salu("s_lshl_b32", S(T1_), S(S_HEAD), 2)); e(salu("s_add_u32", S(T0_), S(T0_), S(T1_)))
    e(salu("s_lshl_b32", S(T0_), S(T0_), 10)); e(salu("s_add_u32", S(T0_), S(T0_), O_OFF))
    pre += mksrd(SRD_O, P_WS, T0_, 3*131072 + 4096)
    e(salu("s_and_b32", S(T0_), S(S_HEAD), 7)); e(salu("s_lshr_b32", S(T1_), S(S_HEAD), 3))
    e(salu("s_lshr_b32", S(T2_), S(T0_), 1)); e(salu("s_lshl_b32", S(S_RB), S(S_QB), 2)); e(salu("s_add_u32", S(S_RB), S(S_RB), S(T2_)))
    if CBX: e(salu("s_xor_b32", S(T1_), S(T1_), CBX))
    e(salu("s_and_b32", S(T0_), S(T0_), 1))
    if CBM == 0: e(salu("s_lshl_b32", S(T0_), S(T0_), 2))
    else: e(salu("s_lshl_b32", S(T1_), S(T1_), 1))
    e(salu("s_add_u32", S(S_CB), S(T0_), S(T1_)))
    e(salu("s_lshl_b32", S(T0_), S(S_RB), 9)); e(salu("s_lshl_b32", S(T1_), S(S_WAVE), 5)); e(salu("s_add_u32", S(T0_), S(T0_), S(T1_)))
    e(salu("s_lshl_b32", S(T0_), S(T0_), 10)); e(salu("s_add_u32", S(T0_), S(T0_), O_OFF))
    pre += mksrd(SRD_A0, P_WS, T0_, 3*131072 + 32*1024)
    e(salu("s_mul_i32", S(T0_), S(S_RB), 224)); e(salu("s_mul_i32", S(T1_), S(S_WAVE), 14)); e(salu("s_add_u32", S(T0_), S(T0_), S(T1_)))
    e(salu("s_lshl_b32", S(T0_), S(T0_), 10)); e(salu("s_add_u32", S(T0_), S(T0_), H_OFF))
    pre += mksrd(SRD_A1, P_WS, T0_, 3*57344 + 14*1024)
    e(salu("s_lshl_b32", S(T0_), S(S_WAVE), 20)); e(salu("s_lshl_b32", S(T1_), S(S_CB), 7)); e(salu("s_add_u32", S(T0_), S(T0_), S(T1_)))
    e(salu("s_sub_u32", S(T2_), 4096*1024, S(T0_)))
    pre += mksrd(SRD_W0, P_WO, T0_, S(T2_))
    e(salu("s_mul_i32", S(T0_), S(S_WAVE), 448*1024)); e(salu("s_add_u32", S(T0_), S(T0_), S(T1_)))
    e(salu("s_sub_u32", S(T2_), 1792*1024, S(T0_)))
    pre += mksrd(SRD_W1, P_WD, T0_, S(T2_))
    e(salu("s_lshl_b32", S(S_LDSW), S(S_WAVE), 15))
    G, RR, C, T1, T2, X = 20, 21, 22, 23, 24, 25
    e(valu("v_lshrrev_b32", V(G), 4, V(1))); e(valu("v_bfe_u32", V(RR), V(1), 2, 2)); e(valu("v_and_b32", V(C), 3, V(1)))
    e(valu("v_lshl_add_u32", V(T2), V(G), 2, V(RR))); e(valu("v_lshlrev_b32", V(T2), 7, V(T2)))
    e(valu("v_lshl_add_u32", V(T2), V(C), 3, V(T2))); e(valu("v_add_u32", V(T2), S(S_LDSW), V(T2)))
    e(valu("v_and_b32", V(X), 1, V(G))); e(valu("v_lshlrev_b32", V(X), 1, V(X))); e(valu("v_lshrrev_b32", V(T1), 1, V(RR))); e(valu("v_add_u32", V(X), V(X), V(T1)))
    for b in range(4):
        e(valu("v_xor_b32", V(T1), b, V(X))); e(valu("v_lshl_add_u32", V(ADDRA + b), V(T1), 5, V(T2)))
    e(valu("v_lshrrev_b32", V(T1), 3, V(1))); e(valu("v_lshlrev_b32", V(T2), 10, V(T1)))
    e(valu("v_lshlrev_b32", V(X), 1, V(G))); e(valu("v_and_b32", V(T1), 7, V(1))); e(valu("v_xor_b32", V(T1), V(T1), V(X)))
    e(valu("v_lshl_add_u32", V(VOFW), V(T1), 4, V(T2)))
    for i in range(1, 4): e(valu("v_add_u32", V(VOFW + i), i*7168, V(VOFW)))
    e(valu("v_lshlrev_b32", V(VOFB), 4, V(1)))
    for qb in range(4):
        e(valu("v_add_u32", V(VB + qb), qb*131072, V(VOFB))); e(valu("v_add_u32", V(VB + 4 + qb), qb*57344, V(VOFB)))
    e(salu("s_mov_b32", S(S_SA), 0)); e(salu("s_mov_b32", S(S_SW), 0))
    D = FD
    def ldW(t):
        p = part(t); o = []
        if t == NT_H: o.append(salu("s_mov_b32", S(S_SW), 0))
        o.append(salu("s_add_u32", "m0", S(S_LDSW), (t % NSLOT)*4096))
        d = [buf_dma(V(VOFW + i), S(SRD_W0 if p == 0 else SRD_W1, 4), S(S_SW), offset=i*1024, tag=("FW", t)) for i in range(4)]
        return o, d, [salu("s_add_u32", S(S_SW), S(S_SW), 32768)]
    def ldB(t):
        p = part(t); o = []
        if t == NT_H: o.append(salu("s_mov_b32", S(S_SA), 0))
        d = [buf_load(BFf(t, qb), V(VB + 4*p + qb), S(SRD_A0 if p == 0 else SRD_A1, 4), S(S_SA), tag=("FB", t), flags="sc1") for qb in range(4)]
        return o, d, [salu("s_add_u32", S(S_SA), S(S_SA), 1024)]
    def rdA(t, nb, rd):
        return ds_read("ds_read_b64_tr_b16", sub(AF(t, nb), 2*rd, 2), V(ADDRA + nb), offset=(t % NSLOT)*4096 + rd*2048)
    def o_unit2(k):
        qb, dp = k >> 2, k & 3
        t = 32 + 8*(k % 2); pk = 48 + 4*(k % 4)
        o = []
        for u in range(2):
            for r in range(4): o.append(valu("v_accvgpr_read_b32", V(t + 4*u + r), sub(OACC(2*dp + u, qb), r)))
        for i in range(8): o.append(valu("v_mul_f32", V(t + i), V(t + i), V(RI + qb)))
        for i in range(4): o.append(valu("v_cvt_pk_bf16_f32", V(pk + i), V(t + 2*i), V(t + 2*i + 1)))
        o.append(buf_store(V(pk, 4), V(VLANE16), S(SRD_O, 4), S(S_T + qb), offset=dp*1024, tag="O", flags="sc1"))
        return o
    def wnext(t):
        if t < NT_H:
            return t + D if t + D < NT_H + D else None
        tw = t + 7 if WPRE else t + D
        return tw if tw < NT else None
    def steps(s, t0, t1, units):
        e = s.append
        for t in range(t0, t1):
            p = part(t)
            if t < 15: s += sstamp("F", t + 1)
            if NT_H <= t < NT_H + 16: s += sstamp("G", t - NT_H)
            F = Fill(16); post = []
            if t + 1 < NT:
                F.add(0, wait_vm(("FW", t + 1)))
                for nb in range(4):
                    F.add(1 + 4*nb, rdA(t + 1, nb, 0)); F.add(3 + 4*nb, rdA(t + 1, nb, 1))
            tw = wnext(t)
            if tw is not None:
                o, d, pp = ldW(tw)
                F.add(0, o)
                for k, x in enumerate(d): F.add(2 + 2*k, x)
                F.add(9, pp)
            if t + D < NT and not (t < NT_H and t + D >= NT_H):
                o, d, pp = ldB(t + D)
                if o: F.add(9, o)
                for k, x in enumerate(d): F.add(10 + 2*k if k < 3 else 15, x)
                post = pp
            u = units.get(t, [])
            for nb in range(4):
                for qb in range(4):
                    g = 4*nb + qb
                    e(mfma16(ACC(p, nb, qb), AF(t, nb), BFf(t, qb), 0 if tl(t) == 0 else ACC(p, nb, qb)))
                    s += F.emit(g)
                    n = 2 if len(u) > 1 else len(u)
                    for _ in range(n):
                        if u: s.append(u.pop(0))
            s += u
            s += post
    f = []; e = f.append
    f += sstamp("F", 0)
    for qb in range(4): e(salu("s_mov_b32", S(S_T + qb), qb*131072))
    def both(t):
        o, d, p = ldW(t); r = o + [nop(0)] + d + p
        o, d, p = ldB(t); return r + o + d + p
    for t in range(2): f += both(t)
    for k in range(16): f += o_unit2(k)
    for t in range(2, D): f += both(t)
    e(wait_vm(("FW", 0)))
    for nb in range(4):
        for rd in range(2): e(rdA(0, nb, rd))
    steps(f, 0, NT_H, {})
    if WPRE:
        for t in range(NT_H + D, NT_H + 7):
            o, d, p = ldW(t); f += o + [nop(0)] + d + p
    sp = []; e = sp.append
    for t in range(NT_H, NT_H + D):
        o, d, p = ldB(t); sp += o; sp += d; sp += p
    steps(sp, NT_H, NT, {})
    sp += sstamp("H", 6)
    SRD_X, SRD_OUT = 8, 12
    e(sload(44, 0, 2)); e(sload(46, 72, 2))
    e(valu("v_lshlrev_b32", V(20), 4, V(1)))
    e(valu("v_add_u32", V(21), S(S_LDSW), V(20)))
    e(valu("v_and_b32", V(23), 15, V(1)))
    e(salu("s_lshl_b32", S(T0_), S(S_RB), 6)); e(salu("s_lshl_b32", S(T1_), S(S_WAVE), 4)); e(salu("s_add_u32", S(T0_), S(T0_), S(T1_)))
    e(valu("v_add_u32", V(23), S(T0_), V(23))); e(valu("v_lshlrev_b32", V(23), 10, V(23)))
    e(valu("v_lshrrev_b32", V(24), 4, V(1))); e(valu("v_lshl_add_u32", V(23), V(24), 3, V(23)))
    e(salu("s_lshl_b32", S(T1_), S(S_CB), 7)); e(valu("v_add_u32", V(23), S(T1_), V(23)))
    e(raw("s_waitcnt lgkmcnt(0)", "wait")); sp[-1].tag = (None, 0)
    sp += mksrd(SRD_X, 44, None, 2097152); sp += mksrd(SRD_OUT, 46, None, 2097152)
    XR_ = 160 - 128 + 2
    XR_ = 12
    for nb in range(4): e(buf_load(V(XR_ + 2*nb, 2), V(23), S(SRD_X, 4), 0, offset=nb*32, n=2))
    for i in list(range(16, 32)): e(ds_write("ds_write_b128", V(21), V(128 + 4*i, 4), offset=i*1024))
    e(nop(3))
    for i in list(range(16)): e(ds_write("ds_write_b128", V(21), V(128 + 4*i, 4), offset=i*1024))
    sp += sstamp("H", 7)
    e(wait_raw(lgkm=0)); e(barrier())
    sp += sstamp("H", 8)
    e(salu("s_lshl_b32", S(T0_), S(S_WAVE), 10))
    e(valu("v_add_u32", V(21), S(T0_), V(20))); e(valu("v_add_u32", V(22), 65536, V(21)))
    for p in (1, 0):
        for nb in range(4):
            for src in range(4):
                off = (src & 1)*32768 + (p*16 + nb*4)*1024
                e(ds_read("ds_read_b128", V(32 + ((p*4 + nb)*4 + src)*4, 4), V(21 if src < 2 else 22), offset=off))
    def red(p, nb):
        b = 32 + (p*4 + nb)*16; o = []
        for r in range(4):
            o.append(valu("v_add_f32", V(b + r), V(b + r), V(b + 4 + r))); o.append(valu("v_add_f32", V(b + 8 + r), V(b + 8 + r), V(b + 12 + r)))
        for r in range(4): o.append(valu("v_add_f32", V(b + r), V(b + r), V(b + 8 + r)))
        return o
    T = 168
    for nb in range(4):
        sp += red(1, nb)
    for nb in range(4):
        fb = 96 + nb*16; t = T + 8*nb
        e(valu("v_cvt_pk_bf16_f32", V(t), V(fb), V(fb + 1))); e(valu("v_cvt_pk_bf16_f32", V(t + 1), V(fb + 2), V(fb + 3)))
        for h in range(2):
            e(valu("v_lshlrev_b32", V(fb + 2*h), 16, V(t + h))); e(valu("v_and_b32", V(fb + 2*h + 1), "0xffff0000", V(t + h)))
        for r in range(4): e(valu("v_mul_f32", V(t + 4 + r), f2h(-1.4426950408889634), V(fb + r)))
    for nb in range(4):
        t = T + 8*nb
        for r in range(4): e(trans("v_exp_f32", V(t + 4 + r), V(t + 4 + r)))
    for nb in range(4): sp += red(0, nb)
    for nb in range(4):
        t = T + 8*nb
        for r in range(4): e(valu("v_add_f32", V(t + 4 + r), 1.0, V(t + 4 + r)))
    for nb in range(4):
        t = T + 8*nb
        for r in range(4): e(trans("v_rcp_f32", V(t + 4 + r), V(t + 4 + r)))
    for nb in range(4):
        sb, fb = 32 + nb*16, 96 + nb*16; t = T + 8*nb
        e(valu("v_cvt_pk_bf16_f32", V(t), V(sb), V(sb + 1))); e(valu("v_cvt_pk_bf16_f32", V(t + 1), V(sb + 2), V(sb + 3)))
        for h in range(2):
            e(valu("v_lshlrev_b32", V(sb + 2*h), 16, V(t + h))); e(valu("v_and_b32", V(sb + 2*h + 1), "0xffff0000", V(t + h)))
        for r in range(4): e(valu("v_mul_f32", V(sb + r), V(sb + r), V(fb + r)))
        for h in range(2):
            e(valu("v_lshlrev_b32", V(fb + 2*h), 16, V(XR_ + 2*nb + h))); e(valu("v_and_b32", V(fb + 2*h + 1), "0xffff0000", V(XR_ + 2*nb + h)))
        for r in range(4): e(valu("v_fma_f32", V(sb + r), V(sb + r), V(t + 4 + r), V(fb + r)))
        e(valu("v_cvt_pk_bf16_f32", V(t + 2), V(sb), V(sb + 1))); e(valu("v_cvt_pk_bf16_f32", V(t + 3), V(sb + 2), V(sb + 3)))
        e(buf_store(V(t + 2, 2), V(23), S(SRD_OUT, 4), 0, offset=nb*32, n=2, flags=OUTFLAGS))
    sp += sstamp("H", 9)
    return pre, f, sp

def final3(name):
    ADDRA, VOFW, VOFB, VB = 2, 6, 10, 12
    ACCS, ACCF = 128, 192
    NT = NT_O
    NT_H = 0
    def part(t): return 0
    def tl(t): return t
    def ACC(p, nb, qb): return V((ACCS if p == 0 else ACCF) + 16*nb + 4*qb, 4)
    def AF(t, nb): return V(64 + 16*(t & 1) + 4*nb, 4)
    def BFf(t, qb): return A(16*(t % NSLOT) + 4*qb, 4)
    SRD_A0, SRD_A1, SRD_W0, SRD_W1 = 8, 12, 16, 20
    SRD_O2 = 24
    S_RB, S_CB, S_LDSW, S_SA, S_SW = 32, 33, 34, 35, 36
    pre = []; e = pre.append
    e(salu("s_lshl_b32", S(T3_), S(S_QB), 4)); e(salu("s_lshl_b32", S(T2_), S(S_WAVE), 2)); e(salu("s_add_u32", S(T3_), S(T3_), S(T2_)))
    if OLAY:
        e(salu("s_lshl_b32", S(T0_), S(S_HEAD), 9)); e(salu("s_add_u32", S(T0_), S(T0_), S(T3_)))
        e(salu("s_lshl_b32", S(T0_), S(T0_), 10)); e(salu("s_add_u32", S(T0_), S(T0_), O_OFF))
        pre += mksrd(SRD_O, P_WS, T0_, 3*131072 + 4096)
    else:
        e(salu("s_lshl_b32", S(T0_), S(T3_), 7)); e(salu("s_lshl_b32", S(T1_), S(S_HEAD), 2)); e(salu("s_add_u32", S(T0_), S(T0_), S(T1_)))
        e(salu("s_lshl_b32", S(T0_), S(T0_), 10)); e(salu("s_add_u32", S(T0_), S(T0_), O_OFF))
        pre += mksrd(SRD_O, P_WS, T0_, 3*131072 + 4096)
    preO = list(pre); del pre[:]
    e(salu("s_and_b32", S(T0_), S(S_HEAD), 7)); e(salu("s_lshr_b32", S(T1_), S(S_HEAD), 3))
    e(salu("s_lshr_b32", S(T2_), S(T0_), 1)); e(salu("s_lshl_b32", S(S_RB), S(S_QB), 2)); e(salu("s_add_u32", S(S_RB), S(S_RB), S(T2_)))
    if CBX: e(salu("s_xor_b32", S(T1_), S(T1_), CBX))
    e(salu("s_and_b32", S(T0_), S(T0_), 1))
    if CBM == 0: e(salu("s_lshl_b32", S(T0_), S(T0_), 2))
    else: e(salu("s_lshl_b32", S(T1_), S(T1_), 1))
    e(salu("s_add_u32", S(S_CB), S(T0_), S(T1_)))
    if OLAY:
        e(salu("s_lshl_b32", S(T0_), S(S_WAVE), 12)); e(salu("s_lshl_b32", S(T1_), S(S_RB), 2)); e(salu("s_add_u32", S(T0_), S(T0_), S(T1_)))
        e(salu("s_lshl_b32", S(T0_), S(T0_), 10)); e(salu("s_add_u32", S(T0_), S(T0_), O_OFF))
        pre += mksrd(SRD_A0, P_WS, T0_, 31*131072 + 4096)
    else:
        e(salu("s_lshl_b32", S(T0_), S(S_RB), 9)); e(salu("s_lshl_b32", S(T1_), S(S_WAVE), 5)); e(salu("s_add_u32", S(T0_), S(T0_), S(T1_)))
        e(salu("s_lshl_b32", S(T0_), S(T0_), 10)); e(salu("s_add_u32", S(T0_), S(T0_), O_OFF))
        pre += mksrd(SRD_A0, P_WS, T0_, 3*131072 + 32*1024)
    e(salu("s_lshl_b32", S(T0_), S(S_WAVE), 20)); e(salu("s_lshl_b32", S(T1_), S(S_CB), 6 if COLSPLIT else 7)); e(salu("s_add_u32", S(T0_), S(T0_), S(T1_)))
    e(salu("s_sub_u32", S(T2_), 4096*1024, S(T0_)))
    pre += mksrd(SRD_W0, P_WO, T0_, S(T2_))
    if PK3:
        e(raw(f"s_cmp_eq_u32 s{S_CB}, 3", "salu", rd=regs("s", S_CB)))
        e(salu("s_mov_b32", S(39), 1024)); e(salu("s_mov_b32", S(42), 32768)); e(salu("s_mov_b32", S(37), 32*32768 - 1))
        e(salu("s_cselect_b32", S(39), 128, S(39))); e(salu("s_cselect_b32", S(42), 4096, S(42))); e(salu("s_cselect_b32", S(37), 32*4096 - 1, S(37)))
        if PK3 == 1:
            e(salu("s_lshl_b32", S(T0_), S(S_WAVE), 17)); e(salu("s_add_u32", S(T0_), S(T0_), S(P_WO))); e(salu("s_addc_u32", S(T1_), S(P_WO + 1), 0))
        else:
            e(salu("s_lshl_b32", S(T0_), S(S_WAVE), 17)); e(salu("s_add_u32", S(T0_), S(T0_), PK_OFF)); e(salu("s_add_u32", S(T0_), S(T0_), S(P_WS))); e(salu("s_addc_u32", S(T1_), S(P_WS + 1), 0))
        e(raw(f"s_cmp_eq_u32 s{S_CB}, 3", "salu", rd=regs("s", S_CB)))
        e(salu("s_cselect_b32", S(SRD_W0), S(T0_), S(SRD_W0))); e(salu("s_cselect_b32", S(SRD_W0 + 1), S(T1_), S(SRD_W0 + 1))); e(salu("s_cselect_b32", S(SRD_W0 + 2), 131072, S(SRD_W0 + 2)))
    e(salu("s_mul_i32", S(T0_), S(S_WAVE), 448*1024)); e(salu("s_add_u32", S(T0_), S(T0_), S(T1_)))
    e(salu("s_sub_u32", S(T2_), 1792*1024, S(T0_)))
    e(salu("s_lshl_b32", S(S_LDSW), S(S_WAVE), 15))
    G, RR, C, T1, T2, X = 20, 21, 22, 23, 24, 25
    e(valu("v_lshrrev_b32", V(G), 4, V(1))); e(valu("v_bfe_u32", V(RR), V(1), 2, 2)); e(valu("v_and_b32", V(C), 3, V(1)))
    e(valu("v_lshl_add_u32", V(T2), V(G), 2, V(RR))); e(valu("v_lshlrev_b32", V(T2), 7, V(T2)))
    e(valu("v_lshl_add_u32", V(T2), V(C), 3, V(T2))); e(valu("v_add_u32", V(T2), S(S_LDSW), V(T2)))
    e(valu("v_and_b32", V(X), 1, V(G))); e(valu("v_lshlrev_b32", V(X), 1, V(X))); e(valu("v_lshrrev_b32", V(T1), 1, V(RR))); e(valu("v_add_u32", V(X), V(X), V(T1)))
    for b in range(4):
        e(valu("v_xor_b32", V(T1), b, V(X))); e(valu("v_lshl_add_u32", V(ADDRA + b), V(T1), 5, V(T2)))
    e(valu("v_lshrrev_b32", V(T1), 3, V(1)))
    if PK3: e(valu("v_mul_lo_u32", V(T2), V(T1), S(39)))
    else: e(valu("v_lshlrev_b32", V(T2), 10, V(T1)))
    e(valu("v_lshlrev_b32", V(X), 1, V(G))); e(valu("v_and_b32", V(T1), 7, V(1))); e(valu("v_xor_b32", V(T1), V(T1), V(X)))
    if COLSPLIT:
        e(valu("v_lshrrev_b32", V(X), 2, V(T1))); e(valu("v_lshl_add_u32", V(T2), V(X), 9, V(T2))); e(valu("v_and_b32", V(T1), 3, V(T1)))
    e(valu("v_lshl_add_u32", V(VOFW), V(T1), 4, V(T2)))
    if PK3:
        e(salu("s_lshl_b32", S(T0_), S(39), 3)); e(salu("s_sub_u32", S(T0_), S(T0_), 1024))
        e(valu("v_add_u32", V(VOFW + 1), S(T0_), V(VOFW))); e(valu("v_add_u32", V(VOFW + 2), S(T0_), V(VOFW + 1))); e(valu("v_add_u32", V(VOFW + 3), S(T0_), V(VOFW + 2)))
    else:
        for i in range(1, 4): e(valu("v_add_u32", V(VOFW + i), i*7168, V(VOFW)))
    e(valu("v_lshlrev_b32", V(VOFB), 4, V(1)))
    for qb in range(4):
        e(valu("v_add_u32", V(VB + qb), qb*131072, V(VOFB))); e(valu("v_add_u32", V(VB + 4 + qb), qb*57344, V(VOFB)))
    if ROTW:
        e(salu("s_mul_i32", S(S_SA), S(S_WAVE), ROTW*1024))
        if ROTK:
            e(salu("s_lshr_b32", S(T0_), S(S_HEAD), 3)); e(salu("s_mul_i32", S(T0_), S(T0_), ROTK*1024)); e(salu("s_add_u32", S(S_SA), S(S_SA), S(T0_)))
        if ROTG:
            e(salu("s_mul_i32", S(T0_), S(S_QB), ROTG*1024)); e(salu("s_add_u32", S(S_SA), S(S_SA), S(T0_)))
        e(salu("s_and_b32", S(S_SA), S(S_SA), 32767))
        if PK3:
            e(salu("s_lshr_b32", S(S_SW), S(S_SA), 10)); e(salu("s_mul_i32", S(S_SW), S(S_SW), S(42)))
        else: e(salu("s_lshl_b32", S(S_SW), S(S_SA), 5))
    else:
        e(salu("s_mov_b32", S(S_SA), 0)); e(salu("s_mov_b32", S(S_SW), 0))
    if OLAY: e(salu("s_lshl_b32", S(38), S(S_SA), 7))
    D = FD
    def ldW(t):
        p = part(t); o = []
        o.append(salu("s_add_u32", "m0", S(S_LDSW), (t % NSLOT)*4096))
        d = [buf_dma(V(VOFW + i), S(SRD_W0 if p == 0 else SRD_W1, 4), S(S_SW), offset=i*1024, tag=("FW", t)) for i in range(4)]
        if PK3: return o, d, [salu("s_add_u32", S(S_SW), S(S_SW), S(42)), salu("s_and_b32", S(S_SW), S(S_SW), S(37))]
        return o, d, [salu("s_add_u32", S(S_SW), S(S_SW), 32768)] + ([salu("s_and_b32", S(S_SW), S(S_SW), 32*32768 - 1)] if ROTW else [])
    def ldB(t):
        p = part(t); o = []
        if OLAY:
            d = [buf_load(BFf(t, qb), V(VOFB), S(SRD_A0, 4), S(38), offset=qb*1024, tag=("FB", t), flags="sc1") for qb in range(4)]
            return o, d, [salu("s_add_u32", S(S_SA), S(S_SA), 1024), salu("s_and_b32", S(S_SA), S(S_SA), 32767), salu("s_lshl_b32", S(38), S(S_SA), 7)]
        d = [buf_load(BFf(t, qb), V(VB + 4*p + qb), S(SRD_A0 if p == 0 else SRD_A1, 4), S(S_SA), tag=("FB", t), flags="sc1") for qb in range(4)]
        return o, d, [salu("s_add_u32", S(S_SA), S(S_SA), 1024)] + ([salu("s_and_b32", S(S_SA), S(S_SA), 32767)] if ROTW else [])
    def rdA(t, nb, rd):
        return ds_read("ds_read_b64_tr_b16", sub(AF(t, nb), 2*rd, 2), V(ADDRA + nb), offset=(t % NSLOT)*4096 + rd*2048)
    def o_unit2(k):
        qb, dp = k >> 2, k & 3
        t = 32 + 8*(k % 2); pk = 48 + 4*(k % 4)
        o = []
        for u in range(2):
            for r in range(4): o.append(valu("v_accvgpr_read_b32", V(t + 4*u + r), sub(OACC(2*dp + u, qb), r)))
        for i in range(8): o.append(valu("v_mul_f32", V(t + i), V(t + i), V(RI + qb)))
        for i in range(4): o.append(valu("v_cvt_pk_bf16_f32", V(pk + i), V(t + 2*i), V(t + 2*i + 1)))
        if OLAY: o.append(buf_store(V(pk, 4), V(VLANE16), S(SRD_O, 4), S(S_T + dp), offset=qb*1024, tag="O", flags="sc1"))
        else: o.append(buf_store(V(pk, 4), V(VLANE16), S(SRD_O, 4), S(S_T + qb), offset=dp*1024, tag="O", flags="sc1"))
        return o
    def wnext(t):
        tw = t + 7
        return tw if tw < NT else None
    def steps(s, t0, t1, units):
        e = s.append
        for t in range(t0, t1):
            p = part(t)
            if t < 16: s += sstamp("G", t)
            if t >= 20 and t % 2 == 0: s += sstamp("H", (t - 20)//2)
            F = Fill(16); post = []
            if t + 1 < NT:
                F.add(0, wait_vm(("FW", t + 1)))
                for nb in range(4):
                    F.add(1 + 4*nb, rdA(t + 1, nb, 0)); F.add(3 + 4*nb, rdA(t + 1, nb, 1))
            tw = wnext(t)
            if tw is not None:
                o, d, pp = ldW(tw)
                F.add(0, o)
                for k, x in enumerate(d): F.add(2 + 2*k, x)
                F.add(9, pp)
            if t + D < NT:
                o, d, pp = ldB(t + D)
                if o: F.add(9, o)
                for k, x in enumerate(d): F.add(10 + 2*k if k < 3 else 15, x)
                post = pp
            u = units.get(t, [])
            for nb in range(4):
                for qb in range(4):
                    g = 4*nb + qb
                    e(mfma16(ACC(p, nb, qb), AF(t, nb), BFf(t, qb), 0 if tl(t) == 0 else ACC(p, nb, qb)))
                    s += F.emit(g)
                    n = 2 if len(u) > 1 else len(u)
                    for _ in range(n):
                        if u: s.append(u.pop(0))
            s += u
            s += post
    f = []; e = f.append
    if FASTPOST:
        ounits = [salu("s_mov_b32", S(S_T + qb), qb*131072) for qb in range(4)]
        for k in range(16): ounits += o_unit2(k)
        for t in range(7):
            o, d, p = ldW(t); f += o + [nop(0)] + d + p
        final3.fast = (preO, ounits)
    else:
        pre[:0] = preO
        for qb in range(4): e(salu("s_mov_b32", S(S_T + qb), qb*131072))
        for t in range(2):
            o, d, p = ldW(t); f += o + [nop(0)] + d + p
        for k in range(16): f += o_unit2(k)
        for t in range(2, 7):
            o, d, p = ldW(t); f += o + [nop(0)] + d + p
    sp = []; e = sp.append
    for t in range(D):
        o, d, p = ldB(t); sp += o; sp += d; sp += p
    if not EARLYF:
        e(wait_vm(("FW", 0)))
        for nb in range(4):
            for rd in range(2): e(rdA(0, nb, rd))
    steps(sp, 0, NT, {})
    if EARLYF:
        SRD_X, SRD_OUT = 20, 28
        GV, TV, XV = 192, 208, 240
        md = []; e = md.append
        e(sload(44, 0, 2)); e(sload(46, 72, 2))
        e(valu("v_lshlrev_b32", V(20), 4, V(1)))
        e(salu("s_lshl_b32", S(T0_), S(S_WAVE), 13)); e(salu("s_add_u32", S(T0_), S(T0_), XR))
        e(valu("v_add_u32", V(21), S(T0_), V(20)))
        e(salu("s_lshl_b32", S(T0_), S(S_WAVE), 10)); e(salu("s_add_u32", S(T0_), S(T0_), XR))
        e(valu("v_add_u32", V(22), S(T0_), V(20)))
        e(valu("v_and_b32", V(23), 15, V(1)))
        e(salu("s_lshl_b32", S(T0_), S(S_RB), 6)); e(salu("s_lshl_b32", S(T1_), S(S_WAVE), 4)); e(salu("s_add_u32", S(T0_), S(T0_), S(T1_)))
        e(valu("v_add_u32", V(23), S(T0_), V(23))); e(valu("v_lshlrev_b32", V(23), 10, V(23)))
        e(valu("v_lshrrev_b32", V(24), 4, V(1))); e(valu("v_lshl_add_u32", V(23), V(24), 3, V(23)))
        e(salu("s_lshl_b32", S(T1_), S(S_CB), 7)); e(valu("v_add_u32", V(23), S(T1_), V(23)))
        e(raw("s_waitcnt lgkmcnt(0)", "wait")); md[-1].tag = (None, 0)
        md += mksrd(SRD_X, 44, None, 2097152); md += mksrd(SRD_OUT, 46, None, 2097152)
        for nb in range(4): e(buf_load(V(XV + 2*nb, 2), V(23), S(SRD_X, 4), 0, offset=nb*32, n=2))
        for rnd in range(2):
            if rnd: e(barrier())
            for j in range(8):
                nb, qb = 2*rnd + (j >> 2), j & 3
                e(ds_write("ds_write_b128", V(21), FACC(nb, qb), offset=j*1024))
            e(wait_raw(lgkm=0)); e(barrier())
            for h in range(2):
                for src in range(4): e(ds_read("ds_read_b128", V(TV + (h*4 + src)*4, 4), V(22), offset=src*8192 + h*4096))
            for h in range(2):
                nb = 2*rnd + h; b = TV + h*16
                for r in range(4):
                    e(valu("v_add_f32", V(b + r), V(b + r), V(b + 4 + r))); e(valu("v_add_f32", V(b + 8 + r), V(b + 8 + r), V(b + 12 + r)))
                for r in range(4): e(valu("v_add_f32", V(GV + 4*nb + r), V(b + r), V(b + 8 + r)))
            e(wait_raw(lgkm=0))
        for nb in range(4):
            g = GV + 4*nb; t = TV + 8*nb
            e(valu("v_cvt_pk_bf16_f32", V(t), V(g), V(g + 1))); e(valu("v_cvt_pk_bf16_f32", V(t + 1), V(g + 2), V(g + 3)))
            for h in range(2):
                e(valu("v_lshlrev_b32", V(g + 2*h), 16, V(t + h))); e(valu("v_and_b32", V(g + 2*h + 1), "0xffff0000", V(t + h)))
            for r in range(4): e(valu("v_mul_f32", V(t + 4 + r), f2h(-1.4426950408889634), V(g + r)))
        for nb in range(4):
            t = TV + 8*nb
            for r in range(4): e(trans("v_exp_f32", V(t + 4 + r), V(t + 4 + r)))
        for nb in range(4):
            t = TV + 8*nb
            for r in range(4): e(valu("v_add_f32", V(t + 4 + r), 1.0, V(t + 4 + r)))
        for nb in range(4):
            t = TV + 8*nb
            for r in range(4): e(trans("v_rcp_f32", V(t + 4 + r), V(t + 4 + r)))
        for nb in range(4):
            g = GV + 4*nb; t = TV + 8*nb
            for r in range(4): e(valu("v_mul_f32", V(g + r), V(g + r), V(t + 4 + r)))
        for nb in range(4):
            for h in range(2):
                e(valu("v_lshlrev_b32", V(TV + 4*nb + 2*h), 16, V(XV + 2*nb + h))); e(valu("v_and_b32", V(TV + 4*nb + 2*h + 1), "0xffff0000", V(XV + 2*nb + h)))
        md.append(wait_vm(("FW", 0)))
        for nb in range(4):
            for rd in range(2): md.append(rdA(0, nb, rd))
        final3.mid = md
        e = sp.append
        sp += sstamp("H", 6)
        e(valu("v_add_u32", V(21), S(S_LDSW), V(20)))
        e(nop(5))
        for i in range(16): e(ds_write("ds_write_b128", V(21), V(128 + 4*i, 4), offset=i*1024))
        e(salu("s_lshl_b32", S(T0_), S(S_WAVE), 10))
        e(valu("v_add_u32", V(22), S(T0_), V(20))); e(valu("v_add_u32", V(24), 65536, V(22)))
        sp += sstamp("H", 7)
        e(wait_raw(lgkm=0)); e(barrier())
        sp += sstamp("H", 8)
        for nb in range(4):
            for src in range(4):
                e(ds_read("ds_read_b128", V(32 + (nb*4 + src)*4, 4), V(22 if src < 2 else 24), offset=(src & 1)*32768 + nb*4*1024))
        T = 96
        for nb in range(4):
            b = 32 + nb*16; t = T + 2*nb
            for r in range(4):
                e(valu("v_add_f32", V(b + r), V(b + r), V(b + 4 + r))); e(valu("v_add_f32", V(b + 8 + r), V(b + 8 + r), V(b + 12 + r)))
            for r in range(4): e(valu("v_add_f32", V(b + r), V(b + r), V(b + 8 + r)))
            e(valu("v_cvt_pk_bf16_f32", V(b + 4), V(b), V(b + 1))); e(valu("v_cvt_pk_bf16_f32", V(b + 5), V(b + 2), V(b + 3)))
            for h in range(2):
                e(valu("v_lshlrev_b32", V(b + 2*h), 16, V(b + 4 + h))); e(valu("v_and_b32", V(b + 2*h + 1), "0xffff0000", V(b + 4 + h)))
            for r in range(4): e(valu("v_fma_f32", V(b + r), V(b + r), V(GV + 4*nb + r), V(TV + 4*nb + r)))
            e(valu("v_cvt_pk_bf16_f32", V(t), V(b), V(b + 1))); e(valu("v_cvt_pk_bf16_f32", V(t + 1), V(b + 2), V(b + 3)))
            e(buf_store(V(t, 2), V(23), S(SRD_OUT, 4), 0, offset=nb*32, n=2, flags=OUTFLAGS))
        sp += sstamp("H", 9)
        return pre, f, sp
    sp += sstamp("H", 6)
    SRD_X, SRD_OUT = 8, 12
    e(sload(44, 0, 2)); e(sload(46, 72, 2))
    e(valu("v_lshlrev_b32", V(20), 4, V(1)))
    e(valu("v_add_u32", V(21), S(S_LDSW), V(20)))
    e(valu("v_and_b32", V(23), 15, V(1)))
    e(salu("s_lshl_b32", S(T0_), S(S_RB), 6)); e(salu("s_lshl_b32", S(T1_), S(S_WAVE), 4)); e(salu("s_add_u32", S(T0_), S(T0_), S(T1_)))
    e(valu("v_add_u32", V(23), S(T0_), V(23))); e(valu("v_lshlrev_b32", V(23), 10, V(23)))
    e(valu("v_lshrrev_b32", V(24), 4, V(1))); e(valu("v_lshl_add_u32", V(23), V(24), 3, V(23)))
    e(salu("s_lshl_b32", S(T1_), S(S_CB), 6 if COLSPLIT else 7)); e(valu("v_add_u32", V(23), S(T1_), V(23)))
    e(raw("s_waitcnt lgkmcnt(0)", "wait")); sp[-1].tag = (None, 0)
    sp += mksrd(SRD_X, 44, None, 2097152); sp += mksrd(SRD_OUT, 46, None, 2097152)
    XR_ = 160 - 128 + 2
    XR_ = 12
    for nb in range(4): e(buf_load(V(XR_ + 2*nb, 2), V(23), S(SRD_X, 4), 0, offset=((nb & 1)*32 + (nb >> 1)*512) if COLSPLIT else nb*32, n=2))
    for i in list(range(16, 32)): e(ds_write("ds_write_b128", V(21), A(128 + 4*(i - 16), 4), offset=i*1024))
    e(nop(3))
    for i in list(range(16)): e(ds_write("ds_write_b128", V(21), V(128 + 4*i, 4), offset=i*1024))
    sp += sstamp("H", 7)
    e(wait_raw(lgkm=0)); e(barrier())
    sp += sstamp("H", 8)
    e(salu("s_lshl_b32", S(T0_), S(S_WAVE), 10))
    e(valu("v_add_u32", V(21), S(T0_), V(20))); e(valu("v_add_u32", V(22), 65536, V(21)))
    for p in (1, 0):
        for nb in range(4):
            for src in range(4):
                off = (src & 1)*32768 + (p*16 + nb*4)*1024
                e(ds_read("ds_read_b128", V(32 + ((p*4 + nb)*4 + src)*4, 4), V(21 if src < 2 else 22), offset=off))
    def red(p, nb):
        b = 32 + (p*4 + nb)*16; o = []
        for r in range(4):
            o.append(valu("v_add_f32", V(b + r), V(b + r), V(b + 4 + r))); o.append(valu("v_add_f32", V(b + 8 + r), V(b + 8 + r), V(b + 12 + r)))
        for r in range(4): o.append(valu("v_add_f32", V(b + r), V(b + r), V(b + 8 + r)))
        return o
    T = 168
    for nb in range(4):
        sp += red(1, nb)
    for nb in range(4):
        fb = 96 + nb*16; t = T + 8*nb
        e(valu("v_cvt_pk_bf16_f32", V(t), V(fb), V(fb + 1))); e(valu("v_cvt_pk_bf16_f32", V(t + 1), V(fb + 2), V(fb + 3)))
        for h in range(2):
            e(valu("v_lshlrev_b32", V(fb + 2*h), 16, V(t + h))); e(valu("v_and_b32", V(fb + 2*h + 1), "0xffff0000", V(t + h)))
        for r in range(4): e(valu("v_mul_f32", V(t + 4 + r), f2h(-1.4426950408889634), V(fb + r)))
    for nb in range(4):
        t = T + 8*nb
        for r in range(4): e(trans("v_exp_f32", V(t + 4 + r), V(t + 4 + r)))
    for nb in range(4): sp += red(0, nb)
    for nb in range(4):
        t = T + 8*nb
        for r in range(4): e(valu("v_add_f32", V(t + 4 + r), 1.0, V(t + 4 + r)))
    for nb in range(4):
        t = T + 8*nb
        for r in range(4): e(trans("v_rcp_f32", V(t + 4 + r), V(t + 4 + r)))
    for nb in range(4):
        sb, fb = 32 + nb*16, 96 + nb*16; t = T + 8*nb
        e(valu("v_cvt_pk_bf16_f32", V(t), V(sb), V(sb + 1))); e(valu("v_cvt_pk_bf16_f32", V(t + 1), V(sb + 2), V(sb + 3)))
        for h in range(2):
            e(valu("v_lshlrev_b32", V(sb + 2*h), 16, V(t + h))); e(valu("v_and_b32", V(sb + 2*h + 1), "0xffff0000", V(t + h)))
        for r in range(4): e(valu("v_mul_f32", V(sb + r), V(sb + r), V(fb + r)))
        for h in range(2):
            e(valu("v_lshlrev_b32", V(fb + 2*h), 16, V(XR_ + 2*nb + h))); e(valu("v_and_b32", V(fb + 2*h + 1), "0xffff0000", V(XR_ + 2*nb + h)))
        for r in range(4): e(valu("v_fma_f32", V(sb + r), V(sb + r), V(t + 4 + r), V(fb + r)))
        e(valu("v_cvt_pk_bf16_f32", V(t + 2), V(sb), V(sb + 1))); e(valu("v_cvt_pk_bf16_f32", V(t + 3), V(sb + 2), V(sb + 3)))
        e(buf_store(V(t + 2, 2), V(23), S(SRD_OUT, 4), 0, offset=((nb & 1)*32 + (nb >> 1)*512) if COLSPLIT else nb*32, n=2, flags=OUTFLAGS))
    sp += sstamp("H", 9)
    return pre, f, sp


S_FBD = 7
FBL = 28672
def post_main_fast(name, preO, ounits):
    s = []; e = s.append
    e(nop(7))
    e(label(f"{name}_fbret"))
    s += preO
    s += o_rinv()[1:-4]
    e(salu("s_mov_b32", S(T0_), f2h(-1.0 if mega.FORCE_FB else mega.FB_THRESH)))
    for qb in range(4):
        e(raw(f"v_cmp_nle_f32_e64 s[{64 + 2*qb if False else (44 + 0)}:{45}], v{LREG + 4*qb}, s{T0_}", "valu")) if False else None
    pairs = [(44, 45), (46, 47), (62, 63)]
    e(raw(f"v_cmp_nle_f32_e64 s[44:45], v{LREG}, s{T0_}", "valu", rd=regs("v", LREG) + regs("s", T0_), wr=regs("s", 44, 2)))
    e(raw(f"v_cmp_nle_f32_e64 s[46:47], v{LREG + 4}, s{T0_}", "valu", rd=regs("v", LREG + 4) + regs("s", T0_), wr=regs("s", 46, 2)))
    e(raw(f"v_cmp_nle_f32_e64 s[62:63], v{LREG + 8}, s{T0_}", "valu", rd=regs("v", LREG + 8) + regs("s", T0_), wr=regs("s", 62, 2)))
    e(raw(f"v_cmp_nle_f32_e64 vcc, v{LREG + 12}, s{T0_}", "valu", rd=regs("v", LREG + 12) + regs("s", T0_), wr=[("s", "vcc")]))
    e(nop(4))
    e(raw("s_or_b64 s[44:45], s[44:45], s[46:47]", "salu")); e(raw("s_or_b64 s[62:63], s[62:63], vcc", "salu")); e(raw("s_or_b64 s[44:45], s[44:45], s[62:63]", "salu"))
    e(raw("s_or_b32 s44, s44, s45", "salu"))
    e(raw(f"s_cmp_eq_u32 s{S_FBD}, 0", "salu")); e(raw("s_cselect_b32 s44, s44, 0", "salu"))
    e(valu("v_mov_b32", V(TMP + 8), S(44)))
    e(salu("s_lshl_b32", S(T0_), S(S_WAVE), 2)); e(salu("s_add_u32", S(T0_), S(T0_), FBL))
    e(valu("v_mov_b32", V(TMP + 9), S(T0_)))
    e(ds_write("ds_write_b32", V(TMP + 9), V(TMP + 8), offset=0))
    s += ounits
    e(wait_raw(lgkm=0)); e(barrier())
    e(valu("v_mov_b32", V(TMP + 9), FBL))
    e(ds_read("ds_read_b128", V(TMP + 4, 4), V(TMP + 9), offset=0))
    e(valu("v_or3_b32", V(TMP + 4), V(TMP + 4), V(TMP + 5), V(TMP + 6)))
    e(valu("v_or_b32", V(TMP + 4), V(TMP + 4), V(TMP + 7)))
    e(nop(0))
    e(valu("v_readfirstlane_b32", S(T0_), V(TMP + 4)))
    e(nop(3))
    e(raw(f"s_cmp_lg_u32 s{T0_}, 0", "salu"))
    e(raw(f"s_cbranch_scc1 {name}_fb", "branch"))
    return [x for x in s if x is not None]

def fb_check2(name):
    c = mega.fb_check(name)
    i = [k for k, x in enumerate(c) if x.kind == "barrier"][0]
    L = f"{name}_hp"
    p = []; e = p.append
    e(raw(f"s_cmp_lg_u32 s{S_WAVE}, 0", "salu", rd=regs("s", S_WAVE)))
    e(raw(f"s_cbranch_scc1 {L}_skip", "branch"))
    e(salu("s_lshl_b32", S(T0_), S(S_QB), 7)); e(salu("s_add_u32", S(T0_), S(T0_), 4096*3))
    e(raw("s_mov_b32 exec_lo, -1", "salu")); e(raw("s_mov_b32 exec_hi, 0", "salu"))
    e(raw(f"v_lshlrev_b32 v{TMP+11}, 2, v1", "other"))
    e(salu("s_mov_b32", S(T2_), SPIN_MAX))
    e(label(f"{L}_poll"))
    e(raw(f"buffer_load_dword v{TMP+12}, v{TMP+11}, s[{SRD_SY}:{SRD_SY+3}], s{T0_} offen sc1", "other"))
    e(raw("s_waitcnt vmcnt(0)", "other"))
    e(raw(f"v_cmp_ne_u32 vcc, s{S_EPOCH}, v{TMP+12}", "other")); e(raw("s_nop 4", "other"))
    e(raw(f"s_cbranch_vccz {L}_done", "branch"))
    e(raw(f"s_sub_u32 s{T2_}, s{T2_}, 1", "other")); e(raw(f"s_cbranch_scc1 {L}_done", "branch"))
    e(raw("s_sleep 1", "other")); e(raw(f"s_branch {L}_poll", "branch"))
    e(label(f"{L}_done"))
    e(raw("s_mov_b64 exec, -1", "salu"))
    e(label(f"{L}_skip"))
    return c[:i + 1] + p + c[i + 1:]

def gen_mega2(name):
    k1.SC1 = True
    k1._cs[0] = 0
    mega.FB_LDS = XR
    s = stamp(0); e = s.append
    if k1.STEPSTAMP: s += [raw('s_memtime s[96:97]', 'smem'), raw('s_waitcnt lgkmcnt(0)', 'other'), raw('s_mov_b32 s80, s96', 'salu')]
    e(raw("s_cmp_ge_u32 s2, 256", "salu", rd=regs("s", 2)))
    e(raw(f"s_cbranch_scc1 {name}_end", "branch"))
    e(sload(60, 0, 2))
    e(raw("s_getpc_b64 s[100:101]", "salu", wr=regs("s", 100, 2))); e(label(f"{name}_pc"))
    s += setup_mega2()
    s += cstamp('S')
    s += setup_addr2()
    s += flatW2(0)
    if WTOUCH == 1: s += touches2()
    if WTOUCH in (3, 4): s += touches2(1)
    s += flatW2(1)
    s += cstamp('S')
    s += epoch_fix()
    s += cstamp('S')
    s += ln_compute()
    s += cstamp('S')
    midl = flatW2(2) + flatW2(3) + (code_touch(name, PFD + 3) if CODEPF else []) + setupK() + setup_addr3() + touch_prep()
    if not SIGEARLY: s += midl
    s += cstamp('S')
    e(wait_vm("XN"))
    s += stamp(1)
    s += cstamp('S')
    s += poll_barrier(name, 0, mid=midl if SIGEARLY else None)
    s += stamp(2)
    s += cstamp('S')
    s += loadB(0) + advB2()
    s += fused_phase()
    s += stamp(3)
    s += cstamp('M')
    if PK3 == 2: s += pk_load()
    if KVLATE:
        s += flatKV(dmaV(2)); s += flatKV(dmaK(2)); s += flatKV(dmaK(3))
    if CONV2:
        s += conv_phase()
        s += window_m1()
    else:
        s += qconvert()
        s += h_epilogue2()
        for i in range(16): e(valu("v_mov_b32", V(LREG + i), 0))
        for i in range(4): e(valu("v_mov_b32", V(ONES + i), "0x3f803f80"))
        s += first_max()
        s += window(-1, 0, last_qk=True, do_pv=False, do_kread=True, exp_tail=False)
    s += stamp(4)
    s += cstamp('M')
    e(salu("s_mov_b32", S(S_LOOP), 0))
    if PK3 == 2:
        s += pk_store()
        s += pk_flag_setup(TMP + 6, TMP + 7)
        e(salu("s_mov_b32", S(75), 14336))
    if FTAIL: s += f_setup()
    s += flag_addr_setup(2, TMP + 10, TMP + 11)
    e(salu("s_lshl_b32", S(7), S(2), 2)); e(salu("s_add_u32", S(7), S(7), S(S_WAVE))); e(salu("s_lshl_b32", S(7), S(7), 12))
    if MALLPF == 2:
        e(valu("v_lshlrev_b32", V(PFD + 3), 6, V(1)))
    else:
        e(valu("v_and_b32", V(PFD + 3), 31, V(1))); e(valu("v_lshlrev_b32", V(PFD + 3), 7, V(PFD + 3)))
    s += [salu("s_mov_b32", S(60), S(P_WD)), salu("s_mov_b32", S(61), S(P_WD + 1)), salu("s_mov_b32", S(62), 1792*1024 if WD_IT == 0 else 0), salu("s_mov_b32", S(63), "0x00020000")]
    if CODEPF:
        s += [salu("s_mov_b32", S(76), S(100)), salu("s_mov_b32", S(77), S(101)), raw(f"s_mov_b32 s78, {name}_codeend-{name}_pc", "salu", wr=regs("s", 78)), salu("s_mov_b32", S(79), "0x00020000")]
        e(salu("s_lshr_b32", S(90), S(2), 3)); e(salu("s_and_b32", S(90), S(90), 15)); e(salu("s_lshl_b32", S(90), S(90), 12))
        e(valu("v_lshlrev_b32", V(PFD + 2), 6, V(1)))
    def pf_next():
        b = [[raw(f"s_cmp_eq_u32 s{S_LOOP}, {WO_IT - 1}", "salu", rd=regs("s", S_LOOP)), salu("s_cselect_b32", S(60), S(P_WO), S(P_WD)), salu("s_cselect_b32", S(61), S(P_WO + 1), S(P_WD + 1)),
              salu("s_cselect_b32", S(62), 4096*1024, 0)]]
        if WD_IT > 0:
            b.append([raw(f"s_cmp_eq_u32 s{S_LOOP}, {WD_IT - 1}", "salu", rd=regs("s", S_LOOP)), salu("s_cselect_b32", S(62), 1792*1024, S(62))])
        return b
    if L2W3:
        e(salu("s_mov_b32", S(28), S(P_WO))); e(salu("s_mov_b32", S(29), S(P_WO + 1))); e(salu("s_mov_b32", S(30), 0)); e(salu("s_mov_b32", S(31), "0x00020000"))
        e(salu("s_lshl_b32", S(91), S(S_WAVE), 20)); e(salu("s_lshl_b32", S(T0_ + 14), S(S_QB), 17)); e(salu("s_add_u32", S(91), S(91), S(T0_ + 14))); e(salu("s_add_u32", S(91), S(91), 384))
        e(valu("v_lshlrev_b32", V(168), 10, V(1))); e(valu("v_add_u32", V(169), 65536, V(168)))
        e(salu("s_and_b32", S(74), S(S_HEAD), 0x19)); e(raw("s_cmp_eq_u32 s74, 0x18", "salu", rd=regs("s", 74))); e(salu("s_cselect_b32", S(75), 4096*1024, 0))
    e(LoopBegin(f"{name}_loop"))
    for T in range(4):
        d0, d1 = tile_dma(T)
        x0, x1 = [], []
        if L2W3 and T == 0:
            x0.append((15, [raw(f"s_cmp_eq_u32 s{S_LOOP}, {L2W3_IT}", "salu", rd=regs("s", S_LOOP)), salu("s_cselect_b32", S(30), S(75), 0)]))
        if L2W3 and T == 1:
            x0.append((39, buf_load(V(170), V(168), S(28, 4), S(91), n=1, tag="PF")))
            x0.append((47, buf_load(V(171), V(169), S(28, 4), S(91), n=1, tag="PF")))
        if T == 0 and MALLPF: x1.append((39, buf_load(V(PFD), V(PFD + 3), S(60, 4), S(7), n=1, tag="PF")))
        if T == 1:
            for k, b in enumerate(pf_next()): x1.append((15 + 2*k, b))
        if T == 2:
            if CODEPF: x1.append((39, buf_load(V(PFD + 1), V(PFD + 2), S(76, 4), S(90), n=1, tag="PF")))
            x0.append((39, buf_store(V(TMP + 11), V(TMP + 10), S(SRD_SY, 4), 0, n=1, tag="HF", flags="sc1")))
            x0.append((41, valu("v_or_b32", V(TMP + 10), "0x40000000", V(TMP + 10))))
            if PK3 == 2:
                x0.append((47, buf_store(V(TMP + 7), V(TMP + 6), S(SRD_SY, 4), 0, n=1, tag="HF", flags="sc1")))
                x0.append((55, valu("v_or_b32", V(TMP + 6), "0x40000000", V(TMP + 6))))
        if T == 3 and FTAIL: x0.append((39, h_flag_load()))
        if T == 3 and PK3 == 2: x0.append((47, pk_flag_load()))
        w0 = window(2*T, T, dma=d0, bar=True, extra=x0)
        if T == 2:
            for x in w0:
                if x.kind == "waitvm": x.need = set(x.need) | {"H", "CP"}
        s += w0
        s += window(2*T + 1, T, dma=d1, extra=x1)
    e(salu("s_add_u32", S(S_LOOP), S(S_LOOP), 1))
    e(raw(f"s_cmp_lt_u32 s{S_LOOP}, 7", "salu", rd=regs("s", S_LOOP)))
    e(raw(f"s_cbranch_scc1 {name}_loop", "branch"))
    e(LoopEnd(f"{name}_loop"))
    s += cstamp('M')
    if FTAIL:
        s += tail_F(name)
    else:
        for T in range(28, 32):
            d0, d1 = tile_dma(T, doK=False, doV=(T + 3 <= 31))
            j = 2*T
            s += window(j, T, dma=d0, bar=(T < 31), do_kread=(j + 2 <= 63))
            j = 2*T + 1
            s += window(j, T, dma=d1, last_qk=(j + 1 <= 63), do_kread=(j + 2 <= 63))
    s += stamp(5)
    s += cstamp('M')
    pre, f, sp = (final3 if FTAIL else final2)(name)
    if FASTPOST:
        s += post_main_fast(name, *final3.fast)
    else:
        s += (mega.fb_check(name) if FTAIL else fb_check2(name))
        s += o_rinv()[:-4]
    s += pre
    s += stamp(6)
    s += cstamp('M')
    s += f
    s += cstamp('M')
    e(wait_vm("O"))
    s += stamp(7)
    s += cstamp('M')
    s += poll_barrier(name, 1, mid=final3.mid if (FTAIL and EARLYF) else None)
    s += stamp(8)
    s += cstamp('M')
    s += sp
    s += cstamp('M')
    if k1.STAMPS: e(raw("s_waitcnt vmcnt(0)", "other"))
    s += stamp(9)
    s += stamp_dump(16 if k1.STEPSTAMP else 10)
    main, res = finish(s, name)
    return main + [label(f"{name}_codeend")] + fallback(name), res
```
